```python
import torch

def _softmax(x, axis=-1):
    return torch.softmax(x, dim=axis)
def _gelu(x):
    return torch.nn.functional.gelu(x, approximate="tanh")
def _silu(x):
    return torch.nn.functional.silu(x)
def _sigmoid(x):
    return torch.sigmoid(x)
def _layernorm(x, axis=-1, eps=1e-5):
    m = x.mean(dim=axis, keepdim=True)
    v = x.var(dim=axis, keepdim=True, unbiased=False)
    return (x - m) / torch.sqrt(v + eps)
def _scatter_add(tgt, idx, src, axis=0):
    return tgt.clone().index_add_(axis, idx, src)
def _segment_sum(src, seg, n):
    out = torch.zeros((n,) + src.shape[1:], dtype=src.dtype)
    return out.index_add_(0, seg, src)
def _pad(x, pw):
    flat = tuple(v for pair in reversed(pw) for v in pair)
    return torch.nn.functional.pad(x, flat)

kernel_name = 'parallel_sum__spectral_fnet__dense_activation_relu__prompt'

def setup_inputs():

    _w = (lambda a: (lambda t: t.to(torch.bfloat16) if t.is_floating_point() else t)(torch.as_tensor(a)))
    def _A_setup():
        B, S, D = 1, 2048, 448
        ns = torch.arange(S)[:, None] * torch.arange(S)[None, :]
        nd = torch.arange(D)[:, None] * torch.arange(D)[None, :]
        Ws_re = torch.cos(-2.0 * torch.pi * ns / S).to(float)
        Ws_im = torch.sin(-2.0 * torch.pi * ns / S).to(float)
        Wd_re = torch.cos(-2.0 * torch.pi * nd / D).to(float)
        Wd_im = torch.sin(-2.0 * torch.pi * nd / D).to(float)
        return {
            "x": _w((lambda *s: torch.randn(*s, dtype=torch.bfloat16) * 0.05)(B, S, D)),
            "dft_seq_re": _w(Ws_re),
            "dft_seq_im": _w(Ws_im),
            "dft_hid_re": _w(Wd_re),
            "dft_hid_im": _w(Wd_im),
        }
    _A_in = _A_setup()

    def _B_setup():
        B, S, D, Dff = 1, 2048, 448, 1792
        return {
            "x": _w((lambda *s: torch.randn(*s, dtype=torch.bfloat16) * 0.05)(B, S, D)),
            "w1": _w((lambda *s: torch.randn(*s, dtype=torch.bfloat16) * 0.4)(D, Dff)),
            "w2": _w((lambda *s: torch.randn(*s, dtype=torch.bfloat16) * 0.4)(Dff, D)),
        }
    _B_in = _B_setup()

    return {
        "A_x": _A_in["x"],
        "A_dft_seq_re": _A_in["dft_seq_re"],
        "A_dft_seq_im": _A_in["dft_seq_im"],
        "A_dft_hid_re": _A_in["dft_hid_re"],
        "A_dft_hid_im": _A_in["dft_hid_im"],
        "B_x": _B_in["x"],
        "B_w1": _B_in["w1"],
        "B_w2": _B_in["w2"],
    }

def reference(A_x, A_dft_seq_re, A_dft_seq_im, A_dft_hid_re, A_dft_hid_im, B_x, B_w1, B_w2):
    def _A_ref(x, dft_seq_re, dft_seq_im, dft_hid_re, dft_hid_im):
        a = torch.einsum("bsd,ed->bse", x, dft_hid_re)
        b = torch.einsum("bsd,ed->bse", x, dft_hid_im)
        y = torch.einsum("ts,bse->bte", dft_seq_re, a) - torch.einsum("ts,bse->bte", dft_seq_im, b)
        return y

    def _B_ref(x, w1, w2):
        h = torch.einsum("bsd,df->bsf", x, w1)
        zero = torch.zeros_like(h)
        h = torch.maximum(h, zero)
        return torch.einsum("bsf,fd->bsd", h, w2)

    x = A_x
    xn = _layernorm(x, axis=-1)
    return x + _A_ref(xn, A_dft_seq_re, A_dft_seq_im, A_dft_hid_re, A_dft_hid_im) + _B_ref(xn, B_w1, B_w2)
```

```python
import sys
NAME = 'parallel_sum__spectral_fnet__dense_activation_relu__prompt'
OPT = dict(a.split('=') for a in sys.argv[1:] if '=' in a)
STAMP = int(OPT.get('stamp', 0))
K1ST = OPT.get('k1st', '')
LDFL = OPT.get('ldfl', '')

HB_SIG = 112 * 1024
HB_SIZE = 64 * HB_SIG
VB_OFF = 0x800000
VB_SIZE = 32 * 16 * 256 * 16
ST_OFF = 0x1000000

class Asm:
    def __init__(self):
        self.L = []
        self.vm = []
    def __call__(self, s):
        for line in s.split('\n'):
            self.L.append('    ' + line.strip() if not line.strip().endswith(':') else line.strip())
    def vmem(self, s, tag):
        self(s); self.vm.append(tag)
    def wait_vm(self, tag):
        if tag not in self.vm: return
        idx = max(i for i, t in enumerate(self.vm) if t == tag)
        n = len(self.vm) - 1 - idx
        self(f's_waitcnt vmcnt({min(n, 63)})')
        self.vm = self.vm[idx + 1:]
    def text(self):
        return '\n'.join(self.L)

def srd(a, d, lo, hi, size):
    a(f's_mov_b32 s{d}, s{lo}\ns_mov_b32 s{d+1}, s{hi}\ns_mov_b32 s{d+2}, {size}\ns_mov_b32 s{d+3}, 0x20000')

def stamp(a, idx, base_s, tmp=90):
    if STAMP:
        a(f's_memrealtime s[{base_s+2*idx}:{base_s+2*idx+1}]')

def stamp_store(a, n, base_s, ws_lo, ws_hi, kidx, wave_s, vt):
    if not STAMP: return
    a('s_waitcnt lgkmcnt(0)')
    a(f's_add_u32 s{ws_lo}, s{ws_lo}, {ST_OFF + kidx*65536}\ns_addc_u32 s{ws_hi}, s{ws_hi}, 0')
    a(f's_mov_b32 s60, s{ws_lo}\ns_mov_b32 s61, s{ws_hi}\ns_mov_b32 s62, 65536\ns_mov_b32 s63, 0x20000')
    a(f's_lshl_b32 s58, s2, 2\ns_add_u32 s58, s58, s{wave_s}\ns_lshl_b32 s58, s58, 6')
    a(f'v_mov_b32 v{vt+1}, s58')
    for i in range(n):
        a(f'v_mov_b32 v{vt}, s{base_s+2*i}')
        a(f'buffer_store_dword v{vt}, v{vt+1}, s[60:63], 0 offen offset:{4*i}')
        a('s_nop 1')

def kd(name, vgpr, sgpr=102):
    acc = (vgpr + 3) // 4 * 4
    return f'''.section .rodata,"a"
.p2align 6
.amdhsa_kernel {name}
  .amdhsa_next_free_vgpr {vgpr}
  .amdhsa_next_free_sgpr {sgpr}
  .amdhsa_accum_offset {acc}
  .amdhsa_group_segment_fixed_size 0
  .amdhsa_kernarg_size 88
  .amdhsa_user_sgpr_count 2
  .amdhsa_user_sgpr_kernarg_segment_ptr 1
  .amdhsa_system_sgpr_workgroup_id_x 1
.end_amdhsa_kernel
'''

def vr(b, n=4): return f'v[{b}:{b+n-1}]'

K1_SLOT = 36864
K1_WC = 4 * K1_SLOT
K1_STAT = K1_WC + 4096
K1_LDS = K1_STAT + 3 * 512

def gen_k1():
    a = Asm()
    SX, SW, SD, SC, SH, SV = 20, 24, 28, 32, 36, 40
    sW, sI, sJ, sRT, sCG = 44, 45, 46, 47, 48
    sLx, sLw, sLd, sT, sOnes, sSig, sT2 = 49, 50, 51, 52, 53, 54, 55
    STB = 70
    vXo = 2
    vWo = 6
    vDo = 10
    vCo = 11
    vRb = 12
    vRp = 20
    vRd = 28
    vTa = 36
    vTb = 38
    vS = 40
    vL = 48
    vU = 49
    vHH = 50
    vt = 52
    FR = 64
    ACC = 104
    EP = 184
    a('s_cmp_ge_u32 s2, 256\ns_cbranch_scc1 Lk1_end')
    a('s_load_dwordx8 s[4:11], s[0:1], 0')
    a('s_load_dwordx2 s[12:13], s[0:1], 32')
    a('s_load_dwordx2 s[14:15], s[0:1], 48')
    a('s_load_dwordx2 s[16:17], s[0:1], 80')
    stamp(a, 0, STB)
    a(f's_and_b32 s{sRT}, s2, 3\ns_lshl_b32 s{sRT}, s{sRT}, 2\ns_bfe_u32 s{sT}, s2, 0x20003\ns_add_u32 s{sRT}, s{sRT}, s{sT}')
    a(f's_bfe_u32 s{sCG}, s2, 0x10002\ns_lshl_b32 s{sCG}, s{sCG}, 3\ns_lshr_b32 s{sT}, s2, 5\ns_add_u32 s{sCG}, s{sCG}, s{sT}')
    a(f's_cmp_ge_u32 s{sCG}, 15\ns_cbranch_scc1 Lk1_end')
    a(f'v_lshrrev_b32 v{vt}, 6, v0\nv_and_b32 v{vL}, 63, v0')
    a(f'v_readfirstlane_b32 s{sW}, v{vt}')
    a(f'v_lshrrev_b32 v{vt+1}, 3, v{vL}')
    a(f'v_and_b32 v{vt+2}, 7, v{vL}')
    a(f'v_lshrrev_b32 v{vt+3}, 1, v{vt+1}')
    a(f's_lshr_b32 s{sI}, s{sW}, 1\ns_and_b32 s{sJ}, s{sW}, 1')
    a(f's_lshl_b32 s{sSig}, s{sRT}, 1\ns_add_u32 s{sSig}, s{sSig}, s{sJ}\ns_lshl_b32 s{sT}, s{sI}, 5\ns_add_u32 s{sSig}, s{sSig}, s{sT}')
    a(f'v_xor_b32 v{vt+4}, v{vt+2}, v{vt+3}\nv_lshlrev_b32 v{vt+4}, 4, v{vt+4}')
    a(f'v_mul_u32_u24 v{vt+5}, {64*896}, v{vt+1}')
    a(f's_mul_i32 s{sT}, s{sSig}, 896')
    a(f'v_add3_u32 v{vXo}, v{vt+5}, v{vt+4}, s{sT}')
    a(f'v_xor_b32 v{vXo+1}, 64, v{vXo}')
    a(f'v_add_u32 v{vXo+2}, {2*(458752-1024)}, v{vXo}')
    a(f'v_add_u32 v{vXo+3}, {3*(458752-1024)}, v{vXo+1}')
    a(f'v_add_u32 v{vXo+1}, {1*(458752-1024)}, v{vXo+1}')
    a(f'v_and_b32 v{vt+6}, 1, v{vt+3}\nv_lshlrev_b32 v{vt+6}, 2, v{vt+6}\nv_xor_b32 v{vt+6}, v{vt+6}, v{vt+2}\nv_lshlrev_b32 v{vt+6}, 4, v{vt+6}')
    a(f'v_mul_u32_u24 v{vt+7}, 3584, v{vt+1}')
    a(f's_mul_i32 s{sT}, s{sI}, {32*3584}\ns_lshl_b32 s{sT2}, s{sCG}, 8\ns_add_u32 s{sT}, s{sT}, s{sT2}\ns_lshl_b32 s{sT2}, s{sJ}, 7\ns_add_u32 s{sT}, s{sT}, s{sT2}')
    a(f'v_add3_u32 v{vWo}, v{vt+7}, v{vt+6}, s{sT}')
    for i in range(1, 4):
        a(f'v_add_u32 v{vWo+i}, {i*(8*3584-1024)}, v{vWo}')
    a(f'v_mul_u32_u24 v{vt+5}, 896, v{vt+1}')
    a(f's_lshl_b32 s{sT}, s{sJ}, 6')
    a(f'v_xor_b32 v{vt+6}, s{sT}, v{vt+4}')
    a(f's_lshl_b32 s{sT}, s{sCG}, 1\ns_add_u32 s{sT}, s{sT}, s{sJ}\ns_mul_i32 s{sT}, s{sT}, {8*896}')
    a(f'v_add3_u32 v{vDo}, v{vt+5}, v{vt+6}, s{sT}')
    a(f'v_lshrrev_b32 v{vt+5}, 2, v{vL}\nv_lshlrev_b32 v{vt+5}, 18, v{vt+5}\nv_and_b32 v{vt+6}, 3, v{vL}\nv_lshlrev_b32 v{vt+6}, 4, v{vt+6}')
    a(f's_lshl_b32 s{sT}, s{sJ}, 22')
    a(f'v_add3_u32 v{vCo}, v{vt+5}, v{vt+6}, s{sT}')
    a(f's_lshl_b32 s{sLx}, s{sW}, 12')
    a(f's_lshl_b32 s{sLw}, s{sJ}, 13\ns_lshl_b32 s{sT}, s{sI}, 12\ns_add_u32 s{sLw}, s{sLw}, s{sT}\ns_add_u32 s{sLw}, s{sLw}, 16384')
    a(f's_lshl_b32 s{sLd}, s{sW}, 10\ns_add_u32 s{sLd}, s{sLd}, 32768')
    a('s_waitcnt lgkmcnt(0)')
    srd(a, SX, 4, 5, 2048*896)
    srd(a, SW, 14, 15, 448*3584)
    a(f's_cmp_ge_u32 s{sW}, 2')
    a(f's_cselect_b32 s{SD}, s12, s10\ns_cselect_b32 s{SD+1}, s13, s11\ns_mov_b32 s{SD+2}, {448*896}\ns_mov_b32 s{SD+3}, 0x20000')
    a(f's_cselect_b32 s{SC}, s8, s6\ns_cselect_b32 s{SC+1}, s9, s7\ns_mov_b32 s{SC+2}, {2048*4096}\ns_mov_b32 s{SC+3}, 0x20000')
    a(f's_cmp_eq_u32 s{sCG}, 14\ns_cselect_b32 s{SW+2}, 0, s{SW+2}')

    def dma_group(g):
        slot = (g % 4) * K1_SLOT
        ins = []
        ins.append((f's_add_u32 m0, s{sLx}, {slot}', None))
        ins.append((f's_movk_i32 s{sT}, {g*128}', None))
        for q in range(4):
            ins.append((f'buffer_load_dwordx4 v{vXo+q}, s[{SX}:{SX+3}], s{sT} offen offset:{q*1024} lds', f'G{g}'))
        ins.append((f's_add_u32 m0, s{sLd}, {slot}', None))
        ins.append((f's_mov_b32 s{sT2}, {g*64*3584}', None))
        ins.append((f'buffer_load_dwordx4 v{vDo}, s[{SD}:{SD+3}], s{sT} offen lds', f'G{g}'))
        ins.append((f's_add_u32 m0, s{sLw}, {slot}', None))
        ins.append(('s_nop 0', None))
        for i in range(4):
            ins.append((f'buffer_load_dwordx4 v{vWo+i}, s[{SW}:{SW+3}], s{sT2} offen offset:{i*1024} lds', f'G{g}'))
        return ins
    def emit(ins):
        s, tag = ins
        if tag: a.vmem(s, tag)
        else: a(s)
    for g in range(4):
        for ins in dma_group(g): emit(ins)
    a(f's_lshl_b32 s{sT}, s{sW}, 10\ns_add_u32 m0, s{sT}, {K1_WC}\ns_nop 0')
    a.vmem(f'buffer_load_dwordx4 v{vCo}, s[{SC}:{SC+3}], 0 offen lds', 'WC')
    stamp(a, 1, STB)
    srd(a, SH, 16, 17, HB_SIZE)
    a(f's_cmp_eq_u32 s{sCG}, 14\ns_cselect_b32 s{SH+2}, 0, s{SH+2}')
    a(f's_add_u32 s{SV}, s16, {VB_OFF}\ns_addc_u32 s{SV+1}, s17, 0\ns_mov_b32 s{SV+2}, {VB_SIZE}\ns_mov_b32 s{SV+3}, 0x20000')
    a(f's_mov_b32 s{sOnes}, 0x3f803f80')
    a(f'v_and_b32 v{vU}, 31, v{vL}\nv_lshrrev_b32 v{vHH}, 5, v{vL}')
    a(f'v_bfe_u32 v{vt}, v{vU}, 1, 3\nv_xor_b32 v{vt}, v{vt}, v{vHH}')
    a(f'v_lshlrev_b32 v{vt+1}, 7, v{vU}')
    a(f's_xor_b32 s{sT}, s{sW}, 1\ns_lshl_b32 s{sT}, s{sT}, 12')
    for jj in range(4):
        a(f'v_xor_b32 v{vt+2}, {2*jj}, v{vt}\nv_lshl_add_u32 v{vt+2}, v{vt+2}, 4, v{vt+1}')
        a(f'v_add_u32 v{vRb+jj}, s{sLx}, v{vt+2}\nv_add_u32 v{vRp+jj}, s{sT}, v{vt+2}\nv_add_u32 v{vRd+jj}, 0x8000, v{vt+2}')
        for r in (vRb, vRp, vRd):
            a(f'v_add_u32 v{r+4+jj}, {2*K1_SLOT}, v{r+jj}')
    a(f'v_bfe_u32 v{vt}, v{vL}, 2, 2')
    a(f'v_lshl_add_u32 v{vt+1}, v{vHH}, 3, v{vt}\nv_lshlrev_b32 v{vt+1}, 7, v{vt+1}')
    a(f'v_lshrrev_b32 v{vt}, 1, v{vt}\nv_xor_b32 v{vt}, s{sI}, v{vt}\nv_lshl_add_u32 v{vt+1}, v{vt}, 6, v{vt+1}')
    a(f'v_bfe_u32 v{vt}, v{vL}, 4, 1\nv_lshl_add_u32 v{vt+1}, v{vt}, 5, v{vt+1}')
    a(f'v_and_b32 v{vt}, 3, v{vL}\nv_lshl_add_u32 v{vt+1}, v{vt}, 3, v{vt+1}')
    a(f's_lshl_b32 s{sT}, s{sJ}, 13\ns_add_u32 s{sT}, s{sT}, 16384')
    a(f'v_add_u32 v{vTa}, s{sT}, v{vt+1}\nv_xor_b32 v{vTb}, 64, v{vTa}')
    a(f'v_add_u32 v{vTa+1}, {2*K1_SLOT}, v{vTa}\nv_add_u32 v{vTb+1}, {2*K1_SLOT}, v{vTb}')
    for i in range(8): a(f'v_mov_b32 v{vS+i}, 0')

    def reads(n):
        g, jj = divmod(n, 4)
        half, so = (g % 4) // 2, (g % 2) * K1_SLOT
        f = FR + 20 * (n & 1)
        return [
            f'ds_read_b64_tr_b16 {vr(f+8,2)}, v{vTa+half} offset:{so + jj*2048}',
            f'ds_read_b64_tr_b16 {vr(f+10,2)}, v{vTa+half} offset:{so + jj*2048 + 512}',
            f'ds_read_b128 {vr(f)}, v{vRb+4*half+jj} offset:{so}',
            f'ds_read_b128 {vr(f+4)}, v{vRp+4*half+jj} offset:{so}',
            f'ds_read_b64_tr_b16 {vr(f+12,2)}, v{vTb+half} offset:{so + jj*2048}',
            f'ds_read_b64_tr_b16 {vr(f+14,2)}, v{vTb+half} offset:{so + jj*2048 + 512}',
            f'ds_read_b128 {vr(f+16)}, v{vRd+4*half+jj} offset:{so}',
        ]
    def mfmas(n):
        f = FR + 20 * (n & 1)
        def m(acc, A, B):
            c = vr(acc, 16) if n else '0'
            return f'v_mfma_f32_32x32x16_bf16 {vr(acc,16)}, {vr(A)}, {vr(B)}, {c}'
        return [m(ACC, f+8, f), m(ACC+16, f+8, f+4), m(ACC+32, f+12, f), m(ACC+48, f+12, f+4), m(ACC+64, f, f+16)]
    def dots(n):
        f = FR + 20 * (n & 1)
        d = []
        for i in range(4):
            d.append(f'v_dot2c_f32_bf16 v{vS+(i&1)}, s{sOnes}, v{f+i}')
            d.append(f'v_dot2c_f32_bf16 v{vS+2+(i&1)}, v{f+i}, v{f+i}')
            d.append(f'v_dot2c_f32_bf16 v{vS+4+(i&1)}, s{sOnes}, v{f+8+i}')
            d.append(f'v_dot2c_f32_bf16 v{vS+6+(i&1)}, s{sOnes}, v{f+16+i}')
        return d

    a.wait_vm('G0')
    a('s_barrier')
    stamp(a, 2, STB)
    for r in reads(0): a(r)
    dmaq = []
    NS = 28
    for n in range(NS):
        g, jj = divmod(n, 4)
        a('s_waitcnt lgkmcnt(0)')
        if jj == 3 and g < 6:
            a.wait_vm(f'G{g+1}')
            a('s_barrier')
            if g + 4 < 7: dmaq += dma_group(g + 4)
        rd = reads(n + 1) if n + 1 < NS else []
        dt = dots(n)
        ms = mfmas(n)
        plan = [(3, 2, 0), (3, 2, 0), (1, 4, 1), (0, 4, 2), (0, 4, 2)]
        for mi, m in enumerate(ms):
            a(m)
            nr, nd, nq = plan[mi]
            for _ in range(nr):
                if rd: a(rd.pop(0))
            for _ in range(nq):
                if dmaq:
                    emit(dmaq.pop(0))
            for _ in range(nd):
                if dt: a(dt.pop(0))
        assert not rd and not dt
    assert not dmaq
    stamp(a, 3, STB)
    t = EP
    a(f's_nop 2')
    a(f'v_add_f32 v{vS}, v{vS}, v{vS+1}\nv_add_f32 v{vS+2}, v{vS+2}, v{vS+3}\nv_add_f32 v{vS+4}, v{vS+4}, v{vS+5}\nv_add_f32 v{vS+6}, v{vS+6}, v{vS+7}')
    for i in (0, 2, 4, 6): a(f'v_mov_b32 v{vS+i+1}, v{vS+i}')
    a('s_nop 1')
    for i in (0, 2, 4, 6): a(f'v_permlane32_swap_b32 v{vS+i}, v{vS+i+1}')
    a('s_nop 1')
    for i in (0, 2, 4, 6): a(f'v_add_f32 v{vS+i}, v{vS+i}, v{vS+i+1}')
    a(f'v_mul_f32 v{t}, {1/448!r}, v{vS}'.replace(repr(1/448), '0x3b124925'))
    a(f'v_mul_f32 v{t+1}, 0x3b124925, v{vS+2}')
    a(f'v_fma_f32 v{t+1}, -v{t}, v{t}, v{t+1}')
    a(f'v_max_f32 v{t+1}, 0, v{t+1}')
    a(f'v_cvt_pk_bf16_f32 v{t+2}, v{t}, v{t+1}')
    a(f'v_lshlrev_b32 v{t}, 16, v{t+2}')
    a(f'v_and_b32 v{t+1}, 0xffff0000, v{t+2}')
    a(f'v_add_f32 v{t+1}, 0x3727c5ac, v{t+1}')
    a(f'v_cvt_pk_bf16_f32 v{t+1}, v{t+1}, v{t+1}\nv_and_b32 v{t+1}, 0xffff0000, v{t+1}')
    a(f'v_sqrt_f32 v{t+1}, v{t+1}\ns_nop 0')
    a(f'v_cvt_pk_bf16_f32 v{t+1}, v{t+1}, v{t+1}\nv_and_b32 v{t+1}, 0xffff0000, v{t+1}')
    a(f'v_rcp_f32 v{t+1}, v{t+1}')
    a(f'v_lshlrev_b32 v{t+3}, 2, v{vU}')
    a(f's_lshl_b32 s{sT}, s{sW}, 7\ns_add_u32 s{sT}, s{sT}, {K1_STAT}')
    a(f'v_add_u32 v{t+4}, s{sT}, v{t+3}')
    a(f's_lshl_b32 s{sT}, s{sJ}, 1\ns_add_u32 s{sT}, s{sT}, s{sI}\ns_lshl_b32 s{sT}, s{sT}, 7\ns_add_u32 s{sT}, s{sT}, {K1_STAT+1024}')
    a(f'v_add_u32 v{t+5}, s{sT}, v{t+3}')
    a(f'ds_write_b32 v{t+4}, v{t}\nds_write_b32 v{t+4}, v{t+1} offset:512\nds_write_b32 v{t+5}, v{vS+4}')
    a(f's_xor_b32 s{sT}, s{sW}, 1\ns_lshl_b32 s{sT}, s{sT}, 7\ns_add_u32 s{sT}, s{sT}, {K1_STAT}')
    a(f'v_add_u32 v{t+6}, s{sT}, v{t+3}')
    a(f'v_lshlrev_b32 v{t+7}, 4, v{vHH}')
    a(f's_lshl_b32 s{sT}, s{sW}, 7\ns_add_u32 s{sT}, s{sT}, {K1_STAT}')
    a(f'v_add_u32 v{t+8}, s{sT}, v{t+7}')
    a(f's_lshl_b32 s{sT}, s{sJ}, 1\ns_add_u32 s{sT}, s{sT}, s{sI}\ns_lshl_b32 s{sT}, s{sT}, 7\ns_add_u32 s{sT}, s{sT}, {K1_STAT+1024}')
    a(f'v_add_u32 v{t+9}, s{sT}, v{t+7}')
    a(f'v_xor_b32 v{t+10}, 128, v{t+9}')
    a(f'v_lshlrev_b32 v{t+11}, 6, v{vU}\nv_lshl_add_u32 v{t+11}, v{vHH}, 3, v{t+11}\nv_add_u32 v{t+11}, {K1_WC}, v{t+11}')
    a.wait_vm('WC')
    a('s_waitcnt lgkmcnt(0)')
    a('s_barrier')
    ZM, ZR = FR, FR + 16
    CA, CB = EP + 16, EP + 32
    WCs = EP + 48
    PM = FR + 32
    for q in range(4): a(f'ds_read_b128 {vr(ZM+4*q)}, v{t+8} offset:{32*q}')
    for q in range(4): a(f'ds_read_b128 {vr(ZR+4*q)}, v{t+8} offset:{512+32*q}')
    for q in range(4): a(f'ds_read_b128 {vr(CA+4*q)}, v{t+9} offset:{32*q}')
    a(f'ds_read_b32 v{PM}, v{t+6}\nds_read_b32 v{PM+2}, v{t+6} offset:512')
    ZA = ACC + 64
    a(f's_waitcnt lgkmcnt(6)')
    for q in range(4): a(f'ds_read_b128 {vr(CB+4*q)}, v{t+10} offset:{32*q}')
    for r in range(16):
        a(f'v_fma_f32 v{ZA+r}, -v{ZM+r}, v{vS+6}, v{ZA+r}')
    for k in range(4):
        a(f'ds_read_b64 {vr(WCs+2*k,2)}, v{t+11} offset:{16*k}')
    for r in range(16):
        a(f'v_mul_f32 v{ZA+r}, v{ZA+r}, v{ZR+r}')
    for k in range(4):
        a(f'ds_read_b64 {vr(WCs+8+2*k,2)}, v{t+11} offset:{2048+16*k}')
    B1, B2 = ZM, ZM + 8
    vSg = t + 12
    a(f'v_bfe_u32 v{vSg}, v{vL}, 4, 1\nv_mul_u32_u24 v{vSg}, 0x8000, v{vSg}\nv_lshl_or_b32 v{vSg}, v{vSg}, 16, v{vSg}')
    for p in range(8):
        a(f'v_cvt_pk_bf16_f32 v{B1+p}, v{ZA+2*p}, v{ZA+2*p+1}')
    for p in range(8):
        a(f'v_xor_b32 v{B1+p}, v{B1+p}, v{vSg}')
    a('s_waitcnt lgkmcnt(0)')
    for p in range(8):
        a(f'ds_swizzle_b32 v{B2+p}, v{B1+p} offset:0x401f')
    OM, OR_ = t, t + 1
    def hblock(acc, C, m, r, out):
        ins = []
        for rr in range(16):
            ins.append(f'v_fma_f32 v{acc+rr}, -v{m}, v{C+rr}, v{acc+rr}')
        for rr in range(16):
            ins.append(f'v_mul_f32 v{acc+rr}, v{r}, v{acc+rr}')
        for p in range(8):
            ins.append(f'v_cvt_pk_bf16_f32 v{out+p}, v{acc+2*p}, v{acc+2*p+1}')
        for p in range(8):
            ins.append(f'v_pk_max_i16 v{out+p}, v{out+p}, 0')
        return ins
    vHo = t + 14
    a(f'v_lshlrev_b32 v{vHo}, 4, v{vL}')
    sHA0, sHA1, sHB0, sHB1 = 56, 57, 58, 59
    a(f's_lshl_b32 s{sT}, s{sCG}, 3\ns_lshl_b32 s{sT2}, s{sJ}, 2\ns_add_u32 s{sT}, s{sT}, s{sT2}\ns_lshl_b32 s{sT2}, s{sI}, 1\ns_add_u32 s{sT}, s{sT}, s{sT2}\ns_lshl_b32 s{sT}, s{sT}, 10')
    a(f's_mul_i32 s{sT2}, s{sSig}, {HB_SIG}\ns_add_u32 s{sHA0}, s{sT}, s{sT2}')
    a(f's_xor_b32 s{sT2}, s{sSig}, 1\ns_mul_i32 s{sT2}, s{sT2}, {HB_SIG}\ns_add_u32 s{sHA1}, s{sT}, s{sT2}')
    a(f's_xor_b32 s{sHB0}, s{sHA0}, 2048\ns_xor_b32 s{sHB1}, s{sHA1}, 2048')
    def hstore(out, so):
        a.vmem(f'buffer_store_dwordx4 {vr(out)}, v{vHo}, s[{SH}:{SH+3}], s{so} offen {K1ST}', 'ST')
        a.vmem(f'buffer_store_dwordx4 {vr(out+4)}, v{vHo}, s[{SH}:{SH+3}], s{so} offen offset:1024 {K1ST}', 'ST')
    O0, O1, O2, O3 = ZR, ZR + 8, ACC, ACC + 16
    for s in hblock(ACC, CA, OM, OR_, O0): a(s)
    hstore(O0, sHA0)
    a('s_waitcnt lgkmcnt(0)')
    for p in range(8):
        a(f'v_xor_b32 v{B2+p}, v{B2+p}, v{vSg}')
    a('s_nop 1')
    VA = ZA
    a(f'v_mfma_f32_32x32x16_bf16 {vr(VA,16)}, {vr(WCs)}, {vr(B1)}, 0')
    a(f'v_mfma_f32_32x32x16_bf16 {vr(VA,16)}, {vr(WCs+4)}, {vr(B1+4)}, {vr(VA,16)}')
    a(f'v_mfma_f32_32x32x16_bf16 {vr(VA,16)}, {vr(WCs+8)}, {vr(B2)}, {vr(VA,16)}')
    a(f'v_mfma_f32_32x32x16_bf16 {vr(VA,16)}, {vr(WCs+12)}, {vr(B2+4)}, {vr(VA,16)}')
    for s in hblock(ACC+16, CA, PM, PM+2, O1): a(s)
    hstore(O1, sHA1)
    vVo = t + 15
    a(f'v_bfe_u32 v{vVo}, v{vL}, 4, 1\nv_lshl_add_u32 v{vVo}, v{vHH}, 2, v{vVo}\nv_lshlrev_b32 v{vVo}, 16, v{vVo}')
    a(f'v_and_b32 v{vt}, 15, v{vL}\nv_lshl_add_u32 v{vVo}, v{vt}, 4, v{vVo}')
    a(f's_lshl_b32 s{sT}, s{sCG}, 8\ns_lshr_b32 s{sT2}, s{sSig}, 2\ns_lshl_b32 s{sT2}, s{sT2}, 12\ns_add_u32 s{sT}, s{sT}, s{sT2}\ns_and_b32 s{sT2}, s{sSig}, 3\ns_lshl_b32 s{sT2}, s{sT2}, 2\ns_add_u32 s{sT}, s{sT}, s{sT2}')
    a(f'v_add_u32 v{vVo}, s{sT}, v{vVo}')
    for p in range(8):
        a(f'v_permlane16_swap_b32 v{VA+2*p}, v{VA+2*p+1}')
    a('s_nop 1')
    for p in range(8):
        a(f'v_cvt_pk_bf16_f32 v{B1+p}, v{VA+2*p}, v{VA+2*p+1}')
    for p in range(8):
        t1b = (2*p & 3) + 8 * (p >> 1)
        a(f's_mov_b32 s{sT}, {t1b*65536}')
        a.vmem(f'buffer_store_dword v{B1+p}, v{vVo}, s[{SV}:{SV+3}], s{sT} offen {K1ST}', 'ST')
    for s in hblock(ACC+32, CB, OM, OR_, O2): a(s)
    hstore(O2, sHB0)
    for s in hblock(ACC+48, CB, PM, PM+2, O3): a(s)
    hstore(O3, sHB1)
    stamp(a, 4, STB)
    if STAMP:
        a('s_waitcnt vmcnt(0)')
        stamp(a, 5, STB)
        stamp_store(a, 6, STB, 16, 17, 0, sW, vt)
    a('Lk1_end:')
    a('s_endpgm')
    return a.text(), 256

K2_SLOT = 32768
K2_NS = 4
K2_XT = K2_NS * K2_SLOT
K2_LDS = K2_XT + 8192
VT_POS = 2

def gen_k2():
    a = Asm()
    SH, SW, SV, SC, SX, SO = 20, 24, 28, 32, 36, 40
    sW, sCB, sRB, sT1, sCT = 44, 45, 46, 47, 48
    sLh, sLw, sT, sT2, sHb, sSig = 49, 50, 51, 52, 53, 54
    STB = 70
    vHo = 2; vWo = 3
    vVo = 7; vTo = 8
    vXo = 10
    vRh = 12
    vTa = 14
    vRv = 16; vRt = 17
    vSg = 21
    vL, vU, vHH = 22, 23, 24
    vXr = 25
    vOr = 29
    vOo = 31
    vt = 34
    FR = 48
    ACC = 112
    TT = 128
    a('s_cmp_ge_u32 s2, 224\ns_cbranch_scc1 Lk2_end')
    a('s_load_dwordx4 s[4:7], s[0:1], 0')
    a('s_load_dwordx2 s[8:9], s[0:1], 16')
    a('s_load_dwordx4 s[12:15], s[0:1], 56')
    a('s_load_dwordx2 s[16:17], s[0:1], 80')
    stamp(a, 0, STB)
    a(f's_and_b32 s{sT1}, s2, 7\ns_lshl_b32 s{sT1}, s{sT1}, 2\ns_bfe_u32 s{sT}, s2, 0x20003\ns_add_u32 s{sT1}, s{sT1}, s{sT}\ns_lshr_b32 s{sCT}, s2, 5')
    a(f'v_lshrrev_b32 v{vt}, 6, v0\nv_and_b32 v{vL}, 63, v0')
    a(f'v_readfirstlane_b32 s{sW}, v{vt}')
    a(f'v_lshrrev_b32 v{vt+1}, 3, v{vL}\nv_and_b32 v{vt+2}, 7, v{vL}\nv_lshrrev_b32 v{vt+3}, 1, v{vt+1}')
    a(f'v_lshlrev_b32 v{vHo}, 4, v{vL}')
    a(f's_and_b32 s{sCB}, s{sW}, 1\ns_lshr_b32 s{sRB}, s{sW}, 1')
    a(f's_lshl_b32 s{sT}, s{sCB}, 5\ns_add_u32 s{sSig}, s{sT}, s{sT1}')
    a(f's_mul_i32 s{sHb}, s{sSig}, {HB_SIG}\ns_lshl_b32 s{sT}, s{sRB}, 12\ns_add_u32 s{sHb}, s{sHb}, s{sT}')
    a(f's_lshl_b32 s{sLh}, s{sCB}, 13\ns_add_u32 s{sLh}, s{sLh}, s{sT}')
    a(f'v_and_b32 v{vt+4}, 1, v{vt+3}\nv_lshlrev_b32 v{vt+4}, 2, v{vt+4}\nv_xor_b32 v{vt+4}, v{vt+4}, v{vt+2}\nv_lshlrev_b32 v{vt+4}, 4, v{vt+4}')
    a(f'v_mul_u32_u24 v{vt+5}, 896, v{vt+1}')
    a(f's_mul_i32 s{sT}, s{sW}, {32*896}\ns_lshl_b32 s{sT2}, s{sCT}, 7\ns_add_u32 s{sT}, s{sT}, s{sT2}')
    a(f'v_add3_u32 v{vWo}, v{vt+5}, v{vt+4}, s{sT}')
    for i in range(1, 4): a(f'v_add_u32 v{vWo+i}, {i*(7168-1024)}, v{vWo}')
    a(f's_lshl_b32 s{sLw}, s{sW}, 12\ns_add_u32 s{sLw}, s{sLw}, 16384')
    a('s_waitcnt lgkmcnt(0)')
    srd(a, SH, 16, 17, HB_SIZE)
    srd(a, SW, 12, 13, 1792*896)

    order = list(range(14)); order.insert(VT_POS, 'VT')
    NG = len(order)
    def dma_group(gi):
        G = order[gi]; slot = (gi % K2_NS) * K2_SLOT
        ins = []
        tag = f'G{gi}'
        if G != 'VT':
            ins.append((f's_add_u32 m0, s{sLh}, {slot}', None))
            ins.append((f's_add_u32 s{sT}, s{sHb}, {G*8192}', None))
            for i in range(4):
                ins.append((f'buffer_load_dwordx4 v{vHo}, s[{SH}:{SH+3}], s{sT} offen offset:{i*1024} lds {LDFL}', tag))
            ins.append((f's_add_u32 m0, s{sLw}, {slot}', None))
            ins.append((f's_mov_b32 s{sT}, {G*128*896}', None))
            for i in range(4):
                ins.append((f'buffer_load_dwordx4 v{vWo+i}, s[{SW}:{SW+3}], s{sT} offen offset:{i*1024} lds', tag))
        else:
            ins.append((f's_add_u32 m0, s{sLh}, {slot}', None))
            for i in range(4):
                ins.append((f's_mov_b32 s{sT}, {(4*(i>>1) + (i&1))*4096 - i*1024}', None))
                ins.append((f'buffer_load_dwordx4 v{vVo}, s[{SV}:{SV+3}], s{sT} offen offset:{i*1024} lds {LDFL}', tag))
            ins.append((f's_add_u32 m0, s{sLw}, {slot}', None))
            for q in range(4):
                ins.append((f's_mov_b32 s{sT}, {q*(8*64*4096) - q*1024}', None))
                ins.append((f'buffer_load_dwordx4 v{vTo+(q&1)}, s[{SC}:{SC+3}], s{sT} offen offset:{q*1024} lds', tag))
        return ins
    def emit(ins):
        s, tag = ins
        if tag: a.vmem(s, tag)
        else: a(s)
    npre = 0
    while order[npre] != 'VT' and npre < K2_NS - 1:
        for ins in dma_group(npre): emit(ins)
        npre += 1
    a(f'v_and_b32 v{vU}, 31, v{vL}\nv_lshrrev_b32 v{vHH}, 5, v{vL}')
    a(f's_add_u32 s{SV}, s16, {VB_OFF}\ns_addc_u32 s{SV+1}, s17, 0\ns_mov_b32 s{SV+2}, {VB_SIZE}\ns_mov_b32 s{SV+3}, 0x20000')
    a(f's_cmp_ge_u32 s{sW}, 2\ns_cselect_b32 s{SC}, s8, s6\ns_cselect_b32 s{SC+1}, s9, s7\ns_mov_b32 s{SC+2}, {2048*4096}\ns_mov_b32 s{SC+3}, 0x20000')
    srd(a, SX, 4, 5, 2048*896)
    srd(a, SO, 14, 15, 2048*896)
    a(f's_lshl_b32 s{sT}, s{sCT}, 6\ns_lshl_b32 s{sT2}, s{sCB}, 5\ns_add_u32 s{sT}, s{sT}, s{sT2}')
    a(f'v_add_u32 v{vt+4}, s{sT}, v{vU}')
    a(f'v_sub_u32 v{vt+5}, 448, v{vt+4}')
    a(f'v_cmp_lt_u32 vcc, 239, v{vt+4}')
    a(f's_sub_u32 s{sT}, 32, s{sT1}\ns_and_b32 s{sT}, s{sT}, 31')
    a(f'v_mov_b32 v{vt+6}, s{sT1}\nv_mov_b32 v{vt+7}, s{sT}\nv_mov_b32 v{vt+8}, 0\nv_bfrev_b32 v{vt+9}, 1')
    a(f'v_cndmask_b32 v{vt+4}, v{vt+4}, v{vt+5}, vcc\nv_cndmask_b32 v{vt+6}, v{vt+6}, v{vt+7}, vcc\nv_cndmask_b32 v{vSg}, v{vt+8}, v{vt+9}, vcc')
    a(f'v_lshlrev_b32 v{vVo}, 16, v{vt+6}\nv_lshl_add_u32 v{vVo}, v{vt+4}, 4, v{vVo}\nv_lshl_add_u32 v{vVo}, v{vHH}, 13, v{vVo}')
    a(f's_lshl_b32 s{sT}, s{sRB}, 15\nv_add_u32 v{vVo}, s{sT}, v{vVo}')
    a(f'v_xor_b32 v{vt+4}, v{vt+2}, v{vt+3}\nv_lshlrev_b32 v{vt+4}, 4, v{vt+4}')
    a(f'v_lshl_add_u32 v{vTo}, v{vt+1}, 18, v{vt+4}')
    a(f's_lshl_b32 s{sT}, s{sSig}, 12\nv_add_u32 v{vTo}, s{sT}, v{vTo}\nv_xor_b32 v{vTo+1}, 64, v{vTo}')
    while npre < K2_NS - 1 or order[npre-1] == 'x':
        for ins in dma_group(npre): emit(ins)
        npre += 1
    a(f'v_mul_u32_u24 v{vt+5}, {64*896}, v{vt+1}')
    a(f's_mul_i32 s{sT}, s{sSig}, 896\ns_lshl_b32 s{sT2}, s{sCT}, 7\ns_add_u32 s{sT}, s{sT}, s{sT2}\ns_mul_i32 s{sT2}, s{sRB}, {2*458752}\ns_add_u32 s{sT}, s{sT}, s{sT2}')
    a(f'v_add3_u32 v{vXo}, v{vt+5}, v{vt+4}, s{sT}\nv_xor_b32 v{vXo+1}, 64, v{vXo}\nv_add_u32 v{vXo+1}, {458752-1024}, v{vXo+1}')
    a(f's_lshl_b32 s{sT}, s{sCB}, 12\ns_lshl_b32 s{sT2}, s{sRB}, 11\ns_add_u32 s{sT}, s{sT}, s{sT2}\ns_add_u32 m0, s{sT}, {K2_XT}\ns_nop 0')
    a.vmem(f'buffer_load_dwordx4 v{vXo}, s[{SX}:{SX+3}], 0 offen lds', 'X')
    a.vmem(f'buffer_load_dwordx4 v{vXo+1}, s[{SX}:{SX+3}], 0 offen offset:1024 lds', 'X')
    for ins in dma_group(npre): emit(ins)
    npre += 1
    stamp(a, 1, STB)
    a(f's_lshl_b32 s{sT}, s{sRB}, 13\nv_add_u32 v{vRh}, s{sT}, v{vHo}\nv_add_u32 v{vRh+1}, {2*K2_SLOT}, v{vRh}')
    a(f's_lshl_b32 s{sT}, s{sCB}, 13\nv_add_u32 v{vRv}, s{sT}, v{vHo}')
    a(f'v_bfe_u32 v{vt}, v{vL}, 2, 2')
    a(f'v_lshl_add_u32 v{vt+1}, v{vHH}, 2, v{vt}\nv_lshlrev_b32 v{vt+1}, 7, v{vt+1}')
    a(f'v_lshrrev_b32 v{vt}, 1, v{vt}\nv_xor_b32 v{vt}, s{sCB}, v{vt}\nv_lshl_add_u32 v{vt+1}, v{vt}, 6, v{vt+1}')
    a(f'v_bfe_u32 v{vt}, v{vL}, 4, 1\nv_lshl_add_u32 v{vt+1}, v{vt}, 5, v{vt+1}')
    a(f'v_and_b32 v{vt}, 3, v{vL}\nv_lshl_add_u32 v{vt+1}, v{vt}, 3, v{vt+1}')
    a(f'v_add_u32 v{vTa}, 0x4000, v{vt+1}\nv_add_u32 v{vTa+1}, {2*K2_SLOT}, v{vTa}')
    a(f'v_bfe_u32 v{vt}, v{vU}, 1, 3')
    a(f's_lshl_b32 s{sT}, s{sRB}, 12\nv_lshlrev_b32 v{vt+1}, 7, v{vU}\nv_add_u32 v{vt+1}, s{sT}, v{vt+1}')
    vtslot = (VT_POS % K2_NS) * K2_SLOT
    a(f'v_xor_b32 v{vt+2}, v{vt}, v{vHH}')
    for m in range(4):
        a(f'v_xor_b32 v{vt+3}, {2*m}, v{vt+2}\nv_lshl_add_u32 v{vRt+m}, v{vt+3}, 4, v{vt+1}\nv_add_u32 v{vRt+m}, {vtslot+16384}, v{vRt+m}')
    a(f'v_add_u32 v{vRv}, {vtslot}, v{vRv}')
    a(f's_lshl_b32 s{sT}, s{sCB}, 2\nv_xor_b32 v{vt+2}, s{sT}, v{vt}\nv_lshl_add_u32 v{vt+4}, v{vHH}, 3, v{vt+1}\nv_add_u32 v{vt+4}, {K2_XT}, v{vt+4}')
    for q in range(4):
        a(f'v_xor_b32 v{vt+3}, {q}, v{vt+2}\nv_lshl_add_u32 v{vXr+q}, v{vt+3}, 4, v{vt+4}')
    a(f'v_lshrrev_b32 v{vt}, 2, v{vL}\nv_and_b32 v{vt+1}, 3, v{vL}\nv_lshrrev_b32 v{vt+2}, 1, v{vt}')
    a(f's_lshl_b32 s{sT}, s{sCB}, 2\nv_add_u32 v{vt+1}, s{sT}, v{vt+1}')
    a(f'v_xor_b32 v{vt+2}, v{vt+2}, v{vt+1}\nv_lshlrev_b32 v{vt+2}, 4, v{vt+2}\nv_lshl_add_u32 v{vt+2}, v{vt}, 7, v{vt+2}')
    a(f's_lshl_b32 s{sT}, s{sRB}, 12\ns_add_u32 s{sT}, s{sT}, {K2_XT}\nv_add_u32 v{vOr}, s{sT}, v{vt+2}')
    a(f'v_mul_u32_u24 v{vt+2}, {64*896}, v{vt}\nv_lshl_add_u32 v{vt+2}, v{vt+1}, 4, v{vt+2}')
    a(f's_lshl_b32 s{sT}, s{sRB}, 5\ns_add_u32 s{sT}, s{sT}, s{sT1}\ns_mul_i32 s{sT}, s{sT}, 896\ns_lshl_b32 s{sT2}, s{sCT}, 7\ns_add_u32 s{sT}, s{sT}, s{sT2}')
    a(f'v_add_u32 v{vOo}, s{sT}, v{vt+2}\nv_add_u32 v{vOo+1}, {16*64*896}, v{vOo}')
    a(f's_mov_b32 s56, 0x05040100\ns_mov_b32 s57, 0x07060302')

    first = True
    for gi in range(NG):
        G = order[gi]
        slot = gi % K2_NS
        half, so = slot // 2, (slot % 2) * K2_SLOT
        a.wait_vm(f'G{gi}')
        a('s_barrier')
        if gi == 0: stamp(a, 2, STB)
        if gi >= 1 and gi + K2_NS - 1 < NG:
            for ins in dma_group(gi + K2_NS - 1): emit(ins)
        if G != 'VT':
            def rd(ks):
                f = FR + 8 * ks
                return [f'ds_read_b64_tr_b16 {vr(f,2)}, v{vTa+half} offset:{so + ks*2048}',
                        f'ds_read_b64_tr_b16 {vr(f+2,2)}, v{vTa+half} offset:{so + ks*2048 + 1024}',
                        f'ds_read_b128 {vr(f+4)}, v{vRh+half} offset:{so + ks*1024}']
            for ks in range(4):
                for r in rd(ks): a(r)
            for ks in range(8):
                out = min(9, 3 * (7 - ks))
                a(f's_waitcnt lgkmcnt({out})')
                f = FR + 8 * ks
                c = '0' if first else vr(ACC, 16)
                first = False
                a(f'v_mfma_f32_32x32x16_bf16 {vr(ACC,16)}, {vr(f)}, {vr(f+4)}, {c}')
                if ks + 4 < 8:
                    for r in rd(ks + 4): a(r)
        else:
            for m in range(4):
                a(f'ds_read_b128 {vr(TT+8*m)}, v{vRt+m}\nds_read_b128 {vr(TT+8*m+4)}, v{vRt+m} offset:8192')
            for j in range(4):
                a(f'ds_read_b128 {vr(FR+8*j)}, v{vRv} offset:{j*1024}')
            a('s_waitcnt lgkmcnt(4)')
            for j in range(4, 8):
                a(f'ds_read_b128 {vr(FR+8*j)}, v{vRv} offset:{j*1024}')
            for j in range(8):
                m, jj = divmod(j, 2)
                C, S_ = TT + 8*m + 2*jj, TT + 8*m + 4 + 2*jj
                f = FR + 8*j + 4
                a(f'v_perm_b32 v{f}, v{S_}, v{C}, s56\nv_perm_b32 v{f+1}, v{S_}, v{C}, s57')
                a(f'v_perm_b32 v{f+2}, v{S_+1}, v{C+1}, s56\nv_perm_b32 v{f+3}, v{S_+1}, v{C+1}, s57')
            a('s_waitcnt lgkmcnt(0)')
            for j in range(8):
                for i in range(4): a(f'v_xor_b32 v{FR+8*j+i}, v{FR+8*j+i}, v{vSg}')
            a('s_nop 1')
            for j in range(8):
                f = FR + 8*j
                a(f'v_mfma_f32_32x32x16_bf16 {vr(ACC,16)}, {vr(f)}, {vr(f+4)}, {vr(ACC,16)}')
    stamp(a, 3, STB)
    XR = TT
    for q in range(4): a(f'ds_read_b64 {vr(XR+2*q,2)}, v{vXr+q}')
    a('s_waitcnt lgkmcnt(0)')
    for q in range(4):
        for h in range(2):
            a(f'v_lshlrev_b32 v{XR+8+4*q+2*h}, 16, v{XR+2*q+h}\nv_and_b32 v{XR+8+4*q+2*h+1}, 0xffff0000, v{XR+2*q+h}')
    a('s_nop 7')
    for r in range(16): a(f'v_add_f32 v{ACC+r}, v{ACC+r}, v{XR+8+r}')
    for p in range(8): a(f'v_cvt_pk_bf16_f32 v{XR+p}, v{ACC+2*p}, v{ACC+2*p+1}')
    for q in range(4): a(f'ds_write_b64 v{vXr+q}, {vr(XR+2*q,2)}')
    a('s_waitcnt lgkmcnt(0)')
    a(f'ds_read_b128 {vr(FR)}, v{vOr}\nds_read_b128 {vr(FR+4)}, v{vOr} offset:2048')
    a('s_waitcnt lgkmcnt(1)')
    a(f'buffer_store_dwordx4 {vr(FR)}, v{vOo}, s[{SO}:{SO+3}], 0 offen')
    a('s_waitcnt lgkmcnt(0)')
    a(f'buffer_store_dwordx4 {vr(FR+4)}, v{vOo+1}, s[{SO}:{SO+3}], 0 offen')
    stamp(a, 4, STB)
    if STAMP:
        a('s_waitcnt vmcnt(0)')
        stamp(a, 5, STB)
        stamp_store(a, 6, STB, 16, 17, 1, sW, vt)
    a('Lk2_end:')
    a('s_endpgm')
    return a.text(), 160

def main():
    k1, v1 = gen_k1(); k2, v2 = gen_k2()
    out = []
    out.append(f'; @launch kernel=fnet_k1_kernel grid=(256,1,1) block=(256,1,1) lds={K1_LDS}')
    out.append(f'; @launch kernel=fnet_k2_kernel grid=(224,1,1) block=(256,1,1) lds={K2_LDS}')
    out.append('.amdgcn_target "amdgcn-amd-amdhsa--gfx950"\n.text')
    for nm, body in (('fnet_k1_kernel', k1), ('fnet_k2_kernel', k2)):
        out.append(f'.globl {nm}\n.p2align 8\n.type {nm},@function\n{nm}:')
        out.append(body)
    out.append(kd('fnet_k1_kernel', v1)); out.append(kd('fnet_k2_kernel', v2))
    print('\n'.join(out))
main()
```

```python
import sys
NAME = 'parallel_sum__spectral_fnet__dense_activation_relu__prompt'
OPT = dict(a.split('=') for a in sys.argv[1:] if '=' in a)
STAMP = int(OPT.get('stamp', 0))
K1ST = OPT.get('k1st', '')
LDFL = OPT.get('ldfl', '')

HB_SIG = 112 * 1024
HB_SIZE = 64 * HB_SIG
VB_OFF = 0x800000
VB_SIZE = 32 * 16 * 256 * 16
ST_OFF = 0x1000000

class Asm:
    def __init__(self):
        self.L = []
        self.vm = []
    def __call__(self, s):
        for line in s.split('\n'):
            self.L.append('    ' + line.strip() if not line.strip().endswith(':') else line.strip())
    def vmem(self, s, tag):
        self(s); self.vm.append(tag)
    def wait_vm(self, tag):
        if tag not in self.vm: return
        idx = max(i for i, t in enumerate(self.vm) if t == tag)
        n = len(self.vm) - 1 - idx
        self(f's_waitcnt vmcnt({min(n, 63)})')
        self.vm = self.vm[idx + 1:]
    def text(self):
        return '\n'.join(self.L)

def srd(a, d, lo, hi, size):
    a(f's_mov_b32 s{d}, s{lo}\ns_mov_b32 s{d+1}, s{hi}\ns_mov_b32 s{d+2}, {size}\ns_mov_b32 s{d+3}, 0x20000')

def stamp(a, idx, base_s, tmp=90):
    if STAMP:
        a(f's_memrealtime s[{base_s+2*idx}:{base_s+2*idx+1}]')
        a(f's_memtime s[{base_s+16+2*idx}:{base_s+17+2*idx}]')

def stamp_store(a, n, base_s, ws_lo, ws_hi, kidx, wave_s, vt):
    if not STAMP: return
    if STAMP == 2:
        a('s_load_dwordx2 s[60:61], s[0:1], 72')
        a('s_waitcnt lgkmcnt(0)')
        if kidx: a('s_sub_u32 s60, s60, 512\ns_subb_u32 s61, s61, 0')
        a('s_mov_b32 s62, 256\ns_mov_b32 s63, 0x20000')
        a(f'v_mov_b32 v{vt+1}, 0')
        a('s_mov_b64 exec, 1')
        a(f's_not_b32 s58, s{base_s}')
        a(f'v_mov_b32 v{vt}, s58')
        a(f'buffer_atomic_umax v{vt}, v{vt+1}, s[60:63], 0 offen offset:{32*kidx}')
        for i in range(6):
            a('s_nop 1')
            a(f'v_mov_b32 v{vt}, s{base_s+2*i}')
            a(f'buffer_atomic_umax v{vt}, v{vt+1}, s[60:63], 0 offen offset:{32*kidx+4+4*i}')
        return
    a('s_waitcnt lgkmcnt(0)')
    a(f's_add_u32 s{ws_lo}, s{ws_lo}, {ST_OFF + kidx*65536}\ns_addc_u32 s{ws_hi}, s{ws_hi}, 0')
    a(f's_mov_b32 s60, s{ws_lo}\ns_mov_b32 s61, s{ws_hi}\ns_mov_b32 s62, 65536\ns_mov_b32 s63, 0x20000')
    a(f's_lshl_b32 s58, s2, 2\ns_add_u32 s58, s58, s{wave_s}\ns_lshl_b32 s58, s58, 6')
    a(f'v_mov_b32 v{vt+1}, s58')
    for i in range(n):
        a(f'v_mov_b32 v{vt}, s{base_s+2*i}')
        a(f'buffer_store_dword v{vt}, v{vt+1}, s[60:63], 0 offen offset:{4*i}')
        a('s_nop 1')

def kd(name, vgpr, sgpr=102):
    acc = (vgpr + 3) // 4 * 4
    return f'''.section .rodata,"a"
.p2align 6
.amdhsa_kernel {name}
  .amdhsa_next_free_vgpr {vgpr}
  .amdhsa_next_free_sgpr {sgpr}
  .amdhsa_accum_offset {acc}
  .amdhsa_group_segment_fixed_size 0
  .amdhsa_kernarg_size 88
  .amdhsa_user_sgpr_count 2
  .amdhsa_user_sgpr_kernarg_segment_ptr 1
  .amdhsa_system_sgpr_workgroup_id_x 1
.end_amdhsa_kernel
'''

def vr(b, n=4): return f'v[{b}:{b+n-1}]'

K1_SLOT = 36864
K1_WC = 4 * K1_SLOT
K1_STAT = K1_WC + 4096
K1_LDS = K1_STAT + 3 * 512

def gen_k1():
    a = Asm()
    SX, SW, SD, SC, SH, SV = 20, 24, 28, 32, 36, 40
    sW, sI, sJ, sRT, sCG = 44, 45, 46, 47, 48
    sLx, sLw, sLd, sT, sOnes, sSig, sT2 = 49, 50, 51, 52, 53, 54, 55
    STB = 70
    vXo = 2
    vWo = 6
    vDo = 10
    vCo = 11
    vRb = 12
    vRp = 20
    vRd = 28
    vTa = 36
    vTb = 38
    vS = 40
    vL = 48
    vU = 49
    vHH = 50
    vt = 52
    FR = 64
    ACC = 104
    EP = 184
    a('s_cmp_ge_u32 s2, 256\ns_cbranch_scc1 Lk1_end')
    if OPT.get('badmap'): a('s_and_b32 s3, s2, 7\ns_lshr_b32 s2, s2, 3\ns_lshl_b32 s3, s3, 5\ns_add_u32 s2, s2, s3')
    a('s_load_dwordx8 s[4:11], s[0:1], 0')
    a('s_load_dwordx2 s[12:13], s[0:1], 32')
    a('s_load_dwordx2 s[14:15], s[0:1], 48')
    a('s_load_dwordx2 s[16:17], s[0:1], 80')
    stamp(a, 0, STB)
    a(f's_and_b32 s{sRT}, s2, 3\ns_lshl_b32 s{sRT}, s{sRT}, 2\ns_bfe_u32 s{sT}, s2, 0x20003\ns_add_u32 s{sRT}, s{sRT}, s{sT}')
    a(f's_bfe_u32 s{sCG}, s2, 0x10002\ns_lshl_b32 s{sCG}, s{sCG}, 3\ns_lshr_b32 s{sT}, s2, 5\ns_add_u32 s{sCG}, s{sCG}, s{sT}')
    a(f's_cmp_ge_u32 s{sCG}, 15\ns_cbranch_scc1 Lk1_end')
    a(f'v_lshrrev_b32 v{vt}, 6, v0\nv_and_b32 v{vL}, 63, v0')
    a(f'v_readfirstlane_b32 s{sW}, v{vt}')
    a(f'v_lshrrev_b32 v{vt+1}, 3, v{vL}')
    a(f'v_and_b32 v{vt+2}, 7, v{vL}')
    a(f'v_lshrrev_b32 v{vt+3}, 1, v{vt+1}')
    a(f's_lshr_b32 s{sI}, s{sW}, 1\ns_and_b32 s{sJ}, s{sW}, 1')
    a(f's_lshl_b32 s{sSig}, s{sRT}, 1\ns_add_u32 s{sSig}, s{sSig}, s{sJ}\ns_lshl_b32 s{sT}, s{sI}, 5\ns_add_u32 s{sSig}, s{sSig}, s{sT}')
    a(f'v_xor_b32 v{vt+4}, v{vt+2}, v{vt+3}\nv_lshlrev_b32 v{vt+4}, 4, v{vt+4}')
    a(f'v_mul_u32_u24 v{vt+5}, {64*896}, v{vt+1}')
    a(f's_mul_i32 s{sT}, s{sSig}, 896')
    a(f'v_add3_u32 v{vXo}, v{vt+5}, v{vt+4}, s{sT}')
    a(f'v_xor_b32 v{vXo+1}, 64, v{vXo}')
    a(f'v_add_u32 v{vXo+2}, {2*(458752-1024)}, v{vXo}')
    a(f'v_add_u32 v{vXo+3}, {3*(458752-1024)}, v{vXo+1}')
    a(f'v_add_u32 v{vXo+1}, {1*(458752-1024)}, v{vXo+1}')
    a(f'v_and_b32 v{vt+6}, 1, v{vt+3}\nv_lshlrev_b32 v{vt+6}, 2, v{vt+6}\nv_xor_b32 v{vt+6}, v{vt+6}, v{vt+2}\nv_lshlrev_b32 v{vt+6}, 4, v{vt+6}')
    a(f'v_mul_u32_u24 v{vt+7}, 3584, v{vt+1}')
    a(f's_mul_i32 s{sT}, s{sI}, {32*3584}\ns_lshl_b32 s{sT2}, s{sCG}, 8\ns_add_u32 s{sT}, s{sT}, s{sT2}\ns_lshl_b32 s{sT2}, s{sJ}, 7\ns_add_u32 s{sT}, s{sT}, s{sT2}')
    a(f'v_add3_u32 v{vWo}, v{vt+7}, v{vt+6}, s{sT}')
    for i in range(1, 4):
        a(f'v_add_u32 v{vWo+i}, {i*(8*3584-1024)}, v{vWo}')
    a(f'v_mul_u32_u24 v{vt+5}, 896, v{vt+1}')
    a(f's_lshl_b32 s{sT}, s{sJ}, 6')
    a(f'v_xor_b32 v{vt+6}, s{sT}, v{vt+4}')
    a(f's_lshl_b32 s{sT}, s{sCG}, 1\ns_add_u32 s{sT}, s{sT}, s{sJ}\ns_mul_i32 s{sT}, s{sT}, {8*896}')
    a(f'v_add3_u32 v{vDo}, v{vt+5}, v{vt+6}, s{sT}')
    a(f'v_lshrrev_b32 v{vt+5}, 2, v{vL}\nv_lshlrev_b32 v{vt+5}, 18, v{vt+5}\nv_and_b32 v{vt+6}, 3, v{vL}\nv_lshlrev_b32 v{vt+6}, 4, v{vt+6}')
    a(f's_lshl_b32 s{sT}, s{sJ}, 22')
    a(f'v_add3_u32 v{vCo}, v{vt+5}, v{vt+6}, s{sT}')
    a(f's_lshl_b32 s{sLx}, s{sW}, 12')
    a(f's_lshl_b32 s{sLw}, s{sJ}, 13\ns_lshl_b32 s{sT}, s{sI}, 12\ns_add_u32 s{sLw}, s{sLw}, s{sT}\ns_add_u32 s{sLw}, s{sLw}, 16384')
    a(f's_lshl_b32 s{sLd}, s{sW}, 10\ns_add_u32 s{sLd}, s{sLd}, 32768')
    a('s_waitcnt lgkmcnt(0)')
    srd(a, SX, 4, 5, 2048*896)
    srd(a, SW, 14, 15, 448*3584)
    a(f's_cmp_ge_u32 s{sW}, 2')
    a(f's_cselect_b32 s{SD}, s12, s10\ns_cselect_b32 s{SD+1}, s13, s11\ns_mov_b32 s{SD+2}, {448*896}\ns_mov_b32 s{SD+3}, 0x20000')
    a(f's_cselect_b32 s{SC}, s8, s6\ns_cselect_b32 s{SC+1}, s9, s7\ns_mov_b32 s{SC+2}, {2048*4096}\ns_mov_b32 s{SC+3}, 0x20000')
    a(f's_cmp_eq_u32 s{sCG}, 14\ns_cselect_b32 s{SW+2}, 0, s{SW+2}')

    def dma_group(g):
        slot = (g % 4) * K1_SLOT
        ins = []
        ins.append((f's_add_u32 m0, s{sLx}, {slot}', None))
        ins.append((f's_movk_i32 s{sT}, {g*128}', None))
        for q in range(4):
            ins.append((f'buffer_load_dwordx4 v{vXo+q}, s[{SX}:{SX+3}], s{sT} offen offset:{q*1024} lds', f'G{g}'))
        ins.append((f's_add_u32 m0, s{sLd}, {slot}', None))
        ins.append((f's_mov_b32 s{sT2}, {g*64*3584}', None))
        ins.append((f'buffer_load_dwordx4 v{vDo}, s[{SD}:{SD+3}], s{sT} offen lds', f'G{g}'))
        ins.append((f's_add_u32 m0, s{sLw}, {slot}', None))
        ins.append(('s_nop 0', None))
        for i in range(4):
            ins.append((f'buffer_load_dwordx4 v{vWo+i}, s[{SW}:{SW+3}], s{sT2} offen offset:{i*1024} lds', f'G{g}'))
        return ins
    def emit(ins):
        s, tag = ins
        if tag: a.vmem(s, tag)
        else: a(s)
    for g in range(4):
        for ins in dma_group(g): emit(ins)
    a(f's_lshl_b32 s{sT}, s{sW}, 10\ns_add_u32 m0, s{sT}, {K1_WC}\ns_nop 0')
    a.vmem(f'buffer_load_dwordx4 v{vCo}, s[{SC}:{SC+3}], 0 offen lds', 'WC')
    stamp(a, 1, STB)
    srd(a, SH, 16, 17, HB_SIZE)
    a(f's_cmp_eq_u32 s{sCG}, 14\ns_cselect_b32 s{SH+2}, 0, s{SH+2}')
    a(f's_add_u32 s{SV}, s16, {VB_OFF}\ns_addc_u32 s{SV+1}, s17, 0\ns_mov_b32 s{SV+2}, {VB_SIZE}\ns_mov_b32 s{SV+3}, 0x20000')
    a(f's_mov_b32 s{sOnes}, 0x3f803f80')
    a(f'v_and_b32 v{vU}, 31, v{vL}\nv_lshrrev_b32 v{vHH}, 5, v{vL}')
    a(f'v_bfe_u32 v{vt}, v{vU}, 1, 3\nv_xor_b32 v{vt}, v{vt}, v{vHH}')
    a(f'v_lshlrev_b32 v{vt+1}, 7, v{vU}')
    a(f's_xor_b32 s{sT}, s{sW}, 1\ns_lshl_b32 s{sT}, s{sT}, 12')
    for jj in range(4):
        a(f'v_xor_b32 v{vt+2}, {2*jj}, v{vt}\nv_lshl_add_u32 v{vt+2}, v{vt+2}, 4, v{vt+1}')
        a(f'v_add_u32 v{vRb+jj}, s{sLx}, v{vt+2}\nv_add_u32 v{vRp+jj}, s{sT}, v{vt+2}\nv_add_u32 v{vRd+jj}, 0x8000, v{vt+2}')
        for r in (vRb, vRp, vRd):
            a(f'v_add_u32 v{r+4+jj}, {2*K1_SLOT}, v{r+jj}')
    a(f'v_bfe_u32 v{vt}, v{vL}, 2, 2')
    a(f'v_lshl_add_u32 v{vt+1}, v{vHH}, 3, v{vt}\nv_lshlrev_b32 v{vt+1}, 7, v{vt+1}')
    a(f'v_lshrrev_b32 v{vt}, 1, v{vt}\nv_xor_b32 v{vt}, s{sI}, v{vt}\nv_lshl_add_u32 v{vt+1}, v{vt}, 6, v{vt+1}')
    a(f'v_bfe_u32 v{vt}, v{vL}, 4, 1\nv_lshl_add_u32 v{vt+1}, v{vt}, 5, v{vt+1}')
    a(f'v_and_b32 v{vt}, 3, v{vL}\nv_lshl_add_u32 v{vt+1}, v{vt}, 3, v{vt+1}')
    a(f's_lshl_b32 s{sT}, s{sJ}, 13\ns_add_u32 s{sT}, s{sT}, 16384')
    a(f'v_add_u32 v{vTa}, s{sT}, v{vt+1}\nv_xor_b32 v{vTb}, 64, v{vTa}')
    a(f'v_add_u32 v{vTa+1}, {2*K1_SLOT}, v{vTa}\nv_add_u32 v{vTb+1}, {2*K1_SLOT}, v{vTb}')
    for i in range(8): a(f'v_mov_b32 v{vS+i}, 0')

    def reads(n):
        g, jj = divmod(n, 4)
        half, so = (g % 4) // 2, (g % 2) * K1_SLOT
        f = FR + 20 * (n & 1)
        return [
            f'ds_read_b64_tr_b16 {vr(f+8,2)}, v{vTa+half} offset:{so + jj*2048}',
            f'ds_read_b64_tr_b16 {vr(f+10,2)}, v{vTa+half} offset:{so + jj*2048 + 512}',
            f'ds_read_b128 {vr(f)}, v{vRb+4*half+jj} offset:{so}',
            f'ds_read_b128 {vr(f+4)}, v{vRp+4*half+jj} offset:{so}',
            f'ds_read_b64_tr_b16 {vr(f+12,2)}, v{vTb+half} offset:{so + jj*2048}',
            f'ds_read_b64_tr_b16 {vr(f+14,2)}, v{vTb+half} offset:{so + jj*2048 + 512}',
            f'ds_read_b128 {vr(f+16)}, v{vRd+4*half+jj} offset:{so}',
        ]
    def mfmas(n):
        f = FR + 20 * (n & 1)
        def m(acc, A, B):
            c = vr(acc, 16) if n else '0'
            return f'v_mfma_f32_32x32x16_bf16 {vr(acc,16)}, {vr(A)}, {vr(B)}, {c}'
        return [m(ACC, f+8, f), m(ACC+16, f+8, f+4), m(ACC+32, f+12, f), m(ACC+48, f+12, f+4), m(ACC+64, f, f+16)]
    def dots(n):
        f = FR + 20 * (n & 1)
        d = []
        if OPT.get('nodot') == '1': return d
        if OPT.get('nodot') == '2': return [f'v_add_f32 v{vS+(i&7)}, v{vS+(i&7)}, v{f+i}' for i in range(16)]
        for i in range(4):
            d.append(f'v_dot2c_f32_bf16 v{vS+(i&1)}, s{sOnes}, v{f+i}')
            d.append(f'v_dot2c_f32_bf16 v{vS+2+(i&1)}, v{f+i}, v{f+i}')
            d.append(f'v_dot2c_f32_bf16 v{vS+4+(i&1)}, s{sOnes}, v{f+8+i}')
            d.append(f'v_dot2c_f32_bf16 v{vS+6+(i&1)}, s{sOnes}, v{f+16+i}')
        return d

    a.wait_vm('G0')
    a('s_barrier')
    stamp(a, 2, STB)
    for r in reads(0): a(r)
    dmaq = []
    NS = 28
    for n in range(NS):
        g, jj = divmod(n, 4)
        a('s_waitcnt lgkmcnt(0)')
        if jj == 3 and g < 6:
            a.wait_vm(f'G{g+1}')
            a('s_barrier')
            if g + 4 < 7: dmaq += dma_group(g + 4)
        rd = reads(n + 1) if n + 1 < NS else []
        if OPT.get('nord') == '1': rd = []
        dt = dots(n)
        ms = mfmas(n)
        plan = [(3, 2, 0), (3, 2, 0), (1, 4, 1), (0, 4, 2), (0, 4, 2)]
        for mi, m in enumerate(ms):
            a(m)
            nr, nd, nq = plan[mi]
            for _ in range(nr):
                if rd: a(rd.pop(0))
            for _ in range(nq):
                if dmaq:
                    emit(dmaq.pop(0))
            for _ in range(nd):
                if dt: a(dt.pop(0))
        assert not rd and not dt
    assert not dmaq
    stamp(a, 3, STB)
    t = EP
    a(f's_nop 2')
    a(f'v_add_f32 v{vS}, v{vS}, v{vS+1}\nv_add_f32 v{vS+2}, v{vS+2}, v{vS+3}\nv_add_f32 v{vS+4}, v{vS+4}, v{vS+5}\nv_add_f32 v{vS+6}, v{vS+6}, v{vS+7}')
    for i in (0, 2, 4, 6): a(f'v_mov_b32 v{vS+i+1}, v{vS+i}')
    a('s_nop 1')
    for i in (0, 2, 4, 6): a(f'v_permlane32_swap_b32 v{vS+i}, v{vS+i+1}')
    a('s_nop 1')
    for i in (0, 2, 4, 6): a(f'v_add_f32 v{vS+i}, v{vS+i}, v{vS+i+1}')
    a(f'v_mul_f32 v{t}, {1/448!r}, v{vS}'.replace(repr(1/448), '0x3b124925'))
    a(f'v_mul_f32 v{t+1}, 0x3b124925, v{vS+2}')
    a(f'v_fma_f32 v{t+1}, -v{t}, v{t}, v{t+1}')
    a(f'v_max_f32 v{t+1}, 0, v{t+1}')
    a(f'v_cvt_pk_bf16_f32 v{t+2}, v{t}, v{t+1}')
    a(f'v_lshlrev_b32 v{t}, 16, v{t+2}')
    a(f'v_and_b32 v{t+1}, 0xffff0000, v{t+2}')
    a(f'v_add_f32 v{t+1}, 0x3727c5ac, v{t+1}')
    a(f'v_cvt_pk_bf16_f32 v{t+1}, v{t+1}, v{t+1}\nv_and_b32 v{t+1}, 0xffff0000, v{t+1}')
    a(f'v_sqrt_f32 v{t+1}, v{t+1}\ns_nop 0')
    a(f'v_cvt_pk_bf16_f32 v{t+1}, v{t+1}, v{t+1}\nv_and_b32 v{t+1}, 0xffff0000, v{t+1}')
    a(f'v_rcp_f32 v{t+1}, v{t+1}')
    a(f'v_lshlrev_b32 v{t+3}, 2, v{vU}')
    a(f's_lshl_b32 s{sT}, s{sW}, 7\ns_add_u32 s{sT}, s{sT}, {K1_STAT}')
    a(f'v_add_u32 v{t+4}, s{sT}, v{t+3}')
    a(f's_lshl_b32 s{sT}, s{sJ}, 1\ns_add_u32 s{sT}, s{sT}, s{sI}\ns_lshl_b32 s{sT}, s{sT}, 7\ns_add_u32 s{sT}, s{sT}, {K1_STAT+1024}')
    a(f'v_add_u32 v{t+5}, s{sT}, v{t+3}')
    a(f'ds_write_b32 v{t+4}, v{t}\nds_write_b32 v{t+4}, v{t+1} offset:512\nds_write_b32 v{t+5}, v{vS+4}')
    a(f's_xor_b32 s{sT}, s{sW}, 1\ns_lshl_b32 s{sT}, s{sT}, 7\ns_add_u32 s{sT}, s{sT}, {K1_STAT}')
    a(f'v_add_u32 v{t+6}, s{sT}, v{t+3}')
    a(f'v_lshlrev_b32 v{t+7}, 4, v{vHH}')
    a(f's_lshl_b32 s{sT}, s{sW}, 7\ns_add_u32 s{sT}, s{sT}, {K1_STAT}')
    a(f'v_add_u32 v{t+8}, s{sT}, v{t+7}')
    a(f's_lshl_b32 s{sT}, s{sJ}, 1\ns_add_u32 s{sT}, s{sT}, s{sI}\ns_lshl_b32 s{sT}, s{sT}, 7\ns_add_u32 s{sT}, s{sT}, {K1_STAT+1024}')
    a(f'v_add_u32 v{t+9}, s{sT}, v{t+7}')
    a(f'v_xor_b32 v{t+10}, 128, v{t+9}')
    a(f'v_lshlrev_b32 v{t+11}, 6, v{vU}\nv_lshl_add_u32 v{t+11}, v{vHH}, 3, v{t+11}\nv_add_u32 v{t+11}, {K1_WC}, v{t+11}')
    a.wait_vm('WC')
    a('s_waitcnt lgkmcnt(0)')
    a('s_barrier')
    ZM, ZR = FR, FR + 16
    CA, CB = EP + 16, EP + 32
    WCs = EP + 48
    PM = FR + 32
    for q in range(4): a(f'ds_read_b128 {vr(ZM+4*q)}, v{t+8} offset:{32*q}')
    for q in range(4): a(f'ds_read_b128 {vr(ZR+4*q)}, v{t+8} offset:{512+32*q}')
    for q in range(4): a(f'ds_read_b128 {vr(CA+4*q)}, v{t+9} offset:{32*q}')
    a(f'ds_read_b32 v{PM}, v{t+6}\nds_read_b32 v{PM+2}, v{t+6} offset:512')
    ZA = ACC + 64
    a(f's_waitcnt lgkmcnt(6)')
    for q in range(4): a(f'ds_read_b128 {vr(CB+4*q)}, v{t+10} offset:{32*q}')
    for r in range(16):
        a(f'v_fma_f32 v{ZA+r}, -v{ZM+r}, v{vS+6}, v{ZA+r}')
    for k in range(4):
        a(f'ds_read_b64 {vr(WCs+2*k,2)}, v{t+11} offset:{16*k}')
    for r in range(16):
        a(f'v_mul_f32 v{ZA+r}, v{ZA+r}, v{ZR+r}')
    for k in range(4):
        a(f'ds_read_b64 {vr(WCs+8+2*k,2)}, v{t+11} offset:{2048+16*k}')
    B1, B2 = ZM, ZM + 8
    vSg = t + 12
    a(f'v_bfe_u32 v{vSg}, v{vL}, 4, 1\nv_mul_u32_u24 v{vSg}, 0x8000, v{vSg}\nv_lshl_or_b32 v{vSg}, v{vSg}, 16, v{vSg}')
    for p in range(8):
        a(f'v_cvt_pk_bf16_f32 v{B1+p}, v{ZA+2*p}, v{ZA+2*p+1}')
    for p in range(8):
        a(f'v_xor_b32 v{B1+p}, v{B1+p}, v{vSg}')
    a('s_waitcnt lgkmcnt(0)')
    for p in range(8):
        a(f'ds_swizzle_b32 v{B2+p}, v{B1+p} offset:0x401f')
    OM, OR_ = t, t + 1
    def hblock(acc, C, m, r, out):
        ins = []
        for rr in range(16):
            ins.append(f'v_fma_f32 v{acc+rr}, -v{m}, v{C+rr}, v{acc+rr}')
        for rr in range(16):
            ins.append(f'v_mul_f32 v{acc+rr}, v{r}, v{acc+rr}')
        for p in range(8):
            ins.append(f'v_cvt_pk_bf16_f32 v{out+p}, v{acc+2*p}, v{acc+2*p+1}')
        for p in range(8):
            ins.append(f'v_pk_max_i16 v{out+p}, v{out+p}, 0')
        return ins
    vHo = t + 14
    a(f'v_lshlrev_b32 v{vHo}, 4, v{vL}')
    sHA0, sHA1, sHB0, sHB1 = 56, 57, 58, 59
    a(f's_lshl_b32 s{sT}, s{sCG}, 3\ns_lshl_b32 s{sT2}, s{sJ}, 2\ns_add_u32 s{sT}, s{sT}, s{sT2}\ns_lshl_b32 s{sT2}, s{sI}, 1\ns_add_u32 s{sT}, s{sT}, s{sT2}\ns_lshl_b32 s{sT}, s{sT}, 10')
    a(f's_mul_i32 s{sT2}, s{sSig}, {HB_SIG}\ns_add_u32 s{sHA0}, s{sT}, s{sT2}')
    a(f's_xor_b32 s{sT2}, s{sSig}, 1\ns_mul_i32 s{sT2}, s{sT2}, {HB_SIG}\ns_add_u32 s{sHA1}, s{sT}, s{sT2}')
    a(f's_xor_b32 s{sHB0}, s{sHA0}, 2048\ns_xor_b32 s{sHB1}, s{sHA1}, 2048')
    def hstore(out, so):
        a.vmem(f'buffer_store_dwordx4 {vr(out)}, v{vHo}, s[{SH}:{SH+3}], s{so} offen {K1ST}', 'ST')
        a.vmem(f'buffer_store_dwordx4 {vr(out+4)}, v{vHo}, s[{SH}:{SH+3}], s{so} offen offset:1024 {K1ST}', 'ST')
    O0, O1, O2, O3 = ZR, ZR + 8, ACC, ACC + 16
    for s in hblock(ACC, CA, OM, OR_, O0): a(s)
    hstore(O0, sHA0)
    a('s_waitcnt lgkmcnt(0)')
    for p in range(8):
        a(f'v_xor_b32 v{B2+p}, v{B2+p}, v{vSg}')
    a('s_nop 1')
    VA = ZA
    a(f'v_mfma_f32_32x32x16_bf16 {vr(VA,16)}, {vr(WCs)}, {vr(B1)}, 0')
    a(f'v_mfma_f32_32x32x16_bf16 {vr(VA,16)}, {vr(WCs+4)}, {vr(B1+4)}, {vr(VA,16)}')
    a(f'v_mfma_f32_32x32x16_bf16 {vr(VA,16)}, {vr(WCs+8)}, {vr(B2)}, {vr(VA,16)}')
    a(f'v_mfma_f32_32x32x16_bf16 {vr(VA,16)}, {vr(WCs+12)}, {vr(B2+4)}, {vr(VA,16)}')
    for s in hblock(ACC+16, CA, PM, PM+2, O1): a(s)
    hstore(O1, sHA1)
    vVo = t + 15
    a(f'v_bfe_u32 v{vVo}, v{vL}, 4, 1\nv_lshl_add_u32 v{vVo}, v{vHH}, 2, v{vVo}\nv_lshlrev_b32 v{vVo}, 16, v{vVo}')
    a(f'v_and_b32 v{vt}, 15, v{vL}\nv_lshl_add_u32 v{vVo}, v{vt}, 4, v{vVo}')
    a(f's_lshl_b32 s{sT}, s{sCG}, 8\ns_lshr_b32 s{sT2}, s{sSig}, 2\ns_lshl_b32 s{sT2}, s{sT2}, 12\ns_add_u32 s{sT}, s{sT}, s{sT2}\ns_and_b32 s{sT2}, s{sSig}, 3\ns_lshl_b32 s{sT2}, s{sT2}, 2\ns_add_u32 s{sT}, s{sT}, s{sT2}')
    a(f'v_add_u32 v{vVo}, s{sT}, v{vVo}')
    for p in range(8):
        a(f'v_permlane16_swap_b32 v{VA+2*p}, v{VA+2*p+1}')
    a('s_nop 1')
    for p in range(8):
        a(f'v_cvt_pk_bf16_f32 v{B1+p}, v{VA+2*p}, v{VA+2*p+1}')
    for p in range(8):
        t1b = (2*p & 3) + 8 * (p >> 1)
        a(f's_mov_b32 s{sT}, {t1b*65536}')
        a.vmem(f'buffer_store_dword v{B1+p}, v{vVo}, s[{SV}:{SV+3}], s{sT} offen {K1ST}', 'ST')
    for s in hblock(ACC+32, CB, OM, OR_, O2): a(s)
    hstore(O2, sHB0)
    for s in hblock(ACC+48, CB, PM, PM+2, O3): a(s)
    hstore(O3, sHB1)
    stamp(a, 4, STB)
    if STAMP:
        a('s_waitcnt vmcnt(0)')
        stamp(a, 5, STB)
        stamp_store(a, 14, STB, 16, 17, 0, sW, vt)
    a('Lk1_end:')
    a('s_endpgm')
    return a.text(), 256

K2_SLOT = 32768
K2_NS = 4
K2_XT = K2_NS * K2_SLOT
K2_LDS = K2_XT + 8192
VT_POS = 2

def gen_k2():
    a = Asm()
    SH, SW, SV, SC, SX, SO = 20, 24, 28, 32, 36, 40
    sW, sCB, sRB, sT1, sCT = 44, 45, 46, 47, 48
    sLh, sLw, sT, sT2, sHb, sSig = 49, 50, 51, 52, 53, 54
    STB = 70
    vHo = 2; vWo = 3
    vVo = 7; vTo = 8
    vXo = 10
    vRh = 12
    vTa = 14
    vRv = 16; vRt = 17
    vSg = 21
    vL, vU, vHH = 22, 23, 24
    vXr = 25
    vOr = 29
    vOo = 31
    vt = 34
    FR = 48
    ACC = 112
    TT = 128
    a('s_cmp_ge_u32 s2, 224\ns_cbranch_scc1 Lk2_end')
    if OPT.get('badmap'): a('s_and_b32 s3, s2, 7\ns_lshr_b32 s2, s2, 3\ns_mul_i32 s3, s3, 28\ns_add_u32 s2, s2, s3')
    a('s_load_dwordx4 s[4:7], s[0:1], 0')
    a('s_load_dwordx2 s[8:9], s[0:1], 16')
    a('s_load_dwordx4 s[12:15], s[0:1], 56')
    a('s_load_dwordx2 s[16:17], s[0:1], 80')
    stamp(a, 0, STB)
    a(f's_and_b32 s{sT1}, s2, 7\ns_lshl_b32 s{sT1}, s{sT1}, 2\ns_bfe_u32 s{sT}, s2, 0x20003\ns_add_u32 s{sT1}, s{sT1}, s{sT}\ns_lshr_b32 s{sCT}, s2, 5')
    a(f'v_lshrrev_b32 v{vt}, 6, v0\nv_and_b32 v{vL}, 63, v0')
    a(f'v_readfirstlane_b32 s{sW}, v{vt}')
    a(f'v_lshrrev_b32 v{vt+1}, 3, v{vL}\nv_and_b32 v{vt+2}, 7, v{vL}\nv_lshrrev_b32 v{vt+3}, 1, v{vt+1}')
    a(f'v_lshlrev_b32 v{vHo}, 4, v{vL}')
    a(f's_and_b32 s{sCB}, s{sW}, 1\ns_lshr_b32 s{sRB}, s{sW}, 1')
    a(f's_lshl_b32 s{sT}, s{sCB}, 5\ns_add_u32 s{sSig}, s{sT}, s{sT1}')
    a(f's_mul_i32 s{sHb}, s{sSig}, {HB_SIG}\ns_lshl_b32 s{sT}, s{sRB}, 12\ns_add_u32 s{sHb}, s{sHb}, s{sT}')
    a(f's_lshl_b32 s{sLh}, s{sCB}, 13\ns_add_u32 s{sLh}, s{sLh}, s{sT}')
    a(f'v_and_b32 v{vt+4}, 1, v{vt+3}\nv_lshlrev_b32 v{vt+4}, 2, v{vt+4}\nv_xor_b32 v{vt+4}, v{vt+4}, v{vt+2}\nv_lshlrev_b32 v{vt+4}, 4, v{vt+4}')
    a(f'v_mul_u32_u24 v{vt+5}, 896, v{vt+1}')
    a(f's_mul_i32 s{sT}, s{sW}, {32*896}\ns_lshl_b32 s{sT2}, s{sCT}, 7\ns_add_u32 s{sT}, s{sT}, s{sT2}')
    a(f'v_add3_u32 v{vWo}, v{vt+5}, v{vt+4}, s{sT}')
    for i in range(1, 4): a(f'v_add_u32 v{vWo+i}, {i*(7168-1024)}, v{vWo}')
    a(f's_lshl_b32 s{sLw}, s{sW}, 12\ns_add_u32 s{sLw}, s{sLw}, 16384')
    a('s_waitcnt lgkmcnt(0)')
    srd(a, SH, 16, 17, HB_SIZE)
    srd(a, SW, 12, 13, 1792*896)

    order = list(range(14)); order.insert(VT_POS, 'VT')
    NG = len(order)
    def dma_group(gi):
        G = order[gi]; slot = (gi % K2_NS) * K2_SLOT
        ins = []
        tag = f'G{gi}'
        if G != 'VT':
            ins.append((f's_add_u32 m0, s{sLh}, {slot}', None))
            ins.append((f's_add_u32 s{sT}, s{sHb}, {G*8192}', None))
            for i in range(4):
                ins.append((f'buffer_load_dwordx4 v{vHo}, s[{SH}:{SH+3}], s{sT} offen offset:{i*1024} lds {LDFL}', tag))
            ins.append((f's_add_u32 m0, s{sLw}, {slot}', None))
            ins.append((f's_mov_b32 s{sT}, {G*128*896}', None))
            for i in range(4):
                ins.append((f'buffer_load_dwordx4 v{vWo+i}, s[{SW}:{SW+3}], s{sT} offen offset:{i*1024} lds', tag))
        else:
            ins.append((f's_add_u32 m0, s{sLh}, {slot}', None))
            for i in range(4):
                ins.append((f's_mov_b32 s{sT}, {(4*(i>>1) + (i&1))*4096 - i*1024}', None))
                ins.append((f'buffer_load_dwordx4 v{vVo}, s[{SV}:{SV+3}], s{sT} offen offset:{i*1024} lds {LDFL}', tag))
            ins.append((f's_add_u32 m0, s{sLw}, {slot}', None))
            for q in range(4):
                ins.append((f's_mov_b32 s{sT}, {q*(8*64*4096) - q*1024}', None))
                ins.append((f'buffer_load_dwordx4 v{vTo+(q&1)}, s[{SC}:{SC+3}], s{sT} offen offset:{q*1024} lds', tag))
        return ins
    def emit(ins):
        s, tag = ins
        if tag: a.vmem(s, tag)
        else: a(s)
    npre = 0
    while order[npre] != 'VT' and npre < K2_NS - 1:
        for ins in dma_group(npre): emit(ins)
        npre += 1
    a(f'v_and_b32 v{vU}, 31, v{vL}\nv_lshrrev_b32 v{vHH}, 5, v{vL}')
    a(f's_add_u32 s{SV}, s16, {VB_OFF}\ns_addc_u32 s{SV+1}, s17, 0\ns_mov_b32 s{SV+2}, {VB_SIZE}\ns_mov_b32 s{SV+3}, 0x20000')
    a(f's_cmp_ge_u32 s{sW}, 2\ns_cselect_b32 s{SC}, s8, s6\ns_cselect_b32 s{SC+1}, s9, s7\ns_mov_b32 s{SC+2}, {2048*4096}\ns_mov_b32 s{SC+3}, 0x20000')
    srd(a, SX, 4, 5, 2048*896)
    srd(a, SO, 14, 15, 2048*896)
    a(f's_lshl_b32 s{sT}, s{sCT}, 6\ns_lshl_b32 s{sT2}, s{sCB}, 5\ns_add_u32 s{sT}, s{sT}, s{sT2}')
    a(f'v_add_u32 v{vt+4}, s{sT}, v{vU}')
    a(f'v_sub_u32 v{vt+5}, 448, v{vt+4}')
    a(f'v_cmp_lt_u32 vcc, 239, v{vt+4}')
    a(f's_sub_u32 s{sT}, 32, s{sT1}\ns_and_b32 s{sT}, s{sT}, 31')
    a(f'v_mov_b32 v{vt+6}, s{sT1}\nv_mov_b32 v{vt+7}, s{sT}\nv_mov_b32 v{vt+8}, 0\nv_bfrev_b32 v{vt+9}, 1')
    a(f'v_cndmask_b32 v{vt+4}, v{vt+4}, v{vt+5}, vcc\nv_cndmask_b32 v{vt+6}, v{vt+6}, v{vt+7}, vcc\nv_cndmask_b32 v{vSg}, v{vt+8}, v{vt+9}, vcc')
    a(f'v_lshlrev_b32 v{vVo}, 16, v{vt+6}\nv_lshl_add_u32 v{vVo}, v{vt+4}, 4, v{vVo}\nv_lshl_add_u32 v{vVo}, v{vHH}, 13, v{vVo}')
    a(f's_lshl_b32 s{sT}, s{sRB}, 15\nv_add_u32 v{vVo}, s{sT}, v{vVo}')
    a(f'v_xor_b32 v{vt+4}, v{vt+2}, v{vt+3}\nv_lshlrev_b32 v{vt+4}, 4, v{vt+4}')
    a(f'v_lshl_add_u32 v{vTo}, v{vt+1}, 18, v{vt+4}')
    a(f's_lshl_b32 s{sT}, s{sSig}, 12\nv_add_u32 v{vTo}, s{sT}, v{vTo}\nv_xor_b32 v{vTo+1}, 64, v{vTo}')
    while npre < K2_NS - 1 or order[npre-1] == 'x':
        for ins in dma_group(npre): emit(ins)
        npre += 1
    a(f'v_mul_u32_u24 v{vt+5}, {64*896}, v{vt+1}')
    a(f's_mul_i32 s{sT}, s{sSig}, 896\ns_lshl_b32 s{sT2}, s{sCT}, 7\ns_add_u32 s{sT}, s{sT}, s{sT2}\ns_mul_i32 s{sT2}, s{sRB}, {2*458752}\ns_add_u32 s{sT}, s{sT}, s{sT2}')
    a(f'v_add3_u32 v{vXo}, v{vt+5}, v{vt+4}, s{sT}\nv_xor_b32 v{vXo+1}, 64, v{vXo}\nv_add_u32 v{vXo+1}, {458752-1024}, v{vXo+1}')
    a(f's_lshl_b32 s{sT}, s{sCB}, 12\ns_lshl_b32 s{sT2}, s{sRB}, 11\ns_add_u32 s{sT}, s{sT}, s{sT2}\ns_add_u32 m0, s{sT}, {K2_XT}\ns_nop 0')
    a.vmem(f'buffer_load_dwordx4 v{vXo}, s[{SX}:{SX+3}], 0 offen lds', 'X')
    a.vmem(f'buffer_load_dwordx4 v{vXo+1}, s[{SX}:{SX+3}], 0 offen offset:1024 lds', 'X')
    for ins in dma_group(npre): emit(ins)
    npre += 1
    stamp(a, 1, STB)
    a(f's_lshl_b32 s{sT}, s{sRB}, 13\nv_add_u32 v{vRh}, s{sT}, v{vHo}\nv_add_u32 v{vRh+1}, {2*K2_SLOT}, v{vRh}')
    a(f's_lshl_b32 s{sT}, s{sCB}, 13\nv_add_u32 v{vRv}, s{sT}, v{vHo}')
    a(f'v_bfe_u32 v{vt}, v{vL}, 2, 2')
    a(f'v_lshl_add_u32 v{vt+1}, v{vHH}, 2, v{vt}\nv_lshlrev_b32 v{vt+1}, 7, v{vt+1}')
    a(f'v_lshrrev_b32 v{vt}, 1, v{vt}\nv_xor_b32 v{vt}, s{sCB}, v{vt}\nv_lshl_add_u32 v{vt+1}, v{vt}, 6, v{vt+1}')
    a(f'v_bfe_u32 v{vt}, v{vL}, 4, 1\nv_lshl_add_u32 v{vt+1}, v{vt}, 5, v{vt+1}')
    a(f'v_and_b32 v{vt}, 3, v{vL}\nv_lshl_add_u32 v{vt+1}, v{vt}, 3, v{vt+1}')
    a(f'v_add_u32 v{vTa}, 0x4000, v{vt+1}\nv_add_u32 v{vTa+1}, {2*K2_SLOT}, v{vTa}')
    a(f'v_bfe_u32 v{vt}, v{vU}, 1, 3')
    a(f's_lshl_b32 s{sT}, s{sRB}, 12\nv_lshlrev_b32 v{vt+1}, 7, v{vU}\nv_add_u32 v{vt+1}, s{sT}, v{vt+1}')
    vtslot = (VT_POS % K2_NS) * K2_SLOT
    a(f'v_xor_b32 v{vt+2}, v{vt}, v{vHH}')
    for m in range(4):
        a(f'v_xor_b32 v{vt+3}, {2*m}, v{vt+2}\nv_lshl_add_u32 v{vRt+m}, v{vt+3}, 4, v{vt+1}\nv_add_u32 v{vRt+m}, {vtslot+16384}, v{vRt+m}')
    a(f'v_add_u32 v{vRv}, {vtslot}, v{vRv}')
    a(f's_lshl_b32 s{sT}, s{sCB}, 2\nv_xor_b32 v{vt+2}, s{sT}, v{vt}\nv_lshl_add_u32 v{vt+4}, v{vHH}, 3, v{vt+1}\nv_add_u32 v{vt+4}, {K2_XT}, v{vt+4}')
    for q in range(4):
        a(f'v_xor_b32 v{vt+3}, {q}, v{vt+2}\nv_lshl_add_u32 v{vXr+q}, v{vt+3}, 4, v{vt+4}')
    a(f'v_lshrrev_b32 v{vt}, 2, v{vL}\nv_and_b32 v{vt+1}, 3, v{vL}\nv_lshrrev_b32 v{vt+2}, 1, v{vt}')
    a(f's_lshl_b32 s{sT}, s{sCB}, 2\nv_add_u32 v{vt+1}, s{sT}, v{vt+1}')
    a(f'v_xor_b32 v{vt+2}, v{vt+2}, v{vt+1}\nv_lshlrev_b32 v{vt+2}, 4, v{vt+2}\nv_lshl_add_u32 v{vt+2}, v{vt}, 7, v{vt+2}')
    a(f's_lshl_b32 s{sT}, s{sRB}, 12\ns_add_u32 s{sT}, s{sT}, {K2_XT}\nv_add_u32 v{vOr}, s{sT}, v{vt+2}')
    a(f'v_mul_u32_u24 v{vt+2}, {64*896}, v{vt}\nv_lshl_add_u32 v{vt+2}, v{vt+1}, 4, v{vt+2}')
    a(f's_lshl_b32 s{sT}, s{sRB}, 5\ns_add_u32 s{sT}, s{sT}, s{sT1}\ns_mul_i32 s{sT}, s{sT}, 896\ns_lshl_b32 s{sT2}, s{sCT}, 7\ns_add_u32 s{sT}, s{sT}, s{sT2}')
    a(f'v_add_u32 v{vOo}, s{sT}, v{vt+2}\nv_add_u32 v{vOo+1}, {16*64*896}, v{vOo}')
    a(f's_mov_b32 s56, 0x05040100\ns_mov_b32 s57, 0x07060302')

    first = True
    for gi in range(NG):
        G = order[gi]
        slot = gi % K2_NS
        half, so = slot // 2, (slot % 2) * K2_SLOT
        a.wait_vm(f'G{gi}')
        a('s_barrier')
        if gi == 0: stamp(a, 2, STB)
        if gi >= 1 and gi + K2_NS - 1 < NG:
            for ins in dma_group(gi + K2_NS - 1): emit(ins)
        if G != 'VT':
            def rd(ks):
                f = FR + 8 * ks
                return [f'ds_read_b64_tr_b16 {vr(f,2)}, v{vTa+half} offset:{so + ks*2048}',
                        f'ds_read_b64_tr_b16 {vr(f+2,2)}, v{vTa+half} offset:{so + ks*2048 + 1024}',
                        f'ds_read_b128 {vr(f+4)}, v{vRh+half} offset:{so + ks*1024}']
            for ks in range(4):
                for r in rd(ks): a(r)
            for ks in range(8):
                out = min(9, 3 * (7 - ks))
                a(f's_waitcnt lgkmcnt({out})')
                f = FR + 8 * ks
                c = '0' if first else vr(ACC, 16)
                first = False
                a(f'v_mfma_f32_32x32x16_bf16 {vr(ACC,16)}, {vr(f)}, {vr(f+4)}, {c}')
                if ks + 4 < 8:
                    for r in rd(ks + 4): a(r)
        else:
            for m in range(4):
                a(f'ds_read_b128 {vr(TT+8*m)}, v{vRt+m}\nds_read_b128 {vr(TT+8*m+4)}, v{vRt+m} offset:8192')
            for j in range(4):
                a(f'ds_read_b128 {vr(FR+8*j)}, v{vRv} offset:{j*1024}')
            a('s_waitcnt lgkmcnt(4)')
            for j in range(4, 8):
                a(f'ds_read_b128 {vr(FR+8*j)}, v{vRv} offset:{j*1024}')
            for j in range(8):
                m, jj = divmod(j, 2)
                C, S_ = TT + 8*m + 2*jj, TT + 8*m + 4 + 2*jj
                f = FR + 8*j + 4
                a(f'v_perm_b32 v{f}, v{S_}, v{C}, s56\nv_perm_b32 v{f+1}, v{S_}, v{C}, s57')
                a(f'v_perm_b32 v{f+2}, v{S_+1}, v{C+1}, s56\nv_perm_b32 v{f+3}, v{S_+1}, v{C+1}, s57')
            a('s_waitcnt lgkmcnt(0)')
            for j in range(8):
                for i in range(4): a(f'v_xor_b32 v{FR+8*j+i}, v{FR+8*j+i}, v{vSg}')
            a('s_nop 1')
            for j in range(8):
                f = FR + 8*j
                a(f'v_mfma_f32_32x32x16_bf16 {vr(ACC,16)}, {vr(f)}, {vr(f+4)}, {vr(ACC,16)}')
    stamp(a, 3, STB)
    XR = TT
    for q in range(4): a(f'ds_read_b64 {vr(XR+2*q,2)}, v{vXr+q}')
    a('s_waitcnt lgkmcnt(0)')
    for q in range(4):
        for h in range(2):
            a(f'v_lshlrev_b32 v{XR+8+4*q+2*h}, 16, v{XR+2*q+h}\nv_and_b32 v{XR+8+4*q+2*h+1}, 0xffff0000, v{XR+2*q+h}')
    a('s_nop 7')
    for r in range(16): a(f'v_add_f32 v{ACC+r}, v{ACC+r}, v{XR+8+r}')
    for p in range(8): a(f'v_cvt_pk_bf16_f32 v{XR+p}, v{ACC+2*p}, v{ACC+2*p+1}')
    for q in range(4): a(f'ds_write_b64 v{vXr+q}, {vr(XR+2*q,2)}')
    a('s_waitcnt lgkmcnt(0)')
    a(f'ds_read_b128 {vr(FR)}, v{vOr}\nds_read_b128 {vr(FR+4)}, v{vOr} offset:2048')
    a('s_waitcnt lgkmcnt(1)')
    a(f'buffer_store_dwordx4 {vr(FR)}, v{vOo}, s[{SO}:{SO+3}], 0 offen')
    a('s_waitcnt lgkmcnt(0)')
    a(f'buffer_store_dwordx4 {vr(FR+4)}, v{vOo+1}, s[{SO}:{SO+3}], 0 offen')
    stamp(a, 4, STB)
    if STAMP:
        a('s_waitcnt vmcnt(0)')
        stamp(a, 5, STB)
        stamp_store(a, 14, STB, 16, 17, 1, sW, vt)
    a('Lk2_end:')
    a('s_endpgm')
    return a.text(), 160

def main():
    k1, v1 = gen_k1(); k2, v2 = gen_k2()
    out = []
    out.append(f'; @launch kernel=fnet_k1_kernel grid=(256,1,1) block=(256,1,1) lds={K1_LDS}')
    out.append(f'; @launch kernel=fnet_k2_kernel grid=(224,1,1) block=(256,1,1) lds={K2_LDS}')
    out.append('.amdgcn_target "amdgcn-amd-amdhsa--gfx950"\n.text')
    for nm, body in (('fnet_k1_kernel', k1), ('fnet_k2_kernel', k2)):
        out.append(f'.globl {nm}\n.p2align 8\n.type {nm},@function\n{nm}:')
        out.append(body)
    out.append(kd('fnet_k1_kernel', v1)); out.append(kd('fnet_k2_kernel', v2))
    print('\n'.join(out))
main()
```

```python
import sys, struct
NAME = 'parallel_sum__spectral_fnet__dense_activation_relu__prompt'
OPT = dict(a.split('=') for a in sys.argv[1:] if '=' in a)
STAMP = int(OPT.get('stamp', 0))
RATE = int(OPT.get('rate', 3))
SPRE = int(OPT.get('spre', 12))
HB0 = int(OPT.get('hb0', 16))
TOUCH = int(OPT.get('touch', 0))

def f2h(x): return '0x%08x' % struct.unpack('<I', struct.pack('<f', x))[0]

HB_SIG = 112 * 1024
HB_SIZE = 64 * HB_SIG
VB_OFF = 0x800000
VB_SIZE = 32 * 16 * 256 * 16
SM_OFF = 0xA00000
SM_SIZE = 0x20000
SMo, SRI, CSW, CSZ = 0x0, 0x4000, 0x8000, 0xC000
FLH, FLS, FLC, EPO = 0x10000, 0x12000, 0x12400, 0x14000
ST_OFF = 0x1000000
SLOT = 36864
VX = 4 * SLOT
AREA = 40960
LDS_SIZE = 163840
SPIN_MAX = 1 << 17

SX, SW, SD, SH, SV, SM, SW2, SO = 24, 28, 32, 36, 40, 44, 48, 52
sTag = 56
sW, sI, sJ, sRT, sCG, sSig, sLx, sLw, sLd, sT, sT2, sT3, sT1, sCT = 58, 59, 60, 61, 62, 63, 64, 65, 66, 67, 68, 69, 70, 71
sA0, sA1, sA2, sA3, sA4, sOnes, sSpin = 72, 73, 74, 75, 76, 77, 78
STB = 82
vL, vU, vHH = 1, 2, 3
vXo, vWo, vDo = 4, 8, 12
vRb, vRp, vRd, vTa, vTb = 13, 21, 29, 37, 39
vM8, vU8, vH16, vPa, vP = 41, 42, 43, 44, 46
vt = 48
WC, TF, FR, ACC = 56, 72, 104, 144
MO, MP, CA, CB, CZ, ZR = 224, 228, 232, 234, 236, 240
aW, aH, aF = 0, 96, 224
NAGPR = 248

class Asm:
    def __init__(self):
        self.L = []; self.vm = []; self.nlab = 0
    def __call__(self, s):
        for line in s.split('\n'):
            line = line.strip()
            self.L.append(line if line.endswith(':') else '    ' + line)
    def vmem(self, s, tag):
        self(s); self.vm.append(tag)
    def emit(self, ins):
        s, tag = ins
        if callable(s): s()
        elif tag: self.vmem(s, tag)
        else: self(s)
    def wait_vm(self, tag):
        if tag not in self.vm: return
        idx = max(i for i, t in enumerate(self.vm) if t == tag)
        n = len(self.vm) - 1 - idx
        self(f's_waitcnt vmcnt({min(n, 63)})')
        self.vm = self.vm[idx + 1:]
    def label(self, p):
        self.nlab += 1
        return f'L{p}_{self.nlab}'
    def text(self): return '\n'.join(self.L)

def vr(b, n=4): return f'v[{b}:{b+n-1}]'
def ar(b, n=4): return f'a[{b}:{b+n-1}]'
def sr(b, n=4): return f's[{b}:{b+n-1}]'
def srd(a, d, lo, size, off=0):
    if off: a(f's_add_u32 s{d}, s{lo}, {off}\ns_addc_u32 s{d+1}, s{lo+1}, 0')
    else: a(f's_mov_b32 s{d}, s{lo}\ns_mov_b32 s{d+1}, s{lo+1}')
    a(f's_mov_b32 s{d+2}, {size}\ns_mov_b32 s{d+3}, 0x20000')
def stamp(a, idx):
    if STAMP: a(f's_memrealtime s[{STB+2*idx}:{STB+2*idx+1}]')
def mfma(D, A, B, C): return f'v_mfma_f32_32x32x16_bf16 {D}, {A}, {B}, {C}'

def stamp_store(a):
    if not STAMP: return
    a('s_waitcnt vmcnt(0) lgkmcnt(0)')
    stamp(a, 9)
    a('s_waitcnt lgkmcnt(0)')
    if STAMP == 3:
        pa, pb = map(int, OPT['probe'].split(','))
        sk = a.label('pskip'); sp = a.label('pspin')
        a(f's_cmp_lg_u32 s2, {OPT.get("pwg", 0)}\ns_cbranch_scc1 {sk}\ns_cmp_lg_u32 s{sW}, {OPT.get("pwv", 0)}\ns_cbranch_scc1 {sk}')
        a(f's_sub_u32 s{sT}, s{STB+2*pb}, s{STB+2*pa}\ns_min_u32 s{sT}, s{sT}, 5000\ns_mul_i32 s{sT}, s{sT}, 10')
        a(f's_memrealtime s[4:5]\ns_waitcnt lgkmcnt(0)\ns_add_u32 s{sT}, s{sT}, s4')
        a(f'{sp}:\ns_memrealtime s[4:5]\ns_waitcnt lgkmcnt(0)\ns_sub_u32 s{sT2}, s{sT}, s4\ns_cmp_gt_i32 s{sT2}, 0\ns_cbranch_scc1 {sp}')
        a(f'{sk}:')
        return
    srd(a, SX, 18, 65536, ST_OFF)
    a(f's_lshl_b32 s{sT}, s2, 2\ns_add_u32 s{sT}, s{sT}, s{sW}\ns_lshl_b32 s{sT}, s{sT}, 6')
    a(f'v_mov_b32 v5, s{sT}')
    for i in range(10):
        a(f'v_mov_b32 v4, s{STB+2*i}')
        a(f'buffer_store_dword v4, v5, {sr(SX)}, 0 offen offset:{4*i}')
        a('s_nop 1')

def poll_issue(a, tag, va=vPa, vd=vP):
    a.vmem(f'buffer_load_dwordx2 {vr(vd,2)}, v{va}, {sr(SM)}, 0 offen sc1', tag)
def poll_check(a, tag, va=vPa, vd=vP):
    ok = a.label('ok'); lp = a.label('spin')
    a.wait_vm(tag)
    a(f'v_cmp_ne_u64 vcc, s[{sTag}:{sTag+1}], {vr(vd,2)}')
    a(f's_cbranch_vccz {ok}')
    a(f's_mov_b32 s{sSpin}, {SPIN_MAX}')
    a(f'{lp}:')
    a(f'buffer_load_dwordx2 {vr(vd,2)}, v{va}, {sr(SM)}, 0 offen sc1')
    a(f's_sub_u32 s{sSpin}, s{sSpin}, 1\ns_cbranch_scc1 {ok}')
    a('s_waitcnt vmcnt(0)')
    a(f'v_cmp_ne_u64 vcc, s[{sTag}:{sTag+1}], {vr(vd,2)}')
    a(f's_cbranch_vccnz {lp}')
    a(f'{ok}:')
def flag_store(a, soff_sgpr, tmp):
    a(f'v_mov_b32 v{tmp}, s{sTag}\nv_mov_b32 v{tmp+1}, s{sTag+1}\nv_mov_b32 v{tmp+2}, 0')
    a('s_mov_b64 exec, 1')
    a.vmem(f'buffer_store_dwordx2 {vr(tmp,2)}, v{tmp+2}, {sr(SM)}, s{soff_sgpr} offen sc1', 'FL')
    a('s_mov_b64 exec, -1')

def dma_group(role, g):
    slot = (g % 4) * SLOT
    ins = []
    ins.append((f's_movk_i32 s{sA0}, {g*128}', None))
    if role != 'C':
        ins.append((f's_add_u32 m0, s{sLx}, {slot}', None))
        ins.append(('s_nop 0', None))
        for q in range(4):
            ins.append((f'buffer_load_dwordx4 v{vXo+q}, {sr(SX)}, s{sA0} offen offset:{q*1024} lds', f'G{g}'))
    ins.append((f's_add_u32 m0, s{sLd}, {slot}', None))
    ins.append((f's_mov_b32 s{sA1}, {g*64*3584}', None))
    ins.append((f'buffer_load_dwordx4 v{vDo}, {sr(SD)}, s{sA0} offen lds', f'G{g}'))
    if role != 'B':
        ins.append((f's_add_u32 m0, s{sLw}, {slot}', None))
        ins.append(('s_nop 0', None))
        for i in range(4):
            ins.append((f'buffer_load_dwordx4 v{vWo+i}, {sr(SW)}, s{sA1} offen offset:{i*1024} lds', f'G{g}'))
    return ins

def p1_addr_dma(a):
    t = FR
    a(f'v_lshrrev_b32 v{t+1}, 3, v{vL}')
    a(f'v_and_b32 v{t+2}, 7, v{vL}')
    a(f'v_lshrrev_b32 v{t+3}, 1, v{t+1}')
    a(f'v_xor_b32 v{t+4}, v{t+2}, v{t+3}\nv_lshlrev_b32 v{t+4}, 4, v{t+4}')
    a(f'v_mul_u32_u24 v{t+5}, {64*896}, v{t+1}')
    a(f's_mul_i32 s{sT}, s{sSig}, 896')
    a(f'v_add3_u32 v{vXo}, v{t+5}, v{t+4}, s{sT}')
    a(f'v_xor_b32 v{vXo+1}, 64, v{vXo}')
    a(f'v_add_u32 v{vXo+2}, {2*(458752-1024)}, v{vXo}')
    a(f'v_add_u32 v{vXo+3}, {3*(458752-1024)}, v{vXo+1}')
    a(f'v_add_u32 v{vXo+1}, {1*(458752-1024)}, v{vXo+1}')
    a(f'v_and_b32 v{t+6}, 1, v{t+3}\nv_lshlrev_b32 v{t+6}, 2, v{t+6}\nv_xor_b32 v{t+6}, v{t+6}, v{t+2}\nv_lshlrev_b32 v{t+6}, 4, v{t+6}')
    a(f'v_mul_u32_u24 v{t+7}, 3584, v{t+1}')
    a(f's_mul_i32 s{sT}, s{sI}, {32*3584}\ns_lshl_b32 s{sT2}, s{sCG}, 8\ns_add_u32 s{sT}, s{sT}, s{sT2}\ns_lshl_b32 s{sT2}, s{sJ}, 7\ns_add_u32 s{sT}, s{sT}, s{sT2}')
    a(f'v_add3_u32 v{vWo}, v{t+7}, v{t+6}, s{sT}')
    for i in range(1, 4): a(f'v_add_u32 v{vWo+i}, {i*(8*3584-1024)}, v{vWo}')
    a(f'v_mul_u32_u24 v{t+5}, 896, v{t+1}')
    a(f's_lshl_b32 s{sT}, s{sJ}, 6')
    a(f'v_xor_b32 v{t+6}, s{sT}, v{t+4}')
    a(f's_lshl_b32 s{sT}, s{sCG}, 1\ns_add_u32 s{sT}, s{sT}, s{sJ}\ns_mul_i32 s{sT}, s{sT}, {8*896}')
    a(f'v_add3_u32 v{vDo}, v{t+5}, v{t+6}, s{sT}')
    a(f's_lshl_b32 s{sLx}, s{sW}, 12')
    a(f's_lshl_b32 s{sLw}, s{sJ}, 13\ns_lshl_b32 s{sT}, s{sI}, 12\ns_add_u32 s{sLw}, s{sLw}, s{sT}\ns_add_u32 s{sLw}, s{sLw}, 16384')
    a(f's_lshl_b32 s{sLd}, s{sW}, 10\ns_add_u32 s{sLd}, s{sLd}, 32768')

def p1_addr_read(a):
    t = FR
    a(f'v_and_b32 v{vU}, 31, v{vL}\nv_lshrrev_b32 v{vHH}, 5, v{vL}')
    a(f'v_bfe_u32 v{t}, v{vU}, 1, 3\nv_xor_b32 v{t}, v{t}, v{vHH}')
    a(f'v_lshlrev_b32 v{t+1}, 7, v{vU}')
    a(f's_xor_b32 s{sT}, s{sW}, 1\ns_lshl_b32 s{sT}, s{sT}, 12')
    for jj in range(4):
        a(f'v_xor_b32 v{t+2}, {2*jj}, v{t}\nv_lshl_add_u32 v{t+2}, v{t+2}, 4, v{t+1}')
        a(f'v_add_u32 v{vRb+jj}, s{sLx}, v{t+2}\nv_add_u32 v{vRp+jj}, s{sT}, v{t+2}\nv_add_u32 v{vRd+jj}, 0x8000, v{t+2}')
        for r in (vRb, vRp, vRd): a(f'v_add_u32 v{r+4+jj}, {2*SLOT}, v{r+jj}')
    a(f'v_bfe_u32 v{t}, v{vL}, 2, 2')
    a(f'v_lshl_add_u32 v{t+1}, v{vHH}, 3, v{t}\nv_lshlrev_b32 v{t+1}, 7, v{t+1}')
    a(f'v_lshrrev_b32 v{t}, 1, v{t}\nv_xor_b32 v{t}, s{sI}, v{t}\nv_lshl_add_u32 v{t+1}, v{t}, 6, v{t+1}')
    a(f'v_bfe_u32 v{t}, v{vL}, 4, 1\nv_lshl_add_u32 v{t+1}, v{t}, 5, v{t+1}')
    a(f'v_and_b32 v{t}, 3, v{vL}\nv_lshl_add_u32 v{t+1}, v{t}, 3, v{t+1}')
    a(f's_lshl_b32 s{sT}, s{sJ}, 13\ns_add_u32 s{sT}, s{sT}, 16384')
    a(f'v_add_u32 v{vTa}, s{sT}, v{t+1}\nv_xor_b32 v{vTb}, 64, v{vTa}')
    a(f'v_add_u32 v{vTa+1}, {2*SLOT}, v{vTa}\nv_add_u32 v{vTb+1}, {2*SLOT}, v{vTb}')
    a(f'v_lshlrev_b32 v{vU8}, 3, v{vU}\nv_lshl_or_b32 v{vM8}, v{vHH}, 31, v{vU8}\nv_lshlrev_b32 v{vH16}, 4, v{vHH}')
    for r in (MO+2, MO+3, MP+2, MP+3, CZ+2, CZ+3): a(f'v_mov_b32 v{r}, 0')

def twiddle_wc(a):
    t = ACC
    a(f'v_cvt_f32_u32 v{t}, v{vU}\nv_cvt_f32_u32 v{t+1}, v{vHH}')
    a(f'v_mul_f32 v{t}, {f2h(1/32)}, v{t}')
    a(f'v_mul_f32 v{t+1}, 4.0, v{t+1}\nv_mul_f32 v{t+1}, v{t+1}, v{t}')
    for p in range(8):
        u0 = 16*(p >> 2) + 8*((p & 3) >> 1) + 2*(p & 1)
        a(f'v_fmamk_f32 v{t+2}, v{t}, {f2h(u0)}, v{t+1}\nv_fmamk_f32 v{t+3}, v{t}, {f2h(u0+1)}, v{t+1}')
        a(f'v_cos_f32 v{t+4}, v{t+2}\nv_cos_f32 v{t+5}, v{t+3}\nv_sin_f32 v{t+6}, v{t+2}\nv_sin_f32 v{t+7}, v{t+3}')
        a(f'v_cvt_pk_bf16_f32 v{WC+p}, v{t+4}, v{t+5}')
        a(f'v_cvt_pk_bf16_f32 v{WC+8+p}, -v{t+6}, -v{t+7}')

def twiddle_tf(a):
    t = ACC
    a(f's_lshl_b32 s{sT}, s{sI}, 5\ns_add_u32 s{sT}, s{sT}, s{sT1}')
    a(f'v_lshl_add_u32 v{t}, v{vU}, 6, s{sT}')
    a(f'v_cvt_f32_u32 v{t}, v{t}\nv_cvt_f32_u32 v{t+1}, v{vHH}')
    a(f'v_mul_f32 v{t}, {f2h(1/2048)}, v{t}')
    a(f'v_mul_f32 v{t+1}, {f2h(16.0)}, v{t+1}\nv_mul_f32 v{t+1}, v{t+1}, v{t}')
    for j in range(8):
        for h in range(2):
            k0 = 2*j + 32*h
            a(f'v_fmamk_f32 v{t+2}, v{t}, {f2h(k0)}, v{t+1}\nv_fmamk_f32 v{t+3}, v{t}, {f2h(k0+1)}, v{t+1}')
            a(f'v_cos_f32 v{t+4}, v{t+2}\nv_sin_f32 v{t+5}, v{t+2}\nv_cos_f32 v{t+6}, v{t+3}\nv_sin_f32 v{t+7}, v{t+3}')
            a(f'v_cvt_pk_bf16_f32 v{TF+4*j+2*h}, v{t+4}, v{t+5}')
            a(f'v_cvt_pk_bf16_f32 v{TF+4*j+2*h+1}, v{t+6}, v{t+7}')

def p1_reads(role, n):
    g, jj = divmod(n, 4)
    half, so = (g % 4) // 2, (g % 2) * SLOT
    f = FR + 20 * (n & 1)
    wa = [f'ds_read_b64_tr_b16 {vr(f+8,2)}, v{vTa+half} offset:{so + jj*2048}',
          f'ds_read_b64_tr_b16 {vr(f+10,2)}, v{vTa+half} offset:{so + jj*2048 + 512}']
    x0 = [f'ds_read_b128 {vr(f)}, v{vRb+4*half+jj} offset:{so}']
    x1 = [f'ds_read_b128 {vr(f+4)}, v{vRp+4*half+jj} offset:{so}']
    wb = [f'ds_read_b64_tr_b16 {vr(f+12,2)}, v{vTb+half} offset:{so + jj*2048}',
          f'ds_read_b64_tr_b16 {vr(f+14,2)}, v{vTb+half} offset:{so + jj*2048 + 512}']
    d = [f'ds_read_b128 {vr(f+16)}, v{vRd+4*half+jj} offset:{so}']
    return {'A': wa + x0 + x1 + wb + d, 'B': x0 + d, 'C': wa + d}[role]

ONES = WC
vS = 56
def p1_mfmas(role, n):
    f = FR + 20 * (n & 1)
    def m(acc, A, B): return mfma(vr(acc, 16), vr(A), vr(B), vr(acc, 16) if n else '0')
    if role == 'A': return [m(ACC, f+8, f), m(ACC+16, f+8, f+4), m(ACC+32, f+12, f), m(ACC+48, f+12, f+4), m(ACC+64, f, f+16)]
    if role == 'B': return [m(ACC+64, f, f+16)]
    return [m(ACC, TF, f+8), m(ACC+64, TF, f+16)]

def stat_loads(role):
    ins = []
    ins.append((f's_lshl_b32 s{sA2}, s{sSig}, 8', None))
    ins.append((f'buffer_load_dwordx2 {vr(MO,2)}, v{vM8}, {sr(SM)}, s{sA2} offen sc1', 'SL'))
    if role == 'A':
        ins.append((f's_xor_b32 s{sA2}, s{sA2}, 256', None))
        ins.append((f'buffer_load_dwordx2 {vr(MP,2)}, v{vM8}, {sr(SM)}, s{sA2} offen sc1', 'SL'))
        ins.append((f's_lshl_b32 s{sA2}, s{sCG}, 10\ns_lshl_b32 s{sA3}, s{sJ}, 9\ns_add_u32 s{sA2}, s{sA2}, s{sA3}\ns_lshl_b32 s{sA3}, s{sI}, 8\ns_add_u32 s{sA2}, s{sA2}, s{sA3}\ns_add_u32 s{sA2}, s{sA2}, {CSW}', None))
        ins.append((f'buffer_load_dwordx2 {vr(CA,2)}, v{vU8}, {sr(SM)}, s{sA2} offen sc1', 'SL'))
        ins.append((f's_xor_b32 s{sA2}, s{sA2}, 256', None))
        ins.append((f'buffer_load_dwordx2 {vr(CB,2)}, v{vU8}, {sr(SM)}, s{sA2} offen sc1', 'SL'))
    ins.append((f's_lshl_b32 s{sA2}, s{sCG}, 8\ns_add_u32 s{sA2}, s{sA2}, {CSZ}', None))
    ins.append((f'buffer_load_dwordx2 {vr(CZ,2)}, v{vU8}, {sr(SM)}, s{sA2} offen sc1', 'SL'))
    ins.append((f's_lshl_b32 s{sA2}, s{sSig}, 7\ns_add_u32 s{sA2}, s{sA2}, {SRI}', None))
    for q in range(4):
        ins.append((f'buffer_load_dwordx4 {vr(ZR+4*q)}, v{vH16}, {sr(SM)}, s{sA2} offen offset:{32*q} sc1', 'SL'))
    return ins

def p1_loop(a, role):
    a.wait_vm('G0')
    a('s_barrier')
    stamp(a, 1)
    for r in p1_reads(role, 0): a(r)
    q = dma_group(role, 2) + dma_group(role, 3)
    late = []
    NS = 28
    vSb = TF
    for n in range(NS):
        g, jj = divmod(n, 4)
        a('s_waitcnt lgkmcnt(0)')
        if jj == 3 and g < 6:
            assert not any(t == f'G{g+1}' for _, t in q)
            a.wait_vm(f'G{g+1}')
            a('s_barrier')
            if g + 4 < 7: q += dma_group(role, g + 4)
        if role == 'A':
            if n == 17: q.append((lambda: poll_issue(a, 'P0'), None))
            if n == 21:
                poll_check(a, 'P0'); q += stat_loads(role)
        rd = p1_reads(role, n + 1) if n + 1 < NS else []
        ms = p1_mfmas(role, n)
        dt = []
        if role == 'B':
            f = FR + 20 * (n & 1)
            for i in range(4):
                dt.append(f'v_dot2c_f32_bf16 v{vSb+(i&1)}, s{sOnes}, v{f+i}')
                dt.append(f'v_dot2c_f32_bf16 v{vSb+2+(i&1)}, v{f+i}, v{f+i}')
        nld = 0
        rate = RATE if role == 'A' else 5
        for mi, m in enumerate(ms):
            a(m)
            for _ in range(3 if role == 'A' else 8):
                if rd: a(rd.pop(0))
            last = mi == len(ms) - 1
            if role != 'A' or mi >= 2:
                cnt = 0
                while q and nld < rate and (cnt < 1 or last or role != 'A'):
                    ins = q.pop(0); a.emit(ins)
                    if ins[1] or callable(ins[0]): nld += 1; cnt += 1
            if last:
                for d in dt: a(d)
        assert not rd
    assert not q, q
    stamp(a, 2)

def z_path_1(a):
    ZA = ACC + 64
    B1 = FR
    for r in range(16): a(f'v_mul_f32 v{ZA+r}, v{ZA+r}, v{ZR+r}')
    for p in range(8): a(f'v_cvt_pk_bf16_f32 v{B1+p}, v{ZA+2*p}, v{ZA+2*p+1}')
    for p in range(8): a(f'ds_swizzle_b32 v{B1+8+p}, v{B1+p} offset:0x401f')
def z_path_2(a, vSg):
    ZA = ACC + 64; B1 = FR; B2 = FR + 8
    a(mfma(vr(ZA,16), vr(WC), vr(B1), '0'))
    a(mfma(vr(ZA,16), vr(WC+4), vr(B1+4), vr(ZA,16)))
    a('s_waitcnt lgkmcnt(0)')
    for p in range(8): a(f'v_xor_b32 v{B2+p}, v{B2+p}, v{vSg}')
    a('s_nop 1')
    a(mfma(vr(ZA,16), vr(WC+8), vr(B2), vr(ZA,16)))
    a(mfma(vr(ZA,16), vr(WC+12), vr(B2+4), vr(ZA,16)))
def z_path_3(a, vXw):
    ZA = ACC + 64; B1 = FR
    for p in range(8): a(f'v_permlane16_swap_b32 v{ZA+2*p}, v{ZA+2*p+1}')
    a('s_nop 1')
    for p in range(8): a(f'v_cvt_pk_bf16_f32 v{B1+p}, v{ZA+2*p}, v{ZA+2*p+1}')
    for p in range(8):
        t1b = (2*p & 3) + 8 * (p >> 1)
        a(f'ds_write_b32 v{vXw}, v{B1+p} offset:{t1b*256}')
    a('s_waitcnt lgkmcnt(0)')
    a('s_barrier')
def z_path_4(a, vXr, vVo):
    B = FR + 8
    a(f'ds_read_b128 {vr(B)}, v{vXr}\nds_read_b128 {vr(B+4)}, v{vXr} offset:1024')
    a('s_waitcnt lgkmcnt(1)')
    a.vmem(f'buffer_store_dwordx4 {vr(B)}, v{vVo}, {sr(SV)}, 0 offen sc1', 'ST')
    a(f's_mov_b32 s{sT}, {4*65536}')
    a('s_waitcnt lgkmcnt(0)')
    a.vmem(f'buffer_store_dwordx4 {vr(B+4)}, v{vVo}, {sr(SV)}, s{sT} offen sc1', 'ST')
def z_addr(a, vSg, vXw, vXr, vVo):
    t = vt
    a(f'v_bfe_u32 v{t}, v{vL}, 4, 1\nv_xor_b32 v{vSg}, 1, v{t}\nv_mul_u32_u24 v{vSg}, 0x8000, v{vSg}\nv_lshl_or_b32 v{vSg}, v{vSg}, 16, v{vSg}')
    a(f'v_lshl_add_u32 v{t}, v{vHH}, 2, v{t}\nv_lshlrev_b32 v{t}, 8, v{t}\nv_and_b32 v{t+1}, 15, v{vL}\nv_lshl_add_u32 v{t}, v{t+1}, 4, v{t}')
    a(f's_lshl_b32 s{sT}, s{sW}, 2\ns_add_u32 s{sT}, s{sT}, {VX}\nv_add_u32 v{vXw}, s{sT}, v{t}')
    a(f's_lshl_b32 s{sT}, s{sW}, 11\ns_add_u32 s{sT}, s{sT}, {VX}\nv_lshlrev_b32 v{t}, 4, v{vL}\nv_add_u32 v{vXr}, s{sT}, v{t}')
    a(f'v_lshrrev_b32 v{t}, 4, v{vL}\nv_lshlrev_b32 v{t}, 16, v{t}\nv_lshl_add_u32 v{t}, v{t+1}, 4, v{t}')
    a(f's_lshl_b32 s{sT}, s{sW}, 19\ns_lshl_b32 s{sT2}, s{sRT}, 12\ns_add_u32 s{sT}, s{sT}, s{sT2}\ns_lshl_b32 s{sT2}, s{sCG}, 8\ns_add_u32 s{sT}, s{sT}, s{sT2}')
    a(f'v_add_u32 v{vVo}, s{sT}, v{t}')

def flagh_off(a, dst):
    a(f's_lshl_b32 s{dst}, s{sCG}, 6\ns_add_u32 s{dst}, s{dst}, s{sSig}\ns_lshl_b32 s{dst}, s{dst}, 3\ns_add_u32 s{dst}, s{dst}, {FLH}')

def get_tag(a):
    a(f's_add_u32 s{sTag}, s{sTag}, 0x7f4a7c15\ns_addc_u32 s{sTag+1}, s{sTag+1}, 0x9e3779b9')

def gen():
    a = Asm()
    a('s_cmp_ge_u32 s2, 256\ns_cbranch_scc1 Lend')
    a('s_load_dwordx2 s[4:5], s[0:1], 0')
    a('s_load_dwordx4 s[8:11], s[0:1], 24')
    a('s_load_dwordx4 s[12:15], s[0:1], 48')
    a('s_load_dwordx2 s[16:17], s[0:1], 64')
    a('s_load_dwordx2 s[18:19], s[0:1], 80')
    stamp(a, 0)
    a(f'v_lshrrev_b32 v{vt}, 6, v0\nv_and_b32 v{vL}, 63, v0')
    a(f'v_readfirstlane_b32 s{sW}, v{vt}')
    sX8, sN = sA3, sA4
    a(f's_and_b32 s{sX8}, s2, 7\ns_lshr_b32 s{sN}, s2, 3')
    a(f's_and_b32 s{sT}, s{sX8}, 3\ns_lshr_b32 s{sT2}, s{sX8}, 2')
    a(f's_lshr_b32 s{sI}, s{sW}, 1\ns_and_b32 s{sJ}, s{sW}, 1')
    a(f's_lshl_b32 s{sRT}, s{sT}, 2\ns_and_b32 s{sT3}, s{sN}, 3\ns_add_u32 s{sRT}, s{sRT}, s{sT3}')
    a(f's_lshl_b32 s{sT1}, s{sX8}, 2\ns_add_u32 s{sT1}, s{sT1}, s{sT3}\ns_lshr_b32 s{sCT}, s{sN}, 2')
    a(f's_mul_i32 s{sCG}, s{sT2}, 7\ns_add_u32 s{sCG}, s{sCG}, s{sCT}')
    a(f's_cmp_ge_u32 s{sN}, 28\ns_cbranch_scc1 LroleBC')

    def sigma(): a(f's_lshl_b32 s{sSig}, s{sRT}, 1\ns_add_u32 s{sSig}, s{sSig}, s{sJ}\ns_lshl_b32 s{sT}, s{sI}, 5\ns_add_u32 s{sSig}, s{sSig}, s{sT}')
    def p1_srds():
        a('s_waitcnt lgkmcnt(0)')
        srd(a, SX, 4, 2048*896)
        a(f's_cmp_ge_u32 s{sW}, 2')
        a(f's_cselect_b32 s{SD}, s10, s8\ns_cselect_b32 s{SD+1}, s11, s9\ns_mov_b32 s{SD+2}, {448*896}\ns_mov_b32 s{SD+3}, 0x20000')
        srd(a, SW, 12, 448*3584)
    def other_srds():
        srd(a, SM, 18, SM_SIZE, SM_OFF)
        a(f's_load_dwordx2 s[{sTag}:{sTag+1}], s[{SM}:{SM+1}], {EPO}')
        srd(a, SH, 18, HB_SIZE)
        srd(a, SV, 18, VB_SIZE, VB_OFF)
    sigma(); p1_addr_dma(a); p1_srds()
    for g in range(2):
        for ins in dma_group('A', g): a.emit(ins)
    other_srds()
    srd(a, SW2, 14, 1792*896)
    srd(a, SO, 16, 2048*896)
    p1_addr_read(a)
    t = FR
    a(f's_lshl_b32 s{sT}, s{sSig}, 3\ns_add_u32 s{sT}, s{sT}, {FLS}\nv_mov_b32 v{vPa}, s{sT}')
    a(f's_xor_b32 s{sT}, s{sT}, 8\nv_mov_b32 v{t}, s{sT}\nv_cmp_eq_u32 vcc, 1, v{vL}\ns_nop 1\nv_cndmask_b32 v{vPa}, v{vPa}, v{t}, vcc')
    a(f's_lshl_b32 s{sT}, s{sCG}, 5\ns_add_u32 s{sT}, s{sT}, {FLC-16}\nv_lshl_add_u32 v{t}, v{vL}, 3, s{sT}')
    a(f'v_subrev_u32 v{t+1}, 2, v{vL}\nv_cmp_gt_u32 vcc, 4, v{t+1}\ns_nop 1\nv_cndmask_b32 v{vPa}, v{vPa}, v{t}, vcc')
    twiddle_wc(a); twiddle_tf(a)
    a('s_waitcnt lgkmcnt(0)'); get_tag(a)
    p1_loop(a, 'A')
    vSg, vXw, vXr, vVo, vHo = vXo, vXo+1, vXo+2, vXo+3, vWo
    z_addr(a, vSg, vXw, vXr, vVo)
    a(f'v_lshlrev_b32 v{vHo}, 4, v{vL}')
    sHA0, sHA1, sHB0, sHB1 = sA0, sA1, sA2, sA3
    a(f's_lshl_b32 s{sT}, s{sCG}, 3\ns_lshl_b32 s{sT2}, s{sJ}, 2\ns_add_u32 s{sT}, s{sT}, s{sT2}\ns_lshl_b32 s{sT2}, s{sI}, 1\ns_add_u32 s{sT}, s{sT}, s{sT2}\ns_lshl_b32 s{sT}, s{sT}, 10')
    a(f's_mul_i32 s{sT2}, s{sSig}, {HB_SIG}\ns_add_u32 s{sHA0}, s{sT}, s{sT2}')
    a(f's_xor_b32 s{sT2}, s{sSig}, 1\ns_mul_i32 s{sT2}, s{sT2}, {HB_SIG}\ns_add_u32 s{sHA1}, s{sT}, s{sT2}')
    a(f's_xor_b32 s{sHB0}, s{sHA0}, 2048\ns_xor_b32 s{sHB1}, s{sHA1}, 2048')
    a.wait_vm('SL')
    a(mfma(vr(ACC+64,16), vr(MO), vr(CZ), vr(ACC+64,16)))
    a(mfma(vr(ACC,16), vr(CA), vr(MO), vr(ACC,16)))
    a(mfma(vr(ACC+16,16), vr(CA), vr(MP), vr(ACC+16,16)))
    a(mfma(vr(ACC+32,16), vr(CB), vr(MO), vr(ACC+32,16)))
    a(mfma(vr(ACC+48,16), vr(CB), vr(MP), vr(ACC+48,16)))
    a('s_nop 7')
    def hblock(acc, out, so):
        for p in range(8): a(f'v_cvt_pk_bf16_f32 v{out+p}, v{acc+2*p}, v{acc+2*p+1}')
        for p in range(8): a(f'v_pk_max_i16 v{out+p}, v{out+p}, 0')
        a.vmem(f'buffer_store_dwordx4 {vr(out)}, v{vHo}, {sr(SH)}, s{so} offen sc1', 'ST')
        a.vmem(f'buffer_store_dwordx4 {vr(out+4)}, v{vHo}, {sr(SH)}, s{so} offen offset:1024 sc1', 'ST')
    z_path_1(a)
    hblock(ACC, FR+16, sHA0)
    z_path_2(a, vSg)
    hblock(ACC+16, FR+24, sHA1)
    z_path_3(a, vXw)
    z_path_4(a, vXr, vVo)
    a('s_barrier')
    hblock(ACC+32, FR+32, sHB0)
    hblock(ACC+48, ACC, sHB1)
    stamp(a, 3)
    phase2(a)
    a('s_branch Lfin')

    a('LroleBC:')
    a.vm = []
    a(f's_cmp_ge_u32 s{sN}, 30\ns_cbranch_scc1 LroleC')
    a(f's_lshl_b32 s{sRT}, s{sT}, 2\ns_lshl_b32 s{sT2}, s{sT2}, 1\ns_add_u32 s{sRT}, s{sRT}, s{sT2}\ns_add_u32 s{sRT}, s{sRT}, s{sN}\ns_sub_u32 s{sRT}, s{sRT}, 28')
    a(f's_mov_b32 s{sCG}, 14')
    sigma(); p1_addr_dma(a); p1_srds()
    for g in range(2):
        for ins in dma_group('B', g): a.emit(ins)
    other_srds()
    p1_addr_read(a)
    a(f's_mov_b32 s{sOnes}, 0x3f803f80')
    a(f'v_mov_b32 v{vPa}, {FLC + 14*32}')
    twiddle_wc(a)
    vSb = TF
    for i in range(4): a(f'v_mov_b32 v{vSb+i}, 0')
    a('s_waitcnt lgkmcnt(0)'); get_tag(a)
    p1_loop(a, 'B')
    t = FR
    a('s_nop 2')
    a(f'v_add_f32 v{vSb}, v{vSb}, v{vSb+1}\nv_add_f32 v{vSb+2}, v{vSb+2}, v{vSb+3}')
    a(f'v_mov_b32 v{vSb+1}, v{vSb}\nv_mov_b32 v{vSb+3}, v{vSb+2}\ns_nop 1')
    a(f'v_permlane32_swap_b32 v{vSb}, v{vSb+1}\nv_permlane32_swap_b32 v{vSb+2}, v{vSb+3}\ns_nop 1')
    a(f'v_add_f32 v{vSb}, v{vSb}, v{vSb+1}\nv_add_f32 v{vSb+2}, v{vSb+2}, v{vSb+3}')
    a(f'v_mul_f32 v{t}, {f2h(1/448)}, v{vSb}\nv_mul_f32 v{t+1}, {f2h(1/448)}, v{vSb+2}')
    a(f'v_fma_f32 v{t+1}, -v{t}, v{t}, v{t+1}\nv_max_f32 v{t+1}, 0, v{t+1}')
    a(f'v_cvt_pk_bf16_f32 v{t+2}, -v{t}, -v{t}\nv_and_b32 v{t+3}, 0xffff, v{t+2}')
    a(f'v_cvt_pk_bf16_f32 v{t+1}, v{t+1}, v{t+1}\nv_and_b32 v{t+1}, 0xffff0000, v{t+1}')
    a(f'v_add_f32 v{t+1}, {f2h(1e-5)}, v{t+1}')
    a(f'v_cvt_pk_bf16_f32 v{t+1}, v{t+1}, v{t+1}\nv_and_b32 v{t+1}, 0xffff0000, v{t+1}')
    a(f'v_sqrt_f32 v{t+1}, v{t+1}\ns_nop 0')
    a(f'v_cvt_pk_bf16_f32 v{t+1}, v{t+1}, v{t+1}\nv_and_b32 v{t+1}, 0xffff0000, v{t+1}')
    a(f'v_rcp_f32 v{t+1}, v{t+1}')
    a(f's_lshl_b32 s{sT}, s{sSig}, 8')
    a.vmem(f'buffer_store_dwordx2 {vr(t+2,2)}, v{vM8}, {sr(SM)}, s{sT} offen sc1', 'S1')
    a(f'v_lshrrev_b32 v{t+4}, 1, v{vM8}\ns_lshl_b32 s{sT}, s{sSig}, 7\ns_add_u32 s{sT}, s{sT}, {SRI}')
    a.vmem(f'buffer_store_dword v{t+1}, v{t+4}, {sr(SM)}, s{sT} offen sc1', 'S1')
    poll_issue(a, 'P0')
    a.wait_vm('S1')
    a(f's_lshl_b32 s{sT}, s{sSig}, 3\ns_add_u32 s{sT}, s{sT}, {FLS}')
    flag_store(a, sT, t+8)
    stamp(a, 3)
    poll_check(a, 'P0')
    for ins in stat_loads('B'): a.emit(ins)
    vSg, vXw, vXr, vVo = vXo, vXo+1, vXo+2, vXo+3
    z_addr(a, vSg, vXw, vXr, vVo)
    a.wait_vm('SL')
    a(mfma(vr(ACC+64,16), vr(MO), vr(CZ), vr(ACC+64,16)))
    a('s_nop 15')
    z_path_1(a); z_path_2(a, vSg); a('s_nop 15'); z_path_3(a, vXw); z_path_4(a, vXr, vVo)
    flagh_off(a, sT)
    a.wait_vm('ST')
    flag_store(a, sT, t+8)
    a('s_branch Lfin')

    a('LroleC:')
    a.vm = []
    a(f's_lshl_b32 s{sT3}, s{sT}, 1\ns_add_u32 s{sT3}, s{sT3}, s{sN}\ns_sub_u32 s{sT3}, s{sT3}, 30')
    a(f's_lshl_b32 s{sRT}, s{sT2}, 3\ns_add_u32 s{sRT}, s{sRT}, s{sT3}')
    a(f's_mul_i32 s{sCG}, s{sT2}, 7\ns_add_u32 s{sCG}, s{sCG}, s{sT3}\ns_add_u32 s{sT2}, s{sT2}, 14')
    a(f's_cmp_eq_u32 s{sT3}, 7\ns_cselect_b32 s{sCG}, s{sT2}, s{sCG}')
    sigma(); p1_addr_dma(a); p1_srds()
    other_srds()
    a(f's_cmp_eq_u32 s{sCG}, 15\ns_cbranch_scc1 LroleE')
    a(f's_cmp_eq_u32 s{sCG}, 14\ns_cselect_b32 s{SW+2}, 0, s{SW+2}')
    for g in range(2):
        for ins in dma_group('C', g): a.emit(ins)
    p1_addr_read(a)
    for i in range(4): a(f'v_mov_b32 v{TF+i}, 0x3f803f80')
    a('s_waitcnt lgkmcnt(0)'); get_tag(a)
    p1_loop(a, 'C')
    t = FR
    a('s_nop 15')
    for k, src in enumerate((ACC, ACC+64)):
        o = t + 8*k
        a(f'v_cvt_pk_bf16_f32 v{o+2}, v{src}, v{src}\nv_and_b32 v{o+3}, 0xffff0000, v{o+2}\nv_sub_f32 v{o+4}, v{src}, v{o+3}')
        a(f'v_cvt_pk_bf16_f32 v{o}, v{src}, v{o+4}\nv_and_b32 v{o+3}, 0xffff0000, v{o}\nv_sub_f32 v{o+4}, v{o+4}, v{o+3}')
        a(f'v_cvt_pk_bf16_f32 v{o+1}, v{o+4}, 0')
    a(f's_lshl_b32 s{sA2}, s{sCG}, 10\ns_lshl_b32 s{sA3}, s{sJ}, 9\ns_add_u32 s{sA2}, s{sA2}, s{sA3}\ns_lshl_b32 s{sA3}, s{sI}, 8\ns_add_u32 s{sA2}, s{sA2}, s{sA3}\ns_add_u32 s{sA2}, s{sA2}, {CSW}')
    a.vmem(f'buffer_store_dwordx2 {vr(t,2)}, v{vM8}, {sr(SM)}, s{sA2} offen sc1', 'S1')
    a(f's_lshl_b32 s{sA2}, s{sCG}, 8\ns_add_u32 s{sA2}, s{sA2}, {CSZ}')
    a.vmem(f'buffer_store_dwordx2 {vr(t+8,2)}, v{vM8}, {sr(SM)}, s{sA2} offen sc1', 'S1')
    a(f's_lshl_b32 s{sT}, s{sCG}, 2\ns_add_u32 s{sT}, s{sT}, s{sW}\ns_lshl_b32 s{sT}, s{sT}, 3\ns_add_u32 s{sT}, s{sT}, {FLC}')
    a.wait_vm('S1')
    flag_store(a, sT, t+16)
    stamp(a, 3)
    a(f's_mov_b32 s{sCG}, 15')
    flagh_off(a, sT)
    flag_store(a, sT, t+16)
    a('s_branch Lfin')

    a('LroleE:')
    a.vm = []
    a('s_waitcnt lgkmcnt(0)'); get_tag(a)
    flagh_off(a, sT)
    flag_store(a, sT, FR)
    a(f's_cmp_lg_u32 s{sW}, 0\ns_cbranch_scc1 Lfin')
    a(f'v_lshlrev_b32 v{vPa}, 3, v{vL}\nv_add_u32 v{vPa}, {FLH}, v{vPa}')
    a(f's_mov_b32 s{sA0}, 16')
    a('LEloop:')
    a.vmem(f'buffer_load_dwordx2 {vr(vP,2)}, v{vPa}, {sr(SM)}, 0 offen sc1', 'PE')
    ok = a.label('ok'); lp = a.label('spin')
    a(f's_mov_b32 s{sSpin}, {SPIN_MAX}')
    a(f'{lp}:')
    a('s_waitcnt vmcnt(0)')
    a(f'v_cmp_ne_u64 vcc, s[{sTag}:{sTag+1}], {vr(vP,2)}')
    a(f's_cbranch_vccz {ok}')
    a('s_sleep 8')
    a(f'buffer_load_dwordx2 {vr(vP,2)}, v{vPa}, {sr(SM)}, 0 offen sc1')
    a(f's_sub_u32 s{sSpin}, s{sSpin}, 1\ns_cbranch_scc0 {lp}')
    a(f'{ok}:')
    a(f'v_add_u32 v{vPa}, 512, v{vPa}\ns_sub_u32 s{sA0}, s{sA0}, 1\ns_cmp_lg_u32 s{sA0}, 0\ns_cbranch_scc1 LEloop')
    a(f's_mov_b32 s{sT}, {EPO}')
    flag_store(a, sT, FR)
    a('Lfin:')
    stamp_store(a)
    a('Lend:')
    a('s_endpgm')
    return a.text()

def phase2(a):
    ACC0, ACC1, YA, VF = 144, 176, 208, 104
    vW2 = 4
    vHo = 8
    vTra, vTrb = 9, 10
    vVo, vSg, vPv = 11, 12, 13
    vRw = 14
    vRwb = 18
    vRr = 22
    vOo = 30
    vRi = 32
    vTo = 35
    XR = 224
    t = 48
    sArea, sHb = sLx, sLw
    a(f'v_lshrrev_b32 v{t+1}, 3, v{vL}\nv_and_b32 v{t+2}, 7, v{vL}\nv_bfe_u32 v{t+3}, v{vL}, 4, 1')
    a(f'v_lshlrev_b32 v{t+3}, 2, v{t+3}\nv_xor_b32 v{t+3}, v{t+3}, v{t+2}\nv_lshlrev_b32 v{t+3}, 4, v{t+3}')
    a(f'v_mul_u32_u24 v{t+4}, 896, v{t+1}')
    a(f's_mul_i32 s{sT}, s{sW}, {448*896}\ns_lshl_b32 s{sT2}, s{sCT}, 7\ns_add_u32 s{sT}, s{sT}, s{sT2}')
    a(f'v_add3_u32 v{vW2}, v{t+4}, v{t+3}, s{sT}')
    for i in range(1, 4): a(f'v_add_u32 v{vW2+i}, {i*(7168-1024)}, v{vW2}')
    a(f's_mul_i32 s{sArea}, s{sW}, {AREA}')
    def w2dma(m0, m1, tag):
        for m in range(m0, m1):
            if m % 4 == 0 or m == m0:
                mb = m - m % 4
                lds = (16384 + mb*1024) if mb < 24 else (mb - 24) * 1024
                a(f's_add_u32 m0, s{sArea}, {lds}\ns_mov_b32 s{sA0}, {mb*7168}')
            a.vmem(f'buffer_load_dwordx4 v{vW2+m%4}, {sr(SW2)}, s{sA0} offen offset:{(m%4)*1024} lds', tag)
    w2dma(0, SPRE, 'S')
    flagh_off(a, sT)
    a.wait_vm('ST')
    flag_store(a, sT, t+4)
    stamp(a, 4)
    w2dma(SPRE, 24, 'S')
    a(f'v_lshlrev_b32 v{vHo}, 4, v{vL}')
    a(f'v_bfe_u32 v{t}, v{vL}, 2, 2')
    a(f'v_lshl_add_u32 v{t+1}, v{vHH}, 2, v{t}\nv_lshlrev_b32 v{t+1}, 7, v{t+1}')
    a(f'v_lshrrev_b32 v{t}, 1, v{t}\nv_xor_b32 v{t}, s{sJ}, v{t}\nv_lshl_add_u32 v{t+1}, v{t}, 6, v{t+1}')
    a(f'v_bfe_u32 v{t}, v{vL}, 4, 1\nv_lshl_add_u32 v{t+1}, v{t}, 5, v{t+1}')
    a(f'v_and_b32 v{t}, 3, v{vL}\nv_lshl_add_u32 v{t+1}, v{t}, 3, v{t+1}')
    a(f'v_add_u32 v{vTra}, s{sArea}, v{t+1}\nv_xor_b32 v{vTrb}, 64, v{vTra}')
    a(f'v_bfe_u32 v{t}, v{vL}, 2, 2\nv_lshlrev_b32 v{t}, 6, v{t}\nv_bfe_u32 v{t+1}, v{vL}, 1, 1\nv_lshl_add_u32 v{t}, v{t+1}, 5, v{t}\nv_and_b32 v{t+1}, 1, v{vL}\nv_add_u32 v{t}, v{t}, v{t+1}')
    a(f's_mul_i32 s{sT}, s{sW}, 7\ns_lshr_b32 s{sT}, s{sT}, 1\ns_lshl_b32 s{sT}, s{sT}, 6\ns_and_b32 s{sT2}, s{sT1}, 30\ns_add_u32 s{sT}, s{sT}, s{sT2}\ns_lshl_b32 s{sT}, s{sT}, 3\ns_add_u32 s{sT}, s{sT}, {FLH}')
    a(f'v_lshl_add_u32 v{vPa}, v{t}, 3, s{sT}')
    w2dma(24, 40, 'R')
    def vmap(el, e_out, tt_out, sg_out):
        a(f's_lshl_b32 s{sT}, s{sCT}, 6\ns_lshl_b32 s{sT2}, s{sJ}, 5\ns_add_u32 s{sT}, s{sT}, s{sT2}')
        a(f'v_add_u32 v{e_out}, s{sT}, v{el}\nv_sub_u32 v{t+6}, 448, v{e_out}\nv_cmp_lt_u32 vcc, 239, v{e_out}')
        a(f's_sub_u32 s{sT}, 32, s{sT1}\ns_and_b32 s{sT}, s{sT}, 31')
        a(f'v_mov_b32 v{tt_out}, s{sT1}\nv_mov_b32 v{t+7}, s{sT}')
        a(f'v_cndmask_b32 v{e_out}, v{e_out}, v{t+6}, vcc\nv_cndmask_b32 v{tt_out}, v{tt_out}, v{t+7}, vcc')
        if sg_out: a(f'v_mov_b32 v{t+6}, 0\nv_bfrev_b32 v{t+7}, 1\nv_cndmask_b32 v{sg_out}, v{t+6}, v{t+7}, vcc')
    vmap(vU, t, t+1, vSg)
    a(f'v_lshlrev_b32 v{vVo}, 16, v{t+1}\nv_lshl_add_u32 v{vVo}, v{t}, 4, v{vVo}\nv_lshl_add_u32 v{vVo}, v{vHH}, 15, v{vVo}')
    a(f'v_bfe_u32 v{t+2}, v{vL}, 4, 1\nv_mul_u32_u24 v{t+2}, 15, v{t+2}\nv_lshl_add_u32 v{t+2}, v{vHH}, 4, v{t+2}')
    vmap(t+2, t, t+1, None)
    a(f'v_lshrrev_b32 v{t}, 4, v{t}\nv_lshlrev_b32 v{t}, 6, v{t}\nv_and_b32 v{t+2}, 15, v{vL}\nv_lshl_add_u32 v{t}, v{t+2}, 1, v{t}')
    a(f'v_bfe_u32 v{t+2}, v{t+1}, 3, 1\nv_add_u32 v{t}, v{t}, v{t+2}\nv_lshrrev_b32 v{t+2}, 4, v{t+1}\nv_lshl_add_u32 v{t}, v{t+2}, 5, v{t}')
    a(f'v_lshlrev_b32 v{vPv}, 3, v{t}\nv_add_u32 v{vPv}, {FLH}, v{vPv}')
    a(f'v_and_b32 v{t}, 7, v{vU}\nv_xor_b32 v{t}, v{t}, v{vHH}\nv_lshlrev_b32 v{t+1}, 7, v{vU}')
    a(f's_lshl_b32 s{sT}, s{sJ}, 12\ns_add_u32 s{sT}, s{sT}, s{sArea}\ns_add_u32 s{sT}, s{sT}, 32768\nv_add_u32 v{t+1}, s{sT}, v{t+1}')
    for q in range(4):
        a(f'v_xor_b32 v{t+2}, {2*q}, v{t}\nv_lshl_add_u32 v{vRw+q}, v{t+2}, 4, v{t+1}\nv_xor_b32 v{vRwb+q}, 0x1000, v{vRw+q}')
    a(f'v_lshrrev_b32 v{t}, 2, v{vL}\nv_and_b32 v{t+1}, 3, v{vL}\nv_and_b32 v{t+2}, 7, v{t}\nv_lshlrev_b32 v{t+3}, 1, v{t+1}\nv_xor_b32 v{t+2}, v{t+2}, v{t+3}')
    a(f'v_lshlrev_b32 v{t+2}, 4, v{t+2}\nv_lshl_add_u32 v{t+2}, v{t}, 7, v{t+2}')
    for k in range(4):
        a(f's_xor_b32 s{sT}, s{sW}, {k}\ns_mul_i32 s{sT}, s{sT}, {AREA}\ns_lshl_b32 s{sT2}, s{sJ}, 12\ns_add_u32 s{sT}, s{sT}, s{sT2}\ns_add_u32 s{sT}, s{sT}, 32768')
        a(f'v_add_u32 v{vRr+2*k}, s{sT}, v{t+2}\nv_xor_b32 v{vRr+2*k+1}, 16, v{vRr+2*k}')
    a(f'v_mul_u32_u24 v{t+2}, {64*896}, v{t}\nv_lshl_add_u32 v{t+2}, v{t+1}, 4, v{t+2}')
    a(f's_lshl_b32 s{sA1}, s{sI}, 5\ns_add_u32 s{sA1}, s{sA1}, s{sT1}')
    a(f's_mul_i32 s{sT}, s{sA1}, 896\ns_lshl_b32 s{sT2}, s{sCT}, 7\ns_add_u32 s{sT}, s{sT}, s{sT2}\ns_lshl_b32 s{sT2}, s{sJ}, 6\ns_add_u32 s{sT}, s{sT}, s{sT2}')
    a(f'v_add_u32 v{vOo}, s{sT}, v{t+2}\nv_add_u32 v{vOo+1}, {16*64*896}, v{vOo}')
    a(f'v_lshlrev_b32 v{t+4}, 2, v{t}\nv_lshlrev_b32 v{t+5}, 2, v{vU}')
    a(f's_lshl_b32 s{sA1}, s{sA1}, 7\ns_add_u32 s{sA1}, s{sA1}, {SRI}')
    a(f's_mul_i32 s{sHb}, s{sT1}, {HB_SIG}\ns_mul_i32 s{sT}, s{sW}, {28*1024}\ns_add_u32 s{sHb}, s{sHb}, s{sT}')
    a.vmem(f'buffer_load_dwordx4 {vr(XR)}, v{vOo}, {sr(SX)}, 0 offen', 'X')
    a.vmem(f'buffer_load_dwordx4 {vr(XR+4)}, v{vOo+1}, {sr(SX)}, 0 offen', 'X')
    a.wait_vm('S')
    stamp(a, 5)
    for k in range(12):
        for blk, va in enumerate((vTra, vTrb)):
            for p in range(2):
                a(f'ds_read_b64_tr_b16 {ar(aW+8*k+4*blk+2*p,2)}, v{va} offset:{16384 + k*2048 + p*1024}')
    poll_issue(a, 'P1')
    a('s_waitcnt lgkmcnt(0)')
    w2dma(40, 56, 'R')
    poll_check(a, 'P1')
    stamp(a, 6)
    def hload(i):
        rb, k = divmod(i, 28)
        off = rb * 32 * HB_SIG + k * 1024
        a(f's_add_u32 s{sA0}, s{sHb}, {off - (off % 4096)}') if (i % 28) % 4 == 0 or i == 0 else None
        a.vmem(f'buffer_load_dwordx4 {ar(aH+4*(i%32))}, v{vHo}, {sr(SH)}, s{sA0} offen offset:{off % 4096} sc1', f'H{i}')
    nh = 0
    for i in range(HB0):
        hload(i); nh += 1
        if TOUCH and i == TOUCH - 1:
            pass
    a.vmem(f'buffer_load_dword v{vRi}, v{t+5}, {sr(SM)}, s{sA1} offen sc1', 'RI')
    a.vmem(f'buffer_load_dword v{vRi+1}, v{t+4}, {sr(SM)}, s{sA1} offen sc1', 'RI')
    a.vmem(f'buffer_load_dword v{vRi+2}, v{t+4}, {sr(SM)}, s{sA1} offen offset:64 sc1', 'RI')
    poll_issue(a, 'P2', vPv)

    def ard(k):
        s = aF + 8 * (k % 3)
        return [f'ds_read_b64_tr_b16 {ar(s+4*blk+2*p,2)}, v{va} offset:{(k-12)*2048 + p*1024}'
                for blk, va in enumerate((vTra, vTrb)) for p in range(2)]
    state = dict(nh=nh, lgk=[])
    def lds(s, tag):
        a(s); state['lgk'].append(tag)
    def wait_lgk(tag):
        L = state['lgk']
        if tag not in L: return
        idx = max(i for i, x in enumerate(L) if x == tag)
        a(f's_waitcnt lgkmcnt({min(len(L)-1-idx, 15)})')
        state['lgk'] = L[idx+1:]
    def kstep(rb, k, fill):
        i = 28*rb + k
        acc = ACC0 if rb == 0 else ACC1
        a.wait_vm(f'H{i}')
        if k >= 12: wait_lgk(f'A{rb}_{k}')
        A = aW + 8*k if k < 12 else aF + 8*(k % 3)
        B = ar(aH + 4*(i % 32))
        a(mfma(vr(acc,16), ar(A), B, vr(acc,16) if k else '0'))
        if 12 <= k + 2 < 28:
            for r in ard(k+2): lds(r, f'A{rb}_{k+2}')
        a(mfma(vr(acc+16,16), ar(A+4), B, vr(acc+16,16) if k else '0'))
        if state['nh'] < 56:
            hload(state['nh']); state['nh'] += 1
        for f in fill: f()
    def vloads():
        for j in range(8):
            a(f's_movk_i32 s{sA2}, {j*4096}')
            a.vmem(f'buffer_load_dwordx4 {vr(VF+4*j)}, v{vVo}, {sr(SV)}, s{sA2} offen sc1', f'V{j}')
    def vstep(j):
        def f():
            a.wait_vm(f'V{j}')
            for i in range(4): a(f'v_xor_b32 v{VF+4*j+i}, v{VF+4*j+i}, v{vSg}')
            a('s_nop 1')
            a(mfma(vr(YA,16), vr(VF+4*j), vr(TF+4*j), vr(YA,16) if j else '0'))
        return f
    for k in range(28):
        fill = []
        if k == 6: fill = [lambda: poll_check(a, 'P2', vPv), vloads]
        if 18 <= k < 26: fill = [vstep(k - 18)]
        kstep(0, k, fill)
    stamp(a, 7)
    def scale_own(acc):
        return [(lambda r=r: a(f'v_fma_f32 v{acc+r}, v{acc+r}, v{vRi}, v{YA+r}')) for r in range(16)]
    def red_write(acc):
        w = []
        for q in range(4): w.append(lambda q=q: lds(f'ds_write_b128 v{vRwb+q}, {vr(acc+16+4*q)}', 'RW'))
        return w
    def red_write_a(acc):
        return [(lambda q=q: lds(f'ds_write_b128 v{vRw+q}, {vr(acc+4*q)}', 'RW')) for q in range(4)]
    def barrier():
        wait_lgk('RW'); a('s_barrier')
    def finalize(P):
        L = []
        for k in range(4):
            for i in range(2):
                for h in range(2):
                    L.append(lambda k=k, i=i, h=h: lds(f'ds_read_b128 {vr(P+16*k+8*i+4*h)}, v{vRr+2*k+h} offset:{2048*i}', f'RR{k}'))
        U = 56
        for i in range(8):
            L.append(lambda i=i: a(f'v_lshlrev_b32 v{U+2*i}, 16, v{XR+i}\nv_and_b32 v{U+2*i+1}, 0xffff0000, v{XR+i}'))
        L.append(lambda: wait_lgk('RR0'))
        for r in range(16): L.append(lambda r=r: a(f'v_add_f32 v{P+r}, v{P+r}, v{U+r}'))
        L.append(lambda: wait_lgk('RR2'))
        for r in range(16): L.append(lambda r=r: a(f'v_add_f32 v{P+16+r}, v{P+16+r}, v{P+32+r}'))
        L.append(lambda: wait_lgk('RR3'))
        for r in range(16): L.append(lambda r=r: a(f'v_add_f32 v{P+16+r}, v{P+16+r}, v{P+48+r}'))
        for r in range(16): L.append(lambda r=r: a(f'v_fma_f32 v{P+r}, v{P+16+r}, v{vRi+1+(r>>3)}, v{P+r}'))
        for p in range(8): L.append(lambda p=p: a(f'v_cvt_pk_bf16_f32 v{U+p}, v{P+2*p}, v{P+2*p+1}'))
        L.append(lambda: a.vmem(f'buffer_store_dwordx4 {vr(U)}, v{vOo}, {sr(SO)}, 0 offen', 'O'))
        L.append(lambda: a.vmem(f'buffer_store_dwordx4 {vr(U+4)}, v{vOo+1}, {sr(SO)}, 0 offen', 'O'))
        return L
    a(f's_cmp_ge_u32 s{sW}, 2\ns_cbranch_scc1 Lp2hi')
    saved_vm, saved_state = list(a.vm), dict(nh=state['nh'], lgk=list(state['lgk']))
    PF = 104
    for hi in (0, 1):
        if hi:
            a('Lp2hi:')
            a.vm = list(saved_vm); state.update(nh=saved_state['nh'], lgk=list(saved_state['lgk']))
        a.wait_vm('RI')
        if not hi:
            work = red_write(ACC0) + scale_own(ACC0) + red_write_a(ACC0)
        else:
            work = red_write(ACC0) + red_write_a(ACC0)
        post = finalize(PF) if not hi else []
        for k in range(28):
            fill = []
            if 1 <= k < 6:
                n = 5 if k < 5 else len(work)
                fill = [work.pop(0) for _ in range(min(n, len(work)))]
            if k == 6: fill = [barrier]
            if k > 6:
                fill = [post.pop(0) for _ in range(min(6, len(post)))]
            if k == 24:
                assert not post and not any(x.startswith('RR') for x in state['lgk'])
                fill = [lambda: a('s_barrier')]
            kstep(1, k, fill)
        assert not work and not post
        stamp(a, 8)
        a('s_nop 11')
        if hi:
            for f in red_write(ACC1) + scale_own(ACC1) + red_write_a(ACC1): f()
            barrier()
            for f in finalize(PF): f()
        else:
            for f in red_write(ACC1) + red_write_a(ACC1): f()
            barrier()
            a('s_branch Lp2done')
    a('Lp2done:')

def main():
    body = gen()
    k = NAME + '_kernel'
    print(f'''; FNet mixing (two-stage DFT factorisation, 2048 = 32 x 64) + ReLU FFN + residual in one persistent launch.
; @launch grid=(256,1,1) block=(256,1,1) lds={LDS_SIZE}
.amdgcn_target "amdgcn-amd-amdhsa--gfx950"
.text
.globl {k}
.p2align 8
.type {k},@function
{k}:
{body}
.section .rodata,"a"
.p2align 6
.amdhsa_kernel {k}
  .amdhsa_next_free_vgpr {256+NAGPR}
  .amdhsa_next_free_sgpr 102
  .amdhsa_accum_offset 256
  .amdhsa_group_segment_fixed_size 0
  .amdhsa_kernarg_size 88
  .amdhsa_user_sgpr_count 2
  .amdhsa_user_sgpr_kernarg_segment_ptr 1
  .amdhsa_system_sgpr_workgroup_id_x 1
.end_amdhsa_kernel''')
main()
```

```python
import sys, struct
NAME = 'parallel_sum__spectral_fnet__dense_activation_relu__prompt'
OPT = dict(a.split('=') for a in sys.argv[1:] if '=' in a)
def opt(k, d): return type(d)(OPT.get(k, d))
STAMP = opt('stamp', 0); LST = OPT.get('lst')
RATE = [int(c) for c in OPT.get('rate', '3')]
ROT = opt('rot', 1)
POLL0 = opt('poll0', 15); PCHK = opt('pchk', 6)
NW = opt('nw', 16); W0 = opt('w0', 16); WPS = opt('wps', 1)
RPRE0 = opt('rpre0', 4); P1POS = opt('p1pos', 16); RLATE = opt('rlate', 24)
HB0 = opt('hb0', 16); VM0 = opt('vm0', 19); FILL = opt('fill', 5); SLEEP = opt('sleep', 4)
OST = OPT.get('ost', '').replace('_', ' ')
TW = opt('tw', 5); ROT1 = opt('rot1', 7); XOFF = opt('xoff', 0); VSPLIT = opt('vsplit', 1)

def f2h(x): return '0x%08x' % struct.unpack('<I', struct.pack('<f', x))[0]

HB_SIG = 112 * 1024
HB_SIZE = 64 * HB_SIG
VB_OFF = 0x800000
VB_SIZE = 32 * 16 * 256 * 16
SM_OFF = 0xA00000
SM_SIZE = 0x20000
CSW, CSZ = 0x8000, 0x18000
FLH, FLV, EPO = 0x10000, 0x11000, 0x14000
ST_OFF = 0x1000000
SLOT = 36864
VX = 4 * SLOT
AREA = 40960
LDS_SIZE = 163840
SPIN_MAX = 1 << 17

SX, SW, SD, SH, SV, SM, SW2, SO = 24, 28, 32, 36, 40, 44, 48, 52
sTag = 56
sW, sI, sJ, sRT, sCG, sSig, sLx, sLw, sLd, sT, sT2, sT3, sT1, sCT = 58, 59, 60, 61, 62, 63, 64, 65, 66, 67, 68, 69, 70, 71
sA0, sA1, sA2, sA3, sA4, sOnes, sSpin, sB0, sB1, sG0 = 72, 73, 74, 75, 76, 77, 78, 79, 80, 81
sGc, sGw, sGh0, sGh1 = 6, 7, 3, 6
sArea, sHb, sRi, sG1 = 20, 21, 77, 10
STB = 82
vL, vU, vHH = 1, 2, 3
vXo, vWo, vDo = 4, 8, 12
vRb, vRp, vRd, vTa, vTb = 13, 21, 29, 37, 39
vM8, vU8, vH16, vZs, vP = 41, 42, 43, 44, 46
vt = 48
WC, TF, FR, ACC = 56, 72, 104, 144
MO, MP, CA, CB, CZ, ZR = 224, 228, 232, 236, 100, 240
vWt = 84
vW2, vTra, vTrb, vZw, vPa, vVo, vSg, vOo, vRo = 48, 52, 53, 54, 55, 45, 72, 74, 76
vFl = 92
aW, aH, aF = 0, 96, 224
aRaw = aH
NAGPR = 256
PD = opt('pd', 3); RL0 = opt('rl0', 0); VL0 = opt('vl0', 4); HN0 = opt('hn0', 12); P2K = opt('p2k', -1)

class Asm:
    def __init__(self):
        self.L = []; self.vm = []; self.nlab = 0
    def __call__(self, s):
        for line in s.split('\n'):
            line = line.strip()
            self.L.append(line if line.endswith(':') else '    ' + line)
    def vmem(self, s, tag):
        self(s); self.vm.append(tag)
    def emit(self, ins):
        s, tag = ins
        if tag: self.vmem(s, tag)
        else: self(s)
    def wait_vm(self, tag):
        if tag not in self.vm: return
        idx = max(i for i, t in enumerate(self.vm) if t == tag)
        n = len(self.vm) - 1 - idx
        self(f's_waitcnt vmcnt({min(n, 63)})')
        self.vm = self.vm[idx + 1:]
    def label(self, p):
        self.nlab += 1
        return f'L{p}_{self.nlab}'
    def text(self): return '\n'.join(self.L)

def vr(b, n=4): return f'v[{b}:{b+n-1}]'
def ar(b, n=4): return f'a[{b}:{b+n-1}]'
def sr(b, n=4): return f's[{b}:{b+n-1}]'
def srd(a, d, lo, size, off=0):
    if off: a(f's_add_u32 s{d}, s{lo}, {off}\ns_addc_u32 s{d+1}, s{lo+1}, 0')
    else: a(f's_mov_b32 s{d}, s{lo}\ns_mov_b32 s{d+1}, s{lo+1}')
    a(f's_mov_b32 s{d+2}, {size}\ns_mov_b32 s{d+3}, 0x20000')
def stamp(a, idx, mode=None):
    if not STAMP: return
    if 1 <= idx <= 8 and mode != LST: return
    a(f's_memrealtime s[{STB+2*idx}:{STB+2*idx+1}]')
def mfma(D, A, B, C): return f'v_mfma_f32_32x32x16_bf16 {D}, {A}, {B}, {C}'
def lines(s): return s.split('\n')
def cost(x): return sum(2 if ('cos' in y or 'sin' in y) else 1 for y in x.split('\n'))

def stamp_store(a):
    if not STAMP: return
    a('s_waitcnt vmcnt(0) lgkmcnt(0)')
    stamp(a, 9)
    a('s_waitcnt lgkmcnt(0)')
    if STAMP == 3:
        pa, pb = map(int, OPT['probe'].split(','))
        sk = a.label('pskip'); sp = a.label('pspin')
        a(f's_cmp_lg_u32 s2, {OPT.get("pwg", 0)}\ns_cbranch_scc1 {sk}\ns_cmp_lg_u32 s{sW}, {OPT.get("pwv", 0)}\ns_cbranch_scc1 {sk}')
        a(f's_sub_u32 s{sT}, s{STB+2*pb}, s{STB+2*pa}\ns_min_u32 s{sT}, s{sT}, 5000\ns_mul_i32 s{sT}, s{sT}, 10')
        a(f's_memrealtime s[4:5]\ns_waitcnt lgkmcnt(0)\ns_add_u32 s{sT}, s{sT}, s4')
        a(f'{sp}:\ns_memrealtime s[4:5]\ns_waitcnt lgkmcnt(0)\ns_sub_u32 s{sT2}, s{sT}, s4\ns_cmp_gt_i32 s{sT2}, 0\ns_cbranch_scc1 {sp}')
        a(f'{sk}:')
        return
    srd(a, SX, 18, 65536, ST_OFF)
    a(f's_lshl_b32 s{sT}, s2, 2\ns_add_u32 s{sT}, s{sT}, s{sW}\ns_lshl_b32 s{sT}, s{sT}, 6')
    a(f'v_mov_b32 v5, s{sT}')
    for i in range(10):
        a(f'v_mov_b32 v4, s{STB+2*i}')
        a(f'buffer_store_dword v4, v5, {sr(SX)}, 0 offen offset:{4*i}')
        a('s_nop 1')

def poll_issue(a, tag, va, vd=vP):
    a.vmem(f'buffer_load_dwordx2 {vr(vd,2)}, v{va}, {sr(SM)}, 0 offen sc1', tag)
def poll_check(a, tag, va, vd=vP, sleep=SLEEP, mask=None):
    ok = a.label('ok'); lp = a.label('spin')
    a.wait_vm(tag)
    mk = f'\ns_and_b64 vcc, vcc, {mask}' if mask else ''
    a(f'v_cmp_ne_u64 vcc, s[{sTag}:{sTag+1}], {vr(vd,2)}' + mk)
    a(f's_cbranch_vccz {ok}')
    a(f's_mov_b32 s{sSpin}, {SPIN_MAX}')
    a(f'{lp}:')
    if sleep: a(f's_sleep {sleep}')
    a(f'buffer_load_dwordx2 {vr(vd,2)}, v{va}, {sr(SM)}, 0 offen sc1')
    a(f's_sub_u32 s{sSpin}, s{sSpin}, 1\ns_cbranch_scc1 {ok}')
    a('s_waitcnt vmcnt(0)')
    a(f'v_cmp_ne_u64 vcc, s[{sTag}:{sTag+1}], {vr(vd,2)}' + mk)
    a(f's_cbranch_vccnz {lp}')
    a(f'{ok}:')
def wg_flag_prep(tmp, u0, u1):
    return [f's_lshl_b32 s{u0}, s{sCG}, 4\ns_add_u32 s{u0}, s{u0}, s{sRT}\ns_lshl_b32 s{u0}, s{u0}, 3\ns_add_u32 s{u0}, s{u0}, {FLV}',
            f's_lshl_b32 s{u1}, s{sRT}, 4\ns_add_u32 s{u1}, s{u1}, s{sCG}\ns_lshl_b32 s{u1}, s{u1}, 3\ns_add_u32 s{u1}, s{u1}, {FLH}\ns_sub_u32 s{u1}, s{u1}, s{u0}',
            f'v_mul_lo_u32 v{tmp+2}, v{vL}, s{u1}', f'v_add_u32 v{tmp+2}, s{u0}, v{tmp+2}',
            f'v_mov_b32 v{tmp}, s{sTag}', f'v_mov_b32 v{tmp+1}, s{sTag+1}']
def wg_flag(a, tmp, barrier=True):
    a.wait_vm('ST')
    if barrier: a('s_barrier')
    sk = a.label('nofl')
    a(f's_cmp_lg_u32 s{sW}, 0\ns_cbranch_scc1 {sk}')
    a('s_mov_b64 exec, 3')
    a(f'buffer_store_dwordx2 {vr(tmp,2)}, v{tmp+2}, {sr(SM)}, 0 offen sc1')
    a('s_mov_b64 exec, -1')
    a(f'{sk}:')
def col_record(a, o, src):
    a(f'v_cvt_pk_bf16_f32 v{o+2}, v{src}, v{src}\nv_and_b32 v{o+3}, 0xffff0000, v{o+2}\nv_sub_f32 v{o+4}, v{src}, v{o+3}')
    a(f'v_cvt_pk_bf16_f32 v{o}, v{src}, v{o+4}\nv_and_b32 v{o+3}, 0xffff0000, v{o}\nv_sub_f32 v{o+4}, v{o+4}, v{o+3}')
    a(f'v_cvt_pk_bf16_f32 v{o+1}, v{o+4}, 0')
    a(f'v_mov_b32 v{o+2}, s{sTag}\nv_mov_b32 v{o+3}, s{sTag+1}')
def get_tag(a):
    a('s_waitcnt lgkmcnt(0)')
    a(f's_add_u32 s{sTag}, s{sTag}, 0x7f4a7c15\ns_addc_u32 s{sTag+1}, s{sTag+1}, 0x9e3779b9')
CW_OFF = f's_lshl_b32 s{sA2}, s{sCG}, 11\ns_lshl_b32 s{sA3}, s{sJ}, 10\ns_add_u32 s{sA2}, s{sA2}, s{sA3}\ns_lshl_b32 s{sA3}, s{sI}, 9\ns_add_u32 s{sA2}, s{sA2}, s{sA3}\ns_add_u32 s{sA2}, s{sA2}, {CSW}'
def stat_loads(role):
    ld = lambda r: (f'buffer_load_dwordx4 {vr(r)}, v{vU8}, {sr(SM)}, s{sA2} offen sc1', 'SL')
    ins = [(f's_lshl_b32 s{sA2}, s{sSig}, 9', None), ld(MO)]
    if role == 'A':
        ins += [(f's_xor_b32 s{sA2}, s{sA2}, 512', None), ld(MP), (CW_OFF, None), ld(CA), (f's_xor_b32 s{sA2}, s{sA2}, 512', None), ld(CB)]
    ins += [(f's_lshl_b32 s{sA2}, s{sCG}, 9\ns_add_u32 s{sA2}, s{sA2}, {CSZ}', None), ld(CZ)]
    return ins
def stat_check(a, role):
    ok = a.label('ok'); lp = a.label('spin')
    recs = [MO, MP, CA, CB, CZ] if role == 'A' else [MO, CZ]
    def cmp():
        for i, r in enumerate(recs):
            a(f'v_cmp_ne_u64 {"s[22:23]" if i else "vcc"}, s[{sTag}:{sTag+1}], {vr(r+2,2)}')
            if i: a('s_or_b64 vcc, vcc, s[22:23]')
    a.wait_vm('SL')
    cmp()
    a(f's_cbranch_vccz {ok}')
    a(f's_mov_b32 s{sSpin}, {SPIN_MAX}')
    a(f'{lp}:')
    for ins in stat_loads(role): a(ins[0])
    a(f's_sub_u32 s{sSpin}, s{sSpin}, 1\ns_cbranch_scc1 {ok}')
    a('s_waitcnt vmcnt(0)')
    cmp()
    a(f's_cbranch_vccnz {lp}')
    a(f'{ok}:')
def stat_fix(role):
    L = [f'ds_write_b32 v{vZs}, v{MO+1}']
    for r in ([MO, MP] if role == 'A' else [MO]):
        L += [f'v_and_b32 v{r}, v{r}, v{vM8}', f'v_and_b32 v{r+1}, 0xffff, v{r}', f'v_mov_b32 v{r+2}, 0', f'v_mov_b32 v{r+3}, 0']
    for r in ([CA, CB, CZ] if role == 'A' else [CZ]):
        L += [f'v_mov_b32 v{r+2}, 0', f'v_mov_b32 v{r+3}, 0']
    L += [f'ds_read_b128 {vr(ZR+4*q)}, v{vH16} offset:{32*q}' for q in range(4)]
    return L

def rot_next(c): return f's_add_u32 s{c}, s{c}, 1\ns_cmp_eq_u32 s{c}, 7\ns_cselect_b32 s{c}, 0, s{c}'
def dma_group(role, g):
    slot = (g % 4) * SLOT
    ins = []
    if role == 'A':
        ins.append((f's_mov_b32 s{sGc}, s{sG1}' if g == 0 else rot_next(sGc), None))
        ins.append((f's_lshl_b32 s{sA0}, s{sGc}, 7\ns_mul_i32 s{sA1}, s{sGc}, {64*3584}', None))
    else:
        ins.append((f's_movk_i32 s{sA0}, {g*128}\ns_mov_b32 s{sA1}, {g*64*3584}', None))
    if role != 'C':
        ins.append((f's_add_u32 m0, s{sLx}, {slot}\ns_nop 0', None))
        for q in range(4):
            ins.append((f'buffer_load_dwordx4 v{vXo+q}, {sr(SX)}, s{sA0} offen offset:{q*1024} lds', f'G{g}'))
        ins.append((f's_add_u32 m0, s{sLd}, {slot}\ns_nop 0', None))
        ins.append((f'buffer_load_dwordx4 v{vDo}, {sr(SD)}, s{sA0} offen lds', f'G{g}'))
    if role != 'B':
        ins.append((f's_add_u32 m0, s{sLw}, {slot}\ns_nop 0', None))
        for i in range(4):
            ins.append((f'buffer_load_dwordx4 v{vWo+i}, {sr(SW)}, s{sA1} offen offset:{i*1024} lds', f'G{g}'))
    return ins
def w2_group(q):
    ins = [(rot_next(sGw), None), (f's_mul_i32 s{sA4}, s{sGw}, {8*7168}', None)]
    for h in range(2):
        ins.append((f's_add_u32 m0, s{sArea}, {(q-3)*8192 + 4096*h}\n' + ('s_nop 0' if h == 0 else f's_add_u32 s{sA4}, s{sA4}, {4*7168}'), None))
        for i in range(4):
            ins.append((f'buffer_load_dwordx4 v{vW2+i}, {sr(SW2)}, s{sA4} offen offset:{i*1024} lds', f'R{q}'))
    return ins
def w2_raw():
    ins = []
    for m in range(24):
        pre = ''
        if m % 8 == 0: pre = (f's_mov_b32 s{sGw}, s{sG0}' if m == 0 else rot_next(sGw)) + f'\ns_mul_i32 s{sA4}, s{sGw}, {8*7168}\n'
        if m % 8 == 4: pre = f's_add_u32 s{sA4}, s{sA4}, {4*7168}\n'
        ins.append((pre + f'buffer_load_dwordx4 {ar(aRaw+4*m)}, v{vW2+m%4}, {sr(SW2)}, s{sA4} offen offset:{(m%4)*1024}', f'W{m//8}'))
    return ins

def p1_addr_dma(a):
    t = FR
    a(f'v_lshrrev_b32 v{t+1}, 3, v{vL}\nv_and_b32 v{t+2}, 7, v{vL}\nv_lshrrev_b32 v{t+3}, 1, v{t+1}')
    a(f'v_xor_b32 v{t+4}, v{t+2}, v{t+3}\nv_lshlrev_b32 v{t+4}, 4, v{t+4}')
    a(f'v_mul_u32_u24 v{t+5}, {64*896}, v{t+1}')
    a(f's_mul_i32 s{sT}, s{sSig}, 896')
    a(f'v_add3_u32 v{vXo}, v{t+5}, v{t+4}, s{sT}')
    a(f'v_xor_b32 v{vXo+1}, 64, v{vXo}')
    a(f'v_add_u32 v{vXo+2}, {2*(458752-1024)}, v{vXo}')
    a(f'v_add_u32 v{vXo+3}, {3*(458752-1024)}, v{vXo+1}')
    a(f'v_add_u32 v{vXo+1}, {1*(458752-1024)}, v{vXo+1}')
    a(f'v_and_b32 v{t+6}, 1, v{t+3}\nv_lshlrev_b32 v{t+6}, 2, v{t+6}\nv_xor_b32 v{t+6}, v{t+6}, v{t+2}\nv_lshlrev_b32 v{t+6}, 4, v{t+6}')
    a(f'v_mul_u32_u24 v{t+7}, 3584, v{t+1}')
    a(f's_mul_i32 s{sT}, s{sI}, {32*3584}\ns_lshl_b32 s{sT2}, s{sCG}, 8\ns_add_u32 s{sT}, s{sT}, s{sT2}\ns_lshl_b32 s{sT2}, s{sJ}, 7\ns_add_u32 s{sT}, s{sT}, s{sT2}')
    a(f'v_add3_u32 v{vWo}, v{t+7}, v{t+6}, s{sT}')
    for i in range(1, 4): a(f'v_add_u32 v{vWo+i}, {i*(8*3584-1024)}, v{vWo}')
    a(f'v_mul_u32_u24 v{t+5}, 896, v{t+1}')
    a(f's_lshl_b32 s{sT}, s{sJ}, 6')
    a(f'v_xor_b32 v{t+6}, s{sT}, v{t+4}')
    a(f's_lshl_b32 s{sT}, s{sCG}, 1\ns_add_u32 s{sT}, s{sT}, s{sJ}\ns_mul_i32 s{sT}, s{sT}, {8*896}')
    a(f'v_add3_u32 v{vDo}, v{t+5}, v{t+6}, s{sT}')
    a(f's_lshl_b32 s{sLx}, s{sW}, 12')
    a(f's_lshl_b32 s{sLw}, s{sJ}, 13\ns_lshl_b32 s{sT}, s{sI}, 12\ns_add_u32 s{sLw}, s{sLw}, s{sT}\ns_add_u32 s{sLw}, s{sLw}, 16384')
    a(f's_lshl_b32 s{sLd}, s{sW}, 10\ns_add_u32 s{sLd}, s{sLd}, 32768')

def p1_addr_read(a):
    t = FR
    a(f'v_and_b32 v{vU}, 31, v{vL}\nv_lshrrev_b32 v{vHH}, 5, v{vL}')
    a(f'v_bfe_u32 v{t}, v{vU}, 1, 3\nv_xor_b32 v{t}, v{t}, v{vHH}')
    a(f'v_lshlrev_b32 v{t+1}, 7, v{vU}')
    a(f's_xor_b32 s{sT}, s{sW}, 1\ns_lshl_b32 s{sT}, s{sT}, 12')
    for jj in range(4):
        a(f'v_xor_b32 v{t+2}, {2*jj}, v{t}\nv_lshl_add_u32 v{t+2}, v{t+2}, 4, v{t+1}')
        a(f'v_add_u32 v{vRb+jj}, s{sLx}, v{t+2}\nv_add_u32 v{vRp+jj}, s{sT}, v{t+2}\nv_add_u32 v{vRd+jj}, 0x8000, v{t+2}')
        for r in (vRb, vRp, vRd): a(f'v_add_u32 v{r+4+jj}, {2*SLOT}, v{r+jj}')
    a(f'v_bfe_u32 v{t}, v{vL}, 2, 2')
    a(f'v_lshl_add_u32 v{t+1}, v{vHH}, 3, v{t}\nv_lshlrev_b32 v{t+1}, 7, v{t+1}')
    a(f'v_lshrrev_b32 v{t}, 1, v{t}\nv_xor_b32 v{t}, s{sI}, v{t}\nv_lshl_add_u32 v{t+1}, v{t}, 6, v{t+1}')
    a(f'v_bfe_u32 v{t}, v{vL}, 4, 1\nv_lshl_add_u32 v{t+1}, v{t}, 5, v{t+1}')
    a(f'v_and_b32 v{t}, 3, v{vL}\nv_lshl_add_u32 v{t+1}, v{t}, 3, v{t+1}')
    a(f's_lshl_b32 s{sT}, s{sJ}, 13\ns_add_u32 s{sT}, s{sT}, 16384')
    a(f'v_add_u32 v{vTa}, s{sT}, v{t+1}\nv_xor_b32 v{vTb}, 64, v{vTa}')
    a(f'v_add_u32 v{vTa+1}, {2*SLOT}, v{vTa}\nv_add_u32 v{vTb+1}, {2*SLOT}, v{vTb}')
def stat_addr():
    return lines(f'v_lshlrev_b32 v{vU8}, 4, v{vU}\nv_add_u32 v{vM8}, -1, v{vHH}') + \
           [f's_lshl_b32 s{sB0}, s{sW}, 7\ns_add_u32 s{sB0}, s{sB0}, {VX+8192}', f'v_lshl_add_u32 v{vZs}, v{vU}, 2, s{sB0}', f'v_lshl_add_u32 v{vH16}, v{vHH}, 4, s{sB0}']

def twiddle_wc(t):
    L = [f'v_cvt_f32_u32 v{t}, v{vU}', f'v_cvt_f32_u32 v{t+1}, v{vHH}', f'v_mul_f32 v{t}, {f2h(1/32)}, v{t}',
         f'v_mul_f32 v{t+1}, 4.0, v{t+1}', f'v_mul_f32 v{t+1}, v{t+1}, v{t}']
    for p in range(8):
        u0 = 16*(p >> 2) + 8*((p & 3) >> 1) + 2*(p & 1)
        L += [f'v_fmamk_f32 v{t+2}, v{t}, {f2h(u0)}, v{t+1}', f'v_fmamk_f32 v{t+3}, v{t}, {f2h(u0+1)}, v{t+1}',
              f'v_cos_f32 v{t+4}, v{t+2}', f'v_cos_f32 v{t+5}, v{t+3}', f'v_sin_f32 v{t+6}, v{t+2}', f'v_sin_f32 v{t+7}, v{t+3}',
              f'v_cvt_pk_bf16_f32 v{WC+p}, v{t+4}, v{t+5}', f'v_cvt_pk_bf16_f32 v{WC+8+p}, -v{t+6}, -v{t+7}']
    return L
def twiddle_tf(t, dst):
    L = [f's_lshl_b32 s{sT}, s{sI}, 5\ns_add_u32 s{sT}, s{sT}, s{sT1}\nv_lshl_add_u32 v{t}, v{vU}, 6, s{sT}',
         f'v_cvt_f32_u32 v{t}, v{t}', f'v_cvt_f32_u32 v{t+1}, v{vHH}', f'v_mul_f32 v{t}, {f2h(1/2048)}, v{t}',
         f'v_mul_f32 v{t+1}, {f2h(16.0)}, v{t+1}', f'v_mul_f32 v{t+1}, v{t+1}, v{t}']
    for j in range(8):
        for h in range(2):
            k0 = 2*j + 32*h
            L += [f'v_fmamk_f32 v{t+2}, v{t}, {f2h(k0)}, v{t+1}', f'v_fmamk_f32 v{t+3}, v{t}, {f2h(k0+1)}, v{t+1}',
                  f'v_cos_f32 v{t+4}, v{t+2}', f'v_sin_f32 v{t+5}, v{t+2}', f'v_cos_f32 v{t+6}, v{t+3}', f'v_sin_f32 v{t+7}, v{t+3}',
                  f'v_cvt_pk_bf16_f32 v{dst+4*j+2*h}, v{t+4}, v{t+5}', f'v_cvt_pk_bf16_f32 v{dst+4*j+2*h+1}, v{t+6}, v{t+7}']
    return L

def p2_addr_early():
    t = vWt; u, w = sB0, sB1
    L = lines(f'v_lshrrev_b32 v{t+1}, 3, v{vL}\nv_and_b32 v{t+2}, 7, v{vL}\nv_bfe_u32 v{t+3}, v{vL}, 4, 1\nv_lshlrev_b32 v{t+3}, 2, v{t+3}\n'
              f'v_xor_b32 v{t+3}, v{t+3}, v{t+2}\nv_lshlrev_b32 v{t+3}, 4, v{t+3}\nv_mul_u32_u24 v{t+4}, 896, v{t+1}')
    L += [f's_mul_i32 s{u}, s{sW}, {448*896}\ns_lshl_b32 s{w}, s{sCT}, 7\ns_add_u32 s{u}, s{u}, s{w}', f'v_add3_u32 v{vW2}, v{t+4}, v{t+3}, s{u}']
    L += [f'v_add_u32 v{vW2+i}, {i*(7168-1024)}, v{vW2}' for i in range(1, 4)]
    L += lines(f'v_bfe_u32 v{t}, v{vL}, 2, 2\nv_lshl_add_u32 v{t+1}, v{vHH}, 2, v{t}\nv_lshlrev_b32 v{t+1}, 7, v{t+1}\nv_lshrrev_b32 v{t}, 1, v{t}\n'
               f'v_xor_b32 v{t}, s{sJ}, v{t}\nv_lshl_add_u32 v{t+1}, v{t}, 6, v{t+1}\nv_bfe_u32 v{t}, v{vL}, 4, 1\nv_lshl_add_u32 v{t+1}, v{t}, 5, v{t+1}\n'
               f'v_and_b32 v{t}, 3, v{vL}\nv_lshl_add_u32 v{t+1}, v{t}, 3, v{t+1}\ns_mul_i32 s{sArea}, s{sW}, {AREA}\n'
               f'v_add_u32 v{vTra}, s{sArea}, v{t+1}\nv_xor_b32 v{vTrb}, 64, v{vTra}\nv_lshlrev_b32 v{vZw}, 4, v{vL}\nv_add_u32 v{vZw}, s{sArea}, v{vZw}')
    def vmap(el, e_out, tt_out, sg_out):
        M = [f's_lshl_b32 s{u}, s{sCT}, 6\ns_lshl_b32 s{w}, s{sJ}, 5\ns_add_u32 s{u}, s{u}, s{w}', f'v_add_u32 v{e_out}, s{u}, v{el}', f'v_sub_u32 v{t+6}, 448, v{e_out}',
             f's_sub_u32 s{u}, 32, s{sT1}\ns_and_b32 s{u}, s{u}, 31', f'v_mov_b32 v{tt_out}, s{sT1}', f'v_mov_b32 v{t+7}, s{u}',
             f'v_cmp_lt_u32 vcc, 239, v{e_out}\ns_nop 1\nv_cndmask_b32 v{e_out}, v{e_out}, v{t+6}, vcc\nv_cndmask_b32 v{tt_out}, v{tt_out}, v{t+7}, vcc' +
             (f'\nv_mov_b32 v{t+6}, 0\nv_bfrev_b32 v{t+7}, 1\nv_cndmask_b32 v{sg_out}, v{t+6}, v{t+7}, vcc' if sg_out else '')]
        return M
    L += vmap(vU, t, t+1, vSg)
    L += lines(f'v_lshlrev_b32 v{vVo}, 16, v{t+1}\nv_lshl_add_u32 v{vVo}, v{t}, 4, v{vVo}\nv_lshl_add_u32 v{vVo}, v{vHH}, 15, v{vVo}')
    L += lines(f'v_and_b32 v{t+2}, 48, v{vL}\nv_subrev_u32 v{t+2}, 16, v{t+2}\nv_min_u32 v{t+2}, 31, v{t+2}')
    L += vmap(t+2, t, t+1, None)
    L += lines(f'v_and_b32 v{t}, 0x1f0, v{t}\nv_and_b32 v{t+2}, 15, v{vL}\nv_add_u32 v{t}, v{t}, v{t+2}\nv_lshlrev_b32 v{t}, 3, v{t}\nv_add_u32 v{vPa}, {FLV}, v{t}')
    L += [f's_mul_i32 s{u}, s{sW}, 7\ns_lshr_b32 s{u}, s{u}, 1\ns_lshr_b32 s{w}, s{sT1}, 1\ns_lshl_b32 s{w}, s{w}, 4\ns_add_u32 s{u}, s{u}, s{w}',
          f's_lshl_b32 s{u}, s{u}, 3\ns_add_u32 s{u}, s{u}, {FLH}', f'v_and_b32 v{t}, 3, v{vL}', f'v_lshl_add_u32 v{t}, v{t}, 3, s{u}',
          f'v_cmp_gt_u32 vcc, 16, v{vL}\ns_nop 1\nv_cndmask_b32 v{vPa}, v{vPa}, v{t}, vcc']
    L += lines(f'v_lshrrev_b32 v{t}, 2, v{vL}\nv_and_b32 v{t+1}, 3, v{vL}\nv_mul_u32_u24 v{t+2}, {64*896}, v{t}\nv_lshl_add_u32 v{t+2}, v{t+1}, 4, v{t+2}')
    L += [f's_lshl_b32 s{sRi}, s{sI}, 5\ns_add_u32 s{sRi}, s{sRi}, s{sT1}\ns_mul_i32 s{u}, s{sRi}, 896\ns_lshl_b32 s{w}, s{sCT}, 7',
          f's_add_u32 s{u}, s{u}, s{w}\ns_lshl_b32 s{w}, s{sJ}, 6\ns_add_u32 s{u}, s{u}, s{w}\ns_lshl_b32 s{sRi}, s{sRi}, 9',
          f'v_add_u32 v{vOo}, s{u}, v{t+2}', f'v_add_u32 v{vOo+1}, {16*64*896}, v{vOo}', f'v_lshlrev_b32 v{vRo}, 4, v{t}',
          f's_mul_i32 s{sHb}, s{sT1}, {HB_SIG}\ns_mul_i32 s{u}, s{sW}, {28*1024}\ns_add_u32 s{sHb}, s{sHb}, s{u}']
    return L

def p1_reads(n):
    g, jj = divmod(n, 4)
    half, so = (g % 4) // 2, (g % 2) * SLOT
    f = FR + 20 * (n & 1)
    return [f'ds_read_b64_tr_b16 {vr(f+8,2)}, v{vTa+half} offset:{so + jj*2048}',
            f'ds_read_b64_tr_b16 {vr(f+10,2)}, v{vTa+half} offset:{so + jj*2048 + 512}',
            f'ds_read_b128 {vr(f)}, v{vRb+4*half+jj} offset:{so}',
            f'ds_read_b128 {vr(f+4)}, v{vRp+4*half+jj} offset:{so}',
            f'ds_read_b64_tr_b16 {vr(f+12,2)}, v{vTb+half} offset:{so + jj*2048}',
            f'ds_read_b64_tr_b16 {vr(f+14,2)}, v{vTb+half} offset:{so + jj*2048 + 512}',
            f'ds_read_b128 {vr(f+16)}, v{vRd+4*half+jj} offset:{so}']
def p1_mfmas(n):
    f = FR + 20 * (n & 1)
    def m(acc, A, B): return mfma(vr(acc, 16), vr(A), vr(B), vr(acc, 16) if n else '0')
    return [m(ACC, f+8, f), m(ACC+16, f+8, f+4), m(ACC+32, f+12, f), m(ACC+48, f+12, f+4), m(ACC+64, f, f+16)]

vZsg, vXw, vXr, vVs, vHo = 78, 79, 80, 81, 82
sHA0, sHA1, sHB0, sHB1 = 4, 5, 8, 9
def z_addr(t, u, w):
    L = lines(f'v_bfe_u32 v{t}, v{vL}, 4, 1\nv_xor_b32 v{vZsg}, 1, v{t}\nv_mul_u32_u24 v{vZsg}, 0x8000, v{vZsg}\nv_lshl_or_b32 v{vZsg}, v{vZsg}, 16, v{vZsg}\n'
              f'v_lshl_add_u32 v{t}, v{vHH}, 2, v{t}\nv_lshlrev_b32 v{t}, 8, v{t}\nv_and_b32 v{t+1}, 15, v{vL}\nv_lshl_add_u32 v{t}, v{t+1}, 4, v{t}')
    L += [f's_lshl_b32 s{u}, s{sW}, 2\ns_add_u32 s{u}, s{u}, {VX}', f'v_add_u32 v{vXw}, s{u}, v{t}',
          f's_lshl_b32 s{u}, s{sW}, 11\ns_add_u32 s{u}, s{u}, {VX}', f'v_lshlrev_b32 v{vHo}, 4, v{vL}', f'v_add_u32 v{vXr}, s{u}, v{vHo}']
    L += lines(f'v_lshrrev_b32 v{t}, 4, v{vL}\nv_lshlrev_b32 v{t}, 16, v{t}\nv_lshl_add_u32 v{t}, v{t+1}, 4, v{t}')
    L += [f's_lshl_b32 s{u}, s{sW}, 19\ns_lshl_b32 s{w}, s{sRT}, 12\ns_add_u32 s{u}, s{u}, s{w}\ns_lshl_b32 s{w}, s{sCG}, 8\ns_add_u32 s{u}, s{u}, s{w}',
          f'v_add_u32 v{vVs}, s{u}, v{t}']
    return L
def h_addr(u, w):
    return [f's_lshl_b32 s{u}, s{sCG}, 3\ns_lshl_b32 s{w}, s{sJ}, 2\ns_add_u32 s{u}, s{u}, s{w}\ns_lshl_b32 s{w}, s{sI}, 1\ns_add_u32 s{u}, s{u}, s{w}',
            f's_lshl_b32 s{u}, s{u}, 10\ns_mul_i32 s{w}, s{sSig}, {HB_SIG}\ns_add_u32 s{sHA0}, s{u}, s{w}',
            f's_xor_b32 s{w}, s{sSig}, 1\ns_mul_i32 s{w}, s{w}, {HB_SIG}\ns_add_u32 s{sHA1}, s{u}, s{w}',
            f's_xor_b32 s{sHB0}, s{sHA0}, 2048\ns_xor_b32 s{sHB1}, s{sHA1}, 2048']

def p1_loop(a):
    a.wait_vm('G0')
    a('s_barrier')
    stamp(a, 1); stamp(a, 1, '1')
    for r in p1_reads(0): a(r)
    q = dma_group('A', 2) + dma_group('A', 3)
    vq = stat_addr() + p2_addr_early() + twiddle_wc(vWt) + z_addr(vWt, sB0, sB1) + h_addr(sB0, sB1) + wg_flag_prep(vFl, sB0, sB1)
    wq = w2_raw()
    nw = 0
    for n in range(28):
        g, jj = divmod(n, 4)
        a('s_waitcnt lgkmcnt(0)')
        if jj == 3 and g < 6:
            assert not any(t == f'G{g+1}' for _, t in q), (n, q)
            a.wait_vm(f'G{g+1}')
            a('s_barrier')
            stamp(a, 2 + g, '1')
            if g + 4 < 7: q += dma_group('A', g + 4)
        if TW and n == TW:
            q = [(f'v_and_b32 v{vP}, 15, v{vL}\nv_lshlrev_b32 v{vP}, 7, v{vP}\nbuffer_load_dword v{vP+1}, v{vP}, {sr(SW2)}, s{sA2} offen', 'TW')] + q
        if n == POLL0: q = stat_loads('A') + q
        if n == POLL0 + PCHK:
            assert not any(t == 'SL' for _, t in q)
            stat_check(a, 'A'); vq += stat_fix('A')
        rd = p1_reads(n + 1) if n + 1 < 28 else []
        nld = 0; wn = 0
        rate = RATE[n % len(RATE)]
        for mi, m in enumerate(p1_mfmas(n)):
            a(m)
            used = 0
            for _ in range(3):
                if rd: a(rd.pop(0)); used += 1
            if mi >= 2:
                cnt = 0
                while nld < rate and (cnt < 1 or mi == 4):
                    if q: ins = q.pop(0)
                    elif n >= W0 and nw < NW and wn < WPS: ins = wq.pop(0); nw += 1; wn += 1
                    else: break
                    a.emit(ins); used += cost(ins[0])
                    if ins[1]: nld += 0.5 if ins[1] == 'SL' else 1; cnt += 1
            while vq and used + min(cost(vq[0]), 3) <= 6:
                x = vq.pop(0); a(x); used += cost(x)
    assert not vq and not q
    stamp(a, 2); stamp(a, 8, '1'); stamp(a, 1, '3')
    return wq

def p1_loop_bc(a, role):
    def regs(g): return FR if g % 2 == 0 else ACC + 16
    def reads(g):
        half, so = (g % 4) // 2, (g % 2) * SLOT
        f = regs(g); L = []
        for jj in range(4):
            if role == 'B':
                L.append(f'ds_read_b128 {vr(f+8*jj)}, v{vRb+4*half+jj} offset:{so}')
                L.append(f'ds_read_b128 {vr(f+8*jj+4)}, v{vRd+4*half+jj} offset:{so}')
            else:
                L.append(f'ds_read_b64_tr_b16 {vr(f+8*jj,2)}, v{vTa+half} offset:{so + jj*2048}')
                L.append(f'ds_read_b64_tr_b16 {vr(f+8*jj+2,2)}, v{vTa+half} offset:{so + jj*2048 + 512}')
        return L
    a.wait_vm('G0'); a('s_barrier')
    if role == 'C': stamp(a, 1)
    for r in reads(0): a(r)
    if role == 'C':
        for ins in dma_group(role, 3): a.emit(ins)
    for g in range(7):
        a('s_waitcnt lgkmcnt(0)')
        if g < 6:
            a.wait_vm(f'G{g+1}'); a('s_barrier')
            for r in reads(g + 1): a(r)
            if g + 4 < 7:
                for ins in dma_group(role, g + 4): a.emit(ins)
            if role == 'B' and g == 4:
                for ins in stat_loads('B'): a.emit(ins)
        f = regs(g)
        for jj in range(4):
            n = 4*g + jj
            if role == 'B': a(mfma(vr(ACC+64,16), vr(f+8*jj), vr(f+8*jj+4), vr(ACC+64,16) if n else '0'))
            else: a(mfma(vr(ACC,16), vr(TF), vr(f+8*jj), vr(ACC,16) if n else '0'))
    if role == 'C': stamp(a, 2)

ZA, B1, B2 = ACC + 64, FR, FR + 8
def z1(a):
    for r in range(16): a(f'v_mul_f32 v{ZA+r}, v{ZA+r}, v{ZR+r}')
    for p in range(8): a(f'v_cvt_pk_bf16_f32 v{B1+p}, v{ZA+2*p}, v{ZA+2*p+1}')
    for p in range(8): a(f'ds_swizzle_b32 v{B2+p}, v{B1+p} offset:0x401f')
    a(mfma(vr(ZA,16), vr(WC), vr(B1), '0'))
    a(mfma(vr(ZA,16), vr(WC+4), vr(B1+4), vr(ZA,16)))
def z2(a):
    a('s_waitcnt lgkmcnt(0)')
    for p in range(8): a(f'v_xor_b32 v{B2+p}, v{B2+p}, v{vZsg}')
    a('s_nop 1')
    a(mfma(vr(ZA,16), vr(WC+8), vr(B2), vr(ZA,16)))
    a(mfma(vr(ZA,16), vr(WC+12), vr(B2+4), vr(ZA,16)))
def z3(a):
    for p in range(8): a(f'v_permlane16_swap_b32 v{ZA+2*p}, v{ZA+2*p+1}')
    a('s_nop 1')
    for p in range(8): a(f'v_cvt_pk_bf16_f32 v{B1+p}, v{ZA+2*p}, v{ZA+2*p+1}')
    for p in range(8):
        t1b = (2*p & 3) + 8 * (p >> 1)
        a(f'ds_write_b32 v{vXw}, v{B1+p} offset:{t1b*256}')
def z4a(a):
    a('s_waitcnt lgkmcnt(0)\ns_barrier')
    a(f'ds_read_b128 {vr(B2)}, v{vXr}\nds_read_b128 {vr(B2+4)}, v{vXr} offset:1024')
def z4b(a):
    a(f's_mov_b32 s{sT}, {4*65536}')
    a('s_waitcnt lgkmcnt(0)')
    a.vmem(f'buffer_store_dwordx4 {vr(B2)}, v{vVs}, {sr(SV)}, 0 offen sc1', 'ST')
    a.vmem(f'buffer_store_dwordx4 {vr(B2+4)}, v{vVs}, {sr(SV)}, s{sT} offen sc1', 'ST')

def gen():
    a = Asm()
    a('s_cmp_ge_u32 s2, 256\ns_cbranch_scc1 Lend')
    a('s_load_dwordx2 s[4:5], s[0:1], 0')
    a('s_load_dwordx4 s[8:11], s[0:1], 24')
    a('s_load_dwordx4 s[12:15], s[0:1], 48')
    a('s_load_dwordx2 s[16:17], s[0:1], 64')
    a('s_load_dwordx2 s[18:19], s[0:1], 80')
    stamp(a, 0)
    a(f'v_lshrrev_b32 v{FR}, 6, v0\nv_and_b32 v{vL}, 63, v0')
    a(f'v_readfirstlane_b32 s{sW}, v{FR}')
    sX8, sN = sA3, sA4
    a(f's_and_b32 s{sX8}, s2, 7\ns_lshr_b32 s{sN}, s2, 3')
    a(f's_and_b32 s{sT}, s{sX8}, 3\ns_lshr_b32 s{sT2}, s{sX8}, 2')
    a(f's_lshr_b32 s{sI}, s{sW}, 1\ns_and_b32 s{sJ}, s{sW}, 1')
    a(f's_cmp_ge_u32 s{sN}, 28\ns_cbranch_scc1 LroleBC')
    def sigma(): a(f's_lshl_b32 s{sSig}, s{sRT}, 1\ns_add_u32 s{sSig}, s{sSig}, s{sJ}\ns_lshl_b32 s{sT}, s{sI}, 5\ns_add_u32 s{sSig}, s{sSig}, s{sT}')
    def p1_srds():
        a('s_waitcnt lgkmcnt(0)')
        srd(a, SX, 4, 2048*896)
        a(f's_cmp_ge_u32 s{sW}, 2')
        a(f's_cselect_b32 s{SD}, s10, s8\ns_cselect_b32 s{SD+1}, s11, s9\ns_mov_b32 s{SD+2}, {448*896}\ns_mov_b32 s{SD+3}, 0x20000')
        srd(a, SW, 12, 448*3584)
    def other_srds():
        srd(a, SM, 18, SM_SIZE, SM_OFF)
        a(f's_load_dwordx2 s[{sTag}:{sTag+1}], s[{SM}:{SM+1}], {EPO}')
        srd(a, SH, 18, HB_SIZE)
        srd(a, SV, 18, VB_SIZE, VB_OFF)

    a(f's_lshl_b32 s{sRT}, s{sT}, 2\ns_and_b32 s{sT3}, s{sN}, 3\ns_add_u32 s{sRT}, s{sRT}, s{sT3}\ns_lshr_b32 s{sCT}, s{sN}, 2')
    a(f's_mul_i32 s{sCG}, s{sT2}, 7\ns_add_u32 s{sCG}, s{sCG}, s{sCT}')
    a(f's_lshl_b32 s{sG0}, s{sT3}, 1\ns_add_u32 s{sG0}, s{sG0}, s{sCT}\ns_sub_u32 s{sB0}, s{sG0}, 7\ns_cselect_b32 s{sG0}, s{sG0}, s{sB0}')
    if not ROT: a(f's_mov_b32 s{sG0}, 0')
    a(f's_lshl_b32 s{sT1}, s{sX8}, 1\ns_lshr_b32 s{sB0}, s{sT3}, 1\ns_add_u32 s{sT1}, s{sT1}, s{sB0}\ns_sub_u32 s{sB0}, 32, s{sT1}\ns_cmp_eq_u32 s{sT1}, 0\ns_cselect_b32 s{sB0}, 16, s{sB0}')
    a(f's_bitcmp1_b32 s{sT3}, 0\ns_cselect_b32 s{sT1}, s{sB0}, s{sT1}')
    if XOFF: a(f's_add_u32 s{sG0}, s{sG0}, s{sX8}\ns_sub_u32 s{sB0}, s{sG0}, 7\ns_cselect_b32 s{sG0}, s{sG0}, s{sB0}\ns_sub_u32 s{sB0}, s{sG0}, 7\ns_cselect_b32 s{sG0}, s{sG0}, s{sB0}')
    if ROT1 == 7: a(f's_mov_b32 s{sB1}, s{sG0}')
    elif ROT1 == 4: a(f's_add_u32 s{sB1}, s{sCT}, s{sT3}\ns_and_b32 s{sB1}, s{sB1}, 3\ns_lshl_b32 s{sB1}, s{sB1}, 1')
    elif ROT1 == 2: a(f's_add_u32 s{sB1}, s{sCT}, s{sT3}\ns_and_b32 s{sB1}, s{sB1}, 1\ns_mul_i32 s{sB1}, s{sB1}, 3')
    elif ROT1 == 3: a(f's_add_u32 s{sB1}, s{sCT}, s{sT3}\ns_mul_i32 s{sB0}, s{sB1}, 43\ns_lshr_b32 s{sB0}, s{sB0}, 7\ns_mul_i32 s{sB0}, s{sB0}, 3\ns_sub_u32 s{sB1}, s{sB1}, s{sB0}\ns_lshl_b32 s{sB1}, s{sB1}, 1')
    else: a(f's_mov_b32 s{sB1}, 0')
    a(f's_mul_i32 s{sOnes}, s{sX8}, 28\ns_add_u32 s{sOnes}, s{sOnes}, s{sN}\ns_lshl_b32 s{sOnes}, s{sOnes}, 2\ns_add_u32 s{sOnes}, s{sOnes}, s{sW}\ns_mul_i32 s{sA2}, s{sOnes}, {14*128}')
    sigma(); p1_addr_dma(a); p1_srds()
    a(f's_mov_b32 s{sG1}, s{sB1}')
    for ins in dma_group('A', 0): a.emit(ins)
    p1_addr_read(a)
    for ins in dma_group('A', 1): a.emit(ins)
    other_srds()
    srd(a, SW2, 14, 1792*896)
    srd(a, SO, 16, 2048*896)
    get_tag(a)
    wq = p1_loop(a)
    a(mfma(vr(ZA,16), vr(MO), vr(CZ), vr(ZA,16)))
    a(mfma(vr(ACC,16), vr(CA), vr(MO), vr(ACC,16)))
    a(mfma(vr(ACC+16,16), vr(CA), vr(MP), vr(ACC+16,16)))
    a(mfma(vr(ACC+32,16), vr(CB), vr(MO), vr(ACC+32,16)))
    a(mfma(vr(ACC+48,16), vr(CB), vr(MP), vr(ACC+48,16)))
    a('s_nop 6\ns_waitcnt lgkmcnt(0)')
    def hblock(acc, out, so):
        for p in range(8): a(f'v_cvt_pk_bf16_f32 v{out+p}, v{acc+2*p}, v{acc+2*p+1}')
        for p in range(8): a(f'v_pk_max_i16 v{out+p}, v{out+p}, 0')
        a.vmem(f'buffer_store_dwordx4 {vr(out)}, v{vHo}, {sr(SH)}, s{so} offen sc1', 'ST')
        a.vmem(f'buffer_store_dwordx4 {vr(out+4)}, v{vHo}, {sr(SH)}, s{so} offen offset:1024 sc1', 'ST')
    z1(a); hblock(ACC, FR+16, sHA0)
    z2(a); hblock(ACC+16, FR+24, sHA1)
    z3(a); hblock(ACC+32, FR+32, sHB0)
    z4a(a); hblock(ACC+48, ACC, sHB1)
    z4b(a)
    stamp(a, 3); stamp(a, 2, '3')
    a('s_barrier')
    phase2(a, wq)
    a('s_branch Lfin')

    a('LroleBC:')
    a.vm = []
    a(f's_cmp_ge_u32 s{sN}, 30\ns_cbranch_scc1 LroleC')
    a(f's_lshl_b32 s{sRT}, s{sT}, 2\ns_lshl_b32 s{sT2}, s{sT2}, 1\ns_add_u32 s{sRT}, s{sRT}, s{sT2}\ns_add_u32 s{sRT}, s{sRT}, s{sN}\ns_sub_u32 s{sRT}, s{sRT}, 28')
    a(f's_mov_b32 s{sCG}, s{sRT}')
    sigma(); p1_addr_dma(a); p1_srds()
    XB, DB, vSb = 104, 224, 92
    for g in range(7):
        a(f's_movk_i32 s{sA0}, {g*128}')
        for q in range(4):
            a.vmem(f'buffer_load_dwordx4 {vr(XB+16*g+4*q)}, v{vXo+q}, {sr(SX)}, s{sA0} offen offset:{q*1024}', f'X{g}')
    for g in range(7):
        a.vmem(f'buffer_load_dwordx4 {vr(DB+4*g)}, v{vDo}, {sr(SD)}, 0 offen offset:{g*128}', 'XD')
    a(f's_sub_u32 s{sT}, 14, s{sRT}\ns_mul_i32 s{sT}, s{sT}, {16*896}\nv_add_u32 v{vDo}, s{sT}, v{vDo}\ns_mov_b32 s{sCG}, 14')
    other_srds()
    a(f's_mov_b32 s{sOnes}, 0x3f803f80')
    for i in range(9): a(f'v_mov_b32 v{vSb+i}, 0')
    for g in range(7):
        a.wait_vm(f'X{g}')
        if g == 0: stamp(a, 1)
        for i in range(4):
            for q in range(4):
                a(f'v_dot2c_f32_bf16 v{vSb+q}, s{sOnes}, v{XB+16*g+4*q+i}')
                a(f'v_dot2c_f32_bf16 v{vSb+4+q}, v{XB+16*g+4*q+i}, v{XB+16*g+4*q+i}')
    t = vt
    def dpp(rng):
        for pat in ('quad_perm:[1,0,3,2]', 'quad_perm:[2,3,0,1]', 'row_half_mirror'):
            for i in rng: a(f'v_add_f32_dpp v{vSb+i}, v{vSb+i}, v{vSb+i} {pat} row_mask:0xf bank_mask:0xf')
            if len(rng) < 3: a('s_nop 1')
    stamp(a, 2)
    a(f'v_and_b32 v{t+6}, 3, v{vL}\ns_nop 1')
    dpp(range(8))
    for q in range(1, 4):
        a(f'v_cmp_eq_u32 vcc, {q}, v{t+6}\ns_nop 1\nv_cndmask_b32 v{vSb}, v{vSb}, v{vSb+q}, vcc\nv_cndmask_b32 v{vSb+4}, v{vSb+4}, v{vSb+4+q}, vcc')
    a(f'v_mul_f32 v{t+4}, {f2h(1/448)}, v{vSb}\nv_mul_f32 v{t+1}, {f2h(1/448)}, v{vSb+4}')
    a(f'v_fma_f32 v{t+1}, -v{t+4}, v{t+4}, v{t+1}\nv_max_f32 v{t+1}, 0, v{t+1}')
    a(f'v_cvt_pk_bf16_f32 v{t}, -v{t+4}, -v{t+4}')
    a(f'v_cvt_pk_bf16_f32 v{t+1}, v{t+1}, v{t+1}\nv_and_b32 v{t+1}, 0xffff0000, v{t+1}')
    a(f'v_add_f32 v{t+1}, {f2h(1e-5)}, v{t+1}')
    a(f'v_cvt_pk_bf16_f32 v{t+1}, v{t+1}, v{t+1}\nv_and_b32 v{t+1}, 0xffff0000, v{t+1}')
    a(f'v_sqrt_f32 v{t+1}, v{t+1}\ns_nop 0')
    a(f'v_cvt_pk_bf16_f32 v{t+1}, v{t+1}, v{t+1}\nv_and_b32 v{t+1}, 0xffff0000, v{t+1}')
    a(f'v_rcp_f32 v{t+1}, v{t+1}')
    get_tag(a)
    a(f'v_mov_b32 v{t+2}, s{sTag}\nv_mov_b32 v{t+3}, s{sTag+1}')
    a(f'v_lshrrev_b32 v{t+7}, 3, v{vL}\nv_lshl_add_u32 v{t+5}, v{t+6}, 3, v{t+7}\nv_lshlrev_b32 v{t+5}, 4, v{t+5}')
    a(f's_lshl_b32 s{sT}, s{sSig}, 9')
    a.vmem(f'buffer_store_dwordx4 {vr(t)}, v{t+5}, {sr(SM)}, s{sT} offen sc1', 'S1')
    a.wait_vm('XD')
    for i in range(28): a(f'v_dot2c_f32_bf16 v{vSb+8}, s{sOnes}, v{DB+i}')
    a('s_nop 2')
    dpp([8])
    col_record(a, DB, vSb+8)
    a(f'v_lshlrev_b32 v{t+7}, 4, v{t+7}\ns_lshl_b32 s{sT}, s{sRT}, 9\ns_lshl_b32 s{sT2}, s{sW}, 7\ns_add_u32 s{sT}, s{sT}, s{sT2}\ns_add_u32 s{sT}, s{sT}, {CSZ}')
    a.vmem(f'buffer_store_dwordx4 {vr(DB)}, v{t+7}, {sr(SM)}, s{sT} offen sc1', 'S1')
    stamp(a, 3)
    for g in range(4):
        for ins in dma_group('B', g): a.emit(ins)
    p1_addr_read(a)
    for x in wg_flag_prep(vFl, sB0, sB1) + stat_addr() + twiddle_wc(vWt) + z_addr(vWt, sB0, sB1): a(x)
    p1_loop_bc(a, 'B')
    stat_check(a, 'B')
    for x in stat_fix('B'): a(x)
    a('s_nop 1')
    a(mfma(vr(ZA,16), vr(MO), vr(CZ), vr(ZA,16)))
    a('s_nop 11\ns_waitcnt lgkmcnt(0)')
    z1(a); z2(a); a('s_nop 11'); z3(a); z4a(a); z4b(a)
    wg_flag(a, vFl)
    a('s_branch Lfin')

    a('LroleC:')
    a.vm = []
    a(f's_lshl_b32 s{sT3}, s{sT}, 1\ns_add_u32 s{sT3}, s{sT3}, s{sN}\ns_sub_u32 s{sT3}, s{sT3}, 30')
    a(f's_lshl_b32 s{sRT}, s{sT2}, 3\ns_add_u32 s{sRT}, s{sRT}, s{sT3}')
    a(f's_mul_i32 s{sCG}, s{sT2}, 7\ns_add_u32 s{sCG}, s{sCG}, s{sT3}\ns_add_u32 s{sT2}, s{sT2}, 14')
    a(f's_cmp_eq_u32 s{sT3}, 7\ns_cselect_b32 s{sCG}, s{sT2}, s{sCG}')
    sigma(); p1_addr_dma(a); p1_srds()
    other_srds()
    a(f's_cmp_ge_u32 s{sCG}, 14\ns_cbranch_scc1 LroleE')
    for g in range(3):
        for ins in dma_group('C', g): a.emit(ins)
    p1_addr_read(a)
    for x in stat_addr(): a(x)
    for i in range(4): a(f'v_mov_b32 v{TF+i}, 0x3f803f80')
    get_tag(a)
    p1_loop_bc(a, 'C')
    a('s_nop 11')
    col_record(a, FR, ACC)
    a(CW_OFF)
    a.vmem(f'buffer_store_dwordx4 {vr(FR)}, v{vU8}, {sr(SM)}, s{sA2} offen sc1', 'S1')
    stamp(a, 3)
    a(f's_mov_b32 s{sCG}, 15')
    for x in wg_flag_prep(vFl, sB0, sB1): a(x)
    wg_flag(a, vFl)
    a('s_branch Lfin')

    a('LroleE:')
    a.vm = []
    get_tag(a)
    a(f's_sub_u32 s{sT3}, 15, s{sCG}\ns_add_u32 s{sT3}, s{sT3}, s{sW}\ns_mov_b32 s{sCG}, 15')
    for x in wg_flag_prep(vFl, sB0, sB1): a(x)
    wg_flag(a, vFl)
    a(f's_cmp_lg_u32 s{sT3}, 0\ns_cbranch_scc1 Lfin')
    a(f'v_lshlrev_b32 v{vPa}, 3, v{vL}\nv_add_u32 v{vPa}, {FLV}, v{vPa}')
    for i in range(4):
        poll_issue(a, 'PE', vPa)
        poll_check(a, 'PE', vPa, sleep=16)
        a(f'v_add_u32 v{vPa}, 512, v{vPa}')
    a(f'v_mov_b32 v{vFl+2}, {EPO}\ns_mov_b64 exec, 1')
    a(f'buffer_store_dwordx2 {vr(vFl,2)}, v{vFl+2}, {sr(SM)}, 0 offen sc1')
    a('s_mov_b64 exec, -1')
    a('Lfin:')
    stamp_store(a)
    a('Lend:')
    a('s_endpgm')
    return a.text()

def phase2(a, wq):
    ACC0, ACC1, YA, VF = 144, 176, 208, 104
    TFd = 4
    vRw, vRwb, vRr = 84, 88, 92
    vRi = 36
    XR = 224
    t = 56
    rq = list(wq)
    for q in range(3, 7): rq += w2_group(q)
    NR = sum(1 for x in rq if x[1])
    def unraw(part):
        a.wait_vm(f'W{part}')
        for m in range(8): a(f'ds_write_b128 v{vZw}, {ar(aRaw+32*part+4*m)} offset:{32768 + m*1024}')
        for kk in range(4):
            for blk, va in enumerate((vTra, vTrb)):
                for p in range(2):
                    a(f'ds_read_b64_tr_b16 {ar(aW+8*(4*part+kk)+4*blk+2*p,2)}, v{va} offset:{32768 + kk*2048 + p*1024}')
    def rdma(n):
        while rq and n > 0:
            ins = rq.pop(0); a.emit(ins)
            if ins[1]: n -= 1
    parts = [0, 1, 2]
    while not any(t_ == f'W{parts[0]}' for _, t_ in rq): unraw(parts.pop(0))
    rdma(RPRE0)
    stamp(a, 3, '3')
    wg_flag(a, vFl)
    stamp(a, 4); stamp(a, 4, '3')
    nr = RPRE0
    while nr < NR - RLATE:
        if nr >= P1POS and 'P1' not in a.vm: poll_issue(a, 'P1', vPa)
        rdma(4); nr += 4
    if 'P1' not in a.vm: poll_issue(a, 'P1', vPa)
    stamp(a, 5, '3')
    while len(parts) > opt('ulate', 1): unraw(parts.pop(0))
    vq = twiddle_tf(t, TFd)
    u = t + 8
    vq += lines(f'v_and_b32 v{u}, 7, v{vU}\nv_xor_b32 v{u}, v{u}, v{vHH}\nv_lshlrev_b32 v{u+1}, 7, v{vU}')
    vq += [f's_lshl_b32 s{sT}, s{sJ}, 12\ns_add_u32 s{sT2}, s{sT}, 32768\ns_add_u32 s{sT}, s{sT2}, s{sArea}', f'v_add_u32 v{u+1}, s{sT}, v{u+1}']
    for q in range(4):
        vq += lines(f'v_xor_b32 v{u+2}, {2*q}, v{u}\nv_lshl_add_u32 v{vRw+q}, v{u+2}, 4, v{u+1}\nv_xor_b32 v{vRwb+q}, 0x1000, v{vRw+q}')
    vq += lines(f'v_lshrrev_b32 v{u}, 2, v{vL}\nv_and_b32 v{u+1}, 3, v{vL}\nv_and_b32 v{u+2}, 7, v{u}\nv_lshlrev_b32 v{u+3}, 1, v{u+1}\nv_xor_b32 v{u+2}, v{u+2}, v{u+3}\n'
                f'v_lshlrev_b32 v{u+2}, 4, v{u+2}\nv_lshl_add_u32 v{u+2}, v{u}, 7, v{u+2}')
    for k in range(4):
        vq += [f's_xor_b32 s{sT}, s{sW}, {k}\ns_mul_i32 s{sT}, s{sT}, {AREA}\ns_add_u32 s{sT}, s{sT}, s{sT2}', f'v_add_u32 v{vRr+2*k}, s{sT}, v{u+2}', f'v_xor_b32 v{vRr+2*k+1}, 16, v{vRr+2*k}']
    pre = opt('tfpre', 0)
    for x in vq[:pre]: a(x)
    vq = vq[pre:]
    stamp(a, 5); stamp(a, 6, '3')
    poll_check(a, 'P1', vPa, mask='15' if VSPLIT else None)
    stamp(a, 6); stamp(a, 7, '3'); stamp(a, 1, '4')
    horder = list(range(HN0)) + [28, 29, 30, 31] + list(range(HN0, 28)) + list(range(32, 56))
    sHq = [sB0, sB1]
    def hload(pos):
        i = horder[pos]
        rb, k = divmod(i, 28)
        c = (sGh0, sGh1)[rb]
        if k % 4 == 0:
            a(f's_mov_b32 s{c}, s{sG0}' if k == 0 else rot_next(c))
            a(f's_lshl_b32 s{sHq[rb]}, s{c}, 12\ns_add_u32 s{sHq[rb]}, s{sHq[rb]}, s{sHb}')
            if rb: a(f's_add_u32 s{sHq[rb]}, s{sHq[rb]}, {32*HB_SIG}')
        a.vmem(f'buffer_load_dwordx4 {ar(aH+4*(i%32))}, v{vHo}, {sr(SH)}, s{sHq[rb]} offen offset:{(k % 4)*1024} sc1', f'H{i}')
    def vloads():
        if VSPLIT: poll_check(a, 'P2', vPa, sleep=0)
        for j in range(8):
            a(f's_movk_i32 s{sA2}, {j*4096}')
            a.vmem(f'buffer_load_dwordx4 {vr(VF+4*j)}, v{vVo}, {sr(SV)}, s{sA2} offen sc1', f'V{j}')
    def smalls():
        a.vmem(f'buffer_load_dword v{vRi}, v{vU8}, {sr(SM)}, s{sRi} offen offset:4 sc1', 'RI')
        a.vmem(f'buffer_load_dword v{vRi+1}, v{vRo}, {sr(SM)}, s{sRi} offen offset:4 sc1', 'RI')
        a.vmem(f'buffer_load_dword v{vRi+2}, v{vRo}, {sr(SM)}, s{sRi} offen offset:260 sc1', 'RI')
        a.vmem(f'buffer_load_dwordx4 {vr(XR)}, v{vOo}, {sr(SX)}, 0 offen', 'X')
        a.vmem(f'buffer_load_dwordx4 {vr(XR+4)}, v{vOo+1}, {sr(SX)}, 0 offen', 'X')
    a('s_waitcnt lgkmcnt(0)')
    nh = 0
    for i in range(HB0):
        if parts and horder[i] % 32 >= 8 * parts[0] and horder[i] % 32 < 24:
            while parts: unraw(parts.pop(0))
            a('s_waitcnt lgkmcnt(0)')
        hload(i); nh += 1
        if i == HN0 + 3 and VL0 < 0: vloads(); smalls()
    stamp(a, 8, '3'); stamp(a, 2, '4')
    while parts: unraw(parts.pop(0))
    for x in vq: a(x)
    vq = []
    a('s_waitcnt lgkmcnt(0)')
    def ard(k):
        s = aF + 8 * (k % (PD + 1))
        return [f'ds_read_b64_tr_b16 {ar(s+4*blk+2*p,2)}, v{va} offset:{(k-12)*2048 + p*1024}'
                for blk, va in enumerate((vTra, vTrb)) for p in range(2)]
    state = dict(nh=nh, lgk=[])
    def lds(s, tag):
        a(s); state['lgk'].append(tag)
    def wait_lgk(tag):
        L = state['lgk']
        if tag not in L: return
        idx = max(i for i, x in enumerate(L) if x == tag)
        a(f's_waitcnt lgkmcnt({min(len(L)-1-idx, 15)})')
        state['lgk'] = L[idx+1:]
    def kstep(rb, k, fill, fill0=()):
        i = 28*rb + k
        acc = ACC0 if rb == 0 else ACC1
        a.wait_vm(f'H{i}')
        if k >= 12: wait_lgk(f'A{rb}_{k}')
        if rb == 0 and 12 <= k + PD < 28 and (k + PD) % 4 == 0:
            assert not any(t_ == f'R{(k+PD)//4}' for _, t_ in rq)
            a.wait_vm(f'R{(k+PD)//4}')
        A = aW + 8*k if k < 12 else aF + 8*(k % (PD + 1))
        B = ar(aH + 4*(i % 32))
        a(mfma(vr(acc,16), ar(A), B, vr(acc,16) if k else '0'))
        if 12 <= k + PD < 28:
            for r in ard(k+PD): lds(r, f'A{rb}_{k+PD}')
        for f in fill0: f()
        a(mfma(vr(acc+16,16), ar(A+4), B, vr(acc+16,16) if k else '0'))
        if state['nh'] < 56 and horder[state['nh']] - 32 <= i:
            hload(state['nh']); state['nh'] += 1
        for f in fill: f()
    def take(Q, budget):
        out = []
        while Q and budget > 0:
            x = Q.pop(0)
            if isinstance(x, str): budget -= cost(x); out.append(lambda x=x: a(x))
            else: budget -= 1; out.append(x)
        return out
    def vstep(j):
        def f():
            a.wait_vm(f'V{j}')
            for i in range(4): a(f'v_xor_b32 v{VF+4*j+i}, v{VF+4*j+i}, v{vSg}')
            a('s_nop 1')
            a(mfma(vr(YA,16), vr(VF+4*j), vr(TFd+4*j), vr(YA,16) if j else '0'))
        return f
    for k in range(28):
        fill = []; fill0 = []
        if k + PD < 12: fill0 = take(vq, 5)
        if rq and k >= RL0: fill.append(lambda: rdma(2))
        if VM0 <= k < VM0 + 8:
            assert not any('cos' in x for x in vq)
            fill.append(vstep(k - VM0))
        else: fill += take(vq, 4)
        if k == P2K: fill.append(lambda: poll_issue(a, 'P2', vPa))
        if k == VL0: fill.append(vloads); fill.append(smalls)
        kstep(0, k, fill, fill0)
        if k in (0, 7, 15, 27): stamp(a, {0: 3, 7: 4, 15: 5, 27: 6}[k], '4')
    assert not vq
    stamp(a, 7)
    def scale_own(acc): return [f'v_fma_f32 v{acc+r}, v{acc+r}, v{vRi}, v{YA+r}' for r in range(16)]
    def red_write(acc, base): return [(lambda q=q: lds(f'ds_write_b128 v{base+q}, {vr(acc+4*q)}', 'RW')) for q in range(4)]
    def barrier():
        wait_lgk('RW'); a('s_barrier')
    def finalize(P):
        L = []
        for k in range(4):
            for i in range(2):
                for h in range(2):
                    L.append(lambda k=k, i=i, h=h: lds(f'ds_read_b128 {vr(P+16*k+8*i+4*h)}, v{vRr+2*k+h} offset:{2048*i}', f'RR{k}'))
        U = 56
        for i in range(8): L += [f'v_lshlrev_b32 v{U+2*i}, 16, v{XR+i}', f'v_and_b32 v{U+2*i+1}, 0xffff0000, v{XR+i}']
        L.append(lambda: wait_lgk('RR0'))
        L += [f'v_add_f32 v{P+r}, v{P+r}, v{U+r}' for r in range(16)]
        L.append(lambda: wait_lgk('RR2'))
        L += [f'v_add_f32 v{P+16+r}, v{P+16+r}, v{P+32+r}' for r in range(16)]
        L.append(lambda: wait_lgk('RR3'))
        L += [f'v_add_f32 v{P+16+r}, v{P+16+r}, v{P+48+r}' for r in range(16)]
        L += [f'v_fma_f32 v{P+r}, v{P+16+r}, v{vRi+1+(r>>3)}, v{P+r}' for r in range(16)]
        L += [f'v_cvt_pk_bf16_f32 v{U+p}, v{P+2*p}, v{P+2*p+1}' for p in range(8)]
        L.append(lambda: a.vmem(f'buffer_store_dwordx4 {vr(U)}, v{vOo}, {sr(SO)}, 0 offen {OST}', 'O'))
        L.append(lambda: a.vmem(f'buffer_store_dwordx4 {vr(U+4)}, v{vOo+1}, {sr(SO)}, 0 offen {OST}', 'O'))
        return L
    def run(L):
        for f in take(L, 10**6): f()
    a(f's_cmp_ge_u32 s{sW}, 2\ns_cbranch_scc1 Lp2hi')
    saved_vm, saved_state = list(a.vm), dict(nh=state['nh'], lgk=list(state['lgk']))
    PF = 104
    for hi in (0, 1):
        if hi:
            a('Lp2hi:')
            a.vm = list(saved_vm); state.update(nh=saved_state['nh'], lgk=list(saved_state['lgk']))
        a.wait_vm('X')
        work = red_write(ACC0+16, vRwb) + (scale_own(ACC0) if not hi else []) + red_write(ACC0, vRw)
        post = finalize(PF) if not hi else []
        KB1, KB2 = opt('kb1', 6), 25
        for k in range(28):
            fill = []; fill0 = []
            if 2 <= k < KB1:
                fill0 = take(work, 5)
                fill = take(work, 4)
            if k == KB1:
                assert not work
                fill = [barrier]
            if KB1 < k < KB2:
                fill0 = take(post, 5 if k + PD < 12 else 1)
                fill = take(post, FILL)
            if k == KB2:
                assert not post and not any(x.startswith('RR') for x in state['lgk']), post
                fill = [lambda: a('s_barrier')]
            kstep(1, k, fill, fill0)
            if k in (11, 27): stamp(a, {11: 7, 27: 8}[k], '4')
        stamp(a, 8)
        if hi:
            a('s_nop 10')
            run(scale_own(ACC1) + red_write(ACC1+16, vRwb) + red_write(ACC1, vRw))
            barrier()
            run(finalize(PF))
        else:
            a('s_nop 10')
            run(red_write(ACC1, vRw) + red_write(ACC1+16, vRwb))
            barrier()
            a('s_branch Lp2done')
    a('Lp2done:')

def main():
    body = gen()
    k = NAME + '_kernel'
    print(f'''; FNet mixing (two-stage DFT factorisation, 2048 = 32 x 64) + ReLU FFN + residual in one persistent launch.
; @launch grid=(256,1,1) block=(256,1,1) lds={LDS_SIZE}
.amdgcn_target "amdgcn-amd-amdhsa--gfx950"
.text
.globl {k}
.p2align 8
.type {k},@function
{k}:
{body}
.section .rodata,"a"
.p2align 6
.amdhsa_kernel {k}
  .amdhsa_next_free_vgpr {256+NAGPR}
  .amdhsa_next_free_sgpr 102
  .amdhsa_accum_offset 256
  .amdhsa_group_segment_fixed_size 0
  .amdhsa_kernarg_size 88
  .amdhsa_user_sgpr_count 2
  .amdhsa_user_sgpr_kernarg_segment_ptr 1
  .amdhsa_system_sgpr_workgroup_id_x 1
.end_amdhsa_kernel''')
main()
```

```python
import sys, struct
NAME = 'parallel_sum__spectral_fnet__dense_activation_relu__prompt'
OPT = dict(a.split('=') for a in sys.argv[1:] if '=' in a)
def opt(k, d): return type(d)(OPT.get(k, d))
STAMP = opt('stamp', 0); LST = OPT.get('lst')
RATE = [int(c) for c in OPT.get('rate', '3')]
ROT = opt('rot', 1)
POLL0 = opt('poll0', 15); PCHK = opt('pchk', 6)
NW = opt('nw', 16); W0 = opt('w0', 16); WPS = [int(c) for c in OPT.get('wps', '112')]
RPRE0 = opt('rpre0', 0); P1POS = opt('p1pos', 26); RLATE = opt('rlate', 0)
HB0 = opt('hb0', 14); VM0 = opt('vm0', 20); FILL = opt('fill', 5); SLEEP = opt('sleep', 4)
OST = OPT.get('ost', '').replace('_', ' ')
TW = opt('tw', -1); ROT1 = opt('rot1', 7); XOFF = opt('xoff', 0); VSPLIT = opt('vsplit', 0)

def f2h(x): return '0x%08x' % struct.unpack('<I', struct.pack('<f', x))[0]

HB_SIG = 112 * 1024
HB_SIZE = 64 * HB_SIG
VB_OFF = 0x800000
VB_SIZE = 32 * 16 * 256 * 16
SM_OFF = 0xA00000
SM_SIZE = 0x20000
CSW, CSZ = 0x8000, 0x18000
FLH, FLV, EPO = 0x10000, 0x11000, 0x14000
ST_OFF = 0x1000000
SLOT = 36864
VX = 4 * SLOT
AREA = 40960
LDS_SIZE = 163840
SPIN_MAX = 1 << 17

SX, SW, SD, SH, SV, SM, SW2, SO = 24, 28, 32, 36, 40, 44, 48, 52
sTag = 56
sW, sI, sJ, sRT, sCG, sSig, sLx, sLw, sLd, sT, sT2, sT3, sT1, sCT = 58, 59, 60, 61, 62, 63, 64, 65, 66, 67, 68, 69, 70, 71
sA0, sA1, sA2, sA3, sA4, sOnes, sSpin, sB0, sB1, sG0 = 72, 73, 74, 75, 76, 77, 78, 79, 80, 81
sGc, sGw, sGh0, sGh1 = 6, 7, 3, 6
sArea, sHb, sRi, sG1, sStg = 20, 21, 77, 10, 11
STB = 82
vL, vU, vHH = 1, 2, 3
vXo, vWo, vDo = 4, 8, 12
vRb, vRp, vRd, vTa, vTb = 13, 21, 29, 37, 39
vM8, vU8, vH16, vZs, vP = 41, 42, 43, 44, 46
vt = 48
WC, TF, FR, ACC = 56, 72, 104, 144
MO, MP, CA, CB, CZ, ZR = 224, 228, 232, 236, 100, 240
vWt = 84
vW2, vTra, vTrb, vZw, vPa, vVo, vSg, vOo, vRo = 48, 52, 53, 54, 55, 45, 72, 74, 76
vSt = [(54, 73), (77, 83)]
vFl = 92
aW, aH, aF = 0, 96, 224
aRaw = aH
NAGPR = 256
PD = opt('pd', 3); RL0 = opt('rl0', 0); VL0 = opt('vl0', -1); HN0 = opt('hn0', 28); P2K = opt('p2k', -1)

class Asm:
    def __init__(self):
        self.L = []; self.vm = []; self.nlab = 0
    def __call__(self, s):
        for line in s.split('\n'):
            line = line.strip()
            self.L.append(line if line.endswith(':') else '    ' + line)
    def vmem(self, s, tag):
        self(s); self.vm.append(tag)
    def emit(self, ins):
        s, tag = ins
        if tag: self.vmem(s, tag)
        else: self(s)
    def wait_vm(self, tag):
        if tag not in self.vm: return
        idx = max(i for i, t in enumerate(self.vm) if t == tag)
        n = len(self.vm) - 1 - idx
        self(f's_waitcnt vmcnt({min(n, 63)})')
        self.vm = self.vm[idx + 1:]
    def label(self, p):
        self.nlab += 1
        return f'L{p}_{self.nlab}'
    def text(self): return '\n'.join(self.L)

def vr(b, n=4): return f'v[{b}:{b+n-1}]'
def ar(b, n=4): return f'a[{b}:{b+n-1}]'
def sr(b, n=4): return f's[{b}:{b+n-1}]'
def srd(a, d, lo, size, off=0):
    if off: a(f's_add_u32 s{d}, s{lo}, {off}\ns_addc_u32 s{d+1}, s{lo+1}, 0')
    else: a(f's_mov_b32 s{d}, s{lo}\ns_mov_b32 s{d+1}, s{lo+1}')
    a(f's_mov_b32 s{d+2}, {size}\ns_mov_b32 s{d+3}, 0x20000')
def stamp(a, idx, mode=None):
    if not STAMP: return
    if 1 <= idx <= 8 and mode != LST: return
    a(f's_memrealtime s[{STB+2*idx}:{STB+2*idx+1}]')
def mfma(D, A, B, C): return f'v_mfma_f32_32x32x16_bf16 {D}, {A}, {B}, {C}'
def lines(s): return s.split('\n')
def cost(x): return sum(2 if ('cos' in y or 'sin' in y) else 1 for y in x.split('\n'))

def stamp_store(a):
    if not STAMP: return
    a('s_waitcnt vmcnt(0) lgkmcnt(0)')
    stamp(a, 9)
    a('s_waitcnt lgkmcnt(0)')
    if STAMP == 3:
        pa, pb = map(int, OPT['probe'].split(','))
        sk = a.label('pskip'); sp = a.label('pspin')
        a(f's_cmp_lg_u32 s2, {OPT.get("pwg", 0)}\ns_cbranch_scc1 {sk}\ns_cmp_lg_u32 s{sW}, {OPT.get("pwv", 0)}\ns_cbranch_scc1 {sk}')
        a(f's_sub_u32 s{sT}, s{STB+2*pb}, s{STB+2*pa}\ns_min_u32 s{sT}, s{sT}, 5000\ns_mul_i32 s{sT}, s{sT}, 10')
        a(f's_memrealtime s[4:5]\ns_waitcnt lgkmcnt(0)\ns_add_u32 s{sT}, s{sT}, s4')
        a(f'{sp}:\ns_memrealtime s[4:5]\ns_waitcnt lgkmcnt(0)\ns_sub_u32 s{sT2}, s{sT}, s4\ns_cmp_gt_i32 s{sT2}, 0\ns_cbranch_scc1 {sp}')
        a(f'{sk}:')
        return
    srd(a, SX, 18, 65536, ST_OFF)
    a(f's_lshl_b32 s{sT}, s2, 2\ns_add_u32 s{sT}, s{sT}, s{sW}\ns_lshl_b32 s{sT}, s{sT}, 6')
    a(f'v_mov_b32 v5, s{sT}')
    for i in range(10):
        a(f'v_mov_b32 v4, s{STB+2*i}')
        a(f'buffer_store_dword v4, v5, {sr(SX)}, 0 offen offset:{4*i}')
        a('s_nop 1')

def poll_issue(a, tag, va, vd=vP):
    a.vmem(f'buffer_load_dwordx2 {vr(vd,2)}, v{va}, {sr(SM)}, 0 offen sc1', tag)
def poll_check(a, tag, va, vd=vP, sleep=SLEEP, mask=None):
    ok = a.label('ok'); lp = a.label('spin')
    a.wait_vm(tag)
    mk = f'\ns_and_b64 vcc, vcc, {mask}' if mask else ''
    a(f'v_cmp_ne_u64 vcc, s[{sTag}:{sTag+1}], {vr(vd,2)}' + mk)
    a(f's_cbranch_vccz {ok}')
    a(f's_mov_b32 s{sSpin}, {SPIN_MAX}')
    a(f'{lp}:')
    if sleep: a(f's_sleep {sleep}')
    a(f'buffer_load_dwordx2 {vr(vd,2)}, v{va}, {sr(SM)}, 0 offen sc1')
    a(f's_sub_u32 s{sSpin}, s{sSpin}, 1\ns_cbranch_scc1 {ok}')
    a('s_waitcnt vmcnt(0)')
    a(f'v_cmp_ne_u64 vcc, s[{sTag}:{sTag+1}], {vr(vd,2)}' + mk)
    a(f's_cbranch_vccnz {lp}')
    a(f'{ok}:')
def wg_flag_prep(tmp, u0, u1):
    return [f's_lshl_b32 s{u0}, s{sCG}, 4\ns_add_u32 s{u0}, s{u0}, s{sRT}\ns_lshl_b32 s{u0}, s{u0}, 3\ns_add_u32 s{u0}, s{u0}, {FLV}',
            f's_lshl_b32 s{u1}, s{sRT}, 4\ns_add_u32 s{u1}, s{u1}, s{sCG}\ns_lshl_b32 s{u1}, s{u1}, 3\ns_add_u32 s{u1}, s{u1}, {FLH}\ns_sub_u32 s{u1}, s{u1}, s{u0}',
            f'v_mul_lo_u32 v{tmp+2}, v{vL}, s{u1}', f'v_add_u32 v{tmp+2}, s{u0}, v{tmp+2}',
            f'v_mov_b32 v{tmp}, s{sTag}', f'v_mov_b32 v{tmp+1}, s{sTag+1}']
def wg_flag(a, tmp, barrier=True):
    a.wait_vm('ST')
    if barrier: a('s_barrier')
    sk = a.label('nofl')
    a(f's_cmp_lg_u32 s{sW}, 0\ns_cbranch_scc1 {sk}')
    a('s_mov_b64 exec, 3')
    a(f'buffer_store_dwordx2 {vr(tmp,2)}, v{tmp+2}, {sr(SM)}, 0 offen sc1')
    a('s_mov_b64 exec, -1')
    a(f'{sk}:')
def col_record(a, o, src):
    a(f'v_cvt_pk_bf16_f32 v{o+2}, v{src}, v{src}\nv_and_b32 v{o+3}, 0xffff0000, v{o+2}\nv_sub_f32 v{o+4}, v{src}, v{o+3}')
    a(f'v_cvt_pk_bf16_f32 v{o}, v{src}, v{o+4}\nv_and_b32 v{o+3}, 0xffff0000, v{o}\nv_sub_f32 v{o+4}, v{o+4}, v{o+3}')
    a(f'v_cvt_pk_bf16_f32 v{o+1}, v{o+4}, 0')
    a(f'v_mov_b32 v{o+2}, s{sTag}\nv_mov_b32 v{o+3}, s{sTag+1}')
def get_tag(a):
    a('s_waitcnt lgkmcnt(0)')
    a(f's_add_u32 s{sTag}, s{sTag}, 0x7f4a7c15\ns_addc_u32 s{sTag+1}, s{sTag+1}, 0x9e3779b9')
CW_OFF = f's_lshl_b32 s{sA2}, s{sCG}, 11\ns_lshl_b32 s{sA3}, s{sJ}, 10\ns_add_u32 s{sA2}, s{sA2}, s{sA3}\ns_lshl_b32 s{sA3}, s{sI}, 9\ns_add_u32 s{sA2}, s{sA2}, s{sA3}\ns_add_u32 s{sA2}, s{sA2}, {CSW}'
def stat_loads(role):
    ld = lambda r: (f'buffer_load_dwordx4 {vr(r)}, v{vU8}, {sr(SM)}, s{sA2} offen sc1', 'SL')
    ins = [(f's_lshl_b32 s{sA2}, s{sSig}, 9', None), ld(MO)]
    if role == 'A':
        ins += [(f's_xor_b32 s{sA2}, s{sA2}, 512', None), ld(MP), (CW_OFF, None), ld(CA), (f's_xor_b32 s{sA2}, s{sA2}, 512', None), ld(CB)]
    ins += [(f's_lshl_b32 s{sA2}, s{sCG}, 9\ns_add_u32 s{sA2}, s{sA2}, {CSZ}', None), ld(CZ)]
    return ins
def stat_check(a, role):
    ok = a.label('ok'); lp = a.label('spin')
    recs = [MO, MP, CA, CB, CZ] if role == 'A' else [MO, CZ]
    def cmp():
        for i, r in enumerate(recs):
            a(f'v_cmp_ne_u64 {"s[22:23]" if i else "vcc"}, s[{sTag}:{sTag+1}], {vr(r+2,2)}')
            if i: a('s_or_b64 vcc, vcc, s[22:23]')
    a.wait_vm('SL')
    cmp()
    a(f's_cbranch_vccz {ok}')
    a(f's_mov_b32 s{sSpin}, {SPIN_MAX}')
    a(f'{lp}:')
    for ins in stat_loads(role): a(ins[0])
    a(f's_sub_u32 s{sSpin}, s{sSpin}, 1\ns_cbranch_scc1 {ok}')
    a('s_waitcnt vmcnt(0)')
    cmp()
    a(f's_cbranch_vccnz {lp}')
    a(f'{ok}:')
def stat_fix(role):
    L = [f'ds_write_b32 v{vZs}, v{MO+1}']
    for r in ([MO, MP] if role == 'A' else [MO]):
        L += [f'v_and_b32 v{r}, v{r}, v{vM8}', f'v_and_b32 v{r+1}, 0xffff, v{r}', f'v_mov_b32 v{r+2}, 0', f'v_mov_b32 v{r+3}, 0']
    for r in ([CA, CB, CZ] if role == 'A' else [CZ]):
        L += [f'v_mov_b32 v{r+2}, 0', f'v_mov_b32 v{r+3}, 0']
    L += [f'ds_read_b128 {vr(ZR+4*q)}, v{vH16} offset:{32*q}' for q in range(4)]
    return L

def rot_next(c): return f's_add_u32 s{c}, s{c}, 1\ns_cmp_eq_u32 s{c}, 7\ns_cselect_b32 s{c}, 0, s{c}'
def dma_group(role, g):
    slot = (g % 4) * SLOT
    ins = []
    if role == 'A':
        ins.append((f's_mov_b32 s{sGc}, s{sG1}' if g == 0 else rot_next(sGc), None))
        ins.append((f's_lshl_b32 s{sA0}, s{sGc}, 7\ns_mul_i32 s{sA1}, s{sGc}, {64*3584}', None))
    else:
        ins.append((f's_movk_i32 s{sA0}, {g*128}\ns_mov_b32 s{sA1}, {g*64*3584}', None))
    if role != 'C':
        ins.append((f's_add_u32 m0, s{sLx}, {slot}\ns_nop 0', None))
        for q in range(4):
            ins.append((f'buffer_load_dwordx4 v{vXo+q}, {sr(SX)}, s{sA0} offen offset:{q*1024} lds', f'G{g}'))
        ins.append((f's_add_u32 m0, s{sLd}, {slot}\ns_nop 0', None))
        ins.append((f'buffer_load_dwordx4 v{vDo}, {sr(SD)}, s{sA0} offen lds', f'G{g}'))
    if role != 'B':
        ins.append((f's_add_u32 m0, s{sLw}, {slot}\ns_nop 0', None))
        for i in range(4):
            ins.append((f'buffer_load_dwordx4 v{vWo+i}, {sr(SW)}, s{sA1} offen offset:{i*1024} lds', f'G{g}'))
    return ins
STG = [3*SLOT, 0]
def w2_group(q):
    base, off = (sStg, STG[q]) if q < 2 else (sArea, 32768 if q == 2 else (q-3)*8192)
    ins = []
    for m in range(8):
        pre = ''
        if m == 0: pre = (f's_mov_b32 s{sGw}, s{sG0}' if q == 0 else rot_next(sGw)) + f'\ns_mul_i32 s{sA4}, s{sGw}, {8*7168}\n'
        if m == 4: pre = f's_add_u32 s{sA4}, s{sA4}, {4*7168}\n'
        pre += f's_add_u32 m0, s{base}, {off + 4096*(m//4)}\ns_nop 0\n' if (q < 2 or m % 4 == 0) else ''
        ins.append((pre + f'buffer_load_dwordx4 v{vW2+m%4}, {sr(SW2)}, s{sA4} offen offset:{(m%4)*1024} lds', f'R{q}'))
    return ins
def stage_reads(part):
    return [f'ds_read_b64_tr_b16 {ar(aW+8*(4*part+kk)+4*blk+2*p,2)}, v{va} offset:{(32768 if part == 2 else 0) + kk*2048 + p*1024}'
            for kk in range(4) for blk, va in enumerate(vSt[part] if part < 2 else (vTra, vTrb)) for p in range(2)]

def p1_addr_dma(a):
    t = FR
    a(f'v_lshrrev_b32 v{t+1}, 3, v{vL}\nv_and_b32 v{t+2}, 7, v{vL}\nv_lshrrev_b32 v{t+3}, 1, v{t+1}')
    a(f'v_xor_b32 v{t+4}, v{t+2}, v{t+3}\nv_lshlrev_b32 v{t+4}, 4, v{t+4}')
    a(f'v_mul_u32_u24 v{t+5}, {64*896}, v{t+1}')
    a(f's_mul_i32 s{sT}, s{sSig}, 896')
    a(f'v_add3_u32 v{vXo}, v{t+5}, v{t+4}, s{sT}')
    a(f'v_xor_b32 v{vXo+1}, 64, v{vXo}')
    a(f'v_add_u32 v{vXo+2}, {2*(458752-1024)}, v{vXo}')
    a(f'v_add_u32 v{vXo+3}, {3*(458752-1024)}, v{vXo+1}')
    a(f'v_add_u32 v{vXo+1}, {1*(458752-1024)}, v{vXo+1}')
    a(f'v_and_b32 v{t+6}, 1, v{t+3}\nv_lshlrev_b32 v{t+6}, 2, v{t+6}\nv_xor_b32 v{t+6}, v{t+6}, v{t+2}\nv_lshlrev_b32 v{t+6}, 4, v{t+6}')
    a(f'v_mul_u32_u24 v{t+7}, 3584, v{t+1}')
    a(f's_mul_i32 s{sT}, s{sI}, {32*3584}\ns_lshl_b32 s{sT2}, s{sCG}, 8\ns_add_u32 s{sT}, s{sT}, s{sT2}\ns_lshl_b32 s{sT2}, s{sJ}, 7\ns_add_u32 s{sT}, s{sT}, s{sT2}')
    a(f'v_add3_u32 v{vWo}, v{t+7}, v{t+6}, s{sT}')
    for i in range(1, 4): a(f'v_add_u32 v{vWo+i}, {i*(8*3584-1024)}, v{vWo}')
    a(f'v_mul_u32_u24 v{t+5}, 896, v{t+1}')
    a(f's_lshl_b32 s{sT}, s{sJ}, 6')
    a(f'v_xor_b32 v{t+6}, s{sT}, v{t+4}')
    a(f's_lshl_b32 s{sT}, s{sCG}, 1\ns_add_u32 s{sT}, s{sT}, s{sJ}\ns_mul_i32 s{sT}, s{sT}, {8*896}')
    a(f'v_add3_u32 v{vDo}, v{t+5}, v{t+6}, s{sT}')
    a(f's_lshl_b32 s{sLx}, s{sW}, 12')
    a(f's_lshl_b32 s{sLw}, s{sJ}, 13\ns_lshl_b32 s{sT}, s{sI}, 12\ns_add_u32 s{sLw}, s{sLw}, s{sT}\ns_add_u32 s{sLw}, s{sLw}, 16384')
    a(f's_lshl_b32 s{sLd}, s{sW}, 10\ns_add_u32 s{sLd}, s{sLd}, 32768')

def p1_addr_read(a):
    t = FR
    a(f'v_and_b32 v{vU}, 31, v{vL}\nv_lshrrev_b32 v{vHH}, 5, v{vL}')
    a(f'v_bfe_u32 v{t}, v{vU}, 1, 3\nv_xor_b32 v{t}, v{t}, v{vHH}')
    a(f'v_lshlrev_b32 v{t+1}, 7, v{vU}')
    a(f's_xor_b32 s{sT}, s{sW}, 1\ns_lshl_b32 s{sT}, s{sT}, 12')
    for jj in range(4):
        a(f'v_xor_b32 v{t+2}, {2*jj}, v{t}\nv_lshl_add_u32 v{t+2}, v{t+2}, 4, v{t+1}')
        a(f'v_add_u32 v{vRb+jj}, s{sLx}, v{t+2}\nv_add_u32 v{vRp+jj}, s{sT}, v{t+2}\nv_add_u32 v{vRd+jj}, 0x8000, v{t+2}')
        for r in (vRb, vRp, vRd): a(f'v_add_u32 v{r+4+jj}, {2*SLOT}, v{r+jj}')
    a(f'v_bfe_u32 v{t}, v{vL}, 2, 2')
    a(f'v_lshl_add_u32 v{t+1}, v{vHH}, 3, v{t}\nv_lshlrev_b32 v{t+1}, 7, v{t+1}')
    a(f'v_lshrrev_b32 v{t}, 1, v{t}\nv_xor_b32 v{t}, s{sI}, v{t}\nv_lshl_add_u32 v{t+1}, v{t}, 6, v{t+1}')
    a(f'v_bfe_u32 v{t}, v{vL}, 4, 1\nv_lshl_add_u32 v{t+1}, v{t}, 5, v{t+1}')
    a(f'v_and_b32 v{t}, 3, v{vL}\nv_lshl_add_u32 v{t+1}, v{t}, 3, v{t+1}')
    a(f's_lshl_b32 s{sT}, s{sJ}, 13\ns_add_u32 s{sT}, s{sT}, 16384')
    a(f'v_add_u32 v{vTa}, s{sT}, v{t+1}\nv_xor_b32 v{vTb}, 64, v{vTa}')
    a(f'v_add_u32 v{vTa+1}, {2*SLOT}, v{vTa}\nv_add_u32 v{vTb+1}, {2*SLOT}, v{vTb}')
def stat_addr():
    return lines(f'v_lshlrev_b32 v{vU8}, 4, v{vU}\nv_add_u32 v{vM8}, -1, v{vHH}') + \
           [f's_lshl_b32 s{sB0}, s{sW}, 7\ns_add_u32 s{sB0}, s{sB0}, {VX+8192}', f'v_lshl_add_u32 v{vZs}, v{vU}, 2, s{sB0}', f'v_lshl_add_u32 v{vH16}, v{vHH}, 4, s{sB0}']

def twiddle_wc(t):
    L = [f'v_cvt_f32_u32 v{t}, v{vU}', f'v_cvt_f32_u32 v{t+1}, v{vHH}', f'v_mul_f32 v{t}, {f2h(1/32)}, v{t}',
         f'v_mul_f32 v{t+1}, 4.0, v{t+1}', f'v_mul_f32 v{t+1}, v{t+1}, v{t}']
    for p in range(8):
        u0 = 16*(p >> 2) + 8*((p & 3) >> 1) + 2*(p & 1)
        L += [f'v_fmamk_f32 v{t+2}, v{t}, {f2h(u0)}, v{t+1}', f'v_fmamk_f32 v{t+3}, v{t}, {f2h(u0+1)}, v{t+1}',
              f'v_cos_f32 v{t+4}, v{t+2}', f'v_cos_f32 v{t+5}, v{t+3}', f'v_sin_f32 v{t+6}, v{t+2}', f'v_sin_f32 v{t+7}, v{t+3}',
              f'v_cvt_pk_bf16_f32 v{WC+p}, v{t+4}, v{t+5}', f'v_cvt_pk_bf16_f32 v{WC+8+p}, -v{t+6}, -v{t+7}']
    return L
def twiddle_tf(t, dst):
    L = [f's_lshl_b32 s{sT}, s{sI}, 5\ns_add_u32 s{sT}, s{sT}, s{sT1}\nv_lshl_add_u32 v{t}, v{vU}, 6, s{sT}',
         f'v_cvt_f32_u32 v{t}, v{t}', f'v_cvt_f32_u32 v{t+1}, v{vHH}', f'v_mul_f32 v{t}, {f2h(1/2048)}, v{t}',
         f'v_mul_f32 v{t+1}, {f2h(16.0)}, v{t+1}', f'v_mul_f32 v{t+1}, v{t+1}, v{t}']
    for j in range(8):
        for h in range(2):
            k0 = 2*j + 32*h
            L += [f'v_fmamk_f32 v{t+2}, v{t}, {f2h(k0)}, v{t+1}', f'v_fmamk_f32 v{t+3}, v{t}, {f2h(k0+1)}, v{t+1}',
                  f'v_cos_f32 v{t+4}, v{t+2}', f'v_sin_f32 v{t+5}, v{t+2}', f'v_cos_f32 v{t+6}, v{t+3}', f'v_sin_f32 v{t+7}, v{t+3}',
                  f'v_cvt_pk_bf16_f32 v{dst+4*j+2*h}, v{t+4}, v{t+5}', f'v_cvt_pk_bf16_f32 v{dst+4*j+2*h+1}, v{t+6}, v{t+7}']
    return L

def p2_addr_early():
    t = vWt; u, w = sB0, sB1
    L = lines(f'v_lshrrev_b32 v{t+1}, 3, v{vL}\nv_and_b32 v{t+2}, 7, v{vL}\nv_bfe_u32 v{t+3}, v{vL}, 4, 1\nv_lshlrev_b32 v{t+3}, 2, v{t+3}\n'
              f'v_xor_b32 v{t+3}, v{t+3}, v{t+2}\nv_lshlrev_b32 v{t+3}, 4, v{t+3}\nv_mul_u32_u24 v{t+4}, 896, v{t+1}')
    L += [f's_mul_i32 s{u}, s{sW}, {448*896}\ns_lshl_b32 s{w}, s{sCT}, 7\ns_add_u32 s{u}, s{u}, s{w}', f'v_add3_u32 v{vW2}, v{t+4}, v{t+3}, s{u}']
    L += [f'v_add_u32 v{vW2+i}, {i*(7168-1024)}, v{vW2}' for i in range(1, 4)]
    L += lines(f'v_bfe_u32 v{t}, v{vL}, 2, 2\nv_lshl_add_u32 v{t+1}, v{vHH}, 2, v{t}\nv_lshlrev_b32 v{t+1}, 7, v{t+1}\nv_lshrrev_b32 v{t}, 1, v{t}\n'
               f'v_xor_b32 v{t}, s{sJ}, v{t}\nv_lshl_add_u32 v{t+1}, v{t}, 6, v{t+1}\nv_bfe_u32 v{t}, v{vL}, 4, 1\nv_lshl_add_u32 v{t+1}, v{t}, 5, v{t+1}\n'
               f'v_and_b32 v{t}, 3, v{vL}\nv_lshl_add_u32 v{t+1}, v{t}, 3, v{t+1}\ns_mul_i32 s{sArea}, s{sW}, {AREA}\n'
               f'v_add_u32 v{vTra}, s{sArea}, v{t+1}\nv_xor_b32 v{vTrb}, 64, v{vTra}\ns_lshl_b32 s{sStg}, s{sW}, 13\nv_add_u32 v{vSt[1][0]}, s{sStg}, v{t+1}\n'
               f'v_xor_b32 v{vSt[1][1]}, 64, v{vSt[1][0]}\nv_add_u32 v{vSt[0][0]}, {STG[0]}, v{vSt[1][0]}\nv_add_u32 v{vSt[0][1]}, {STG[0]}, v{vSt[1][1]}')
    def vmap(el, e_out, tt_out, sg_out):
        M = [f's_lshl_b32 s{u}, s{sCT}, 6\ns_lshl_b32 s{w}, s{sJ}, 5\ns_add_u32 s{u}, s{u}, s{w}', f'v_add_u32 v{e_out}, s{u}, v{el}', f'v_sub_u32 v{t+6}, 448, v{e_out}',
             f's_sub_u32 s{u}, 32, s{sT1}\ns_and_b32 s{u}, s{u}, 31', f'v_mov_b32 v{tt_out}, s{sT1}', f'v_mov_b32 v{t+7}, s{u}',
             f'v_cmp_lt_u32 vcc, 239, v{e_out}\ns_nop 1\nv_cndmask_b32 v{e_out}, v{e_out}, v{t+6}, vcc\nv_cndmask_b32 v{tt_out}, v{tt_out}, v{t+7}, vcc' +
             (f'\nv_mov_b32 v{t+6}, 0\nv_bfrev_b32 v{t+7}, 1\nv_cndmask_b32 v{sg_out}, v{t+6}, v{t+7}, vcc' if sg_out else '')]
        return M
    L += vmap(vU, t, t+1, vSg)
    L += lines(f'v_lshlrev_b32 v{vVo}, 16, v{t+1}\nv_lshl_add_u32 v{vVo}, v{t}, 4, v{vVo}\nv_lshl_add_u32 v{vVo}, v{vHH}, 15, v{vVo}')
    L += lines(f'v_and_b32 v{t+2}, 48, v{vL}\nv_subrev_u32 v{t+2}, 16, v{t+2}\nv_min_u32 v{t+2}, 31, v{t+2}')
    L += vmap(t+2, t, t+1, None)
    L += lines(f'v_and_b32 v{t}, 0x1f0, v{t}\nv_and_b32 v{t+2}, 15, v{vL}\nv_add_u32 v{t}, v{t}, v{t+2}\nv_lshlrev_b32 v{t}, 3, v{t}\nv_add_u32 v{vPa}, {FLV}, v{t}')
    L += [f's_mul_i32 s{u}, s{sW}, 7\ns_lshr_b32 s{u}, s{u}, 1\ns_lshr_b32 s{w}, s{sT1}, 1\ns_lshl_b32 s{w}, s{w}, 4\ns_add_u32 s{u}, s{u}, s{w}',
          f's_lshl_b32 s{u}, s{u}, 3\ns_add_u32 s{u}, s{u}, {FLH}', f'v_and_b32 v{t}, 3, v{vL}', f'v_lshl_add_u32 v{t}, v{t}, 3, s{u}',
          f'v_cmp_gt_u32 vcc, 16, v{vL}\ns_nop 1\nv_cndmask_b32 v{vPa}, v{vPa}, v{t}, vcc']
    L += [f'v_lshrrev_b32 v{t}, 2, v{vL}', f's_lshl_b32 s{u}, s{sI}, 4', f'v_add_u32 v{t}, s{u}, v{t}']
    L += lines(f'v_and_b32 v{t+1}, 3, v{vL}\nv_mul_u32_u24 v{t+2}, {64*896}, v{t}\nv_lshl_add_u32 v{t+2}, v{t+1}, 4, v{t+2}')
    L += [f's_lshl_b32 s{sRi}, s{sI}, 5\ns_add_u32 s{sRi}, s{sRi}, s{sT1}\ns_mul_i32 s{u}, s{sT1}, 896\ns_lshl_b32 s{w}, s{sCT}, 7',
          f's_add_u32 s{u}, s{u}, s{w}\ns_lshl_b32 s{w}, s{sJ}, 6\ns_add_u32 s{u}, s{u}, s{w}\ns_lshl_b32 s{sRi}, s{sRi}, 9',
          f'v_add_u32 v{vOo}, s{u}, v{t+2}', f'v_add_u32 v{vOo+1}, {32*896}, v{vOo}', f'v_lshlrev_b32 v{vRo}, 4, v{t}',
          f's_mul_i32 s{sHb}, s{sT1}, {HB_SIG}\ns_mul_i32 s{u}, s{sW}, {28*1024}\ns_add_u32 s{sHb}, s{sHb}, s{u}']
    return L

def p1_reads(n):
    g, jj = divmod(n, 4)
    half, so = (g % 4) // 2, (g % 2) * SLOT
    f = FR + 20 * (n & 1)
    return [f'ds_read_b64_tr_b16 {vr(f+8,2)}, v{vTa+half} offset:{so + jj*2048}',
            f'ds_read_b64_tr_b16 {vr(f+10,2)}, v{vTa+half} offset:{so + jj*2048 + 512}',
            f'ds_read_b128 {vr(f)}, v{vRb+4*half+jj} offset:{so}',
            f'ds_read_b128 {vr(f+4)}, v{vRp+4*half+jj} offset:{so}',
            f'ds_read_b64_tr_b16 {vr(f+12,2)}, v{vTb+half} offset:{so + jj*2048}',
            f'ds_read_b64_tr_b16 {vr(f+14,2)}, v{vTb+half} offset:{so + jj*2048 + 512}',
            f'ds_read_b128 {vr(f+16)}, v{vRd+4*half+jj} offset:{so}']
def p1_mfmas(n):
    f = FR + 20 * (n & 1)
    def m(acc, A, B): return mfma(vr(acc, 16), vr(A), vr(B), vr(acc, 16) if n else '0')
    return [m(ACC, f+8, f), m(ACC+16, f+8, f+4), m(ACC+32, f+12, f), m(ACC+48, f+12, f+4), m(ACC+64, f, f+16)]

vZsg, vXw, vXr, vVs, vHo = 78, 79, 80, 81, 82
sHA0, sHA1, sHB0, sHB1 = 4, 5, 8, 9
def z_addr(t, u, w):
    L = lines(f'v_bfe_u32 v{t}, v{vL}, 4, 1\nv_xor_b32 v{vZsg}, 1, v{t}\nv_mul_u32_u24 v{vZsg}, 0x8000, v{vZsg}\nv_lshl_or_b32 v{vZsg}, v{vZsg}, 16, v{vZsg}\n'
              f'v_lshl_add_u32 v{t}, v{vHH}, 2, v{t}\nv_lshlrev_b32 v{t}, 8, v{t}\nv_and_b32 v{t+1}, 15, v{vL}\nv_lshl_add_u32 v{t}, v{t+1}, 4, v{t}')
    L += [f's_lshl_b32 s{u}, s{sW}, 2\ns_add_u32 s{u}, s{u}, {VX}', f'v_add_u32 v{vXw}, s{u}, v{t}',
          f's_lshl_b32 s{u}, s{sW}, 11\ns_add_u32 s{u}, s{u}, {VX}', f'v_lshlrev_b32 v{vHo}, 4, v{vL}', f'v_add_u32 v{vXr}, s{u}, v{vHo}']
    L += lines(f'v_lshrrev_b32 v{t}, 4, v{vL}\nv_lshlrev_b32 v{t}, 16, v{t}\nv_lshl_add_u32 v{t}, v{t+1}, 4, v{t}')
    L += [f's_lshl_b32 s{u}, s{sW}, 19\ns_lshl_b32 s{w}, s{sRT}, 12\ns_add_u32 s{u}, s{u}, s{w}\ns_lshl_b32 s{w}, s{sCG}, 8\ns_add_u32 s{u}, s{u}, s{w}',
          f'v_add_u32 v{vVs}, s{u}, v{t}']
    return L
def h_addr(u, w):
    return [f's_lshl_b32 s{u}, s{sCG}, 3\ns_lshl_b32 s{w}, s{sJ}, 2\ns_add_u32 s{u}, s{u}, s{w}\ns_lshl_b32 s{w}, s{sI}, 1\ns_add_u32 s{u}, s{u}, s{w}',
            f's_lshl_b32 s{u}, s{u}, 10\ns_mul_i32 s{w}, s{sSig}, {HB_SIG}\ns_add_u32 s{sHA0}, s{u}, s{w}',
            f's_xor_b32 s{w}, s{sSig}, 1\ns_mul_i32 s{w}, s{w}, {HB_SIG}\ns_add_u32 s{sHA1}, s{u}, s{w}',
            f's_xor_b32 s{sHB0}, s{sHA0}, 2048\ns_xor_b32 s{sHB1}, s{sHA1}, 2048']

def p1_loop(a):
    a.wait_vm('G0')
    a('s_barrier')
    stamp(a, 1); stamp(a, 1, '1')
    for r in p1_reads(0): a(r)
    q = dma_group('A', 2) + dma_group('A', 3)
    vq = stat_addr() + p2_addr_early() + twiddle_wc(vWt) + z_addr(vWt, sB0, sB1) + h_addr(sB0, sB1) + wg_flag_prep(vFl, sB0, sB1)
    wq = w2_group(0) + w2_group(1)
    nw = 0
    for n in range(28):
        g, jj = divmod(n, 4)
        a('s_waitcnt lgkmcnt(0)')
        if jj == 3 and g < 6:
            assert not any(t == f'G{g+1}' for _, t in q), (n, q)
            a.wait_vm(f'G{g+1}')
            a('s_barrier')
            stamp(a, 2 + g, '1')
            if g + 4 < 7: q += dma_group('A', g + 4)
        if TW > 0 and n == TW:
            q = [(f'v_and_b32 v{vP}, 15, v{vL}\nv_lshlrev_b32 v{vP}, 7, v{vP}\nbuffer_load_dword v{vP+1}, v{vP}, {sr(SW2)}, s{sA2} offen', 'TW')] + q
        if n == POLL0: q = stat_loads('A') + q
        if n == POLL0 + PCHK:
            assert not any(t == 'SL' for _, t in q)
            stat_check(a, 'A'); vq += stat_fix('A')
        rd = p1_reads(n + 1) if n + 1 < 28 else []
        nld = 0; wn = 0
        rate = RATE[n % len(RATE)]
        for mi, m in enumerate(p1_mfmas(n)):
            a(m)
            used = 0
            for _ in range(3):
                if rd: a(rd.pop(0)); used += 1
            if mi >= 2:
                cnt = 0
                while nld < rate and (cnt < 1 or mi == 4):
                    if q: ins = q.pop(0)
                    elif n >= W0 and wq and wn < WPS[n % len(WPS)] and (len(wq) > 8 or n >= 20): ins = wq.pop(0); wn += 1
                    else: break
                    a.emit(ins); used += cost(ins[0])
                    if ins[1]: nld += 0.5 if ins[1] == 'SL' else 1; cnt += 1
            while vq and used + min(cost(vq[0]), 3) <= 6:
                x = vq.pop(0); a(x); used += cost(x)
    assert not vq and not q
    stamp(a, 2); stamp(a, 8, '1'); stamp(a, 1, '3')
    return wq

def p1_loop_bc(a, role):
    def regs(g): return FR if g % 2 == 0 else ACC + 16
    def reads(g):
        half, so = (g % 4) // 2, (g % 2) * SLOT
        f = regs(g); L = []
        for jj in range(4):
            if role == 'B':
                L.append(f'ds_read_b128 {vr(f+8*jj)}, v{vRb+4*half+jj} offset:{so}')
                L.append(f'ds_read_b128 {vr(f+8*jj+4)}, v{vRd+4*half+jj} offset:{so}')
            else:
                L.append(f'ds_read_b64_tr_b16 {vr(f+8*jj,2)}, v{vTa+half} offset:{so + jj*2048}')
                L.append(f'ds_read_b64_tr_b16 {vr(f+8*jj+2,2)}, v{vTa+half} offset:{so + jj*2048 + 512}')
        return L
    a.wait_vm('G0'); a('s_barrier')
    if role == 'C': stamp(a, 1)
    for r in reads(0): a(r)
    if role == 'C':
        for ins in dma_group(role, 3): a.emit(ins)
    for g in range(7):
        a('s_waitcnt lgkmcnt(0)')
        if g < 6:
            a.wait_vm(f'G{g+1}'); a('s_barrier')
            for r in reads(g + 1): a(r)
            if g + 4 < 7:
                for ins in dma_group(role, g + 4): a.emit(ins)
            if role == 'B' and g == 4:
                for ins in stat_loads('B'): a.emit(ins)
        f = regs(g)
        for jj in range(4):
            n = 4*g + jj
            if role == 'B': a(mfma(vr(ACC+64,16), vr(f+8*jj), vr(f+8*jj+4), vr(ACC+64,16) if n else '0'))
            else: a(mfma(vr(ACC,16), vr(TF), vr(f+8*jj), vr(ACC,16) if n else '0'))
    if role == 'C': stamp(a, 2)

ZA, B1, B2 = ACC + 64, FR, FR + 8
def z1(a):
    for r in range(16): a(f'v_mul_f32 v{ZA+r}, v{ZA+r}, v{ZR+r}')
    for p in range(8): a(f'v_cvt_pk_bf16_f32 v{B1+p}, v{ZA+2*p}, v{ZA+2*p+1}')
    for p in range(8): a(f'ds_swizzle_b32 v{B2+p}, v{B1+p} offset:0x401f')
    a(mfma(vr(ZA,16), vr(WC), vr(B1), '0'))
    a(mfma(vr(ZA,16), vr(WC+4), vr(B1+4), vr(ZA,16)))
def z2(a):
    a('s_waitcnt lgkmcnt(0)')
    for p in range(8): a(f'v_xor_b32 v{B2+p}, v{B2+p}, v{vZsg}')
    a('s_nop 1')
    a(mfma(vr(ZA,16), vr(WC+8), vr(B2), vr(ZA,16)))
    a(mfma(vr(ZA,16), vr(WC+12), vr(B2+4), vr(ZA,16)))
def z3(a):
    for p in range(8): a(f'v_permlane16_swap_b32 v{ZA+2*p}, v{ZA+2*p+1}')
    a('s_nop 1')
    for p in range(8): a(f'v_cvt_pk_bf16_f32 v{B1+p}, v{ZA+2*p}, v{ZA+2*p+1}')
    for p in range(8):
        t1b = (2*p & 3) + 8 * (p >> 1)
        a(f'ds_write_b32 v{vXw}, v{B1+p} offset:{t1b*256}')
def z4a(a):
    a('s_waitcnt lgkmcnt(0)\ns_barrier')
    a(f'ds_read_b128 {vr(B2)}, v{vXr}\nds_read_b128 {vr(B2+4)}, v{vXr} offset:1024')
def z4b(a):
    a(f's_mov_b32 s{sT}, {4*65536}')
    a('s_waitcnt lgkmcnt(0)')
    a.vmem(f'buffer_store_dwordx4 {vr(B2)}, v{vVs}, {sr(SV)}, 0 offen sc1', 'ST')
    a.vmem(f'buffer_store_dwordx4 {vr(B2+4)}, v{vVs}, {sr(SV)}, s{sT} offen sc1', 'ST')

def gen():
    a = Asm()
    a('s_cmp_ge_u32 s2, 256\ns_cbranch_scc1 Lend')
    a('s_load_dwordx2 s[4:5], s[0:1], 0')
    a('s_load_dwordx4 s[8:11], s[0:1], 24')
    a('s_load_dwordx4 s[12:15], s[0:1], 48')
    a('s_load_dwordx2 s[16:17], s[0:1], 64')
    a('s_load_dwordx2 s[18:19], s[0:1], 80')
    stamp(a, 0)
    a(f'v_lshrrev_b32 v{FR}, 6, v0\nv_and_b32 v{vL}, 63, v0')
    a(f'v_readfirstlane_b32 s{sW}, v{FR}')
    sX8, sN = sA3, sA4
    a(f's_and_b32 s{sX8}, s2, 7\ns_lshr_b32 s{sN}, s2, 3')
    a(f's_and_b32 s{sT}, s{sX8}, 3\ns_lshr_b32 s{sT2}, s{sX8}, 2')
    a(f's_lshr_b32 s{sI}, s{sW}, 1\ns_and_b32 s{sJ}, s{sW}, 1')
    a(f's_cmp_ge_u32 s{sN}, 28\ns_cbranch_scc1 LroleBC')
    def sigma(): a(f's_lshl_b32 s{sSig}, s{sRT}, 1\ns_add_u32 s{sSig}, s{sSig}, s{sJ}\ns_lshl_b32 s{sT}, s{sI}, 5\ns_add_u32 s{sSig}, s{sSig}, s{sT}')
    def p1_srds():
        a('s_waitcnt lgkmcnt(0)')
        srd(a, SX, 4, 2048*896)
        a(f's_cmp_ge_u32 s{sW}, 2')
        a(f's_cselect_b32 s{SD}, s10, s8\ns_cselect_b32 s{SD+1}, s11, s9\ns_mov_b32 s{SD+2}, {448*896}\ns_mov_b32 s{SD+3}, 0x20000')
        srd(a, SW, 12, 448*3584)
    def other_srds():
        srd(a, SM, 18, SM_SIZE, SM_OFF)
        a(f's_load_dwordx2 s[{sTag}:{sTag+1}], s[{SM}:{SM+1}], {EPO}')
        srd(a, SH, 18, HB_SIZE)
        srd(a, SV, 18, VB_SIZE, VB_OFF)

    a(f's_lshl_b32 s{sRT}, s{sT}, 2\ns_and_b32 s{sT3}, s{sN}, 3\ns_add_u32 s{sRT}, s{sRT}, s{sT3}\ns_lshr_b32 s{sCT}, s{sN}, 2')
    a(f's_mul_i32 s{sCG}, s{sT2}, 7\ns_add_u32 s{sCG}, s{sCG}, s{sCT}')
    a(f's_lshl_b32 s{sG0}, s{sT3}, 1\ns_add_u32 s{sG0}, s{sG0}, s{sCT}\ns_sub_u32 s{sB0}, s{sG0}, 7\ns_cselect_b32 s{sG0}, s{sG0}, s{sB0}')
    if not ROT: a(f's_mov_b32 s{sG0}, 0')
    a(f's_lshl_b32 s{sT1}, s{sX8}, 1\ns_lshr_b32 s{sB0}, s{sT3}, 1\ns_add_u32 s{sT1}, s{sT1}, s{sB0}\ns_sub_u32 s{sB0}, 32, s{sT1}\ns_cmp_eq_u32 s{sT1}, 0\ns_cselect_b32 s{sB0}, 16, s{sB0}')
    a(f's_bitcmp1_b32 s{sT3}, 0\ns_cselect_b32 s{sT1}, s{sB0}, s{sT1}')
    if XOFF: a(f's_add_u32 s{sG0}, s{sG0}, s{sX8}\ns_sub_u32 s{sB0}, s{sG0}, 7\ns_cselect_b32 s{sG0}, s{sG0}, s{sB0}\ns_sub_u32 s{sB0}, s{sG0}, 7\ns_cselect_b32 s{sG0}, s{sG0}, s{sB0}')
    if ROT1 == 7: a(f's_mov_b32 s{sB1}, s{sG0}')
    elif ROT1 == 4: a(f's_add_u32 s{sB1}, s{sCT}, s{sT3}\ns_and_b32 s{sB1}, s{sB1}, 3\ns_lshl_b32 s{sB1}, s{sB1}, 1')
    elif ROT1 == 2: a(f's_add_u32 s{sB1}, s{sCT}, s{sT3}\ns_and_b32 s{sB1}, s{sB1}, 1\ns_mul_i32 s{sB1}, s{sB1}, 3')
    elif ROT1 == 3: a(f's_add_u32 s{sB1}, s{sCT}, s{sT3}\ns_mul_i32 s{sB0}, s{sB1}, 43\ns_lshr_b32 s{sB0}, s{sB0}, 7\ns_mul_i32 s{sB0}, s{sB0}, 3\ns_sub_u32 s{sB1}, s{sB1}, s{sB0}\ns_lshl_b32 s{sB1}, s{sB1}, 1')
    else: a(f's_mov_b32 s{sB1}, 0')
    a(f's_mul_i32 s{sOnes}, s{sX8}, 28\ns_add_u32 s{sOnes}, s{sOnes}, s{sN}\ns_lshl_b32 s{sOnes}, s{sOnes}, 2\ns_add_u32 s{sOnes}, s{sOnes}, s{sW}\ns_mul_i32 s{sA2}, s{sOnes}, {14*128}')
    sigma(); p1_addr_dma(a); p1_srds()
    a(f's_mov_b32 s{sG1}, s{sB1}')
    for ins in dma_group('A', 0): a.emit(ins)
    p1_addr_read(a)
    for ins in dma_group('A', 1): a.emit(ins)
    srd(a, SW2, 14, 1792*896)
    if TW < 0: a.vmem(f'v_and_b32 v{vP}, 15, v{vL}\nv_lshlrev_b32 v{vP}, 7, v{vP}\nbuffer_load_dword v{vP+1}, v{vP}, {sr(SW2)}, s{sA2} offen', 'TW')
    other_srds()
    srd(a, SO, 16, 2048*896)
    get_tag(a)
    wq = p1_loop(a)
    a(mfma(vr(ZA,16), vr(MO), vr(CZ), vr(ZA,16)))
    a(mfma(vr(ACC,16), vr(CA), vr(MO), vr(ACC,16)))
    a(mfma(vr(ACC+16,16), vr(CA), vr(MP), vr(ACC+16,16)))
    a(mfma(vr(ACC+32,16), vr(CB), vr(MO), vr(ACC+32,16)))
    a(mfma(vr(ACC+48,16), vr(CB), vr(MP), vr(ACC+48,16)))
    a('s_nop 6\ns_waitcnt lgkmcnt(0)')
    def hblock(acc, out, so):
        for p in range(8): a(f'v_cvt_pk_bf16_f32 v{out+p}, v{acc+2*p}, v{acc+2*p+1}')
        for p in range(8): a(f'v_pk_max_i16 v{out+p}, v{out+p}, 0')
        a.vmem(f'buffer_store_dwordx4 {vr(out)}, v{vHo}, {sr(SH)}, s{so} offen sc1', 'ST')
        a.vmem(f'buffer_store_dwordx4 {vr(out+4)}, v{vHo}, {sr(SH)}, s{so} offen offset:1024 sc1', 'ST')
    z1(a); hblock(ACC, FR+16, sHA0)
    z2(a); hblock(ACC+16, FR+24, sHA1)
    z3(a); hblock(ACC+32, FR+32, sHB0)
    z4a(a); hblock(ACC+48, ACC, sHB1)
    z4b(a)
    stamp(a, 3); stamp(a, 2, '3')
    phase2(a, wq)
    a('s_branch Lfin')

    a('LroleBC:')
    a.vm = []
    a(f's_cmp_ge_u32 s{sN}, 30\ns_cbranch_scc1 LroleC')
    a(f's_lshl_b32 s{sRT}, s{sT}, 2\ns_lshl_b32 s{sT2}, s{sT2}, 1\ns_add_u32 s{sRT}, s{sRT}, s{sT2}\ns_add_u32 s{sRT}, s{sRT}, s{sN}\ns_sub_u32 s{sRT}, s{sRT}, 28')
    a(f's_mov_b32 s{sCG}, s{sRT}')
    sigma(); p1_addr_dma(a); p1_srds()
    XB, DB, vSb = 104, 224, 92
    for g in range(7):
        a(f's_movk_i32 s{sA0}, {g*128}')
        for q in range(4):
            a.vmem(f'buffer_load_dwordx4 {vr(XB+16*g+4*q)}, v{vXo+q}, {sr(SX)}, s{sA0} offen offset:{q*1024}', f'X{g}')
    for g in range(7):
        a.vmem(f'buffer_load_dwordx4 {vr(DB+4*g)}, v{vDo}, {sr(SD)}, 0 offen offset:{g*128}', 'XD')
    a(f's_sub_u32 s{sT}, 14, s{sRT}\ns_mul_i32 s{sT}, s{sT}, {16*896}\nv_add_u32 v{vDo}, s{sT}, v{vDo}\ns_mov_b32 s{sCG}, 14')
    other_srds()
    a(f's_mov_b32 s{sOnes}, 0x3f803f80')
    for i in range(9): a(f'v_mov_b32 v{vSb+i}, 0')
    for g in range(7):
        a.wait_vm(f'X{g}')
        if g == 0: stamp(a, 1)
        for i in range(4):
            for q in range(4):
                a(f'v_dot2c_f32_bf16 v{vSb+q}, s{sOnes}, v{XB+16*g+4*q+i}')
                a(f'v_dot2c_f32_bf16 v{vSb+4+q}, v{XB+16*g+4*q+i}, v{XB+16*g+4*q+i}')
    t = vt
    def dpp(rng):
        for pat in ('quad_perm:[1,0,3,2]', 'quad_perm:[2,3,0,1]', 'row_half_mirror'):
            for i in rng: a(f'v_add_f32_dpp v{vSb+i}, v{vSb+i}, v{vSb+i} {pat} row_mask:0xf bank_mask:0xf')
            if len(rng) < 3: a('s_nop 1')
    stamp(a, 2)
    a(f'v_and_b32 v{t+6}, 3, v{vL}\ns_nop 1')
    dpp(range(8))
    for q in range(1, 4):
        a(f'v_cmp_eq_u32 vcc, {q}, v{t+6}\ns_nop 1\nv_cndmask_b32 v{vSb}, v{vSb}, v{vSb+q}, vcc\nv_cndmask_b32 v{vSb+4}, v{vSb+4}, v{vSb+4+q}, vcc')
    a(f'v_mul_f32 v{t+4}, {f2h(1/448)}, v{vSb}\nv_mul_f32 v{t+1}, {f2h(1/448)}, v{vSb+4}')
    a(f'v_fma_f32 v{t+1}, -v{t+4}, v{t+4}, v{t+1}\nv_max_f32 v{t+1}, 0, v{t+1}')
    a(f'v_cvt_pk_bf16_f32 v{t}, -v{t+4}, -v{t+4}')
    a(f'v_cvt_pk_bf16_f32 v{t+1}, v{t+1}, v{t+1}\nv_and_b32 v{t+1}, 0xffff0000, v{t+1}')
    a(f'v_add_f32 v{t+1}, {f2h(1e-5)}, v{t+1}')
    a(f'v_cvt_pk_bf16_f32 v{t+1}, v{t+1}, v{t+1}\nv_and_b32 v{t+1}, 0xffff0000, v{t+1}')
    a(f'v_sqrt_f32 v{t+1}, v{t+1}\ns_nop 0')
    a(f'v_cvt_pk_bf16_f32 v{t+1}, v{t+1}, v{t+1}\nv_and_b32 v{t+1}, 0xffff0000, v{t+1}')
    a(f'v_rcp_f32 v{t+1}, v{t+1}')
    get_tag(a)
    a(f'v_mov_b32 v{t+2}, s{sTag}\nv_mov_b32 v{t+3}, s{sTag+1}')
    a(f'v_lshrrev_b32 v{t+7}, 3, v{vL}\nv_lshl_add_u32 v{t+5}, v{t+6}, 3, v{t+7}\nv_lshlrev_b32 v{t+5}, 4, v{t+5}')
    a(f's_lshl_b32 s{sT}, s{sSig}, 9')
    a.vmem(f'buffer_store_dwordx4 {vr(t)}, v{t+5}, {sr(SM)}, s{sT} offen sc1', 'S1')
    a.wait_vm('XD')
    for i in range(28): a(f'v_dot2c_f32_bf16 v{vSb+8}, s{sOnes}, v{DB+i}')
    a('s_nop 2')
    dpp([8])
    col_record(a, DB, vSb+8)
    a(f'v_lshlrev_b32 v{t+7}, 4, v{t+7}\ns_lshl_b32 s{sT}, s{sRT}, 9\ns_lshl_b32 s{sT2}, s{sW}, 7\ns_add_u32 s{sT}, s{sT}, s{sT2}\ns_add_u32 s{sT}, s{sT}, {CSZ}')
    a.vmem(f'buffer_store_dwordx4 {vr(DB)}, v{t+7}, {sr(SM)}, s{sT} offen sc1', 'S1')
    stamp(a, 3)
    for g in range(4):
        for ins in dma_group('B', g): a.emit(ins)
    p1_addr_read(a)
    for x in wg_flag_prep(vFl, sB0, sB1) + stat_addr() + twiddle_wc(vWt) + z_addr(vWt, sB0, sB1): a(x)
    p1_loop_bc(a, 'B')
    stat_check(a, 'B')
    for x in stat_fix('B'): a(x)
    a('s_nop 1')
    a(mfma(vr(ZA,16), vr(MO), vr(CZ), vr(ZA,16)))
    a('s_nop 11\ns_waitcnt lgkmcnt(0)')
    z1(a); z2(a); a('s_nop 11'); z3(a); z4a(a); z4b(a)
    wg_flag(a, vFl)
    a('s_branch Lfin')

    a('LroleC:')
    a.vm = []
    a(f's_lshl_b32 s{sT3}, s{sT}, 1\ns_add_u32 s{sT3}, s{sT3}, s{sN}\ns_sub_u32 s{sT3}, s{sT3}, 30')
    a(f's_lshl_b32 s{sRT}, s{sT2}, 3\ns_add_u32 s{sRT}, s{sRT}, s{sT3}')
    a(f's_mul_i32 s{sCG}, s{sT2}, 7\ns_add_u32 s{sCG}, s{sCG}, s{sT3}\ns_add_u32 s{sT2}, s{sT2}, 14')
    a(f's_cmp_eq_u32 s{sT3}, 7\ns_cselect_b32 s{sCG}, s{sT2}, s{sCG}')
    sigma(); p1_addr_dma(a); p1_srds()
    other_srds()
    a(f's_cmp_ge_u32 s{sCG}, 14\ns_cbranch_scc1 LroleE')
    for g in range(3):
        for ins in dma_group('C', g): a.emit(ins)
    p1_addr_read(a)
    for x in stat_addr(): a(x)
    for i in range(4): a(f'v_mov_b32 v{TF+i}, 0x3f803f80')
    get_tag(a)
    p1_loop_bc(a, 'C')
    a('s_nop 11')
    col_record(a, FR, ACC)
    a(CW_OFF)
    a.vmem(f'buffer_store_dwordx4 {vr(FR)}, v{vU8}, {sr(SM)}, s{sA2} offen sc1', 'S1')
    stamp(a, 3)
    a(f's_mov_b32 s{sCG}, 15')
    for x in wg_flag_prep(vFl, sB0, sB1): a(x)
    wg_flag(a, vFl)
    a('s_branch Lfin')

    a('LroleE:')
    a.vm = []
    get_tag(a)
    a(f's_sub_u32 s{sT3}, 15, s{sCG}\ns_add_u32 s{sT3}, s{sT3}, s{sW}\ns_mov_b32 s{sCG}, 15')
    for x in wg_flag_prep(vFl, sB0, sB1): a(x)
    wg_flag(a, vFl)
    a(f's_cmp_lg_u32 s{sT3}, 0\ns_cbranch_scc1 Lfin')
    a(f'v_lshlrev_b32 v{vPa}, 3, v{vL}\nv_add_u32 v{vPa}, {FLV}, v{vPa}')
    for i in range(4):
        poll_issue(a, 'PE', vPa)
        poll_check(a, 'PE', vPa, sleep=16)
        a(f'v_add_u32 v{vPa}, 512, v{vPa}')
    a(f'v_mov_b32 v{vFl+2}, {EPO}\ns_mov_b64 exec, 1')
    a(f'buffer_store_dwordx2 {vr(vFl,2)}, v{vFl+2}, {sr(SM)}, 0 offen sc1')
    a('s_mov_b64 exec, -1')
    a('Lfin:')
    stamp_store(a)
    a('Lend:')
    a('s_endpgm')
    return a.text()

def phase2(a, wq):
    ACC0, ACC1, YA, VF = 144, 176, 208, 104
    TFd = 4
    vRw, vRwb, vRr = 84, 88, 92
    vRi = 36
    XR = 224
    t = 56
    for ins in wq: a.emit(ins)
    rq = []
    for q in range(2, 7): rq += w2_group(q)
    NR = len(rq)
    def rdma(n):
        while rq and n > 0:
            ins = rq.pop(0); a.emit(ins)
            if ins[1]: n -= 1
    vq = twiddle_tf(t, TFd)
    u = t + 8
    vq += lines(f'v_and_b32 v{u}, 7, v{vU}\nv_xor_b32 v{u}, v{u}, v{vHH}\nv_lshlrev_b32 v{u+1}, 7, v{vU}')
    vq += [f's_lshl_b32 s{sT}, s{sJ}, 12\ns_add_u32 s{sT2}, s{sT}, 32768\ns_add_u32 s{sT}, s{sT2}, s{sArea}', f'v_add_u32 v{u+1}, s{sT}, v{u+1}']
    for q in range(4):
        vq += lines(f'v_xor_b32 v{u+2}, {2*q}, v{u}\nv_lshl_add_u32 v{vRw+q}, v{u+2}, 4, v{u+1}\nv_xor_b32 v{vRwb+q}, 0x1000, v{vRw+q}')
    vq += lines(f'v_lshrrev_b32 v{u}, 2, v{vL}\nv_and_b32 v{u+1}, 3, v{vL}\nv_and_b32 v{u+2}, 7, v{u}\nv_lshlrev_b32 v{u+3}, 1, v{u+1}\nv_xor_b32 v{u+2}, v{u+2}, v{u+3}\n'
                f'v_lshlrev_b32 v{u+2}, 4, v{u+2}\nv_lshl_add_u32 v{u+2}, v{u}, 7, v{u+2}')
    vq += [f's_lshl_b32 s{sT}, s{sI}, 11\ns_add_u32 s{sT2}, s{sT2}, s{sT}']
    nsafe = len(vq)
    for k in range(4):
        vq += [f's_xor_b32 s{sT}, s{sJ}, {k}\ns_mul_i32 s{sT}, s{sT}, {AREA}\ns_add_u32 s{sT}, s{sT}, s{sT2}', f'v_add_u32 v{vRr+2*k}, s{sT}, v{u+2}', f'v_xor_b32 v{vRr+2*k+1}, 16, v{vRr+2*k}']
    uq = []
    def vdo(budget):
        while (uq or vq) and budget > 0:
            x = (uq or vq).pop(0)
            if callable(x): x(); continue
            a(x); budget -= cost(x)
    a.wait_vm('R0')
    for x in stage_reads(0): a(x)
    vdo(opt('tf0', 60))
    a.wait_vm('R1')
    for x in stage_reads(1): a(x)
    vdo(opt('tf0b', 40))
    a('s_waitcnt lgkmcnt(0)')
    stamp(a, 3, '3')
    wg_flag(a, vFl)
    stamp(a, 4); stamp(a, 4, '3')
    nr = opt('rb', 10)
    rdma(nr)
    did2 = False
    while nr < NR - RLATE:
        if nr >= P1POS and 'P1' not in a.vm: poll_issue(a, 'P1', vPa)
        rdma(1); nr += 1
        if nr == 20: uq += [lambda: a.wait_vm('R2')] + stage_reads(2); did2 = True
        vdo(opt('tf1', 8))
    if 'P1' not in a.vm: poll_issue(a, 'P1', vPa)
    stamp(a, 5, '3')
    if not did2: uq += [lambda: a.wait_vm('R2')] + stage_reads(2)
    vdo(10000)
    stamp(a, 5); stamp(a, 6, '3')
    poll_check(a, 'P1', vPa, mask='15' if VSPLIT else None)
    stamp(a, 6); stamp(a, 7, '3'); stamp(a, 1, '4')
    horder = list(range(HN0)) + [28, 29, 30, 31] + list(range(HN0, 28)) + list(range(32, 56))
    sHq = [sB0, sB1]
    def hload(pos):
        i = horder[pos]
        rb, k = divmod(i, 28)
        c = (sGh0, sGh1)[rb]
        if k % 4 == 0:
            a(f's_mov_b32 s{c}, s{sG0}' if k == 0 else rot_next(c))
            a(f's_lshl_b32 s{sHq[rb]}, s{c}, 12\ns_add_u32 s{sHq[rb]}, s{sHq[rb]}, s{sHb}')
            if rb: a(f's_add_u32 s{sHq[rb]}, s{sHq[rb]}, {32*HB_SIG}')
        a.vmem(f'buffer_load_dwordx4 {ar(aH+4*(i%32))}, v{vHo}, {sr(SH)}, s{sHq[rb]} offen offset:{(k % 4)*1024} sc1', f'H{i}')
    def vloads():
        if VSPLIT: poll_check(a, 'P2', vPa, sleep=0)
        for j in range(8):
            a(f's_movk_i32 s{sA2}, {j*4096}')
            a.vmem(f'buffer_load_dwordx4 {vr(VF+4*j)}, v{vVo}, {sr(SV)}, s{sA2} offen sc1', f'V{j}')
    def smalls():
        a.vmem(f'buffer_load_dword v{vRi}, v{vU8}, {sr(SM)}, s{sRi} offen offset:4 sc1', 'RI')
        a(f's_lshl_b32 s{sA2}, s{sT1}, 9')
        a.vmem(f'buffer_load_dword v{vRi+1}, v{vRo}, {sr(SM)}, s{sA2} offen offset:4 sc1', 'RI')
        a(f's_add_u32 s{sA2}, s{sA2}, {32*512}')
        a.vmem(f'buffer_load_dword v{vRi+2}, v{vRo}, {sr(SM)}, s{sA2} offen offset:4 sc1', 'RI')
        a.vmem(f'buffer_load_dwordx4 {vr(XR)}, v{vOo}, {sr(SX)}, 0 offen', 'X')
        a.vmem(f'buffer_load_dwordx4 {vr(XR+4)}, v{vOo+1}, {sr(SX)}, 0 offen', 'X')
    a('s_waitcnt lgkmcnt(0)')
    def vload(j):
        a(f's_movk_i32 s{sA2}, {j*4096}')
        a.vmem(f'buffer_load_dwordx4 {vr(VF+4*j)}, v{vVo}, {sr(SV)}, s{sA2} offen sc1', f'V{j}')
    lq = [('h', i) for i in range(56)]
    vpos = opt('vpos', 14)
    lq = lq[:vpos] + [('v', j) for j in range(8)] + [('s', 0)] + lq[vpos:]
    pos = opt('rpos', 8)
    for _ in range(RLATE):
        lq.insert(pos, ('r', 0)); pos += opt('rstep', 2)
    def lnext(i):
        if not lq: return
        kind, x = lq[0]
        if kind == 'h' and horder[x] - 32 > i: return
        lq.pop(0)
        if kind == 'h': hload(x)
        elif kind == 'v': vload(x)
        elif kind == 'r': rdma(1)
        else: smalls()
    for i in range(HB0): lnext(-1)
    stamp(a, 8, '3'); stamp(a, 2, '4')
    def ard(k):
        s = aF + 8 * (k % (PD + 1))
        return [f'ds_read_b64_tr_b16 {ar(s+4*blk+2*p,2)}, v{va} offset:{(k-12)*2048 + p*1024}'
                for blk, va in enumerate((vTra, vTrb)) for p in range(2)]
    state = dict(lgk=[])
    HPS = [int(c) for c in (OPT.get('hpp', '1112') * opt('hpn', 10) + '1')]
    def lds(s, tag):
        a(s); state['lgk'].append(tag)
    def wait_lgk(tag):
        L = state['lgk']
        if tag not in L: return
        idx = max(i for i, x in enumerate(L) if x == tag)
        a(f's_waitcnt lgkmcnt({min(len(L)-1-idx, 15)})')
        state['lgk'] = L[idx+1:]
    def kstep(rb, k, fill, fill0=()):
        i = 28*rb + k
        acc = ACC0 if rb == 0 else ACC1
        assert not any(kd == 'h' and horder[x] == i for kd, x in lq)
        a.wait_vm(f'H{i}')
        if k >= 12: wait_lgk(f'A{rb}_{k}')
        if rb == 0 and 12 <= k + PD < 28 and (k + PD) % 4 == 0:
            assert not any(t_ == f'R{(k+PD)//4}' for _, t_ in rq)
            a.wait_vm(f'R{(k+PD)//4}')
        A = aW + 8*k if k < 12 else aF + 8*(k % (PD + 1))
        B = ar(aH + 4*(i % 32))
        a(mfma(vr(acc,16), ar(A), B, vr(acc,16) if k else '0'))
        if 12 <= k + PD < 28:
            for r in ard(k+PD): lds(r, f'A{rb}_{k+PD}')
        for f in fill0: f()
        a(mfma(vr(acc+16,16), ar(A+4), B, vr(acc+16,16) if k else '0'))
        for _ in range(HPS[min(i, len(HPS) - 1)]): lnext(i)
        for f in fill: f()
    def take(Q, budget):
        out = []
        while Q and budget > 0:
            x = Q.pop(0)
            if isinstance(x, str): budget -= cost(x); out.append(lambda x=x: a(x))
            else: budget -= 1; out.append(x)
        return out
    def vstep(j):
        def f():
            assert ('v', j) not in lq
            a.wait_vm(f'V{j}')
            for i in range(4): a(f'v_xor_b32 v{VF+4*j+i}, v{VF+4*j+i}, v{vSg}')
            a('s_nop 1')
            a(mfma(vr(YA,16), vr(VF+4*j), vr(TFd+4*j), vr(YA,16) if j else '0'))
        return f
    for k in range(28):
        fill = []; fill0 = []
        if k + PD < 12: fill0 = take(vq, 5)
        if VM0 <= k < VM0 + 8:
            assert not any('cos' in x for x in vq)
            fill.append(vstep(k - VM0))
        else: fill += take(vq, 4)
        kstep(0, k, fill, fill0)
        if k in (0, 7, 15, 27): stamp(a, {0: 3, 7: 4, 15: 5, 27: 6}[k], '4')
    assert not vq
    stamp(a, 7)
    def red_write(acc, base): return [(lambda q=q: lds(f'ds_write_b128 v{base+q}, {vr(acc+4*q)}', 'RW')) for q in range(4)]
    def scale_own(acc, rb):
        def f():
            sk = a.label('noy')
            a(f's_cmp_lg_u32 s{sI}, {rb}\ns_cbranch_scc1 {sk}')
            for r in range(16): a(f'v_fma_f32 v{acc+r}, v{acc+r}, v{vRi}, v{YA+r}')
            a(f'{sk}:')
        return f
    def barrier():
        wait_lgk('RW'); a('s_barrier')
    def finalize(P, rb):
        L = []
        for k in range(4):
            for h in range(2):
                L.append(lambda k=k, h=h: lds(f'ds_read_b128 {vr(P+8*k+4*h)}, v{vRr+2*(k ^ (2*rb))+h}', f'RR{k}'))
        U = 56
        for i in range(4): L += [f'v_lshlrev_b32 v{U+2*i}, 16, v{XR+4*rb+i}', f'v_and_b32 v{U+2*i+1}, 0xffff0000, v{XR+4*rb+i}']
        L.append(lambda: wait_lgk('RR0'))
        L += [f'v_add_f32 v{P+r}, v{P+r}, v{U+r}' for r in range(8)]
        L.append(lambda: wait_lgk('RR2'))
        L += [f'v_add_f32 v{P+8+r}, v{P+8+r}, v{P+16+r}' for r in range(8)]
        L.append(lambda: wait_lgk('RR3'))
        L += [f'v_add_f32 v{P+8+r}, v{P+8+r}, v{P+24+r}' for r in range(8)]
        L += [f'v_fma_f32 v{P+r}, v{P+8+r}, v{vRi+1+rb}, v{P+r}' for r in range(8)]
        L += [f'v_cvt_pk_bf16_f32 v{U+p}, v{P+2*p}, v{P+2*p+1}' for p in range(4)]
        L.append(lambda: a.vmem(f'buffer_store_dwordx4 {vr(U)}, v{vOo+rb}, {sr(SO)}, 0 offen {OST}', 'O'))
        return L
    def run(L):
        for f in take(L, 10**6): f()
    PF = 104
    assert ('s', 0) not in lq
    a.wait_vm('X')
    work = red_write(ACC0+16, vRwb) + [scale_own(ACC0, 0)] + red_write(ACC0, vRw)
    post = finalize(PF, 0)
    KB1, KB2 = opt('kb1', 10), 25
    for k in range(28):
        fill = []; fill0 = []
        if 3 <= k < KB1: fill = take(work, 2)
        if k == KB1:
            assert not work
            fill = [barrier]
        if KB1 < k < KB2:
            fill0 = take(post, 1)
            fill = take(post, FILL)
        if k == KB2:
            assert not post and not any(x.startswith('RR') for x in state['lgk']), post
            fill = [lambda: a('s_barrier')]
        kstep(1, k, fill, fill0)
        if k in (11, 27): stamp(a, {11: 7, 27: 8}[k], '4')
    stamp(a, 8)
    a('s_nop 10')
    run([scale_own(ACC1, 1)] + red_write(ACC1, vRw) + red_write(ACC1+16, vRwb))
    barrier()
    run(finalize(PF, 1))

def main():
    body = gen()
    k = NAME + '_kernel'
    print(f'''; FNet mixing (two-stage DFT factorisation, 2048 = 32 x 64) + ReLU FFN + residual in one persistent launch.
; @launch grid=(256,1,1) block=(256,1,1) lds={LDS_SIZE}
.amdgcn_target "amdgcn-amd-amdhsa--gfx950"
.text
.globl {k}
.p2align 8
.type {k},@function
{k}:
{body}
.section .rodata,"a"
.p2align 6
.amdhsa_kernel {k}
  .amdhsa_next_free_vgpr {256+NAGPR}
  .amdhsa_next_free_sgpr 102
  .amdhsa_accum_offset 256
  .amdhsa_group_segment_fixed_size 0
  .amdhsa_kernarg_size 88
  .amdhsa_user_sgpr_count 2
  .amdhsa_user_sgpr_kernarg_segment_ptr 1
  .amdhsa_system_sgpr_workgroup_id_x 1
.end_amdhsa_kernel''')
main()
```

```python
import sys, struct
NAME = 'parallel_sum__spectral_fnet__dense_activation_relu__prompt'
OPT = dict(a.split('=') for a in sys.argv[1:] if '=' in a)
def opt(k, d): return type(d)(OPT.get(k, d))
STAMP = opt('stamp', 0); LST = OPT.get('lst')
RATE = [int(c) for c in OPT.get('rate', '3')]
ROT = opt('rot', 1)
POLL0 = opt('poll0', 15); PCHK = opt('pchk', 6)
NW = opt('nw', 16); W0 = opt('w0', 16); WPS = [int(c) for c in OPT.get('wps', '112')]
RPRE0 = opt('rpre0', 0); P1POS = opt('p1pos', 26); RLATE = opt('rlate', 0)
HB0 = opt('hb0', 14); VM0 = opt('vm0', 20); FILL = opt('fill', 5); SLEEP = opt('sleep', 4)
OST = OPT.get('ost', '').replace('_', ' ')
TW = opt('tw', -1); ROT1 = opt('rot1', 4); XOFF = opt('xoff', 0); VSPLIT = opt('vsplit', 0)

def f2h(x): return '0x%08x' % struct.unpack('<I', struct.pack('<f', x))[0]

HB_SIG = 112 * 1024
HB_SIZE = 64 * HB_SIG
VB_OFF = 0x800000
VB_SIZE = 32 * 16 * 256 * 16
SM_OFF = 0xA00000
SM_SIZE = 0x20000
CSW, CSZ = 0x8000, 0x18000
FLH, FLV, EPO = 0x10000, 0x11000, 0x14000
ST_OFF = 0x1000000
SLOT = 36864
VX = 4 * SLOT
AREA = 40960
LDS_SIZE = 163840
SPIN_MAX = 1 << 17

SX, SW, SD, SH, SV, SM, SW2, SO = 24, 28, 32, 36, 40, 44, 48, 52
sTag = 56
sW, sI, sJ, sRT, sCG, sSig, sLx, sLw, sLd, sT, sT2, sT3, sT1, sCT = 58, 59, 60, 61, 62, 63, 64, 65, 66, 67, 68, 69, 70, 71
sA0, sA1, sA2, sA3, sA4, sOnes, sSpin, sB0, sB1, sG0 = 72, 73, 74, 75, 76, 77, 78, 79, 80, 81
sGc, sGw, sGh0, sGh1 = 6, 7, 3, 6
sArea, sHb, sRi, sG1, sStg = 20, 21, 77, 10, 11
STB = 82
vL, vU, vHH = 1, 2, 3
vXo, vWo, vDo = 4, 8, 12
vRb, vRp, vRd, vTa, vTb = 13, 21, 29, 37, 39
vM8, vU8, vH16, vZs, vP = 41, 42, 43, 44, 46
vt = 48
WC, TF, FR, ACC = 56, 72, 104, 144
MO, MP, CA, CB, CZ, ZR = 224, 228, 232, 236, 100, 240
vWt = 84
vW2, vTra, vTrb, vZw, vPa, vVo, vSg, vOo, vRo = 48, 52, 53, 54, 55, 45, 72, 74, 76
vSt = [(54, 73), (77, 83)]
vFl = 92
aW, aH, aF = 0, 96, 224
aRaw = aH
NAGPR = 256
PD = opt('pd', 3); RL0 = opt('rl0', 0); VL0 = opt('vl0', -1); HN0 = opt('hn0', 28); P2K = opt('p2k', -1)

class Asm:
    def __init__(self):
        self.L = []; self.vm = []; self.nlab = 0
    def __call__(self, s):
        for line in s.split('\n'):
            line = line.strip()
            self.L.append(line if line.endswith(':') else '    ' + line)
    def vmem(self, s, tag):
        self(s); self.vm.append(tag)
    def emit(self, ins):
        s, tag = ins
        if tag: self.vmem(s, tag)
        else: self(s)
    def wait_vm(self, tag):
        if tag not in self.vm: return
        idx = max(i for i, t in enumerate(self.vm) if t == tag)
        n = len(self.vm) - 1 - idx
        self(f's_waitcnt vmcnt({min(n, 63)})')
        self.vm = self.vm[idx + 1:]
    def label(self, p):
        self.nlab += 1
        return f'L{p}_{self.nlab}'
    def text(self): return '\n'.join(self.L)

def vr(b, n=4): return f'v[{b}:{b+n-1}]'
def ar(b, n=4): return f'a[{b}:{b+n-1}]'
def sr(b, n=4): return f's[{b}:{b+n-1}]'
def srd(a, d, lo, size, off=0):
    if off: a(f's_add_u32 s{d}, s{lo}, {off}\ns_addc_u32 s{d+1}, s{lo+1}, 0')
    else: a(f's_mov_b32 s{d}, s{lo}\ns_mov_b32 s{d+1}, s{lo+1}')
    a(f's_mov_b32 s{d+2}, {size}\ns_mov_b32 s{d+3}, 0x20000')
def stamp(a, idx, mode=None):
    if not STAMP: return
    if 1 <= idx <= 8 and mode != LST: return
    a(f's_memrealtime s[{STB+2*idx}:{STB+2*idx+1}]')
def mfma(D, A, B, C): return f'v_mfma_f32_32x32x16_bf16 {D}, {A}, {B}, {C}'
def lines(s): return s.split('\n')
def cost(x): return sum(2 if ('cos' in y or 'sin' in y) else 1 for y in x.split('\n'))

def stamp_store(a):
    if not STAMP: return
    a('s_waitcnt vmcnt(0) lgkmcnt(0)')
    stamp(a, 9)
    a('s_waitcnt lgkmcnt(0)')
    if STAMP == 3:
        pa, pb = map(int, OPT['probe'].split(','))
        sk = a.label('pskip'); sp = a.label('pspin')
        a(f's_cmp_lg_u32 s2, {OPT.get("pwg", 0)}\ns_cbranch_scc1 {sk}\ns_cmp_lg_u32 s{sW}, {OPT.get("pwv", 0)}\ns_cbranch_scc1 {sk}')
        a(f's_sub_u32 s{sT}, s{STB+2*pb}, s{STB+2*pa}\ns_min_u32 s{sT}, s{sT}, 5000\ns_mul_i32 s{sT}, s{sT}, 10')
        a(f's_memrealtime s[4:5]\ns_waitcnt lgkmcnt(0)\ns_add_u32 s{sT}, s{sT}, s4')
        a(f'{sp}:\ns_memrealtime s[4:5]\ns_waitcnt lgkmcnt(0)\ns_sub_u32 s{sT2}, s{sT}, s4\ns_cmp_gt_i32 s{sT2}, 0\ns_cbranch_scc1 {sp}')
        a(f'{sk}:')
        return
    srd(a, SX, 18, 65536, ST_OFF)
    a(f's_lshl_b32 s{sT}, s2, 2\ns_add_u32 s{sT}, s{sT}, s{sW}\ns_lshl_b32 s{sT}, s{sT}, 6')
    a(f'v_mov_b32 v5, s{sT}')
    for i in range(10):
        a(f'v_mov_b32 v4, s{STB+2*i}')
        a(f'buffer_store_dword v4, v5, {sr(SX)}, 0 offen offset:{4*i}')
        a('s_nop 1')

def poll_issue(a, tag, va, vd=vP):
    a.vmem(f'buffer_load_dwordx2 {vr(vd,2)}, v{va}, {sr(SM)}, 0 offen sc1', tag)
def poll_check(a, tag, va, vd=vP, sleep=SLEEP, mask=None):
    ok = a.label('ok'); lp = a.label('spin')
    a.wait_vm(tag)
    mk = f'\ns_and_b64 vcc, vcc, {mask}' if mask else ''
    a(f'v_cmp_ne_u64 vcc, s[{sTag}:{sTag+1}], {vr(vd,2)}' + mk)
    a(f's_cbranch_vccz {ok}')
    a(f's_mov_b32 s{sSpin}, {SPIN_MAX}')
    a(f'{lp}:')
    if sleep: a(f's_sleep {sleep}')
    a(f'buffer_load_dwordx2 {vr(vd,2)}, v{va}, {sr(SM)}, 0 offen sc1')
    a(f's_sub_u32 s{sSpin}, s{sSpin}, 1\ns_cbranch_scc1 {ok}')
    a('s_waitcnt vmcnt(0)')
    a(f'v_cmp_ne_u64 vcc, s[{sTag}:{sTag+1}], {vr(vd,2)}' + mk)
    a(f's_cbranch_vccnz {lp}')
    a(f'{ok}:')
def wg_flag_prep(tmp, u0, u1):
    return [f's_lshl_b32 s{u0}, s{sCG}, 4\ns_add_u32 s{u0}, s{u0}, s{sRT}\ns_lshl_b32 s{u0}, s{u0}, 3\ns_add_u32 s{u0}, s{u0}, {FLV}',
            f's_lshl_b32 s{u1}, s{sRT}, 4\ns_add_u32 s{u1}, s{u1}, s{sCG}\ns_lshl_b32 s{u1}, s{u1}, 3\ns_add_u32 s{u1}, s{u1}, {FLH}\ns_sub_u32 s{u1}, s{u1}, s{u0}',
            f'v_mul_lo_u32 v{tmp+2}, v{vL}, s{u1}', f'v_add_u32 v{tmp+2}, s{u0}, v{tmp+2}',
            f'v_mov_b32 v{tmp}, s{sTag}', f'v_mov_b32 v{tmp+1}, s{sTag+1}']
def wg_flag(a, tmp, barrier=True):
    a.wait_vm('ST')
    if barrier: a('s_barrier')
    sk = a.label('nofl')
    a(f's_cmp_lg_u32 s{sW}, 0\ns_cbranch_scc1 {sk}')
    a('s_mov_b64 exec, 3')
    a(f'buffer_store_dwordx2 {vr(tmp,2)}, v{tmp+2}, {sr(SM)}, 0 offen sc1')
    a('s_mov_b64 exec, -1')
    a(f'{sk}:')
def col_record(a, o, src):
    a(f'v_cvt_pk_bf16_f32 v{o+2}, v{src}, v{src}\nv_and_b32 v{o+3}, 0xffff0000, v{o+2}\nv_sub_f32 v{o+4}, v{src}, v{o+3}')
    a(f'v_cvt_pk_bf16_f32 v{o}, v{src}, v{o+4}\nv_and_b32 v{o+3}, 0xffff0000, v{o}\nv_sub_f32 v{o+4}, v{o+4}, v{o+3}')
    a(f'v_cvt_pk_bf16_f32 v{o+1}, v{o+4}, 0')
    a(f'v_mov_b32 v{o+2}, s{sTag}\nv_mov_b32 v{o+3}, s{sTag+1}')
def get_tag(a):
    a('s_waitcnt lgkmcnt(0)')
    a(f's_add_u32 s{sTag}, s{sTag}, 0x7f4a7c15\ns_addc_u32 s{sTag+1}, s{sTag+1}, 0x9e3779b9')
CW_OFF = f's_lshl_b32 s{sA2}, s{sCG}, 11\ns_lshl_b32 s{sA3}, s{sJ}, 10\ns_add_u32 s{sA2}, s{sA2}, s{sA3}\ns_lshl_b32 s{sA3}, s{sI}, 9\ns_add_u32 s{sA2}, s{sA2}, s{sA3}\ns_add_u32 s{sA2}, s{sA2}, {CSW}'
def stat_loads(role):
    ld = lambda r: (f'buffer_load_dwordx4 {vr(r)}, v{vU8}, {sr(SM)}, s{sA2} offen sc1', 'SL')
    ins = [(f's_lshl_b32 s{sA2}, s{sSig}, 9', None), ld(MO)]
    if role == 'A':
        ins += [(f's_xor_b32 s{sA2}, s{sA2}, 512', None), ld(MP), (CW_OFF, None), ld(CA), (f's_xor_b32 s{sA2}, s{sA2}, 512', None), ld(CB)]
    ins += [(f's_lshl_b32 s{sA2}, s{sCG}, 9\ns_add_u32 s{sA2}, s{sA2}, {CSZ}', None), ld(CZ)]
    return ins
def stat_check(a, role):
    ok = a.label('ok'); lp = a.label('spin')
    recs = [MO, MP, CA, CB, CZ] if role == 'A' else [MO, CZ]
    def cmp():
        for i, r in enumerate(recs):
            a(f'v_cmp_ne_u64 {"s[22:23]" if i else "vcc"}, s[{sTag}:{sTag+1}], {vr(r+2,2)}')
            if i: a('s_or_b64 vcc, vcc, s[22:23]')
    a.wait_vm('SL')
    cmp()
    a(f's_cbranch_vccz {ok}')
    a(f's_mov_b32 s{sSpin}, {SPIN_MAX}')
    a(f'{lp}:')
    for ins in stat_loads(role): a(ins[0])
    a(f's_sub_u32 s{sSpin}, s{sSpin}, 1\ns_cbranch_scc1 {ok}')
    a('s_waitcnt vmcnt(0)')
    cmp()
    a(f's_cbranch_vccnz {lp}')
    a(f'{ok}:')
def stat_fix(role):
    L = [f'ds_write_b32 v{vZs}, v{MO+1}']
    for r in ([MO, MP] if role == 'A' else [MO]):
        L += [f'v_and_b32 v{r}, v{r}, v{vM8}', f'v_and_b32 v{r+1}, 0xffff, v{r}', f'v_mov_b32 v{r+2}, 0', f'v_mov_b32 v{r+3}, 0']
    for r in ([CA, CB, CZ] if role == 'A' else [CZ]):
        L += [f'v_mov_b32 v{r+2}, 0', f'v_mov_b32 v{r+3}, 0']
    L += [f'ds_read_b128 {vr(ZR+4*q)}, v{vH16} offset:{32*q}' for q in range(4)]
    return L

def rot_next(c): return f's_add_u32 s{c}, s{c}, 1\ns_cmp_eq_u32 s{c}, 7\ns_cselect_b32 s{c}, 0, s{c}'
def dma_group(role, g):
    slot = (g % 4) * SLOT
    ins = []
    if role == 'A':
        ins.append((f's_mov_b32 s{sGc}, s{sG1}' if g == 0 else rot_next(sGc), None))
        ins.append((f's_lshl_b32 s{sA0}, s{sGc}, 7\ns_mul_i32 s{sA1}, s{sGc}, {64*3584}', None))
    else:
        ins.append((f's_movk_i32 s{sA0}, {g*128}\ns_mov_b32 s{sA1}, {g*64*3584}', None))
    if role != 'C':
        ins.append((f's_add_u32 m0, s{sLx}, {slot}\ns_nop 0', None))
        for q in range(4):
            ins.append((f'buffer_load_dwordx4 v{vXo+q}, {sr(SX)}, s{sA0} offen offset:{q*1024} lds', f'G{g}'))
        ins.append((f's_add_u32 m0, s{sLd}, {slot}\ns_nop 0', None))
        ins.append((f'buffer_load_dwordx4 v{vDo}, {sr(SD)}, s{sA0} offen lds', f'G{g}'))
    if role != 'B':
        ins.append((f's_add_u32 m0, s{sLw}, {slot}\ns_nop 0', None))
        for i in range(4):
            ins.append((f'buffer_load_dwordx4 v{vWo+i}, {sr(SW)}, s{sA1} offen offset:{i*1024} lds', f'G{g}'))
    return ins
STG = [3*SLOT, 0]
def w2_group(q):
    base, off = (sStg, STG[q]) if q < 2 else (sArea, 32768 if q == 2 else (q-3)*8192)
    ins = []
    for m in range(8):
        pre = ''
        if m == 0: pre = (f's_mov_b32 s{sGw}, s{sG0}' if q == 0 else rot_next(sGw)) + f'\ns_mul_i32 s{sA4}, s{sGw}, {8*7168}\n'
        if m == 4: pre = f's_add_u32 s{sA4}, s{sA4}, {4*7168}\n'
        pre += f's_add_u32 m0, s{base}, {off + 4096*(m//4)}\ns_nop 0\n' if (q < 2 or m % 4 == 0) else ''
        ins.append((pre + f'buffer_load_dwordx4 v{vW2+m%4}, {sr(SW2)}, s{sA4} offen offset:{(m%4)*1024} lds', f'R{q}'))
    return ins
def stage_reads(part):
    return [f'ds_read_b64_tr_b16 {ar(aW+8*(4*part+kk)+4*blk+2*p,2)}, v{va} offset:{(32768 if part == 2 else 0) + kk*2048 + p*1024}'
            for kk in range(4) for blk, va in enumerate(vSt[part] if part < 2 else (vTra, vTrb)) for p in range(2)]

def p1_addr_dma(a):
    t = FR
    a(f'v_lshrrev_b32 v{t+1}, 3, v{vL}\nv_and_b32 v{t+2}, 7, v{vL}\nv_lshrrev_b32 v{t+3}, 1, v{t+1}')
    a(f'v_xor_b32 v{t+4}, v{t+2}, v{t+3}\nv_lshlrev_b32 v{t+4}, 4, v{t+4}')
    a(f'v_mul_u32_u24 v{t+5}, {64*896}, v{t+1}')
    a(f's_mul_i32 s{sT}, s{sSig}, 896')
    a(f'v_add3_u32 v{vXo}, v{t+5}, v{t+4}, s{sT}')
    a(f'v_xor_b32 v{vXo+1}, 64, v{vXo}')
    a(f'v_add_u32 v{vXo+2}, {2*(458752-1024)}, v{vXo}')
    a(f'v_add_u32 v{vXo+3}, {3*(458752-1024)}, v{vXo+1}')
    a(f'v_add_u32 v{vXo+1}, {1*(458752-1024)}, v{vXo+1}')
    a(f'v_and_b32 v{t+6}, 1, v{t+3}\nv_lshlrev_b32 v{t+6}, 2, v{t+6}\nv_xor_b32 v{t+6}, v{t+6}, v{t+2}\nv_lshlrev_b32 v{t+6}, 4, v{t+6}')
    a(f'v_mul_u32_u24 v{t+7}, 3584, v{t+1}')
    a(f's_mul_i32 s{sT}, s{sI}, {32*3584}\ns_lshl_b32 s{sT2}, s{sCG}, 8\ns_add_u32 s{sT}, s{sT}, s{sT2}\ns_lshl_b32 s{sT2}, s{sJ}, 7\ns_add_u32 s{sT}, s{sT}, s{sT2}')
    a(f'v_add3_u32 v{vWo}, v{t+7}, v{t+6}, s{sT}')
    for i in range(1, 4): a(f'v_add_u32 v{vWo+i}, {i*(8*3584-1024)}, v{vWo}')
    a(f'v_mul_u32_u24 v{t+5}, 896, v{t+1}')
    a(f's_lshl_b32 s{sT}, s{sJ}, 6')
    a(f'v_xor_b32 v{t+6}, s{sT}, v{t+4}')
    a(f's_lshl_b32 s{sT}, s{sCG}, 1\ns_add_u32 s{sT}, s{sT}, s{sJ}\ns_mul_i32 s{sT}, s{sT}, {8*896}')
    a(f'v_add3_u32 v{vDo}, v{t+5}, v{t+6}, s{sT}')
    a(f's_lshl_b32 s{sLx}, s{sW}, 12')
    a(f's_lshl_b32 s{sLw}, s{sJ}, 13\ns_lshl_b32 s{sT}, s{sI}, 12\ns_add_u32 s{sLw}, s{sLw}, s{sT}\ns_add_u32 s{sLw}, s{sLw}, 16384')
    a(f's_lshl_b32 s{sLd}, s{sW}, 10\ns_add_u32 s{sLd}, s{sLd}, 32768')

def p1_addr_read(a):
    t = FR
    a(f'v_and_b32 v{vU}, 31, v{vL}\nv_lshrrev_b32 v{vHH}, 5, v{vL}')
    a(f'v_bfe_u32 v{t}, v{vU}, 1, 3\nv_xor_b32 v{t}, v{t}, v{vHH}')
    a(f'v_lshlrev_b32 v{t+1}, 7, v{vU}')
    a(f's_xor_b32 s{sT}, s{sW}, 1\ns_lshl_b32 s{sT}, s{sT}, 12')
    for jj in range(4):
        a(f'v_xor_b32 v{t+2}, {2*jj}, v{t}\nv_lshl_add_u32 v{t+2}, v{t+2}, 4, v{t+1}')
        a(f'v_add_u32 v{vRb+jj}, s{sLx}, v{t+2}\nv_add_u32 v{vRp+jj}, s{sT}, v{t+2}\nv_add_u32 v{vRd+jj}, 0x8000, v{t+2}')
        for r in (vRb, vRp, vRd): a(f'v_add_u32 v{r+4+jj}, {2*SLOT}, v{r+jj}')
    a(f'v_bfe_u32 v{t}, v{vL}, 2, 2')
    a(f'v_lshl_add_u32 v{t+1}, v{vHH}, 3, v{t}\nv_lshlrev_b32 v{t+1}, 7, v{t+1}')
    a(f'v_lshrrev_b32 v{t}, 1, v{t}\nv_xor_b32 v{t}, s{sI}, v{t}\nv_lshl_add_u32 v{t+1}, v{t}, 6, v{t+1}')
    a(f'v_bfe_u32 v{t}, v{vL}, 4, 1\nv_lshl_add_u32 v{t+1}, v{t}, 5, v{t+1}')
    a(f'v_and_b32 v{t}, 3, v{vL}\nv_lshl_add_u32 v{t+1}, v{t}, 3, v{t+1}')
    a(f's_lshl_b32 s{sT}, s{sJ}, 13\ns_add_u32 s{sT}, s{sT}, 16384')
    a(f'v_add_u32 v{vTa}, s{sT}, v{t+1}\nv_xor_b32 v{vTb}, 64, v{vTa}')
    a(f'v_add_u32 v{vTa+1}, {2*SLOT}, v{vTa}\nv_add_u32 v{vTb+1}, {2*SLOT}, v{vTb}')
def stat_addr():
    return lines(f'v_lshlrev_b32 v{vU8}, 4, v{vU}\nv_add_u32 v{vM8}, -1, v{vHH}') + \
           [f's_lshl_b32 s{sB0}, s{sW}, 7\ns_add_u32 s{sB0}, s{sB0}, {VX+8192}', f'v_lshl_add_u32 v{vZs}, v{vU}, 2, s{sB0}', f'v_lshl_add_u32 v{vH16}, v{vHH}, 4, s{sB0}']

def twiddle_wc(t):
    L = [f'v_cvt_f32_u32 v{t}, v{vU}', f'v_cvt_f32_u32 v{t+1}, v{vHH}', f'v_mul_f32 v{t}, {f2h(1/32)}, v{t}',
         f'v_mul_f32 v{t+1}, 4.0, v{t+1}', f'v_mul_f32 v{t+1}, v{t+1}, v{t}']
    for p in range(8):
        u0 = 16*(p >> 2) + 8*((p & 3) >> 1) + 2*(p & 1)
        L += [f'v_fmamk_f32 v{t+2}, v{t}, {f2h(u0)}, v{t+1}', f'v_fmamk_f32 v{t+3}, v{t}, {f2h(u0+1)}, v{t+1}',
              f'v_cos_f32 v{t+4}, v{t+2}', f'v_cos_f32 v{t+5}, v{t+3}', f'v_sin_f32 v{t+6}, v{t+2}', f'v_sin_f32 v{t+7}, v{t+3}',
              f'v_cvt_pk_bf16_f32 v{WC+p}, v{t+4}, v{t+5}', f'v_cvt_pk_bf16_f32 v{WC+8+p}, -v{t+6}, -v{t+7}']
    return L
def twiddle_tf(t, dst):
    L = [f's_lshl_b32 s{sT}, s{sI}, 5\ns_add_u32 s{sT}, s{sT}, s{sT1}\nv_lshl_add_u32 v{t}, v{vU}, 6, s{sT}',
         f'v_cvt_f32_u32 v{t}, v{t}', f'v_cvt_f32_u32 v{t+1}, v{vHH}', f'v_mul_f32 v{t}, {f2h(1/2048)}, v{t}',
         f'v_mul_f32 v{t+1}, {f2h(16.0)}, v{t+1}', f'v_mul_f32 v{t+1}, v{t+1}, v{t}']
    for j in range(8):
        for h in range(2):
            k0 = 2*j + 32*h
            L += [f'v_fmamk_f32 v{t+2}, v{t}, {f2h(k0)}, v{t+1}', f'v_fmamk_f32 v{t+3}, v{t}, {f2h(k0+1)}, v{t+1}',
                  f'v_cos_f32 v{t+4}, v{t+2}', f'v_sin_f32 v{t+5}, v{t+2}', f'v_cos_f32 v{t+6}, v{t+3}', f'v_sin_f32 v{t+7}, v{t+3}',
                  f'v_cvt_pk_bf16_f32 v{dst+4*j+2*h}, v{t+4}, v{t+5}', f'v_cvt_pk_bf16_f32 v{dst+4*j+2*h+1}, v{t+6}, v{t+7}']
    return L

def p2_addr_early():
    t = vWt; u, w = sB0, sB1
    L = lines(f'v_lshrrev_b32 v{t+1}, 3, v{vL}\nv_and_b32 v{t+2}, 7, v{vL}\nv_bfe_u32 v{t+3}, v{vL}, 4, 1\nv_lshlrev_b32 v{t+3}, 2, v{t+3}\n'
              f'v_xor_b32 v{t+3}, v{t+3}, v{t+2}\nv_lshlrev_b32 v{t+3}, 4, v{t+3}\nv_mul_u32_u24 v{t+4}, 896, v{t+1}')
    L += [f's_mul_i32 s{u}, s{sW}, {448*896}\ns_lshl_b32 s{w}, s{sCT}, 7\ns_add_u32 s{u}, s{u}, s{w}', f'v_add3_u32 v{vW2}, v{t+4}, v{t+3}, s{u}']
    L += [f'v_add_u32 v{vW2+i}, {i*(7168-1024)}, v{vW2}' for i in range(1, 4)]
    L += lines(f'v_bfe_u32 v{t}, v{vL}, 2, 2\nv_lshl_add_u32 v{t+1}, v{vHH}, 2, v{t}\nv_lshlrev_b32 v{t+1}, 7, v{t+1}\nv_lshrrev_b32 v{t}, 1, v{t}\n'
               f'v_xor_b32 v{t}, s{sJ}, v{t}\nv_lshl_add_u32 v{t+1}, v{t}, 6, v{t+1}\nv_bfe_u32 v{t}, v{vL}, 4, 1\nv_lshl_add_u32 v{t+1}, v{t}, 5, v{t+1}\n'
               f'v_and_b32 v{t}, 3, v{vL}\nv_lshl_add_u32 v{t+1}, v{t}, 3, v{t+1}\ns_mul_i32 s{sArea}, s{sW}, {AREA}\n'
               f'v_add_u32 v{vTra}, s{sArea}, v{t+1}\nv_xor_b32 v{vTrb}, 64, v{vTra}\ns_lshl_b32 s{sStg}, s{sW}, 13\nv_add_u32 v{vSt[1][0]}, s{sStg}, v{t+1}\n'
               f'v_xor_b32 v{vSt[1][1]}, 64, v{vSt[1][0]}\nv_add_u32 v{vSt[0][0]}, {STG[0]}, v{vSt[1][0]}\nv_add_u32 v{vSt[0][1]}, {STG[0]}, v{vSt[1][1]}')
    def vmap(el, e_out, tt_out, sg_out):
        M = [f's_lshl_b32 s{u}, s{sCT}, 6\ns_lshl_b32 s{w}, s{sJ}, 5\ns_add_u32 s{u}, s{u}, s{w}', f'v_add_u32 v{e_out}, s{u}, v{el}', f'v_sub_u32 v{t+6}, 448, v{e_out}',
             f's_sub_u32 s{u}, 32, s{sT1}\ns_and_b32 s{u}, s{u}, 31', f'v_mov_b32 v{tt_out}, s{sT1}', f'v_mov_b32 v{t+7}, s{u}',
             f'v_cmp_lt_u32 vcc, 239, v{e_out}\ns_nop 1\nv_cndmask_b32 v{e_out}, v{e_out}, v{t+6}, vcc\nv_cndmask_b32 v{tt_out}, v{tt_out}, v{t+7}, vcc' +
             (f'\nv_mov_b32 v{t+6}, 0\nv_bfrev_b32 v{t+7}, 1\nv_cndmask_b32 v{sg_out}, v{t+6}, v{t+7}, vcc' if sg_out else '')]
        return M
    L += vmap(vU, t, t+1, vSg)
    L += lines(f'v_lshlrev_b32 v{vVo}, 16, v{t+1}\nv_lshl_add_u32 v{vVo}, v{t}, 4, v{vVo}\nv_lshl_add_u32 v{vVo}, v{vHH}, 15, v{vVo}')
    L += lines(f'v_and_b32 v{t+2}, 48, v{vL}\nv_subrev_u32 v{t+2}, 16, v{t+2}\nv_min_u32 v{t+2}, 31, v{t+2}')
    L += vmap(t+2, t, t+1, None)
    L += lines(f'v_and_b32 v{t}, 0x1f0, v{t}\nv_and_b32 v{t+2}, 15, v{vL}\nv_add_u32 v{t}, v{t}, v{t+2}\nv_lshlrev_b32 v{t}, 3, v{t}\nv_add_u32 v{vPa}, {FLV}, v{t}')
    L += [f's_mul_i32 s{u}, s{sW}, 7\ns_lshr_b32 s{u}, s{u}, 1\ns_lshr_b32 s{w}, s{sT1}, 1\ns_lshl_b32 s{w}, s{w}, 4\ns_add_u32 s{u}, s{u}, s{w}',
          f's_lshl_b32 s{u}, s{u}, 3\ns_add_u32 s{u}, s{u}, {FLH}', f'v_and_b32 v{t}, 3, v{vL}', f'v_lshl_add_u32 v{t}, v{t}, 3, s{u}',
          f'v_cmp_gt_u32 vcc, 16, v{vL}\ns_nop 1\nv_cndmask_b32 v{vPa}, v{vPa}, v{t}, vcc']
    L += [f'v_lshrrev_b32 v{t}, 2, v{vL}', f's_lshl_b32 s{u}, s{sI}, 4', f'v_add_u32 v{t}, s{u}, v{t}']
    L += lines(f'v_and_b32 v{t+1}, 3, v{vL}\nv_mul_u32_u24 v{t+2}, {64*896}, v{t}\nv_lshl_add_u32 v{t+2}, v{t+1}, 4, v{t+2}')
    L += [f's_lshl_b32 s{sRi}, s{sI}, 5\ns_add_u32 s{sRi}, s{sRi}, s{sT1}\ns_mul_i32 s{u}, s{sT1}, 896\ns_lshl_b32 s{w}, s{sCT}, 7',
          f's_add_u32 s{u}, s{u}, s{w}\ns_lshl_b32 s{w}, s{sJ}, 6\ns_add_u32 s{u}, s{u}, s{w}\ns_lshl_b32 s{sRi}, s{sRi}, 9',
          f'v_add_u32 v{vOo}, s{u}, v{t+2}', f'v_add_u32 v{vOo+1}, {32*896}, v{vOo}', f'v_lshlrev_b32 v{vRo}, 4, v{t}',
          f's_mul_i32 s{sHb}, s{sT1}, {HB_SIG}\ns_mul_i32 s{u}, s{sW}, {28*1024}\ns_add_u32 s{sHb}, s{sHb}, s{u}']
    return L

def p1_reads(n):
    g, jj = divmod(n, 4)
    half, so = (g % 4) // 2, (g % 2) * SLOT
    f = FR + 20 * (n & 1)
    return [f'ds_read_b64_tr_b16 {vr(f+8,2)}, v{vTa+half} offset:{so + jj*2048}',
            f'ds_read_b64_tr_b16 {vr(f+10,2)}, v{vTa+half} offset:{so + jj*2048 + 512}',
            f'ds_read_b128 {vr(f)}, v{vRb+4*half+jj} offset:{so}',
            f'ds_read_b128 {vr(f+4)}, v{vRp+4*half+jj} offset:{so}',
            f'ds_read_b64_tr_b16 {vr(f+12,2)}, v{vTb+half} offset:{so + jj*2048}',
            f'ds_read_b64_tr_b16 {vr(f+14,2)}, v{vTb+half} offset:{so + jj*2048 + 512}',
            f'ds_read_b128 {vr(f+16)}, v{vRd+4*half+jj} offset:{so}']
def p1_mfmas(n):
    f = FR + 20 * (n & 1)
    def m(acc, A, B): return mfma(vr(acc, 16), vr(A), vr(B), vr(acc, 16) if n else '0')
    return [m(ACC, f+8, f), m(ACC+16, f+8, f+4), m(ACC+32, f+12, f), m(ACC+48, f+12, f+4), m(ACC+64, f, f+16)]

vZsg, vXw, vXr, vVs, vHo = 78, 79, 80, 81, 82
sHA0, sHA1, sHB0, sHB1 = 4, 5, 8, 9
def z_addr(t, u, w):
    L = lines(f'v_bfe_u32 v{t}, v{vL}, 4, 1\nv_xor_b32 v{vZsg}, 1, v{t}\nv_mul_u32_u24 v{vZsg}, 0x8000, v{vZsg}\nv_lshl_or_b32 v{vZsg}, v{vZsg}, 16, v{vZsg}\n'
              f'v_lshl_add_u32 v{t}, v{vHH}, 2, v{t}\nv_lshlrev_b32 v{t}, 8, v{t}\nv_and_b32 v{t+1}, 15, v{vL}\nv_lshl_add_u32 v{t}, v{t+1}, 4, v{t}')
    L += [f's_lshl_b32 s{u}, s{sW}, 2\ns_add_u32 s{u}, s{u}, {VX}', f'v_add_u32 v{vXw}, s{u}, v{t}',
          f's_lshl_b32 s{u}, s{sW}, 11\ns_add_u32 s{u}, s{u}, {VX}', f'v_lshlrev_b32 v{vHo}, 4, v{vL}', f'v_add_u32 v{vXr}, s{u}, v{vHo}']
    L += lines(f'v_lshrrev_b32 v{t}, 4, v{vL}\nv_lshlrev_b32 v{t}, 16, v{t}\nv_lshl_add_u32 v{t}, v{t+1}, 4, v{t}')
    L += [f's_lshl_b32 s{u}, s{sW}, 19\ns_lshl_b32 s{w}, s{sRT}, 12\ns_add_u32 s{u}, s{u}, s{w}\ns_lshl_b32 s{w}, s{sCG}, 8\ns_add_u32 s{u}, s{u}, s{w}',
          f'v_add_u32 v{vVs}, s{u}, v{t}']
    return L
def h_addr(u, w):
    return [f's_lshl_b32 s{u}, s{sCG}, 3\ns_lshl_b32 s{w}, s{sJ}, 2\ns_add_u32 s{u}, s{u}, s{w}\ns_lshl_b32 s{w}, s{sI}, 1\ns_add_u32 s{u}, s{u}, s{w}',
            f's_lshl_b32 s{u}, s{u}, 10\ns_mul_i32 s{w}, s{sSig}, {HB_SIG}\ns_add_u32 s{sHA0}, s{u}, s{w}',
            f's_xor_b32 s{w}, s{sSig}, 1\ns_mul_i32 s{w}, s{w}, {HB_SIG}\ns_add_u32 s{sHA1}, s{u}, s{w}',
            f's_xor_b32 s{sHB0}, s{sHA0}, 2048\ns_xor_b32 s{sHB1}, s{sHA1}, 2048']

def p1_loop(a):
    a.wait_vm('G0')
    a('s_barrier')
    stamp(a, 1); stamp(a, 1, '1')
    for r in p1_reads(0): a(r)
    q = dma_group('A', 2) + dma_group('A', 3)
    vq = stat_addr() + p2_addr_early() + twiddle_wc(vWt) + z_addr(vWt, sB0, sB1) + h_addr(sB0, sB1) + wg_flag_prep(vFl, sB0, sB1)
    wq = w2_group(0) + w2_group(1)
    nw = 0
    for n in range(28):
        g, jj = divmod(n, 4)
        a('s_waitcnt lgkmcnt(0)')
        if jj == 3 and g < 6:
            assert not any(t == f'G{g+1}' for _, t in q), (n, q)
            a.wait_vm(f'G{g+1}')
            a('s_barrier')
            stamp(a, 2 + g, '1')
            if g + 4 < 7: q += dma_group('A', g + 4)
        if TW > 0 and n == TW:
            q = [(f'v_and_b32 v{vP}, 15, v{vL}\nv_lshlrev_b32 v{vP}, 7, v{vP}\nbuffer_load_dword v{vP+1}, v{vP}, {sr(SW2)}, s{sA2} offen', 'TW')] + q
        if n == POLL0: q = stat_loads('A') + q
        if n == POLL0 + PCHK:
            assert not any(t == 'SL' for _, t in q)
            stat_check(a, 'A'); vq += stat_fix('A')
        rd = p1_reads(n + 1) if n + 1 < 28 else []
        nld = 0; wn = 0
        rate = RATE[n % len(RATE)]
        for mi, m in enumerate(p1_mfmas(n)):
            a(m)
            used = 0
            for _ in range(3):
                if rd: a(rd.pop(0)); used += 1
            if mi >= 2:
                cnt = 0
                while nld < rate and (cnt < 1 or mi == 4):
                    if q: ins = q.pop(0)
                    elif n >= W0 and wq and wn < WPS[n % len(WPS)] and (len(wq) > 8 or n >= opt('w1', 20)): ins = wq.pop(0); wn += 1
                    else: break
                    a.emit(ins); used += cost(ins[0])
                    if ins[1]: nld += 0.5 if ins[1] == 'SL' else 1; cnt += 1
            while vq and used + min(cost(vq[0]), 3) <= 6:
                x = vq.pop(0); a(x); used += cost(x)
    assert not vq and not q
    stamp(a, 2); stamp(a, 8, '1'); stamp(a, 1, '3'); stamp(a, 1, '5')
    return wq

def p1_loop_bc(a, role):
    def regs(g): return FR if g % 2 == 0 else ACC + 16
    def reads(g):
        half, so = (g % 4) // 2, (g % 2) * SLOT
        f = regs(g); L = []
        for jj in range(4):
            if role == 'B':
                L.append(f'ds_read_b128 {vr(f+8*jj)}, v{vRb+4*half+jj} offset:{so}')
                L.append(f'ds_read_b128 {vr(f+8*jj+4)}, v{vRd+4*half+jj} offset:{so}')
            else:
                L.append(f'ds_read_b64_tr_b16 {vr(f+8*jj,2)}, v{vTa+half} offset:{so + jj*2048}')
                L.append(f'ds_read_b64_tr_b16 {vr(f+8*jj+2,2)}, v{vTa+half} offset:{so + jj*2048 + 512}')
        return L
    a.wait_vm('G0'); a('s_barrier')
    if role == 'C': stamp(a, 1)
    for r in reads(0): a(r)
    if role == 'C':
        for ins in dma_group(role, 3): a.emit(ins)
    for g in range(7):
        a('s_waitcnt lgkmcnt(0)')
        if g < 6:
            a.wait_vm(f'G{g+1}'); a('s_barrier')
            for r in reads(g + 1): a(r)
            if g + 4 < 7:
                for ins in dma_group(role, g + 4): a.emit(ins)
            if role == 'B' and g == 4:
                for ins in stat_loads('B'): a.emit(ins)
        f = regs(g)
        for jj in range(4):
            n = 4*g + jj
            if role == 'B': a(mfma(vr(ACC+64,16), vr(f+8*jj), vr(f+8*jj+4), vr(ACC+64,16) if n else '0'))
            else: a(mfma(vr(ACC,16), vr(TF), vr(f+8*jj), vr(ACC,16) if n else '0'))
    if role == 'C': stamp(a, 2)

ZA, B1, B2 = ACC + 64, FR, FR + 8
def z1(a):
    for r in range(16): a(f'v_mul_f32 v{ZA+r}, v{ZA+r}, v{ZR+r}')
    for p in range(8): a(f'v_cvt_pk_bf16_f32 v{B1+p}, v{ZA+2*p}, v{ZA+2*p+1}')
    for p in range(8): a(f'ds_swizzle_b32 v{B2+p}, v{B1+p} offset:0x401f')
    a(mfma(vr(ZA,16), vr(WC), vr(B1), '0'))
    a(mfma(vr(ZA,16), vr(WC+4), vr(B1+4), vr(ZA,16)))
def z2(a):
    a('s_waitcnt lgkmcnt(0)')
    for p in range(8): a(f'v_xor_b32 v{B2+p}, v{B2+p}, v{vZsg}')
    a('s_nop 1')
    a(mfma(vr(ZA,16), vr(WC+8), vr(B2), vr(ZA,16)))
    a(mfma(vr(ZA,16), vr(WC+12), vr(B2+4), vr(ZA,16)))
def z3(a):
    for p in range(8): a(f'v_permlane16_swap_b32 v{ZA+2*p}, v{ZA+2*p+1}')
    a('s_nop 1')
    for p in range(8): a(f'v_cvt_pk_bf16_f32 v{B1+p}, v{ZA+2*p}, v{ZA+2*p+1}')
    for p in range(8):
        t1b = (2*p & 3) + 8 * (p >> 1)
        a(f'ds_write_b32 v{vXw}, v{B1+p} offset:{t1b*256}')
def z4a(a):
    a('s_waitcnt lgkmcnt(0)\ns_barrier')
    a(f'ds_read_b128 {vr(B2)}, v{vXr}\nds_read_b128 {vr(B2+4)}, v{vXr} offset:1024')
def z4b(a):
    a(f's_mov_b32 s{sT}, {4*65536}')
    a('s_waitcnt lgkmcnt(0)')
    a.vmem(f'buffer_store_dwordx4 {vr(B2)}, v{vVs}, {sr(SV)}, 0 offen sc1', 'ST')
    a.vmem(f'buffer_store_dwordx4 {vr(B2+4)}, v{vVs}, {sr(SV)}, s{sT} offen sc1', 'ST')

def gen():
    a = Asm()
    a('s_cmp_ge_u32 s2, 256\ns_cbranch_scc1 Lend')
    a('s_load_dwordx2 s[4:5], s[0:1], 0')
    a('s_load_dwordx4 s[8:11], s[0:1], 24')
    a('s_load_dwordx4 s[12:15], s[0:1], 48')
    a('s_load_dwordx2 s[16:17], s[0:1], 64')
    a('s_load_dwordx2 s[18:19], s[0:1], 80')
    stamp(a, 0)
    CPF = opt('cpf', 1)
    if CPF:
        a('s_getpc_b64 s[22:23]')
        a('Lpc:')
        a(f's_bfe_u32 s3, s2, 0x30003\ns_lshl_b32 s3, s3, 12')
        a(f'v_lshrrev_b32 v{vP}, 6, v0\nv_lshlrev_b32 v{vP}, 10, v{vP}\nv_and_b32 v{vP+1}, 7, v0\nv_lshl_add_u32 v{vP}, v{vP+1}, 7, v{vP}\nv_add_u32 v{vP}, s3, v{vP}')
        a(f'v_min_u32 v{vP}, Lend-Lpc, v{vP}')
        a.vmem(f'global_load_dword v{vP+1}, v{vP}, s[22:23]', 'CP')
    a(f'v_lshrrev_b32 v{FR}, 6, v0\nv_and_b32 v{vL}, 63, v0')
    a(f'v_readfirstlane_b32 s{sW}, v{FR}')
    sX8, sN = sA3, sA4
    a(f's_and_b32 s{sX8}, s2, 7\ns_lshr_b32 s{sN}, s2, 3')
    a(f's_and_b32 s{sT}, s{sX8}, 3\ns_lshr_b32 s{sT2}, s{sX8}, 2')
    a(f's_lshr_b32 s{sI}, s{sW}, 1\ns_and_b32 s{sJ}, s{sW}, 1')
    a(f's_cmp_ge_u32 s{sN}, 28\ns_cbranch_scc1 LroleBC')
    def sigma(): a(f's_lshl_b32 s{sSig}, s{sRT}, 1\ns_add_u32 s{sSig}, s{sSig}, s{sJ}\ns_lshl_b32 s{sT}, s{sI}, 5\ns_add_u32 s{sSig}, s{sSig}, s{sT}')
    def p1_srds():
        a('s_waitcnt lgkmcnt(0)')
        srd(a, SX, 4, 2048*896)
        a(f's_cmp_ge_u32 s{sW}, 2')
        a(f's_cselect_b32 s{SD}, s10, s8\ns_cselect_b32 s{SD+1}, s11, s9\ns_mov_b32 s{SD+2}, {448*896}\ns_mov_b32 s{SD+3}, 0x20000')
        srd(a, SW, 12, 448*3584)
    def other_srds():
        srd(a, SM, 18, SM_SIZE, SM_OFF)
        a(f's_load_dwordx2 s[{sTag}:{sTag+1}], s[{SM}:{SM+1}], {EPO}')
        srd(a, SH, 18, HB_SIZE)
        srd(a, SV, 18, VB_SIZE, VB_OFF)

    a(f's_lshl_b32 s{sRT}, s{sT}, 2\ns_and_b32 s{sT3}, s{sN}, 3\ns_add_u32 s{sRT}, s{sRT}, s{sT3}\ns_lshr_b32 s{sCT}, s{sN}, 2')
    a(f's_mul_i32 s{sCG}, s{sT2}, 7\ns_add_u32 s{sCG}, s{sCG}, s{sCT}')
    a(f's_lshl_b32 s{sG0}, s{sT3}, 1\ns_add_u32 s{sG0}, s{sG0}, s{sCT}\ns_sub_u32 s{sB0}, s{sG0}, 7\ns_cselect_b32 s{sG0}, s{sG0}, s{sB0}')
    if not ROT: a(f's_mov_b32 s{sG0}, 0')
    sCT1 = sCT
    if opt('map2', 0):
        a(f's_mov_b32 s{sB1}, s{sG0}')
        a(f's_and_b32 s{sA0}, s{sX8}, 1\ns_and_b32 s{sA1}, s{sN}, 7\ns_lshr_b32 s{sCT}, s{sN}, 3')
        a(f's_lshl_b32 s{sG0}, s{sCT}, 1\ns_add_u32 s{sG0}, s{sG0}, s{sA1}')
        a(f's_lshl_b32 s{sB0}, s{sA1}, 1\ns_lshl_b32 s{sA0}, s{sA0}, 2\ns_add_u32 s{sT1}, s{sA1}, s{sA0}\ns_add_u32 s{sA0}, s{sA0}, s{sCT}')
        a(f's_cmp_eq_u32 s{sCT}, 3\ns_cselect_b32 s{sCT}, 3, s{sA0}\ns_cselect_b32 s{sA1}, s{sT1}, s{sA1}\ns_cselect_b32 s{sG0}, s{sB0}, s{sG0}')
        a(f's_sub_u32 s{sB0}, s{sG0}, 7\ns_cselect_b32 s{sG0}, s{sG0}, s{sB0}')
        a(f's_lshr_b32 s{sT1}, s{sX8}, 1\ns_lshl_b32 s{sT1}, s{sT1}, 2\ns_lshr_b32 s{sB0}, s{sA1}, 1\ns_add_u32 s{sT1}, s{sT1}, s{sB0}')
        a(f's_sub_u32 s{sB0}, 32, s{sT1}\ns_cmp_eq_u32 s{sT1}, 0\ns_cselect_b32 s{sB0}, 16, s{sB0}')
        a(f's_bitcmp1_b32 s{sA1}, 0\ns_cselect_b32 s{sT1}, s{sB0}, s{sT1}')
        assert ROT1 in (7, 4) and not XOFF
        if ROT1 == 4: a(f's_lshr_b32 s{sB1}, s{sN}, 2\ns_add_u32 s{sB1}, s{sB1}, s{sT3}\ns_and_b32 s{sB1}, s{sB1}, 3\ns_lshl_b32 s{sB1}, s{sB1}, 1')
    else:
        a(f's_lshl_b32 s{sT1}, s{sX8}, 1\ns_lshr_b32 s{sB0}, s{sT3}, 1\ns_add_u32 s{sT1}, s{sT1}, s{sB0}\ns_sub_u32 s{sB0}, 32, s{sT1}\ns_cmp_eq_u32 s{sT1}, 0\ns_cselect_b32 s{sB0}, 16, s{sB0}')
        a(f's_bitcmp1_b32 s{sT3}, 0\ns_cselect_b32 s{sT1}, s{sB0}, s{sT1}')
    if XOFF: a(f's_add_u32 s{sG0}, s{sG0}, s{sX8}\ns_sub_u32 s{sB0}, s{sG0}, 7\ns_cselect_b32 s{sG0}, s{sG0}, s{sB0}\ns_sub_u32 s{sB0}, s{sG0}, 7\ns_cselect_b32 s{sG0}, s{sG0}, s{sB0}')
    if opt('map2', 0): pass
    elif ROT1 == 7: a(f's_mov_b32 s{sB1}, s{sG0}')
    elif ROT1 == 4: a(f's_add_u32 s{sB1}, s{sCT}, s{sT3}\ns_and_b32 s{sB1}, s{sB1}, 3\ns_lshl_b32 s{sB1}, s{sB1}, 1')
    elif ROT1 == 2: a(f's_add_u32 s{sB1}, s{sCT}, s{sT3}\ns_and_b32 s{sB1}, s{sB1}, 1\ns_mul_i32 s{sB1}, s{sB1}, 3')
    elif ROT1 == 3: a(f's_add_u32 s{sB1}, s{sCT}, s{sT3}\ns_mul_i32 s{sB0}, s{sB1}, 43\ns_lshr_b32 s{sB0}, s{sB0}, 7\ns_mul_i32 s{sB0}, s{sB0}, 3\ns_sub_u32 s{sB1}, s{sB1}, s{sB0}\ns_lshl_b32 s{sB1}, s{sB1}, 1')
    else: a(f's_mov_b32 s{sB1}, 0')
    a(f's_mul_i32 s{sOnes}, s{sX8}, 28\ns_add_u32 s{sOnes}, s{sOnes}, s{sN}\ns_lshl_b32 s{sOnes}, s{sOnes}, 2\ns_add_u32 s{sOnes}, s{sOnes}, s{sW}\ns_mul_i32 s{sA2}, s{sOnes}, {14*128}')
    sigma(); p1_addr_dma(a); p1_srds()
    a(f's_mov_b32 s{sG1}, s{sB1}')
    for ins in dma_group('A', 0): a.emit(ins)
    p1_addr_read(a)
    for ins in dma_group('A', 1): a.emit(ins)
    srd(a, SW2, 14, 1792*896)
    if TW < 0: a.vmem(f'v_and_b32 v{vP}, 15, v{vL}\nv_lshlrev_b32 v{vP}, 7, v{vP}\nbuffer_load_dword v{vP+1}, v{vP}, {sr(SW2)}, s{sA2} offen', 'TW')
    other_srds()
    srd(a, SO, 16, 2048*896)
    get_tag(a)
    wq = p1_loop(a)
    a(mfma(vr(ZA,16), vr(MO), vr(CZ), vr(ZA,16)))
    a(mfma(vr(ACC,16), vr(CA), vr(MO), vr(ACC,16)))
    a(mfma(vr(ACC+16,16), vr(CA), vr(MP), vr(ACC+16,16)))
    a(mfma(vr(ACC+32,16), vr(CB), vr(MO), vr(ACC+32,16)))
    a(mfma(vr(ACC+48,16), vr(CB), vr(MP), vr(ACC+48,16)))
    a('s_nop 6\ns_waitcnt lgkmcnt(0)')
    def hblock(acc, out, so):
        for p in range(8): a(f'v_cvt_pk_bf16_f32 v{out+p}, v{acc+2*p}, v{acc+2*p+1}')
        for p in range(8): a(f'v_pk_max_i16 v{out+p}, v{out+p}, 0')
        a.vmem(f'buffer_store_dwordx4 {vr(out)}, v{vHo}, {sr(SH)}, s{so} offen sc1', 'ST')
        a.vmem(f'buffer_store_dwordx4 {vr(out+4)}, v{vHo}, {sr(SH)}, s{so} offen offset:1024 sc1', 'ST')
    z1(a); hblock(ACC, FR+16, sHA0)
    z2(a); hblock(ACC+16, FR+24, sHA1)
    z3(a); hblock(ACC+32, FR+32, sHB0)
    z4a(a); hblock(ACC+48, ACC, sHB1)
    z4b(a)
    stamp(a, 3); stamp(a, 2, '3'); stamp(a, 2, '5')
    phase2(a, wq)
    a('s_branch Lfin')

    a('LroleBC:')
    a.vm = ['CP'] if CPF else []
    a(f's_cmp_ge_u32 s{sN}, 30\ns_cbranch_scc1 LroleC')
    a(f's_lshl_b32 s{sRT}, s{sT}, 2\ns_lshl_b32 s{sT2}, s{sT2}, 1\ns_add_u32 s{sRT}, s{sRT}, s{sT2}\ns_add_u32 s{sRT}, s{sRT}, s{sN}\ns_sub_u32 s{sRT}, s{sRT}, 28')
    a(f's_mov_b32 s{sCG}, s{sRT}')
    sigma(); p1_addr_dma(a); p1_srds()
    XB, DB, vSb = 104, 224, 92
    for g in range(7):
        a(f's_movk_i32 s{sA0}, {g*128}')
        for q in range(4):
            a.vmem(f'buffer_load_dwordx4 {vr(XB+16*g+4*q)}, v{vXo+q}, {sr(SX)}, s{sA0} offen offset:{q*1024}', f'X{g}')
    for g in range(7):
        a.vmem(f'buffer_load_dwordx4 {vr(DB+4*g)}, v{vDo}, {sr(SD)}, 0 offen offset:{g*128}', 'XD')
    a(f's_sub_u32 s{sT}, 14, s{sRT}\ns_mul_i32 s{sT}, s{sT}, {16*896}\nv_add_u32 v{vDo}, s{sT}, v{vDo}\ns_mov_b32 s{sCG}, 14')
    other_srds()
    a(f's_mov_b32 s{sOnes}, 0x3f803f80')
    for i in range(9): a(f'v_mov_b32 v{vSb+i}, 0')
    for g in range(7):
        a.wait_vm(f'X{g}')
        if g == 0: stamp(a, 1)
        for i in range(4):
            for q in range(4):
                a(f'v_dot2c_f32_bf16 v{vSb+q}, s{sOnes}, v{XB+16*g+4*q+i}')
                a(f'v_dot2c_f32_bf16 v{vSb+4+q}, v{XB+16*g+4*q+i}, v{XB+16*g+4*q+i}')
    t = vt
    def dpp(rng):
        for pat in ('quad_perm:[1,0,3,2]', 'quad_perm:[2,3,0,1]', 'row_half_mirror'):
            for i in rng: a(f'v_add_f32_dpp v{vSb+i}, v{vSb+i}, v{vSb+i} {pat} row_mask:0xf bank_mask:0xf')
            if len(rng) < 3: a('s_nop 1')
    stamp(a, 2)
    a(f'v_and_b32 v{t+6}, 3, v{vL}\ns_nop 1')
    dpp(range(8))
    for q in range(1, 4):
        a(f'v_cmp_eq_u32 vcc, {q}, v{t+6}\ns_nop 1\nv_cndmask_b32 v{vSb}, v{vSb}, v{vSb+q}, vcc\nv_cndmask_b32 v{vSb+4}, v{vSb+4}, v{vSb+4+q}, vcc')
    a(f'v_mul_f32 v{t+4}, {f2h(1/448)}, v{vSb}\nv_mul_f32 v{t+1}, {f2h(1/448)}, v{vSb+4}')
    a(f'v_fma_f32 v{t+1}, -v{t+4}, v{t+4}, v{t+1}\nv_max_f32 v{t+1}, 0, v{t+1}')
    a(f'v_cvt_pk_bf16_f32 v{t}, -v{t+4}, -v{t+4}')
    a(f'v_cvt_pk_bf16_f32 v{t+1}, v{t+1}, v{t+1}\nv_and_b32 v{t+1}, 0xffff0000, v{t+1}')
    a(f'v_add_f32 v{t+1}, {f2h(1e-5)}, v{t+1}')
    a(f'v_cvt_pk_bf16_f32 v{t+1}, v{t+1}, v{t+1}\nv_and_b32 v{t+1}, 0xffff0000, v{t+1}')
    a(f'v_sqrt_f32 v{t+1}, v{t+1}\ns_nop 0')
    a(f'v_cvt_pk_bf16_f32 v{t+1}, v{t+1}, v{t+1}\nv_and_b32 v{t+1}, 0xffff0000, v{t+1}')
    a(f'v_rcp_f32 v{t+1}, v{t+1}')
    get_tag(a)
    a(f'v_mov_b32 v{t+2}, s{sTag}\nv_mov_b32 v{t+3}, s{sTag+1}')
    a(f'v_lshrrev_b32 v{t+7}, 3, v{vL}\nv_lshl_add_u32 v{t+5}, v{t+6}, 3, v{t+7}\nv_lshlrev_b32 v{t+5}, 4, v{t+5}')
    a(f's_lshl_b32 s{sT}, s{sSig}, 9')
    a.vmem(f'buffer_store_dwordx4 {vr(t)}, v{t+5}, {sr(SM)}, s{sT} offen sc1', 'S1')
    a.wait_vm('XD')
    for i in range(28): a(f'v_dot2c_f32_bf16 v{vSb+8}, s{sOnes}, v{DB+i}')
    a('s_nop 2')
    dpp([8])
    col_record(a, DB, vSb+8)
    a(f'v_lshlrev_b32 v{t+7}, 4, v{t+7}\ns_lshl_b32 s{sT}, s{sRT}, 9\ns_lshl_b32 s{sT2}, s{sW}, 7\ns_add_u32 s{sT}, s{sT}, s{sT2}\ns_add_u32 s{sT}, s{sT}, {CSZ}')
    a.vmem(f'buffer_store_dwordx4 {vr(DB)}, v{t+7}, {sr(SM)}, s{sT} offen sc1', 'S1')
    stamp(a, 3)
    for g in range(4):
        for ins in dma_group('B', g): a.emit(ins)
    p1_addr_read(a)
    for x in wg_flag_prep(vFl, sB0, sB1) + stat_addr() + twiddle_wc(vWt) + z_addr(vWt, sB0, sB1): a(x)
    p1_loop_bc(a, 'B')
    stat_check(a, 'B')
    for x in stat_fix('B'): a(x)
    a('s_nop 1')
    a(mfma(vr(ZA,16), vr(MO), vr(CZ), vr(ZA,16)))
    a('s_nop 11\ns_waitcnt lgkmcnt(0)')
    z1(a); z2(a); a('s_nop 11'); z3(a); z4a(a); z4b(a)
    wg_flag(a, vFl)
    a('s_branch Lfin')

    a('LroleC:')
    a.vm = ['CP'] if CPF else []
    a(f's_lshl_b32 s{sT3}, s{sT}, 1\ns_add_u32 s{sT3}, s{sT3}, s{sN}\ns_sub_u32 s{sT3}, s{sT3}, 30')
    a(f's_lshl_b32 s{sRT}, s{sT2}, 3\ns_add_u32 s{sRT}, s{sRT}, s{sT3}')
    a(f's_mul_i32 s{sCG}, s{sT2}, 7\ns_add_u32 s{sCG}, s{sCG}, s{sT3}\ns_add_u32 s{sT2}, s{sT2}, 14')
    a(f's_cmp_eq_u32 s{sT3}, 7\ns_cselect_b32 s{sCG}, s{sT2}, s{sCG}')
    sigma(); p1_addr_dma(a); p1_srds()
    other_srds()
    a(f's_cmp_ge_u32 s{sCG}, 14\ns_cbranch_scc1 LroleE')
    for g in range(3):
        for ins in dma_group('C', g): a.emit(ins)
    p1_addr_read(a)
    for x in stat_addr(): a(x)
    for i in range(4): a(f'v_mov_b32 v{TF+i}, 0x3f803f80')
    get_tag(a)
    p1_loop_bc(a, 'C')
    a('s_nop 11')
    col_record(a, FR, ACC)
    a(CW_OFF)
    a.vmem(f'buffer_store_dwordx4 {vr(FR)}, v{vU8}, {sr(SM)}, s{sA2} offen sc1', 'S1')
    stamp(a, 3)
    a(f's_mov_b32 s{sCG}, 15')
    for x in wg_flag_prep(vFl, sB0, sB1): a(x)
    wg_flag(a, vFl)
    a('s_branch Lfin')

    a('LroleE:')
    a.vm = []
    get_tag(a)
    a(f's_sub_u32 s{sT3}, 15, s{sCG}\ns_add_u32 s{sT3}, s{sT3}, s{sW}\ns_mov_b32 s{sCG}, 15')
    for x in wg_flag_prep(vFl, sB0, sB1): a(x)
    wg_flag(a, vFl)
    a(f's_cmp_lg_u32 s{sT3}, 0\ns_cbranch_scc1 Lfin')
    a(f'v_lshlrev_b32 v{vPa}, 3, v{vL}\nv_add_u32 v{vPa}, {FLV}, v{vPa}')
    for i in range(4):
        poll_issue(a, 'PE', vPa)
        poll_check(a, 'PE', vPa, sleep=16)
        a(f'v_add_u32 v{vPa}, 512, v{vPa}')
    a(f'v_mov_b32 v{vFl+2}, {EPO}\ns_mov_b64 exec, 1')
    a(f'buffer_store_dwordx2 {vr(vFl,2)}, v{vFl+2}, {sr(SM)}, 0 offen sc1')
    a('s_mov_b64 exec, -1')
    a('Lfin:')
    stamp_store(a)
    a('Lend:')
    a('s_endpgm')
    return a.text()

def phase2(a, wq):
    ACC0, ACC1, YA, VF = 144, 176, 208, 104
    TFd = 4
    vRw, vRwb, vRr = 84, 88, 92
    vRi = 36
    XR = 224
    t = 56
    for ins in wq: a.emit(ins)
    rq = []
    for q in range(2, 7): rq += w2_group(q)
    NR = len(rq)
    def rdma(n):
        while rq and n > 0:
            ins = rq.pop(0); a.emit(ins)
            if ins[1]: n -= 1
    vq = twiddle_tf(t, TFd)
    u = t + 8
    vq += lines(f'v_and_b32 v{u}, 7, v{vU}\nv_xor_b32 v{u}, v{u}, v{vHH}\nv_lshlrev_b32 v{u+1}, 7, v{vU}')
    vq += [f's_lshl_b32 s{sT}, s{sJ}, 12\ns_add_u32 s{sT2}, s{sT}, 32768\ns_add_u32 s{sT}, s{sT2}, s{sArea}', f'v_add_u32 v{u+1}, s{sT}, v{u+1}']
    for q in range(4):
        vq += lines(f'v_xor_b32 v{u+2}, {2*q}, v{u}\nv_lshl_add_u32 v{vRw+q}, v{u+2}, 4, v{u+1}\nv_xor_b32 v{vRwb+q}, 0x1000, v{vRw+q}')
    vq += lines(f'v_lshrrev_b32 v{u}, 2, v{vL}\nv_and_b32 v{u+1}, 3, v{vL}\nv_and_b32 v{u+2}, 7, v{u}\nv_lshlrev_b32 v{u+3}, 1, v{u+1}\nv_xor_b32 v{u+2}, v{u+2}, v{u+3}\n'
                f'v_lshlrev_b32 v{u+2}, 4, v{u+2}\nv_lshl_add_u32 v{u+2}, v{u}, 7, v{u+2}')
    vq += [f's_lshl_b32 s{sT}, s{sI}, 11\ns_add_u32 s{sT2}, s{sT2}, s{sT}']
    nsafe = len(vq)
    for k in range(4):
        vq += [f's_xor_b32 s{sT}, s{sJ}, {k}\ns_mul_i32 s{sT}, s{sT}, {AREA}\ns_add_u32 s{sT}, s{sT}, s{sT2}', f'v_add_u32 v{vRr+2*k}, s{sT}, v{u+2}', f'v_xor_b32 v{vRr+2*k+1}, 16, v{vRr+2*k}']
    uq = []
    def vdo(budget):
        while (uq or vq) and budget > 0:
            x = (uq or vq).pop(0)
            if callable(x): x(); continue
            a(x); budget -= cost(x)
    a.wait_vm('R0'); stamp(a, 3, '5')
    for x in stage_reads(0): a(x)
    vdo(opt('tf0', 60))
    stamp(a, 4, '5'); a.wait_vm('R1'); stamp(a, 5, '5')
    for x in stage_reads(1): a(x)
    vdo(opt('tf0b', 40))
    a('s_waitcnt lgkmcnt(0)')
    stamp(a, 3, '3'); stamp(a, 6, '5'); a.wait_vm('ST'); stamp(a, 7, '5')
    wg_flag(a, vFl)
    stamp(a, 8, '5')
    stamp(a, 4); stamp(a, 4, '3')
    nr = opt('rb', 10)
    rdma(nr)
    did2 = False
    while nr < NR - RLATE:
        if nr >= P1POS and 'P1' not in a.vm: poll_issue(a, 'P1', vPa)
        rdma(1); nr += 1
        if nr == 20: uq += [lambda: a.wait_vm('R2')] + stage_reads(2); did2 = True
        vdo(opt('tf1', 8))
    if 'P1' not in a.vm: poll_issue(a, 'P1', vPa)
    stamp(a, 5, '3')
    if not did2: uq += [lambda: a.wait_vm('R2')] + stage_reads(2)
    vdo(10000)
    stamp(a, 5); stamp(a, 6, '3')
    poll_check(a, 'P1', vPa, mask='15' if VSPLIT else None)
    stamp(a, 6); stamp(a, 7, '3'); stamp(a, 1, '4')
    horder = list(range(HN0)) + [28, 29, 30, 31] + list(range(HN0, 28)) + list(range(32, 56))
    sHq = [sB0, sB1]
    def hload(pos):
        i = horder[pos]
        rb, k = divmod(i, 28)
        c = (sGh0, sGh1)[rb]
        if k % 4 == 0:
            a(f's_mov_b32 s{c}, s{sG0}' if k == 0 else rot_next(c))
            a(f's_lshl_b32 s{sHq[rb]}, s{c}, 12\ns_add_u32 s{sHq[rb]}, s{sHq[rb]}, s{sHb}')
            if rb: a(f's_add_u32 s{sHq[rb]}, s{sHq[rb]}, {32*HB_SIG}')
        a.vmem(f'buffer_load_dwordx4 {ar(aH+4*(i%32))}, v{vHo}, {sr(SH)}, s{sHq[rb]} offen offset:{(k % 4)*1024} sc1', f'H{i}')
    def vloads():
        if VSPLIT: poll_check(a, 'P2', vPa, sleep=0)
        for j in range(8):
            a(f's_movk_i32 s{sA2}, {j*4096}')
            a.vmem(f'buffer_load_dwordx4 {vr(VF+4*j)}, v{vVo}, {sr(SV)}, s{sA2} offen sc1', f'V{j}')
    def smalls():
        a.vmem(f'buffer_load_dword v{vRi}, v{vU8}, {sr(SM)}, s{sRi} offen offset:4 sc1', 'RI')
        a(f's_lshl_b32 s{sA2}, s{sT1}, 9')
        a.vmem(f'buffer_load_dword v{vRi+1}, v{vRo}, {sr(SM)}, s{sA2} offen offset:4 sc1', 'RI')
        a(f's_add_u32 s{sA2}, s{sA2}, {32*512}')
        a.vmem(f'buffer_load_dword v{vRi+2}, v{vRo}, {sr(SM)}, s{sA2} offen offset:4 sc1', 'RI')
        a.vmem(f'buffer_load_dwordx4 {vr(XR)}, v{vOo}, {sr(SX)}, 0 offen', 'X')
        a.vmem(f'buffer_load_dwordx4 {vr(XR+4)}, v{vOo+1}, {sr(SX)}, 0 offen', 'X')
    a('s_waitcnt lgkmcnt(0)')
    def vload(j):
        a(f's_movk_i32 s{sA2}, {j*4096}')
        a.vmem(f'buffer_load_dwordx4 {vr(VF+4*j)}, v{vVo}, {sr(SV)}, s{sA2} offen sc1', f'V{j}')
    lq = [('h', i) for i in range(56)]
    vpos = opt('vpos', 14)
    lq = lq[:vpos] + [('v', j) for j in range(8)] + [('s', 0)] + lq[vpos:]
    pos = opt('rpos', 8)
    for _ in range(RLATE):
        lq.insert(pos, ('r', 0)); pos += opt('rstep', 2)
    def lnext(i):
        if not lq: return
        kind, x = lq[0]
        if kind == 'h' and horder[x] - 32 > i: return
        lq.pop(0)
        if kind == 'h': hload(x)
        elif kind == 'v': vload(x)
        elif kind == 'r': rdma(1)
        else: smalls()
    for i in range(HB0): lnext(-1)
    stamp(a, 8, '3'); stamp(a, 2, '4')
    def ard(k):
        s = aF + 8 * (k % (PD + 1))
        return [f'ds_read_b64_tr_b16 {ar(s+4*blk+2*p,2)}, v{va} offset:{(k-12)*2048 + p*1024}'
                for blk, va in enumerate((vTra, vTrb)) for p in range(2)]
    state = dict(lgk=[])
    HPS = [int(c) for c in (OPT.get('hpp', '1112') * opt('hpn', 10) + '1')]
    def lds(s, tag):
        a(s); state['lgk'].append(tag)
    def wait_lgk(tag):
        L = state['lgk']
        if tag not in L: return
        idx = max(i for i, x in enumerate(L) if x == tag)
        a(f's_waitcnt lgkmcnt({min(len(L)-1-idx, 15)})')
        state['lgk'] = L[idx+1:]
    def kstep(rb, k, fill, fill0=()):
        i = 28*rb + k
        acc = ACC0 if rb == 0 else ACC1
        assert not any(kd == 'h' and horder[x] == i for kd, x in lq)
        a.wait_vm(f'H{i}')
        if k >= 12: wait_lgk(f'A{rb}_{k}')
        if rb == 0 and 12 <= k + PD < 28 and (k + PD) % 4 == 0:
            assert not any(t_ == f'R{(k+PD)//4}' for _, t_ in rq)
            a.wait_vm(f'R{(k+PD)//4}')
        A = aW + 8*k if k < 12 else aF + 8*(k % (PD + 1))
        B = ar(aH + 4*(i % 32))
        a(mfma(vr(acc,16), ar(A), B, vr(acc,16) if k else '0'))
        if 12 <= k + PD < 28:
            for r in ard(k+PD): lds(r, f'A{rb}_{k+PD}')
        for f in fill0: f()
        a(mfma(vr(acc+16,16), ar(A+4), B, vr(acc+16,16) if k else '0'))
        for _ in range(HPS[min(i, len(HPS) - 1)]): lnext(i)
        for f in fill: f()
    def take(Q, budget):
        out = []
        while Q and budget > 0:
            x = Q.pop(0)
            if isinstance(x, str): budget -= cost(x); out.append(lambda x=x: a(x))
            else: budget -= 1; out.append(x)
        return out
    def vstep(j):
        def f():
            assert ('v', j) not in lq
            a.wait_vm(f'V{j}')
            for i in range(4): a(f'v_xor_b32 v{VF+4*j+i}, v{VF+4*j+i}, v{vSg}')
            a('s_nop 1')
            a(mfma(vr(YA,16), vr(VF+4*j), vr(TFd+4*j), vr(YA,16) if j else '0'))
        return f
    for k in range(28):
        fill = []; fill0 = []
        if k + PD < 12: fill0 = take(vq, 5)
        if VM0 <= k < VM0 + 8:
            assert not any('cos' in x for x in vq)
            fill.append(vstep(k - VM0))
        else: fill += take(vq, 4)
        kstep(0, k, fill, fill0)
        if k in (0, 7, 15, 27): stamp(a, {0: 3, 7: 4, 15: 5, 27: 6}[k], '4')
    assert not vq
    stamp(a, 7)
    def red_write(acc, base): return [(lambda q=q: lds(f'ds_write_b128 v{base+q}, {vr(acc+4*q)}', 'RW')) for q in range(4)]
    def scale_own(acc, rb):
        def f():
            sk = a.label('noy')
            a(f's_cmp_lg_u32 s{sI}, {rb}\ns_cbranch_scc1 {sk}')
            for r in range(16): a(f'v_fma_f32 v{acc+r}, v{acc+r}, v{vRi}, v{YA+r}')
            a(f'{sk}:')
        return f
    def barrier():
        wait_lgk('RW'); a('s_barrier')
    def finalize(P, rb):
        L = []
        for k in range(4):
            for h in range(2):
                L.append(lambda k=k, h=h: lds(f'ds_read_b128 {vr(P+8*k+4*h)}, v{vRr+2*(k ^ (2*rb))+h}', f'RR{k}'))
        U = 56
        for i in range(4): L += [f'v_lshlrev_b32 v{U+2*i}, 16, v{XR+4*rb+i}', f'v_and_b32 v{U+2*i+1}, 0xffff0000, v{XR+4*rb+i}']
        L.append(lambda: wait_lgk('RR0'))
        L += [f'v_add_f32 v{P+r}, v{P+r}, v{U+r}' for r in range(8)]
        L.append(lambda: wait_lgk('RR2'))
        L += [f'v_add_f32 v{P+8+r}, v{P+8+r}, v{P+16+r}' for r in range(8)]
        L.append(lambda: wait_lgk('RR3'))
        L += [f'v_add_f32 v{P+8+r}, v{P+8+r}, v{P+24+r}' for r in range(8)]
        L += [f'v_fma_f32 v{P+r}, v{P+8+r}, v{vRi+1+rb}, v{P+r}' for r in range(8)]
        L += [f'v_cvt_pk_bf16_f32 v{U+p}, v{P+2*p}, v{P+2*p+1}' for p in range(4)]
        L.append(lambda: a.vmem(f'buffer_store_dwordx4 {vr(U)}, v{vOo+rb}, {sr(SO)}, 0 offen {OST}', 'O'))
        return L
    def run(L):
        for f in take(L, 10**6): f()
    PF = 104
    assert ('s', 0) not in lq
    a.wait_vm('X')
    work = red_write(ACC0+16, vRwb) + [scale_own(ACC0, 0)] + red_write(ACC0, vRw)
    post = finalize(PF, 0)
    KB1, KB2 = opt('kb1', 10), 25
    for k in range(28):
        fill = []; fill0 = []
        if 3 <= k < KB1: fill = take(work, 2)
        if k == KB1:
            assert not work
            fill = [barrier]
        if KB1 < k < KB2:
            fill0 = take(post, 1)
            fill = take(post, FILL)
        if k == KB2:
            assert not post and not any(x.startswith('RR') for x in state['lgk']), post
            fill = [lambda: a('s_barrier')]
        kstep(1, k, fill, fill0)
        if k in (11, 27): stamp(a, {11: 7, 27: 8}[k], '4')
    stamp(a, 8)
    a('s_nop 10')
    run([scale_own(ACC1, 1)] + red_write(ACC1, vRw) + red_write(ACC1+16, vRwb))
    barrier()
    run(finalize(PF, 1))

def main():
    body = gen()
    k = NAME + '_kernel'
    print(f'''; FNet mixing (two-stage DFT factorisation, 2048 = 32 x 64) + ReLU FFN + residual in one persistent launch.
; @launch grid=(256,1,1) block=(256,1,1) lds={LDS_SIZE}
.amdgcn_target "amdgcn-amd-amdhsa--gfx950"
.text
.globl {k}
.p2align 8
.type {k},@function
{k}:
{body}
.section .rodata,"a"
.p2align 6
.amdhsa_kernel {k}
  .amdhsa_next_free_vgpr {256+NAGPR}
  .amdhsa_next_free_sgpr 102
  .amdhsa_accum_offset 256
  .amdhsa_group_segment_fixed_size 0
  .amdhsa_kernarg_size 88
  .amdhsa_user_sgpr_count 2
  .amdhsa_user_sgpr_kernarg_segment_ptr 1
  .amdhsa_system_sgpr_workgroup_id_x 1
.end_amdhsa_kernel''')
main()
```

```python
import sys, struct
NAME = 'parallel_sum__spectral_fnet__dense_activation_relu__prompt'
OPT = dict(a.split('=') for a in sys.argv[1:] if '=' in a)
def opt(k, d): return type(d)(OPT.get(k, d))
STAMP = opt('stamp', 0); LST = OPT.get('lst')
RATE = [int(c) for c in OPT.get('rate', '3')]
ROT = opt('rot', 1)
POLL0 = opt('poll0', 15); PCHK = opt('pchk', 6)
NW = opt('nw', 16); W0 = opt('w0', 16); WPS = [int(c) for c in OPT.get('wps', '112')]
RPRE0 = opt('rpre0', 0); P1POS = opt('p1pos', 26); RLATE = opt('rlate', 0)
HB0 = opt('hb0', 14); VM0 = opt('vm0', 20); FILL = opt('fill', 5); SLEEP = opt('sleep', 4)
OST = OPT.get('ost', '').replace('_', ' ')
TW = opt('tw', -1); ROT1 = opt('rot1', 4); XOFF = opt('xoff', 0); VSPLIT = opt('vsplit', 0)

def f2h(x): return '0x%08x' % struct.unpack('<I', struct.pack('<f', x))[0]

WS0 = opt('ws0', 0) << 20
HB_SIG = 112 * 1024
HB_SIZE = 64 * HB_SIG
VB_OFF = WS0 + 0x800000
VB_SIZE = 32 * 16 * 256 * 16
SM_OFF = WS0 + 0xA00000
SM_SIZE = 0x20000
CSW, CSZ = 0x8000, 0x18000
FLH, FLV, EPO = 0x10000, 0x11000, 0x14000
ST_OFF = 0x1000000
SLOT = 36864
VX = 4 * SLOT
AREA = 40960
LDS_SIZE = 163840
SPIN_MAX = 1 << 17

SX, SW, SD, SH, SV, SM, SW2, SO = 24, 28, 32, 36, 40, 44, 48, 52
sTag = 56
sW, sI, sJ, sRT, sCG, sSig, sLx, sLw, sLd, sT, sT2, sT3, sT1, sCT = 58, 59, 60, 61, 62, 63, 64, 65, 66, 67, 68, 69, 70, 71
sA0, sA1, sA2, sA3, sA4, sOnes, sSpin, sB0, sB1, sG0 = 72, 73, 74, 75, 76, 77, 78, 79, 80, 81
sGc, sGw, sGh0, sGh1 = 6, 7, 3, 6
sArea, sHb, sRi, sG1, sStg = 20, 21, 77, 10, 11
STB = 82
vL, vU, vHH = 1, 2, 3
vXo, vWo, vDo = 4, 8, 12
vRb, vRp, vRd, vTa, vTb = 13, 21, 29, 37, 39
vM8, vU8, vH16, vZs, vP = 41, 42, 43, 44, 46
vt = 48
WC, TF, FR, ACC = 56, 72, 104, 144
MO, MP, CA, CB, CZ, ZR = 224, 228, 232, 236, 100, 240
vWt = 84
vW2, vTra, vTrb, vZw, vPa, vVo, vSg, vOo, vRo = 48, 52, 53, 54, 55, 45, 72, 74, 76
vSt = [(54, 73), (77, 83)]
vFl = 92
aW, aH, aF = 0, 96, 224
aRaw = aH
NAGPR = 256
PD = opt('pd', 3); RL0 = opt('rl0', 0); VL0 = opt('vl0', -1); HN0 = opt('hn0', 28); P2K = opt('p2k', -1)

class Asm:
    def __init__(self):
        self.L = []; self.vm = []; self.nlab = 0
    def __call__(self, s):
        for line in s.split('\n'):
            line = line.strip()
            self.L.append(line if line.endswith(':') else '    ' + line)
    def vmem(self, s, tag):
        self(s); self.vm.append(tag)
    def emit(self, ins):
        s, tag = ins
        if tag: self.vmem(s, tag)
        else: self(s)
    def wait_vm(self, tag):
        if tag not in self.vm: return
        idx = max(i for i, t in enumerate(self.vm) if t == tag)
        n = len(self.vm) - 1 - idx
        self(f's_waitcnt vmcnt({min(n, 63)})')
        self.vm = self.vm[idx + 1:]
    def label(self, p):
        self.nlab += 1
        return f'L{p}_{self.nlab}'
    def text(self): return '\n'.join(self.L)

def vr(b, n=4): return f'v[{b}:{b+n-1}]'
def ar(b, n=4): return f'a[{b}:{b+n-1}]'
def sr(b, n=4): return f's[{b}:{b+n-1}]'
def srd(a, d, lo, size, off=0):
    if off: a(f's_add_u32 s{d}, s{lo}, {off}\ns_addc_u32 s{d+1}, s{lo+1}, 0')
    else: a(f's_mov_b32 s{d}, s{lo}\ns_mov_b32 s{d+1}, s{lo+1}')
    a(f's_mov_b32 s{d+2}, {size}\ns_mov_b32 s{d+3}, 0x20000')
def stamp(a, idx, mode=None):
    if not STAMP: return
    if 1 <= idx <= 8 and mode != LST: return
    a(f's_memrealtime s[{STB+2*idx}:{STB+2*idx+1}]')
def mfma(D, A, B, C): return f'v_mfma_f32_32x32x16_bf16 {D}, {A}, {B}, {C}'
def lines(s): return s.split('\n')
def cost(x): return sum(2 if ('cos' in y or 'sin' in y) else 1 for y in x.split('\n'))

def stamp_store(a):
    if not STAMP: return
    a('s_waitcnt vmcnt(0) lgkmcnt(0)')
    stamp(a, 9)
    a('s_waitcnt lgkmcnt(0)')
    if STAMP == 3:
        pa, pb = map(int, OPT['probe'].split(','))
        sk = a.label('pskip'); sp = a.label('pspin')
        a(f's_cmp_lg_u32 s2, {OPT.get("pwg", 0)}\ns_cbranch_scc1 {sk}\ns_cmp_lg_u32 s{sW}, {OPT.get("pwv", 0)}\ns_cbranch_scc1 {sk}')
        a(f's_sub_u32 s{sT}, s{STB+2*pb}, s{STB+2*pa}\ns_min_u32 s{sT}, s{sT}, 5000\ns_mul_i32 s{sT}, s{sT}, 10')
        a(f's_memrealtime s[4:5]\ns_waitcnt lgkmcnt(0)\ns_add_u32 s{sT}, s{sT}, s4')
        a(f'{sp}:\ns_memrealtime s[4:5]\ns_waitcnt lgkmcnt(0)\ns_sub_u32 s{sT2}, s{sT}, s4\ns_cmp_gt_i32 s{sT2}, 0\ns_cbranch_scc1 {sp}')
        a(f'{sk}:')
        return
    srd(a, SX, 18, 65536, ST_OFF)
    a(f's_lshl_b32 s{sT}, s2, 2\ns_add_u32 s{sT}, s{sT}, s{sW}\ns_lshl_b32 s{sT}, s{sT}, 6')
    a(f'v_mov_b32 v5, s{sT}')
    for i in range(10):
        a(f'v_mov_b32 v4, s{STB+2*i}')
        a(f'buffer_store_dword v4, v5, {sr(SX)}, 0 offen offset:{4*i}')
        a('s_nop 1')

def poll_issue(a, tag, va, vd=vP):
    a.vmem(f'buffer_load_dwordx2 {vr(vd,2)}, v{va}, {sr(SM)}, 0 offen sc1', tag)
def poll_check(a, tag, va, vd=vP, sleep=SLEEP, mask=None):
    ok = a.label('ok'); lp = a.label('spin')
    a.wait_vm(tag)
    mk = f'\ns_and_b64 vcc, vcc, {mask}' if mask else ''
    a(f'v_cmp_ne_u64 vcc, s[{sTag}:{sTag+1}], {vr(vd,2)}' + mk)
    a(f's_cbranch_vccz {ok}')
    a(f's_mov_b32 s{sSpin}, {SPIN_MAX}')
    a(f'{lp}:')
    if sleep: a(f's_sleep {sleep}')
    a(f'buffer_load_dwordx2 {vr(vd,2)}, v{va}, {sr(SM)}, 0 offen sc1')
    a(f's_sub_u32 s{sSpin}, s{sSpin}, 1\ns_cbranch_scc1 {ok}')
    a('s_waitcnt vmcnt(0)')
    a(f'v_cmp_ne_u64 vcc, s[{sTag}:{sTag+1}], {vr(vd,2)}' + mk)
    a(f's_cbranch_vccnz {lp}')
    a(f'{ok}:')
def wg_flag_prep(tmp, u0, u1):
    return [f's_lshl_b32 s{u0}, s{sCG}, 4\ns_add_u32 s{u0}, s{u0}, s{sRT}\ns_lshl_b32 s{u0}, s{u0}, 3\ns_add_u32 s{u0}, s{u0}, {FLV}',
            f's_lshl_b32 s{u1}, s{sRT}, 4\ns_add_u32 s{u1}, s{u1}, s{sCG}\ns_lshl_b32 s{u1}, s{u1}, 3\ns_add_u32 s{u1}, s{u1}, {FLH}\ns_sub_u32 s{u1}, s{u1}, s{u0}',
            f'v_mul_lo_u32 v{tmp+2}, v{vL}, s{u1}', f'v_add_u32 v{tmp+2}, s{u0}, v{tmp+2}',
            f'v_mov_b32 v{tmp}, s{sTag}', f'v_mov_b32 v{tmp+1}, s{sTag+1}']
def wg_flag(a, tmp, barrier=True):
    a.wait_vm('ST')
    if barrier: a('s_barrier')
    sk = a.label('nofl')
    a(f's_cmp_lg_u32 s{sW}, 0\ns_cbranch_scc1 {sk}')
    a('s_mov_b64 exec, 3')
    a(f'buffer_store_dwordx2 {vr(tmp,2)}, v{tmp+2}, {sr(SM)}, 0 offen sc1')
    a('s_mov_b64 exec, -1')
    a(f'{sk}:')
def col_record(a, o, src):
    a(f'v_cvt_pk_bf16_f32 v{o+2}, v{src}, v{src}\nv_and_b32 v{o+3}, 0xffff0000, v{o+2}\nv_sub_f32 v{o+4}, v{src}, v{o+3}')
    a(f'v_cvt_pk_bf16_f32 v{o}, v{src}, v{o+4}\nv_and_b32 v{o+3}, 0xffff0000, v{o}\nv_sub_f32 v{o+4}, v{o+4}, v{o+3}')
    a(f'v_cvt_pk_bf16_f32 v{o+1}, v{o+4}, 0')
    a(f'v_mov_b32 v{o+2}, s{sTag}\nv_mov_b32 v{o+3}, s{sTag+1}')
def get_tag(a):
    a('s_waitcnt lgkmcnt(0)')
    a(f's_add_u32 s{sTag}, s{sTag}, 0x7f4a7c15\ns_addc_u32 s{sTag+1}, s{sTag+1}, 0x9e3779b9')
CW_OFF = f's_lshl_b32 s{sA2}, s{sCG}, 11\ns_lshl_b32 s{sA3}, s{sJ}, 10\ns_add_u32 s{sA2}, s{sA2}, s{sA3}\ns_lshl_b32 s{sA3}, s{sI}, 9\ns_add_u32 s{sA2}, s{sA2}, s{sA3}\ns_add_u32 s{sA2}, s{sA2}, {CSW}'
def stat_loads(role):
    ld = lambda r: (f'buffer_load_dwordx4 {vr(r)}, v{vU8}, {sr(SM)}, s{sA2} offen sc1', 'SL')
    ins = [(f's_lshl_b32 s{sA2}, s{sSig}, 9', None), ld(MO)]
    if role == 'A':
        ins += [(f's_xor_b32 s{sA2}, s{sA2}, 512', None), ld(MP), (CW_OFF, None), ld(CA), (f's_xor_b32 s{sA2}, s{sA2}, 512', None), ld(CB)]
    ins += [(f's_lshl_b32 s{sA2}, s{sCG}, 9\ns_add_u32 s{sA2}, s{sA2}, {CSZ}', None), ld(CZ)]
    return ins
def stat_check(a, role):
    ok = a.label('ok'); lp = a.label('spin')
    recs = [MO, MP, CA, CB, CZ] if role == 'A' else [MO, CZ]
    def cmp():
        for i, r in enumerate(recs):
            a(f'v_cmp_ne_u64 {"s[22:23]" if i else "vcc"}, s[{sTag}:{sTag+1}], {vr(r+2,2)}')
            if i: a('s_or_b64 vcc, vcc, s[22:23]')
    a.wait_vm('SL')
    cmp()
    a(f's_cbranch_vccz {ok}')
    a(f's_mov_b32 s{sSpin}, {SPIN_MAX}')
    a(f'{lp}:')
    for ins in stat_loads(role): a(ins[0])
    a(f's_sub_u32 s{sSpin}, s{sSpin}, 1\ns_cbranch_scc1 {ok}')
    a('s_waitcnt vmcnt(0)')
    cmp()
    a(f's_cbranch_vccnz {lp}')
    a(f'{ok}:')
def stat_fix(role):
    L = [f'ds_write_b32 v{vZs}, v{MO+1}']
    for r in ([MO, MP] if role == 'A' else [MO]):
        L += [f'v_and_b32 v{r}, v{r}, v{vM8}', f'v_and_b32 v{r+1}, 0xffff, v{r}', f'v_mov_b32 v{r+2}, 0', f'v_mov_b32 v{r+3}, 0']
    for r in ([CA, CB, CZ] if role == 'A' else [CZ]):
        L += [f'v_mov_b32 v{r+2}, 0', f'v_mov_b32 v{r+3}, 0']
    L += [f'ds_read_b128 {vr(ZR+4*q)}, v{vH16} offset:{32*q}' for q in range(4)]
    return L

def rot_next(c): return f's_add_u32 s{c}, s{c}, 1\ns_cmp_eq_u32 s{c}, 7\ns_cselect_b32 s{c}, 0, s{c}'
def dma_group(role, g):
    slot = (g % 4) * SLOT
    ins = []
    if role == 'A':
        ins.append((f's_mov_b32 s{sGc}, s{sG1}' if g == 0 else rot_next(sGc), None))
        ins.append((f's_lshl_b32 s{sA0}, s{sGc}, 7\ns_mul_i32 s{sA1}, s{sGc}, {64*3584}', None))
    else:
        ins.append((f's_movk_i32 s{sA0}, {g*128}\ns_mov_b32 s{sA1}, {g*64*3584}', None))
    if role != 'C':
        ins.append((f's_add_u32 m0, s{sLx}, {slot}\ns_nop 0', None))
        for q in range(4):
            ins.append((f'buffer_load_dwordx4 v{vXo+q}, {sr(SX)}, s{sA0} offen offset:{q*1024} lds', f'G{g}'))
        ins.append((f's_add_u32 m0, s{sLd}, {slot}\ns_nop 0', None))
        ins.append((f'buffer_load_dwordx4 v{vDo}, {sr(SD)}, s{sA0} offen lds', f'G{g}'))
    if role != 'B':
        ins.append((f's_add_u32 m0, s{sLw}, {slot}\ns_nop 0', None))
        for i in range(4):
            ins.append((f'buffer_load_dwordx4 v{vWo+i}, {sr(SW)}, s{sA1} offen offset:{i*1024} lds', f'G{g}'))
    return ins
STG = [3*SLOT, 0]
def w2_group(q):
    base, off = (sStg, STG[q]) if q < 2 else (sArea, 32768 if q == 2 else (q-3)*8192)
    ins = []
    for m in range(8):
        pre = ''
        if m == 0: pre = (f's_mov_b32 s{sGw}, s{sG0}' if q == 0 else rot_next(sGw)) + f'\ns_mul_i32 s{sA4}, s{sGw}, {8*7168}\n'
        if m == 4: pre = f's_add_u32 s{sA4}, s{sA4}, {4*7168}\n'
        pre += f's_add_u32 m0, s{base}, {off + 4096*(m//4)}\ns_nop 0\n' if (q < 2 or m % 4 == 0) else ''
        ins.append((pre + f'buffer_load_dwordx4 v{vW2+m%4}, {sr(SW2)}, s{sA4} offen offset:{(m%4)*1024} lds', f'R{q}'))
    return ins
def stage_reads(part):
    return [f'ds_read_b64_tr_b16 {ar(aW+8*(4*part+kk)+4*blk+2*p,2)}, v{va} offset:{(32768 if part == 2 else 0) + kk*2048 + p*1024}'
            for kk in range(4) for blk, va in enumerate(vSt[part] if part < 2 else (vTra, vTrb)) for p in range(2)]

def p1_addr_dma(a):
    t = FR
    a(f'v_lshrrev_b32 v{t+1}, 3, v{vL}\nv_and_b32 v{t+2}, 7, v{vL}\nv_lshrrev_b32 v{t+3}, 1, v{t+1}')
    a(f'v_xor_b32 v{t+4}, v{t+2}, v{t+3}\nv_lshlrev_b32 v{t+4}, 4, v{t+4}')
    a(f'v_mul_u32_u24 v{t+5}, {64*896}, v{t+1}')
    a(f's_mul_i32 s{sT}, s{sSig}, 896')
    a(f'v_add3_u32 v{vXo}, v{t+5}, v{t+4}, s{sT}')
    a(f'v_xor_b32 v{vXo+1}, 64, v{vXo}')
    a(f'v_add_u32 v{vXo+2}, {2*(458752-1024)}, v{vXo}')
    a(f'v_add_u32 v{vXo+3}, {3*(458752-1024)}, v{vXo+1}')
    a(f'v_add_u32 v{vXo+1}, {1*(458752-1024)}, v{vXo+1}')
    a(f'v_and_b32 v{t+6}, 1, v{t+3}\nv_lshlrev_b32 v{t+6}, 2, v{t+6}\nv_xor_b32 v{t+6}, v{t+6}, v{t+2}\nv_lshlrev_b32 v{t+6}, 4, v{t+6}')
    a(f'v_mul_u32_u24 v{t+7}, 3584, v{t+1}')
    a(f's_mul_i32 s{sT}, s{sI}, {32*3584}\ns_lshl_b32 s{sT2}, s{sCG}, 8\ns_add_u32 s{sT}, s{sT}, s{sT2}\ns_lshl_b32 s{sT2}, s{sJ}, 7\ns_add_u32 s{sT}, s{sT}, s{sT2}')
    a(f'v_add3_u32 v{vWo}, v{t+7}, v{t+6}, s{sT}')
    for i in range(1, 4): a(f'v_add_u32 v{vWo+i}, {i*(8*3584-1024)}, v{vWo}')
    a(f'v_mul_u32_u24 v{t+5}, 896, v{t+1}')
    a(f's_lshl_b32 s{sT}, s{sJ}, 6')
    a(f'v_xor_b32 v{t+6}, s{sT}, v{t+4}')
    a(f's_lshl_b32 s{sT}, s{sCG}, 1\ns_add_u32 s{sT}, s{sT}, s{sJ}\ns_mul_i32 s{sT}, s{sT}, {8*896}')
    a(f'v_add3_u32 v{vDo}, v{t+5}, v{t+6}, s{sT}')
    a(f's_lshl_b32 s{sLx}, s{sW}, 12')
    a(f's_lshl_b32 s{sLw}, s{sJ}, 13\ns_lshl_b32 s{sT}, s{sI}, 12\ns_add_u32 s{sLw}, s{sLw}, s{sT}\ns_add_u32 s{sLw}, s{sLw}, 16384')
    a(f's_lshl_b32 s{sLd}, s{sW}, 10\ns_add_u32 s{sLd}, s{sLd}, 32768')

def p1_addr_read(a):
    t = FR
    a(f'v_and_b32 v{vU}, 31, v{vL}\nv_lshrrev_b32 v{vHH}, 5, v{vL}')
    a(f'v_bfe_u32 v{t}, v{vU}, 1, 3\nv_xor_b32 v{t}, v{t}, v{vHH}')
    a(f'v_lshlrev_b32 v{t+1}, 7, v{vU}')
    a(f's_xor_b32 s{sT}, s{sW}, 1\ns_lshl_b32 s{sT}, s{sT}, 12')
    for jj in range(4):
        a(f'v_xor_b32 v{t+2}, {2*jj}, v{t}\nv_lshl_add_u32 v{t+2}, v{t+2}, 4, v{t+1}')
        a(f'v_add_u32 v{vRb+jj}, s{sLx}, v{t+2}\nv_add_u32 v{vRp+jj}, s{sT}, v{t+2}\nv_add_u32 v{vRd+jj}, 0x8000, v{t+2}')
        for r in (vRb, vRp, vRd): a(f'v_add_u32 v{r+4+jj}, {2*SLOT}, v{r+jj}')
    a(f'v_bfe_u32 v{t}, v{vL}, 2, 2')
    a(f'v_lshl_add_u32 v{t+1}, v{vHH}, 3, v{t}\nv_lshlrev_b32 v{t+1}, 7, v{t+1}')
    a(f'v_lshrrev_b32 v{t}, 1, v{t}\nv_xor_b32 v{t}, s{sI}, v{t}\nv_lshl_add_u32 v{t+1}, v{t}, 6, v{t+1}')
    a(f'v_bfe_u32 v{t}, v{vL}, 4, 1\nv_lshl_add_u32 v{t+1}, v{t}, 5, v{t+1}')
    a(f'v_and_b32 v{t}, 3, v{vL}\nv_lshl_add_u32 v{t+1}, v{t}, 3, v{t+1}')
    a(f's_lshl_b32 s{sT}, s{sJ}, 13\ns_add_u32 s{sT}, s{sT}, 16384')
    a(f'v_add_u32 v{vTa}, s{sT}, v{t+1}\nv_xor_b32 v{vTb}, 64, v{vTa}')
    a(f'v_add_u32 v{vTa+1}, {2*SLOT}, v{vTa}\nv_add_u32 v{vTb+1}, {2*SLOT}, v{vTb}')
def stat_addr():
    return lines(f'v_lshlrev_b32 v{vU8}, 4, v{vU}\nv_add_u32 v{vM8}, -1, v{vHH}') + \
           [f's_lshl_b32 s{sB0}, s{sW}, 7\ns_add_u32 s{sB0}, s{sB0}, {VX+8192}', f'v_lshl_add_u32 v{vZs}, v{vU}, 2, s{sB0}', f'v_lshl_add_u32 v{vH16}, v{vHH}, 4, s{sB0}']

def twiddle_wc(t):
    L = [f'v_cvt_f32_u32 v{t}, v{vU}', f'v_cvt_f32_u32 v{t+1}, v{vHH}', f'v_mul_f32 v{t}, {f2h(1/32)}, v{t}',
         f'v_mul_f32 v{t+1}, 4.0, v{t+1}', f'v_mul_f32 v{t+1}, v{t+1}, v{t}']
    for p in range(8):
        u0 = 16*(p >> 2) + 8*((p & 3) >> 1) + 2*(p & 1)
        L += [f'v_fmamk_f32 v{t+2}, v{t}, {f2h(u0)}, v{t+1}', f'v_fmamk_f32 v{t+3}, v{t}, {f2h(u0+1)}, v{t+1}',
              f'v_cos_f32 v{t+4}, v{t+2}', f'v_cos_f32 v{t+5}, v{t+3}', f'v_sin_f32 v{t+6}, v{t+2}', f'v_sin_f32 v{t+7}, v{t+3}',
              f'v_cvt_pk_bf16_f32 v{WC+p}, v{t+4}, v{t+5}', f'v_cvt_pk_bf16_f32 v{WC+8+p}, -v{t+6}, -v{t+7}']
    return L
def twiddle_tf(t, dst):
    L = [f's_lshl_b32 s{sT}, s{sI}, 5\ns_add_u32 s{sT}, s{sT}, s{sT1}\nv_lshl_add_u32 v{t}, v{vU}, 6, s{sT}',
         f'v_cvt_f32_u32 v{t}, v{t}', f'v_cvt_f32_u32 v{t+1}, v{vHH}', f'v_mul_f32 v{t}, {f2h(1/2048)}, v{t}',
         f'v_mul_f32 v{t+1}, {f2h(16.0)}, v{t+1}', f'v_mul_f32 v{t+1}, v{t+1}, v{t}']
    for j in range(8):
        for h in range(2):
            k0 = 2*j + 32*h
            L += [f'v_fmamk_f32 v{t+2}, v{t}, {f2h(k0)}, v{t+1}', f'v_fmamk_f32 v{t+3}, v{t}, {f2h(k0+1)}, v{t+1}',
                  f'v_cos_f32 v{t+4}, v{t+2}', f'v_sin_f32 v{t+5}, v{t+2}', f'v_cos_f32 v{t+6}, v{t+3}', f'v_sin_f32 v{t+7}, v{t+3}',
                  f'v_cvt_pk_bf16_f32 v{dst+4*j+2*h}, v{t+4}, v{t+5}', f'v_cvt_pk_bf16_f32 v{dst+4*j+2*h+1}, v{t+6}, v{t+7}']
    return L

def p2_addr_early():
    t = vWt; u, w = sB0, sB1
    L = lines(f'v_lshrrev_b32 v{t+1}, 3, v{vL}\nv_and_b32 v{t+2}, 7, v{vL}\nv_bfe_u32 v{t+3}, v{vL}, 4, 1\nv_lshlrev_b32 v{t+3}, 2, v{t+3}\n'
              f'v_xor_b32 v{t+3}, v{t+3}, v{t+2}\nv_lshlrev_b32 v{t+3}, 4, v{t+3}\nv_mul_u32_u24 v{t+4}, 896, v{t+1}')
    L += [f's_mul_i32 s{u}, s{sW}, {448*896}\ns_lshl_b32 s{w}, s{sCT}, 7\ns_add_u32 s{u}, s{u}, s{w}', f'v_add3_u32 v{vW2}, v{t+4}, v{t+3}, s{u}']
    L += [f'v_add_u32 v{vW2+i}, {i*(7168-1024)}, v{vW2}' for i in range(1, 4)]
    L += lines(f'v_bfe_u32 v{t}, v{vL}, 2, 2\nv_lshl_add_u32 v{t+1}, v{vHH}, 2, v{t}\nv_lshlrev_b32 v{t+1}, 7, v{t+1}\nv_lshrrev_b32 v{t}, 1, v{t}\n'
               f'v_xor_b32 v{t}, s{sJ}, v{t}\nv_lshl_add_u32 v{t+1}, v{t}, 6, v{t+1}\nv_bfe_u32 v{t}, v{vL}, 4, 1\nv_lshl_add_u32 v{t+1}, v{t}, 5, v{t+1}\n'
               f'v_and_b32 v{t}, 3, v{vL}\nv_lshl_add_u32 v{t+1}, v{t}, 3, v{t+1}\ns_mul_i32 s{sArea}, s{sW}, {AREA}\n'
               f'v_add_u32 v{vTra}, s{sArea}, v{t+1}\nv_xor_b32 v{vTrb}, 64, v{vTra}\ns_lshl_b32 s{sStg}, s{sW}, 13\nv_add_u32 v{vSt[1][0]}, s{sStg}, v{t+1}\n'
               f'v_xor_b32 v{vSt[1][1]}, 64, v{vSt[1][0]}\nv_add_u32 v{vSt[0][0]}, {STG[0]}, v{vSt[1][0]}\nv_add_u32 v{vSt[0][1]}, {STG[0]}, v{vSt[1][1]}')
    def vmap(el, e_out, tt_out, sg_out):
        M = [f's_lshl_b32 s{u}, s{sCT}, 6\ns_lshl_b32 s{w}, s{sJ}, 5\ns_add_u32 s{u}, s{u}, s{w}', f'v_add_u32 v{e_out}, s{u}, v{el}', f'v_sub_u32 v{t+6}, 448, v{e_out}',
             f's_sub_u32 s{u}, 32, s{sT1}\ns_and_b32 s{u}, s{u}, 31', f'v_mov_b32 v{tt_out}, s{sT1}', f'v_mov_b32 v{t+7}, s{u}',
             f'v_cmp_lt_u32 vcc, 239, v{e_out}\ns_nop 1\nv_cndmask_b32 v{e_out}, v{e_out}, v{t+6}, vcc\nv_cndmask_b32 v{tt_out}, v{tt_out}, v{t+7}, vcc' +
             (f'\nv_mov_b32 v{t+6}, 0\nv_bfrev_b32 v{t+7}, 1\nv_cndmask_b32 v{sg_out}, v{t+6}, v{t+7}, vcc' if sg_out else '')]
        return M
    L += vmap(vU, t, t+1, vSg)
    L += lines(f'v_lshlrev_b32 v{vVo}, 16, v{t+1}\nv_lshl_add_u32 v{vVo}, v{t}, 4, v{vVo}\nv_lshl_add_u32 v{vVo}, v{vHH}, 15, v{vVo}')
    L += lines(f'v_and_b32 v{t+2}, 48, v{vL}\nv_subrev_u32 v{t+2}, 16, v{t+2}\nv_min_u32 v{t+2}, 31, v{t+2}')
    L += vmap(t+2, t, t+1, None)
    L += lines(f'v_and_b32 v{t}, 0x1f0, v{t}\nv_and_b32 v{t+2}, 15, v{vL}\nv_add_u32 v{t}, v{t}, v{t+2}\nv_lshlrev_b32 v{t}, 3, v{t}\nv_add_u32 v{vPa}, {FLV}, v{t}')
    L += [f's_mul_i32 s{u}, s{sW}, 7\ns_lshr_b32 s{u}, s{u}, 1\ns_lshr_b32 s{w}, s{sT1}, 1\ns_lshl_b32 s{w}, s{w}, 4\ns_add_u32 s{u}, s{u}, s{w}',
          f's_lshl_b32 s{u}, s{u}, 3\ns_add_u32 s{u}, s{u}, {FLH}', f'v_and_b32 v{t}, 3, v{vL}', f'v_lshl_add_u32 v{t}, v{t}, 3, s{u}',
          f'v_cmp_gt_u32 vcc, 16, v{vL}\ns_nop 1\nv_cndmask_b32 v{vPa}, v{vPa}, v{t}, vcc']
    L += [f'v_lshrrev_b32 v{t}, 2, v{vL}', f's_lshl_b32 s{u}, s{sI}, 4', f'v_add_u32 v{t}, s{u}, v{t}']
    L += lines(f'v_and_b32 v{t+1}, 3, v{vL}\nv_mul_u32_u24 v{t+2}, {64*896}, v{t}\nv_lshl_add_u32 v{t+2}, v{t+1}, 4, v{t+2}')
    L += [f's_lshl_b32 s{sRi}, s{sI}, 5\ns_add_u32 s{sRi}, s{sRi}, s{sT1}\ns_mul_i32 s{u}, s{sT1}, 896\ns_lshl_b32 s{w}, s{sCT}, 7',
          f's_add_u32 s{u}, s{u}, s{w}\ns_lshl_b32 s{w}, s{sJ}, 6\ns_add_u32 s{u}, s{u}, s{w}\ns_lshl_b32 s{sRi}, s{sRi}, 9',
          f'v_add_u32 v{vOo}, s{u}, v{t+2}', f'v_add_u32 v{vOo+1}, {32*896}, v{vOo}', f'v_lshlrev_b32 v{vRo}, 4, v{t}',
          f's_mul_i32 s{sHb}, s{sT1}, {HB_SIG}\ns_mul_i32 s{u}, s{sW}, {28*1024}\ns_add_u32 s{sHb}, s{sHb}, s{u}']
    return L

def p1_reads(n):
    g, jj = divmod(n, 4)
    half, so = (g % 4) // 2, (g % 2) * SLOT
    f = FR + 20 * (n & 1)
    return [f'ds_read_b64_tr_b16 {vr(f+8,2)}, v{vTa+half} offset:{so + jj*2048}',
            f'ds_read_b64_tr_b16 {vr(f+10,2)}, v{vTa+half} offset:{so + jj*2048 + 512}',
            f'ds_read_b128 {vr(f)}, v{vRb+4*half+jj} offset:{so}',
            f'ds_read_b128 {vr(f+4)}, v{vRp+4*half+jj} offset:{so}',
            f'ds_read_b64_tr_b16 {vr(f+12,2)}, v{vTb+half} offset:{so + jj*2048}',
            f'ds_read_b64_tr_b16 {vr(f+14,2)}, v{vTb+half} offset:{so + jj*2048 + 512}',
            f'ds_read_b128 {vr(f+16)}, v{vRd+4*half+jj} offset:{so}']
def p1_mfmas(n):
    f = FR + 20 * (n & 1)
    def m(acc, A, B): return mfma(vr(acc, 16), vr(A), vr(B), vr(acc, 16) if n else '0')
    return [m(ACC, f+8, f), m(ACC+16, f+8, f+4), m(ACC+32, f+12, f), m(ACC+48, f+12, f+4), m(ACC+64, f, f+16)]

vZsg, vXw, vXr, vVs, vHo = 78, 79, 80, 81, 82
sHA0, sHA1, sHB0, sHB1 = 4, 5, 8, 9
def z_addr(t, u, w):
    L = lines(f'v_bfe_u32 v{t}, v{vL}, 4, 1\nv_xor_b32 v{vZsg}, 1, v{t}\nv_mul_u32_u24 v{vZsg}, 0x8000, v{vZsg}\nv_lshl_or_b32 v{vZsg}, v{vZsg}, 16, v{vZsg}\n'
              f'v_lshl_add_u32 v{t}, v{vHH}, 2, v{t}\nv_lshlrev_b32 v{t}, 8, v{t}\nv_and_b32 v{t+1}, 15, v{vL}\nv_lshl_add_u32 v{t}, v{t+1}, 4, v{t}')
    L += [f's_lshl_b32 s{u}, s{sW}, 2\ns_add_u32 s{u}, s{u}, {VX}', f'v_add_u32 v{vXw}, s{u}, v{t}',
          f's_lshl_b32 s{u}, s{sW}, 11\ns_add_u32 s{u}, s{u}, {VX}', f'v_lshlrev_b32 v{vHo}, 4, v{vL}', f'v_add_u32 v{vXr}, s{u}, v{vHo}']
    L += lines(f'v_lshrrev_b32 v{t}, 4, v{vL}\nv_lshlrev_b32 v{t}, 16, v{t}\nv_lshl_add_u32 v{t}, v{t+1}, 4, v{t}')
    L += [f's_lshl_b32 s{u}, s{sW}, 19\ns_lshl_b32 s{w}, s{sRT}, 12\ns_add_u32 s{u}, s{u}, s{w}\ns_lshl_b32 s{w}, s{sCG}, 8\ns_add_u32 s{u}, s{u}, s{w}',
          f'v_add_u32 v{vVs}, s{u}, v{t}']
    return L
def h_addr(u, w):
    return [f's_lshl_b32 s{u}, s{sCG}, 3\ns_lshl_b32 s{w}, s{sJ}, 2\ns_add_u32 s{u}, s{u}, s{w}\ns_lshl_b32 s{w}, s{sI}, 1\ns_add_u32 s{u}, s{u}, s{w}',
            f's_lshl_b32 s{u}, s{u}, 10\ns_mul_i32 s{w}, s{sSig}, {HB_SIG}\ns_add_u32 s{sHA0}, s{u}, s{w}',
            f's_xor_b32 s{w}, s{sSig}, 1\ns_mul_i32 s{w}, s{w}, {HB_SIG}\ns_add_u32 s{sHA1}, s{u}, s{w}',
            f's_xor_b32 s{sHB0}, s{sHA0}, 2048\ns_xor_b32 s{sHB1}, s{sHA1}, 2048']

def rank1():
    return [mfma(vr(ACC,16), vr(CA), vr(MO), vr(ACC,16)), mfma(vr(ACC+16,16), vr(CA), vr(MP), vr(ACC+16,16)),
            mfma(vr(ACC+32,16), vr(CB), vr(MO), vr(ACC+32,16)), mfma(vr(ACC+48,16), vr(CB), vr(MP), vr(ACC+48,16)),
            mfma(vr(ACC+64,16), vr(MO), vr(CZ), vr(ACC+64,16))]
def p1_loop(a):
    a.wait_vm('G0')
    a('s_barrier')
    stamp(a, 1); stamp(a, 1, '1')
    for r in p1_reads(0): a(r)
    q = dma_group('A', 2) + dma_group('A', 3)
    vq = stat_addr() + p2_addr_early() + twiddle_wc(vWt) + z_addr(vWt, sB0, sB1) + h_addr(sB0, sB1) + wg_flag_prep(vFl, sB0, sB1)
    wq = w2_group(0) + w2_group(1)
    nw = 0
    for n in range(28):
        g, jj = divmod(n, 4)
        a('s_waitcnt lgkmcnt(0)')
        if jj == 3 and g < 6:
            assert not any(t == f'G{g+1}' for _, t in q), (n, q)
            a.wait_vm(f'G{g+1}')
            a('s_barrier')
            stamp(a, 2 + g, '1')
            if g + 4 < 7: q += dma_group('A', g + 4)
        if TW > 0 and n == TW:
            q = [(f'v_and_b32 v{vP}, 15, v{vL}\nv_lshlrev_b32 v{vP}, 7, v{vP}\nbuffer_load_dword v{vP+1}, v{vP}, {sr(SW2)}, s{sA2} offen', 'TW')] + q
        if n == POLL0: q = stat_loads('A') + q
        if n == POLL0 + PCHK:
            assert not any(t == 'SL' for _, t in q)
            stat_check(a, 'A'); vq += stat_fix('A')
        if n == 26 and opt('r1in', 1):
            assert not vq
            for m in rank1(): a(m)
        rd = p1_reads(n + 1) if n + 1 < 28 else []
        nld = 0; wn = 0
        rate = RATE[n % len(RATE)]
        for mi, m in enumerate(p1_mfmas(n)):
            a(m)
            used = 0
            for _ in range(3):
                if rd: a(rd.pop(0)); used += 1
            if mi >= 2:
                cnt = 0
                while nld < rate and (cnt < 1 or mi == 4):
                    if q: ins = q.pop(0)
                    elif n >= W0 and wq and wn < WPS[n % len(WPS)] and (len(wq) > 8 or n >= opt('w1', 20)): ins = wq.pop(0); wn += 1
                    else: break
                    a.emit(ins); used += cost(ins[0])
                    if ins[1]: nld += 0.5 if ins[1] == 'SL' else 1; cnt += 1
            while vq and used + min(cost(vq[0]), 3) <= 6:
                x = vq.pop(0); a(x); used += cost(x)
    assert not vq and not q
    stamp(a, 2); stamp(a, 8, '1'); stamp(a, 1, '3'); stamp(a, 1, '5')
    return wq

def p1_loop_bc(a, role):
    def regs(g): return FR if g % 2 == 0 else ACC + 16
    def reads(g):
        half, so = (g % 4) // 2, (g % 2) * SLOT
        f = regs(g); L = []
        for jj in range(4):
            if role == 'B':
                L.append(f'ds_read_b128 {vr(f+8*jj)}, v{vRb+4*half+jj} offset:{so}')
                L.append(f'ds_read_b128 {vr(f+8*jj+4)}, v{vRd+4*half+jj} offset:{so}')
            else:
                L.append(f'ds_read_b64_tr_b16 {vr(f+8*jj,2)}, v{vTa+half} offset:{so + jj*2048}')
                L.append(f'ds_read_b64_tr_b16 {vr(f+8*jj+2,2)}, v{vTa+half} offset:{so + jj*2048 + 512}')
        return L
    a.wait_vm('G0'); a('s_barrier')
    if role == 'C': stamp(a, 1)
    for r in reads(0): a(r)
    if role == 'C':
        for ins in dma_group(role, 3): a.emit(ins)
    for g in range(7):
        a('s_waitcnt lgkmcnt(0)')
        if g < 6:
            a.wait_vm(f'G{g+1}'); a('s_barrier')
            for r in reads(g + 1): a(r)
            if g + 4 < 7:
                for ins in dma_group(role, g + 4): a.emit(ins)
            if role == 'B' and g == 4:
                for ins in stat_loads('B'): a.emit(ins)
        f = regs(g)
        for jj in range(4):
            n = 4*g + jj
            if role == 'B': a(mfma(vr(ACC+64,16), vr(f+8*jj), vr(f+8*jj+4), vr(ACC+64,16) if n else '0'))
            else: a(mfma(vr(ACC,16), vr(TF), vr(f+8*jj), vr(ACC,16) if n else '0'))
    if role == 'C': stamp(a, 2)

ZA, B1, B2 = ACC + 64, FR, FR + 8
def z1(a):
    for r in range(16): a(f'v_mul_f32 v{ZA+r}, v{ZA+r}, v{ZR+r}')
    for p in range(8): a(f'v_cvt_pk_bf16_f32 v{B1+p}, v{ZA+2*p}, v{ZA+2*p+1}')
    for p in range(8): a(f'ds_swizzle_b32 v{B2+p}, v{B1+p} offset:0x401f')
    a(mfma(vr(ZA,16), vr(WC), vr(B1), '0'))
    a(mfma(vr(ZA,16), vr(WC+4), vr(B1+4), vr(ZA,16)))
def z2(a):
    a('s_waitcnt lgkmcnt(0)')
    for p in range(8): a(f'v_xor_b32 v{B2+p}, v{B2+p}, v{vZsg}')
    a('s_nop 1')
    a(mfma(vr(ZA,16), vr(WC+8), vr(B2), vr(ZA,16)))
    a(mfma(vr(ZA,16), vr(WC+12), vr(B2+4), vr(ZA,16)))
def z3(a):
    for p in range(8): a(f'v_permlane16_swap_b32 v{ZA+2*p}, v{ZA+2*p+1}')
    a('s_nop 1')
    for p in range(8): a(f'v_cvt_pk_bf16_f32 v{B1+p}, v{ZA+2*p}, v{ZA+2*p+1}')
    for p in range(8):
        t1b = (2*p & 3) + 8 * (p >> 1)
        a(f'ds_write_b32 v{vXw}, v{B1+p} offset:{t1b*256}')
def z4a(a):
    a('s_waitcnt lgkmcnt(0)\ns_barrier')
    a(f'ds_read_b128 {vr(B2)}, v{vXr}\nds_read_b128 {vr(B2+4)}, v{vXr} offset:1024')
def z4b(a):
    a(f's_mov_b32 s{sT}, {4*65536}')
    a('s_waitcnt lgkmcnt(0)')
    a.vmem(f'buffer_store_dwordx4 {vr(B2)}, v{vVs}, {sr(SV)}, 0 offen sc1', 'ST')
    a.vmem(f'buffer_store_dwordx4 {vr(B2+4)}, v{vVs}, {sr(SV)}, s{sT} offen sc1', 'ST')

def gen():
    a = Asm()
    a('s_cmp_ge_u32 s2, 256\ns_cbranch_scc1 Lend')
    a('s_load_dwordx2 s[4:5], s[0:1], 0')
    a('s_load_dwordx4 s[8:11], s[0:1], 24')
    a('s_load_dwordx4 s[12:15], s[0:1], 48')
    a('s_load_dwordx2 s[16:17], s[0:1], 64')
    a('s_load_dwordx2 s[18:19], s[0:1], 80')
    stamp(a, 0)
    CPF = opt('cpf', 1)
    if CPF:
        a('s_getpc_b64 s[22:23]')
        a('Lpc:')
        a(f's_bfe_u32 s3, s2, 0x30003\ns_lshl_b32 s3, s3, 12')
        a(f'v_lshrrev_b32 v{vP}, 6, v0\nv_lshlrev_b32 v{vP}, 10, v{vP}\nv_and_b32 v{vP+1}, 7, v0\nv_lshl_add_u32 v{vP}, v{vP+1}, 7, v{vP}\nv_add_u32 v{vP}, s3, v{vP}')
        a(f'v_min_u32 v{vP}, Lend-Lpc, v{vP}')
        a.vmem(f'global_load_dword v{vP+1}, v{vP}, s[22:23]', 'CP')
    a(f'v_lshrrev_b32 v{FR}, 6, v0\nv_and_b32 v{vL}, 63, v0')
    a(f'v_readfirstlane_b32 s{sW}, v{FR}')
    sX8, sN = sA3, sA4
    a(f's_and_b32 s{sX8}, s2, 7\ns_lshr_b32 s{sN}, s2, 3')
    a(f's_and_b32 s{sT}, s{sX8}, 3\ns_lshr_b32 s{sT2}, s{sX8}, 2')
    a(f's_lshr_b32 s{sI}, s{sW}, 1\ns_and_b32 s{sJ}, s{sW}, 1')
    a(f's_cmp_ge_u32 s{sN}, 28\ns_cbranch_scc1 LroleBC')
    def sigma(): a(f's_lshl_b32 s{sSig}, s{sRT}, 1\ns_add_u32 s{sSig}, s{sSig}, s{sJ}\ns_lshl_b32 s{sT}, s{sI}, 5\ns_add_u32 s{sSig}, s{sSig}, s{sT}')
    def p1_srds():
        a('s_waitcnt lgkmcnt(0)')
        srd(a, SX, 4, 2048*896)
        a(f's_cmp_ge_u32 s{sW}, 2')
        a(f's_cselect_b32 s{SD}, s10, s8\ns_cselect_b32 s{SD+1}, s11, s9\ns_mov_b32 s{SD+2}, {448*896}\ns_mov_b32 s{SD+3}, 0x20000')
        srd(a, SW, 12, 448*3584)
    def other_srds():
        srd(a, SM, 18, SM_SIZE, SM_OFF)
        a(f's_load_dwordx2 s[{sTag}:{sTag+1}], s[{SM}:{SM+1}], {EPO}')
        srd(a, SH, 18, HB_SIZE, WS0)
        srd(a, SV, 18, VB_SIZE, VB_OFF)

    a(f's_lshl_b32 s{sRT}, s{sT}, 2\ns_and_b32 s{sT3}, s{sN}, 3\ns_add_u32 s{sRT}, s{sRT}, s{sT3}\ns_lshr_b32 s{sCT}, s{sN}, 2')
    a(f's_mul_i32 s{sCG}, s{sT2}, 7\ns_add_u32 s{sCG}, s{sCG}, s{sCT}')
    a(f's_lshl_b32 s{sG0}, s{sT3}, 1\ns_add_u32 s{sG0}, s{sG0}, s{sCT}\ns_sub_u32 s{sB0}, s{sG0}, 7\ns_cselect_b32 s{sG0}, s{sG0}, s{sB0}')
    if not ROT: a(f's_mov_b32 s{sG0}, 0')
    sCT1 = sCT
    if opt('map2', 0):
        a(f's_mov_b32 s{sB1}, s{sG0}')
        a(f's_and_b32 s{sA0}, s{sX8}, 1\ns_and_b32 s{sA1}, s{sN}, 7\ns_lshr_b32 s{sCT}, s{sN}, 3')
        a(f's_lshl_b32 s{sG0}, s{sCT}, 1\ns_add_u32 s{sG0}, s{sG0}, s{sA1}')
        a(f's_lshl_b32 s{sB0}, s{sA1}, 1\ns_lshl_b32 s{sA0}, s{sA0}, 2\ns_add_u32 s{sT1}, s{sA1}, s{sA0}\ns_add_u32 s{sA0}, s{sA0}, s{sCT}')
        a(f's_cmp_eq_u32 s{sCT}, 3\ns_cselect_b32 s{sCT}, 3, s{sA0}\ns_cselect_b32 s{sA1}, s{sT1}, s{sA1}\ns_cselect_b32 s{sG0}, s{sB0}, s{sG0}')
        a(f's_sub_u32 s{sB0}, s{sG0}, 7\ns_cselect_b32 s{sG0}, s{sG0}, s{sB0}')
        a(f's_lshr_b32 s{sT1}, s{sX8}, 1\ns_lshl_b32 s{sT1}, s{sT1}, 2\ns_lshr_b32 s{sB0}, s{sA1}, 1\ns_add_u32 s{sT1}, s{sT1}, s{sB0}')
        a(f's_sub_u32 s{sB0}, 32, s{sT1}\ns_cmp_eq_u32 s{sT1}, 0\ns_cselect_b32 s{sB0}, 16, s{sB0}')
        a(f's_bitcmp1_b32 s{sA1}, 0\ns_cselect_b32 s{sT1}, s{sB0}, s{sT1}')
        assert ROT1 in (7, 4) and not XOFF
        if ROT1 == 4: a(f's_lshr_b32 s{sB1}, s{sN}, 2\ns_add_u32 s{sB1}, s{sB1}, s{sT3}\ns_and_b32 s{sB1}, s{sB1}, 3\ns_lshl_b32 s{sB1}, s{sB1}, 1')
    else:
        a(f's_lshl_b32 s{sT1}, s{sX8}, 1\ns_lshr_b32 s{sB0}, s{sT3}, 1\ns_add_u32 s{sT1}, s{sT1}, s{sB0}\ns_sub_u32 s{sB0}, 32, s{sT1}\ns_cmp_eq_u32 s{sT1}, 0\ns_cselect_b32 s{sB0}, 16, s{sB0}')
        a(f's_bitcmp1_b32 s{sT3}, 0\ns_cselect_b32 s{sT1}, s{sB0}, s{sT1}')
    if XOFF: a(f's_add_u32 s{sG0}, s{sG0}, s{sX8}\ns_sub_u32 s{sB0}, s{sG0}, 7\ns_cselect_b32 s{sG0}, s{sG0}, s{sB0}\ns_sub_u32 s{sB0}, s{sG0}, 7\ns_cselect_b32 s{sG0}, s{sG0}, s{sB0}')
    if opt('map2', 0): pass
    elif ROT1 == 7: a(f's_mov_b32 s{sB1}, s{sG0}')
    elif ROT1 == 4: a(f's_add_u32 s{sB1}, s{sCT}, s{sT3}\ns_and_b32 s{sB1}, s{sB1}, 3\ns_lshl_b32 s{sB1}, s{sB1}, 1')
    elif ROT1 == 2: a(f's_add_u32 s{sB1}, s{sCT}, s{sT3}\ns_and_b32 s{sB1}, s{sB1}, 1\ns_mul_i32 s{sB1}, s{sB1}, 3')
    elif ROT1 == 3: a(f's_add_u32 s{sB1}, s{sCT}, s{sT3}\ns_mul_i32 s{sB0}, s{sB1}, 43\ns_lshr_b32 s{sB0}, s{sB0}, 7\ns_mul_i32 s{sB0}, s{sB0}, 3\ns_sub_u32 s{sB1}, s{sB1}, s{sB0}\ns_lshl_b32 s{sB1}, s{sB1}, 1')
    else: a(f's_mov_b32 s{sB1}, 0')
    a(f's_mul_i32 s{sOnes}, s{sX8}, 28\ns_add_u32 s{sOnes}, s{sOnes}, s{sN}\ns_lshl_b32 s{sOnes}, s{sOnes}, 2\ns_add_u32 s{sOnes}, s{sOnes}, s{sW}\ns_mul_i32 s{sA2}, s{sOnes}, {14*128}')
    sigma(); p1_addr_dma(a); p1_srds()
    a(f's_mov_b32 s{sG1}, s{sB1}')
    for ins in dma_group('A', 0): a.emit(ins)
    p1_addr_read(a)
    for ins in dma_group('A', 1): a.emit(ins)
    srd(a, SW2, 14, 1792*896)
    if TW < 0: a.vmem(f'v_and_b32 v{vP}, 15, v{vL}\nv_lshlrev_b32 v{vP}, 7, v{vP}\nbuffer_load_dword v{vP+1}, v{vP}, {sr(SW2)}, s{sA2} offen', 'TW')
    other_srds()
    srd(a, SO, 16, 2048*896)
    get_tag(a)
    wq = p1_loop(a)
    if not opt('r1in', 1):
        for m in rank1(): a(m)
        a('s_nop 15\ns_waitcnt lgkmcnt(0)')
    else: a(f's_nop {6 if opt("ep", 1) else 11}\ns_waitcnt lgkmcnt(0)')
    def hblock(acc, out, so):
        for p in range(8): a(f'v_cvt_pk_bf16_f32 v{out+p}, v{acc+2*p}, v{acc+2*p+1}')
        for p in range(8): a(f'v_pk_max_i16 v{out+p}, v{out+p}, 0')
        a.vmem(f'buffer_store_dwordx4 {vr(out)}, v{vHo}, {sr(SH)}, s{so} offen sc1', 'ST')
        a.vmem(f'buffer_store_dwordx4 {vr(out+4)}, v{vHo}, {sr(SH)}, s{so} offen offset:1024 sc1', 'ST')
    if opt('ep', 1) == 0:
        z1(a); hblock(ACC, FR+16, sHA0)
        z2(a); hblock(ACC+16, FR+24, sHA1)
        z3(a); hblock(ACC+32, FR+32, sHB0)
        z4a(a); hblock(ACC+48, ACC, sHB1)
        z4b(a)
    elif opt('ep', 1) == 1:
        hblock(ACC, FR+16, sHA0)
        z1(a); hblock(ACC+16, FR+24, sHA1)
        z2(a); hblock(ACC+32, FR+32, sHB0)
        z3(a); hblock(ACC+48, ACC, sHB1)
        z4a(a); z4b(a)
    else:
        hblock(ACC, FR+16, sHA0); hblock(ACC+16, FR+24, sHA1)
        z1(a); hblock(ACC+32, FR+32, sHB0)
        z2(a); hblock(ACC+48, ACC, sHB1)
        z3(a); z4a(a); z4b(a)
    stamp(a, 3); stamp(a, 2, '3'); stamp(a, 2, '5')
    phase2(a, wq)
    a('s_branch Lfin')

    a('LroleBC:')
    a.vm = ['CP'] if CPF else []
    a(f's_cmp_ge_u32 s{sN}, 30\ns_cbranch_scc1 LroleC')
    a(f's_lshl_b32 s{sRT}, s{sT}, 2\ns_lshl_b32 s{sT2}, s{sT2}, 1\ns_add_u32 s{sRT}, s{sRT}, s{sT2}\ns_add_u32 s{sRT}, s{sRT}, s{sN}\ns_sub_u32 s{sRT}, s{sRT}, 28')
    a(f's_mov_b32 s{sCG}, s{sRT}')
    sigma(); p1_addr_dma(a); p1_srds()
    XB, DB, vSb = 104, 224, 92
    for g in range(7):
        a(f's_movk_i32 s{sA0}, {g*128}')
        for q in range(4):
            a.vmem(f'buffer_load_dwordx4 {vr(XB+16*g+4*q)}, v{vXo+q}, {sr(SX)}, s{sA0} offen offset:{q*1024}', f'X{g}')
    for g in range(7):
        a.vmem(f'buffer_load_dwordx4 {vr(DB+4*g)}, v{vDo}, {sr(SD)}, 0 offen offset:{g*128}', 'XD')
    a(f's_sub_u32 s{sT}, 14, s{sRT}\ns_mul_i32 s{sT}, s{sT}, {16*896}\nv_add_u32 v{vDo}, s{sT}, v{vDo}\ns_mov_b32 s{sCG}, 14')
    other_srds()
    a(f's_mov_b32 s{sOnes}, 0x3f803f80')
    for i in range(9): a(f'v_mov_b32 v{vSb+i}, 0')
    for g in range(7):
        a.wait_vm(f'X{g}')
        if g == 0: stamp(a, 1)
        for i in range(4):
            for q in range(4):
                a(f'v_dot2c_f32_bf16 v{vSb+q}, s{sOnes}, v{XB+16*g+4*q+i}')
                a(f'v_dot2c_f32_bf16 v{vSb+4+q}, v{XB+16*g+4*q+i}, v{XB+16*g+4*q+i}')
    t = vt
    def dpp(rng):
        for pat in ('quad_perm:[1,0,3,2]', 'quad_perm:[2,3,0,1]', 'row_half_mirror'):
            for i in rng: a(f'v_add_f32_dpp v{vSb+i}, v{vSb+i}, v{vSb+i} {pat} row_mask:0xf bank_mask:0xf')
            if len(rng) < 3: a('s_nop 1')
    stamp(a, 2)
    a(f'v_and_b32 v{t+6}, 3, v{vL}\ns_nop 1')
    dpp(range(8))
    for q in range(1, 4):
        a(f'v_cmp_eq_u32 vcc, {q}, v{t+6}\ns_nop 1\nv_cndmask_b32 v{vSb}, v{vSb}, v{vSb+q}, vcc\nv_cndmask_b32 v{vSb+4}, v{vSb+4}, v{vSb+4+q}, vcc')
    a(f'v_mul_f32 v{t+4}, {f2h(1/448)}, v{vSb}\nv_mul_f32 v{t+1}, {f2h(1/448)}, v{vSb+4}')
    a(f'v_fma_f32 v{t+1}, -v{t+4}, v{t+4}, v{t+1}\nv_max_f32 v{t+1}, 0, v{t+1}')
    a(f'v_cvt_pk_bf16_f32 v{t}, -v{t+4}, -v{t+4}')
    a(f'v_cvt_pk_bf16_f32 v{t+1}, v{t+1}, v{t+1}\nv_and_b32 v{t+1}, 0xffff0000, v{t+1}')
    a(f'v_add_f32 v{t+1}, {f2h(1e-5)}, v{t+1}')
    a(f'v_cvt_pk_bf16_f32 v{t+1}, v{t+1}, v{t+1}\nv_and_b32 v{t+1}, 0xffff0000, v{t+1}')
    a(f'v_sqrt_f32 v{t+1}, v{t+1}\ns_nop 0')
    a(f'v_cvt_pk_bf16_f32 v{t+1}, v{t+1}, v{t+1}\nv_and_b32 v{t+1}, 0xffff0000, v{t+1}')
    a(f'v_rcp_f32 v{t+1}, v{t+1}')
    get_tag(a)
    a(f'v_mov_b32 v{t+2}, s{sTag}\nv_mov_b32 v{t+3}, s{sTag+1}')
    a(f'v_lshrrev_b32 v{t+7}, 3, v{vL}\nv_lshl_add_u32 v{t+5}, v{t+6}, 3, v{t+7}\nv_lshlrev_b32 v{t+5}, 4, v{t+5}')
    a(f's_lshl_b32 s{sT}, s{sSig}, 9')
    a.vmem(f'buffer_store_dwordx4 {vr(t)}, v{t+5}, {sr(SM)}, s{sT} offen sc1', 'S1')
    a.wait_vm('XD')
    for i in range(28): a(f'v_dot2c_f32_bf16 v{vSb+8}, s{sOnes}, v{DB+i}')
    a('s_nop 2')
    dpp([8])
    col_record(a, DB, vSb+8)
    a(f'v_lshlrev_b32 v{t+7}, 4, v{t+7}\ns_lshl_b32 s{sT}, s{sRT}, 9\ns_lshl_b32 s{sT2}, s{sW}, 7\ns_add_u32 s{sT}, s{sT}, s{sT2}\ns_add_u32 s{sT}, s{sT}, {CSZ}')
    a.vmem(f'buffer_store_dwordx4 {vr(DB)}, v{t+7}, {sr(SM)}, s{sT} offen sc1', 'S1')
    stamp(a, 3)
    for g in range(4):
        for ins in dma_group('B', g): a.emit(ins)
    p1_addr_read(a)
    for x in wg_flag_prep(vFl, sB0, sB1) + stat_addr() + twiddle_wc(vWt) + z_addr(vWt, sB0, sB1): a(x)
    p1_loop_bc(a, 'B')
    stat_check(a, 'B')
    for x in stat_fix('B'): a(x)
    a('s_nop 1')
    a(mfma(vr(ZA,16), vr(MO), vr(CZ), vr(ZA,16)))
    a('s_nop 11\ns_waitcnt lgkmcnt(0)')
    z1(a); z2(a); a('s_nop 11'); z3(a); z4a(a); z4b(a)
    wg_flag(a, vFl)
    a('s_branch Lfin')

    a('LroleC:')
    a.vm = ['CP'] if CPF else []
    a(f's_lshl_b32 s{sT3}, s{sT}, 1\ns_add_u32 s{sT3}, s{sT3}, s{sN}\ns_sub_u32 s{sT3}, s{sT3}, 30')
    a(f's_lshl_b32 s{sRT}, s{sT2}, 3\ns_add_u32 s{sRT}, s{sRT}, s{sT3}')
    a(f's_mul_i32 s{sCG}, s{sT2}, 7\ns_add_u32 s{sCG}, s{sCG}, s{sT3}\ns_add_u32 s{sT2}, s{sT2}, 14')
    a(f's_cmp_eq_u32 s{sT3}, 7\ns_cselect_b32 s{sCG}, s{sT2}, s{sCG}')
    sigma(); p1_addr_dma(a); p1_srds()
    other_srds()
    a(f's_cmp_ge_u32 s{sCG}, 14\ns_cbranch_scc1 LroleE')
    for g in range(3):
        for ins in dma_group('C', g): a.emit(ins)
    p1_addr_read(a)
    for x in stat_addr(): a(x)
    for i in range(4): a(f'v_mov_b32 v{TF+i}, 0x3f803f80')
    get_tag(a)
    p1_loop_bc(a, 'C')
    a('s_nop 11')
    col_record(a, FR, ACC)
    a(CW_OFF)
    a.vmem(f'buffer_store_dwordx4 {vr(FR)}, v{vU8}, {sr(SM)}, s{sA2} offen sc1', 'S1')
    stamp(a, 3)
    a(f's_mov_b32 s{sCG}, 15')
    for x in wg_flag_prep(vFl, sB0, sB1): a(x)
    wg_flag(a, vFl)
    a('s_branch Lfin')

    a('LroleE:')
    a.vm = []
    get_tag(a)
    a(f's_sub_u32 s{sT3}, 15, s{sCG}\ns_add_u32 s{sT3}, s{sT3}, s{sW}\ns_mov_b32 s{sCG}, 15')
    for x in wg_flag_prep(vFl, sB0, sB1): a(x)
    wg_flag(a, vFl)
    a(f's_cmp_lg_u32 s{sT3}, 0\ns_cbranch_scc1 Lfin')
    a(f'v_lshlrev_b32 v{vPa}, 3, v{vL}\nv_add_u32 v{vPa}, {FLV}, v{vPa}')
    for i in range(4):
        poll_issue(a, 'PE', vPa)
        poll_check(a, 'PE', vPa, sleep=16)
        a(f'v_add_u32 v{vPa}, 512, v{vPa}')
    a(f'v_mov_b32 v{vFl+2}, {EPO}\ns_mov_b64 exec, 1')
    a(f'buffer_store_dwordx2 {vr(vFl,2)}, v{vFl+2}, {sr(SM)}, 0 offen sc1')
    a('s_mov_b64 exec, -1')
    a('Lfin:')
    stamp_store(a)
    a('Lend:')
    a('s_endpgm')
    return a.text()

def phase2(a, wq):
    ACC0, ACC1, YA, VF = 144, 176, 208, 104
    TFd = 4
    vRw, vRwb, vRr = 84, 88, 92
    vRi = 36
    XR = 224
    t = 56
    for ins in wq: a.emit(ins)
    rq = []
    for q in range(2, 7): rq += w2_group(q)
    NR = len(rq)
    def rdma(n):
        while rq and n > 0:
            ins = rq.pop(0); a.emit(ins)
            if ins[1]: n -= 1
    vq = twiddle_tf(t, TFd)
    u = t + 8
    vq += lines(f'v_and_b32 v{u}, 7, v{vU}\nv_xor_b32 v{u}, v{u}, v{vHH}\nv_lshlrev_b32 v{u+1}, 7, v{vU}')
    vq += [f's_lshl_b32 s{sT}, s{sJ}, 12\ns_add_u32 s{sT2}, s{sT}, 32768\ns_add_u32 s{sT}, s{sT2}, s{sArea}', f'v_add_u32 v{u+1}, s{sT}, v{u+1}']
    for q in range(4):
        vq += lines(f'v_xor_b32 v{u+2}, {2*q}, v{u}\nv_lshl_add_u32 v{vRw+q}, v{u+2}, 4, v{u+1}\nv_xor_b32 v{vRwb+q}, 0x1000, v{vRw+q}')
    vq += lines(f'v_lshrrev_b32 v{u}, 2, v{vL}\nv_and_b32 v{u+1}, 3, v{vL}\nv_and_b32 v{u+2}, 7, v{u}\nv_lshlrev_b32 v{u+3}, 1, v{u+1}\nv_xor_b32 v{u+2}, v{u+2}, v{u+3}\n'
                f'v_lshlrev_b32 v{u+2}, 4, v{u+2}\nv_lshl_add_u32 v{u+2}, v{u}, 7, v{u+2}')
    vq += [f's_lshl_b32 s{sT}, s{sI}, 11\ns_add_u32 s{sT2}, s{sT2}, s{sT}']
    nsafe = len(vq)
    for k in range(4):
        vq += [f's_xor_b32 s{sT}, s{sJ}, {k}\ns_mul_i32 s{sT}, s{sT}, {AREA}\ns_add_u32 s{sT}, s{sT}, s{sT2}', f'v_add_u32 v{vRr+2*k}, s{sT}, v{u+2}', f'v_xor_b32 v{vRr+2*k+1}, 16, v{vRr+2*k}']
    uq = []
    def vdo(budget):
        while (uq or vq) and budget > 0:
            x = (uq or vq).pop(0)
            if callable(x): x(); continue
            a(x); budget -= cost(x)
    a.wait_vm('R0'); stamp(a, 3, '5')
    for x in stage_reads(0): a(x)
    vdo(opt('tf0', 60))
    stamp(a, 4, '5'); a.wait_vm('R1'); stamp(a, 5, '5')
    for x in stage_reads(1): a(x)
    vdo(opt('tf0b', 40))
    a('s_waitcnt lgkmcnt(0)')
    stamp(a, 3, '3'); stamp(a, 6, '5'); a.wait_vm('ST'); stamp(a, 7, '5')
    wg_flag(a, vFl)
    stamp(a, 8, '5')
    stamp(a, 4); stamp(a, 4, '3')
    nr = opt('rb', 10)
    rdma(nr)
    did2 = False
    while nr < NR - RLATE:
        if nr >= P1POS and 'P1' not in a.vm: poll_issue(a, 'P1', vPa)
        rdma(1); nr += 1
        if nr == 20: uq += [lambda: a.wait_vm('R2')] + stage_reads(2); did2 = True
        vdo(opt('tf1', 8))
    if 'P1' not in a.vm: poll_issue(a, 'P1', vPa)
    stamp(a, 5, '3')
    if not did2: uq += [lambda: a.wait_vm('R2')] + stage_reads(2)
    vdo(10000)
    stamp(a, 5); stamp(a, 6, '3')
    poll_check(a, 'P1', vPa, mask='15' if VSPLIT else None)
    stamp(a, 6); stamp(a, 7, '3'); stamp(a, 1, '4')
    horder = list(range(HN0)) + [28, 29, 30, 31] + list(range(HN0, 28)) + list(range(32, 56))
    sHq = [sB0, sB1]
    def hload(pos):
        i = horder[pos]
        rb, k = divmod(i, 28)
        c = (sGh0, sGh1)[rb]
        if k % 4 == 0:
            a(f's_mov_b32 s{c}, s{sG0}' if k == 0 else rot_next(c))
            a(f's_lshl_b32 s{sHq[rb]}, s{c}, 12\ns_add_u32 s{sHq[rb]}, s{sHq[rb]}, s{sHb}')
            if rb: a(f's_add_u32 s{sHq[rb]}, s{sHq[rb]}, {32*HB_SIG}')
        a.vmem(f'buffer_load_dwordx4 {ar(aH+4*(i%32))}, v{vHo}, {sr(SH)}, s{sHq[rb]} offen offset:{(k % 4)*1024} sc1', f'H{i}')
    def vloads():
        if VSPLIT: poll_check(a, 'P2', vPa, sleep=0)
        for j in range(8):
            a(f's_movk_i32 s{sA2}, {j*4096}')
            a.vmem(f'buffer_load_dwordx4 {vr(VF+4*j)}, v{vVo}, {sr(SV)}, s{sA2} offen sc1', f'V{j}')
    def smalls():
        a.vmem(f'buffer_load_dword v{vRi}, v{vU8}, {sr(SM)}, s{sRi} offen offset:4 sc1', 'RI')
        a(f's_lshl_b32 s{sA2}, s{sT1}, 9')
        a.vmem(f'buffer_load_dword v{vRi+1}, v{vRo}, {sr(SM)}, s{sA2} offen offset:4 sc1', 'RI')
        a(f's_add_u32 s{sA2}, s{sA2}, {32*512}')
        a.vmem(f'buffer_load_dword v{vRi+2}, v{vRo}, {sr(SM)}, s{sA2} offen offset:4 sc1', 'RI')
        a.vmem(f'buffer_load_dwordx4 {vr(XR)}, v{vOo}, {sr(SX)}, 0 offen', 'X')
        a.vmem(f'buffer_load_dwordx4 {vr(XR+4)}, v{vOo+1}, {sr(SX)}, 0 offen', 'X')
    a('s_waitcnt lgkmcnt(0)')
    def vload(j):
        a(f's_movk_i32 s{sA2}, {j*4096}')
        a.vmem(f'buffer_load_dwordx4 {vr(VF+4*j)}, v{vVo}, {sr(SV)}, s{sA2} offen sc1', f'V{j}')
    lq = [('h', i) for i in range(56)]
    vpos = opt('vpos', 14)
    lq = lq[:vpos] + [('v', j) for j in range(8)] + [('s', 0)] + lq[vpos:]
    pos = opt('rpos', 8)
    for _ in range(RLATE):
        lq.insert(pos, ('r', 0)); pos += opt('rstep', 2)
    def lnext(i):
        if not lq: return
        kind, x = lq[0]
        if kind == 'h' and horder[x] - 32 > i: return
        lq.pop(0)
        if kind == 'h': hload(x)
        elif kind == 'v': vload(x)
        elif kind == 'r': rdma(1)
        else: smalls()
    for i in range(HB0): lnext(-1)
    stamp(a, 8, '3'); stamp(a, 2, '4')
    def ard(k):
        s = aF + 8 * (k % (PD + 1))
        return [f'ds_read_b64_tr_b16 {ar(s+4*blk+2*p,2)}, v{va} offset:{(k-12)*2048 + p*1024}'
                for blk, va in enumerate((vTra, vTrb)) for p in range(2)]
    state = dict(lgk=[])
    HPS = [int(c) for c in (OPT.get('hpp', '1112') * opt('hpn', 10) + '1')]
    def lds(s, tag):
        a(s); state['lgk'].append(tag)
    def wait_lgk(tag):
        L = state['lgk']
        if tag not in L: return
        idx = max(i for i, x in enumerate(L) if x == tag)
        a(f's_waitcnt lgkmcnt({min(len(L)-1-idx, 15)})')
        state['lgk'] = L[idx+1:]
    def kstep(rb, k, fill, fill0=()):
        i = 28*rb + k
        acc = ACC0 if rb == 0 else ACC1
        assert not any(kd == 'h' and horder[x] == i for kd, x in lq)
        a.wait_vm(f'H{i}')
        if k >= 12: wait_lgk(f'A{rb}_{k}')
        if rb == 0 and 12 <= k + PD < 28 and (k + PD) % 4 == 0:
            assert not any(t_ == f'R{(k+PD)//4}' for _, t_ in rq)
            a.wait_vm(f'R{(k+PD)//4}')
        A = aW + 8*k if k < 12 else aF + 8*(k % (PD + 1))
        B = ar(aH + 4*(i % 32))
        a(mfma(vr(acc,16), ar(A), B, vr(acc,16) if k else '0'))
        if 12 <= k + PD < 28:
            for r in ard(k+PD): lds(r, f'A{rb}_{k+PD}')
        for f in fill0: f()
        a(mfma(vr(acc+16,16), ar(A+4), B, vr(acc+16,16) if k else '0'))
        for _ in range(HPS[min(i, len(HPS) - 1)]): lnext(i)
        for f in fill: f()
    def take(Q, budget):
        out = []
        while Q and budget > 0:
            x = Q.pop(0)
            if isinstance(x, str): budget -= cost(x); out.append(lambda x=x: a(x))
            else: budget -= 1; out.append(x)
        return out
    def vstep(j):
        def f():
            assert ('v', j) not in lq
            a.wait_vm(f'V{j}')
            for i in range(4): a(f'v_xor_b32 v{VF+4*j+i}, v{VF+4*j+i}, v{vSg}')
            a('s_nop 1')
            a(mfma(vr(YA,16), vr(VF+4*j), vr(TFd+4*j), vr(YA,16) if j else '0'))
        return f
    for k in range(28):
        fill = []; fill0 = []
        if k + PD < 12: fill0 = take(vq, 5)
        if VM0 <= k < VM0 + 8:
            assert not any('cos' in x for x in vq)
            fill.append(vstep(k - VM0))
        else: fill += take(vq, 4)
        kstep(0, k, fill, fill0)
        if k in (0, 7, 15, 27): stamp(a, {0: 3, 7: 4, 15: 5, 27: 6}[k], '4')
    assert not vq
    stamp(a, 7)
    def red_write(acc, base): return [(lambda q=q: lds(f'ds_write_b128 v{base+q}, {vr(acc+4*q)}', 'RW')) for q in range(4)]
    def scale_own(acc, rb):
        def f():
            sk = a.label('noy')
            a(f's_cmp_lg_u32 s{sI}, {rb}\ns_cbranch_scc1 {sk}')
            for r in range(16): a(f'v_fma_f32 v{acc+r}, v{acc+r}, v{vRi}, v{YA+r}')
            a(f'{sk}:')
        return f
    def barrier():
        wait_lgk('RW'); a('s_barrier')
    def finalize(P, rb):
        L = []
        for k in range(4):
            for h in range(2):
                L.append(lambda k=k, h=h: lds(f'ds_read_b128 {vr(P+8*k+4*h)}, v{vRr+2*(k ^ (2*rb))+h}', f'RR{k}'))
        U = 56
        for i in range(4): L += [f'v_lshlrev_b32 v{U+2*i}, 16, v{XR+4*rb+i}', f'v_and_b32 v{U+2*i+1}, 0xffff0000, v{XR+4*rb+i}']
        L.append(lambda: wait_lgk('RR0'))
        L += [f'v_add_f32 v{P+r}, v{P+r}, v{U+r}' for r in range(8)]
        L.append(lambda: wait_lgk('RR2'))
        L += [f'v_add_f32 v{P+8+r}, v{P+8+r}, v{P+16+r}' for r in range(8)]
        L.append(lambda: wait_lgk('RR3'))
        L += [f'v_add_f32 v{P+8+r}, v{P+8+r}, v{P+24+r}' for r in range(8)]
        L += [f'v_fma_f32 v{P+r}, v{P+8+r}, v{vRi+1+rb}, v{P+r}' for r in range(8)]
        L += [f'v_cvt_pk_bf16_f32 v{U+p}, v{P+2*p}, v{P+2*p+1}' for p in range(4)]
        L.append(lambda: a.vmem(f'buffer_store_dwordx4 {vr(U)}, v{vOo+rb}, {sr(SO)}, 0 offen {OST}', 'O'))
        return L
    def run(L):
        for f in take(L, 10**6): f()
    PF = 104
    assert ('s', 0) not in lq
    a.wait_vm('X')
    work = red_write(ACC0+16, vRwb) + [scale_own(ACC0, 0)] + red_write(ACC0, vRw)
    post = finalize(PF, 0)
    KB1, KB2 = opt('kb1', 10), 25
    for k in range(28):
        fill = []; fill0 = []
        if 3 <= k < KB1: fill = take(work, 2)
        if k == KB1:
            assert not work
            fill = [barrier]
        if KB1 < k < KB2:
            fill0 = take(post, 1)
            fill = take(post, FILL)
        if k == KB2:
            assert not post and not any(x.startswith('RR') for x in state['lgk']), post
            fill = [lambda: a('s_barrier')]
        kstep(1, k, fill, fill0)
        if k in (11, 27): stamp(a, {11: 7, 27: 8}[k], '4')
    stamp(a, 8)
    a('s_nop 10')
    run([scale_own(ACC1, 1)] + red_write(ACC1, vRw) + red_write(ACC1+16, vRwb))
    barrier()
    run(finalize(PF, 1))

def main():
    body = gen()
    k = NAME + '_kernel'
    print(f'''; FNet mixing (two-stage DFT factorisation, 2048 = 32 x 64) + ReLU FFN + residual in one persistent launch.
; @launch grid=(256,1,1) block=(256,1,1) lds={LDS_SIZE}
.amdgcn_target "amdgcn-amd-amdhsa--gfx950"
.text
.globl {k}
.p2align 8
.type {k},@function
{k}:
{body}
.section .rodata,"a"
.p2align 6
.amdhsa_kernel {k}
  .amdhsa_next_free_vgpr {256+NAGPR}
  .amdhsa_next_free_sgpr 102
  .amdhsa_accum_offset 256
  .amdhsa_group_segment_fixed_size 0
  .amdhsa_kernarg_size 88
  .amdhsa_user_sgpr_count 2
  .amdhsa_user_sgpr_kernarg_segment_ptr 1
  .amdhsa_system_sgpr_workgroup_id_x 1
.end_amdhsa_kernel''')
main()
```

```python
import sys, struct
NAME = 'parallel_sum__spectral_fnet__dense_activation_relu__prompt'
OPT = dict(a.split('=') for a in sys.argv[1:] if '=' in a)
def opt(k, d): return type(d)(OPT.get(k, d))
STAMP = opt('stamp', 0); LST = OPT.get('lst')
RATE = [int(c) for c in OPT.get('rate', '3')]
ROT = opt('rot', 1)
POLL0 = opt('poll0', 15); PCHK = opt('pchk', 6)
NW = opt('nw', 16); W0 = opt('w0', 16); WPS = [int(c) for c in OPT.get('wps', '112')]
RPRE0 = opt('rpre0', 0); P1POS = opt('p1pos', 26); RLATE = opt('rlate', 0)
HB0 = opt('hb0', 14); VM0 = opt('vm0', 20); FILL = opt('fill', 5); SLEEP = opt('sleep', 4)
OST = OPT.get('ost', '').replace('_', ' ')
TW = opt('tw', -1); ROT1 = opt('rot1', 4); XOFF = opt('xoff', 0); VSPLIT = opt('vsplit', 0)

def f2h(x): return '0x%08x' % struct.unpack('<I', struct.pack('<f', x))[0]

WS0 = opt('ws0', 0) << 20
HB_SIG = 112 * 1024
HB_SIZE = 64 * HB_SIG
VB_OFF = WS0 + 0x800000
VB_SIZE = 32 * 16 * 256 * 16
SM_OFF = WS0 + 0xA00000
SM_SIZE = 0x20000
CSW, CSZ = 0x8000, 0x18000
FLH, FLV, EPO = 0x10000, 0x11000, 0x14000
ST_OFF = 0x1000000
SLOT = 36864
VX = 4 * SLOT
AREA = 40960
LDS_SIZE = 163840
SPIN_MAX = 1 << 17

SX, SW, SD, SH, SV, SM, SW2, SO = 24, 28, 32, 36, 40, 44, 48, 52
sTag = 56
sW, sI, sJ, sRT, sCG, sSig, sLx, sLw, sLd, sT, sT2, sT3, sT1, sCT = 58, 59, 60, 61, 62, 63, 64, 65, 66, 67, 68, 69, 70, 71
sA0, sA1, sA2, sA3, sA4, sOnes, sSpin, sB0, sB1, sG0 = 72, 73, 74, 75, 76, 77, 78, 79, 80, 81
sGc, sGw, sGh0, sGh1 = 6, 7, 3, 6
sArea, sHb, sRi, sG1, sStg = 20, 21, 77, 10, 11
STB = 82
vL, vU, vHH = 1, 2, 3
vXo, vWo, vDo = 4, 8, 12
vRb, vRp, vRd, vTa, vTb = 13, 21, 29, 37, 39
vM8, vU8, vH16, vZs, vP = 41, 42, 43, 44, 46
vt = 48
WC, TF, FR, ACC = 56, 72, 104, 144
MO, MP, CA, CB, CZ, ZR = 224, 228, 232, 236, 100, 240
vWt = 84
vW2, vTra, vTrb, vZw, vPa, vVo, vSg, vOo, vRo = 48, 52, 53, 54, 55, 45, 72, 74, 76
vSt = [(54, 73), (77, 83)]
vFl = 92
aW, aH, aF = 0, 96, 224
aRaw = aH
NAGPR = 256
PD = opt('pd', 3); RL0 = opt('rl0', 0); VL0 = opt('vl0', -1); HN0 = opt('hn0', 28); P2K = opt('p2k', -1)

class Asm:
    def __init__(self):
        self.L = []; self.vm = []; self.nlab = 0
    def __call__(self, s):
        for line in s.split('\n'):
            line = line.strip()
            self.L.append(line if line.endswith(':') else '    ' + line)
    def vmem(self, s, tag):
        self(s); self.vm.append(tag)
    def emit(self, ins):
        s, tag = ins
        if tag: self.vmem(s, tag)
        else: self(s)
    def wait_vm(self, tag):
        if tag not in self.vm: return
        idx = max(i for i, t in enumerate(self.vm) if t == tag)
        n = len(self.vm) - 1 - idx
        self(f's_waitcnt vmcnt({min(n, 63)})')
        self.vm = self.vm[idx + 1:]
    def label(self, p):
        self.nlab += 1
        return f'L{p}_{self.nlab}'
    def text(self): return '\n'.join(self.L)

def vr(b, n=4): return f'v[{b}:{b+n-1}]'
def ar(b, n=4): return f'a[{b}:{b+n-1}]'
def sr(b, n=4): return f's[{b}:{b+n-1}]'
def srd(a, d, lo, size, off=0):
    if off: a(f's_add_u32 s{d}, s{lo}, {off}\ns_addc_u32 s{d+1}, s{lo+1}, 0')
    else: a(f's_mov_b32 s{d}, s{lo}\ns_mov_b32 s{d+1}, s{lo+1}')
    a(f's_mov_b32 s{d+2}, {size}\ns_mov_b32 s{d+3}, 0x20000')
def stamp(a, idx, mode=None):
    if not STAMP: return
    if 1 <= idx <= 8 and mode != LST: return
    a(f's_memrealtime s[{STB+2*idx}:{STB+2*idx+1}]')
def cstamp(a, idx):
    if STAMP and LST == '6': a(f's_memrealtime s[{STB+2*idx}:{STB+2*idx+1}]\ns_memtime s[{STB+2*idx+2}:{STB+2*idx+3}]')
def mfma(D, A, B, C): return f'v_mfma_f32_32x32x16_bf16 {D}, {A}, {B}, {C}'
def lines(s): return s.split('\n')
def cost(x): return sum(2 if ('cos' in y or 'sin' in y) else 1 for y in x.split('\n'))

def stamp_store(a):
    if not STAMP: return
    a('s_waitcnt vmcnt(0) lgkmcnt(0)')
    if LST != '7': stamp(a, 9)
    a('s_waitcnt lgkmcnt(0)')
    if STAMP == 3:
        pa, pb = map(int, OPT['probe'].split(','))
        sk = a.label('pskip'); sp = a.label('pspin')
        a(f's_cmp_lg_u32 s2, {OPT.get("pwg", 0)}\ns_cbranch_scc1 {sk}\ns_cmp_lg_u32 s{sW}, {OPT.get("pwv", 0)}\ns_cbranch_scc1 {sk}')
        if pa < 0:
            a(f'v_mov_b32 v4, {EPO+128}\nbuffer_load_dword v5, v4, {sr(SM)}, 0 offen sc1\ns_waitcnt vmcnt(0)\nv_readfirstlane_b32 s{STB-2}, v5\ns_nop 3')
        a(f's_sub_u32 s{sT}, s{STB+2*pb}, s{STB+2*pa}\ns_add_u32 s{sT}, s{sT}, {opt("poff", 0)}\ns_min_u32 s{sT}, s{sT}, 5000\ns_mul_i32 s{sT}, s{sT}, 10')
        a(f's_memrealtime s[4:5]\ns_waitcnt lgkmcnt(0)\ns_add_u32 s{sT}, s{sT}, s4')
        a(f'{sp}:\ns_memrealtime s[4:5]\ns_waitcnt lgkmcnt(0)\ns_sub_u32 s{sT2}, s{sT}, s4\ns_cmp_gt_i32 s{sT2}, 0\ns_cbranch_scc1 {sp}')
        a(f'{sk}:')
        return
    srd(a, SX, 18, 65536, ST_OFF)
    a(f's_lshl_b32 s{sT}, s2, 2\ns_add_u32 s{sT}, s{sT}, s{sW}\ns_lshl_b32 s{sT}, s{sT}, 6')
    a(f'v_mov_b32 v5, s{sT}')
    for i in range(10):
        a(f'v_mov_b32 v4, s{STB+2*i}')
        a(f'buffer_store_dword v4, v5, {sr(SX)}, 0 offen offset:{4*i}')
        a('s_nop 1')

def poll_issue(a, tag, va, vd=vP):
    a.vmem(f'buffer_load_dwordx2 {vr(vd,2)}, v{va}, {sr(SM)}, 0 offen sc1', tag)
def poll_check(a, tag, va, vd=vP, sleep=SLEEP, mask=None):
    ok = a.label('ok'); lp = a.label('spin')
    a.wait_vm(tag)
    mk = f'\ns_and_b64 vcc, vcc, {mask}' if mask else ''
    a(f'v_cmp_ne_u64 vcc, s[{sTag}:{sTag+1}], {vr(vd,2)}' + mk)
    a(f's_cbranch_vccz {ok}')
    a(f's_mov_b32 s{sSpin}, {SPIN_MAX}')
    a(f'{lp}:')
    if sleep: a(f's_sleep {sleep}')
    a(f'buffer_load_dwordx2 {vr(vd,2)}, v{va}, {sr(SM)}, 0 offen sc1')
    a(f's_sub_u32 s{sSpin}, s{sSpin}, 1\ns_cbranch_scc1 {ok}')
    a('s_waitcnt vmcnt(0)')
    a(f'v_cmp_ne_u64 vcc, s[{sTag}:{sTag+1}], {vr(vd,2)}' + mk)
    a(f's_cbranch_vccnz {lp}')
    a(f'{ok}:')
def wg_flag_prep(tmp, u0, u1):
    return [f's_lshl_b32 s{u0}, s{sCG}, 4\ns_add_u32 s{u0}, s{u0}, s{sRT}\ns_lshl_b32 s{u0}, s{u0}, 3\ns_add_u32 s{u0}, s{u0}, {FLV}',
            f's_lshl_b32 s{u1}, s{sRT}, 4\ns_add_u32 s{u1}, s{u1}, s{sCG}\ns_lshl_b32 s{u1}, s{u1}, 3\ns_add_u32 s{u1}, s{u1}, {FLH}\ns_sub_u32 s{u1}, s{u1}, s{u0}',
            f'v_mul_lo_u32 v{tmp+2}, v{vL}, s{u1}', f'v_add_u32 v{tmp+2}, s{u0}, v{tmp+2}',
            f'v_mov_b32 v{tmp}, s{sTag}', f'v_mov_b32 v{tmp+1}, s{sTag+1}']
def wg_flag(a, tmp, barrier=True):
    a.wait_vm('ST')
    if barrier: a('s_barrier')
    sk = a.label('nofl')
    a(f's_cmp_lg_u32 s{sW}, 0\ns_cbranch_scc1 {sk}')
    a('s_mov_b64 exec, 3')
    a(f'buffer_store_dwordx2 {vr(tmp,2)}, v{tmp+2}, {sr(SM)}, 0 offen sc1')
    a('s_mov_b64 exec, -1')
    a(f'{sk}:')
def col_record(a, o, src):
    a(f'v_cvt_pk_bf16_f32 v{o+2}, v{src}, v{src}\nv_and_b32 v{o+3}, 0xffff0000, v{o+2}\nv_sub_f32 v{o+4}, v{src}, v{o+3}')
    a(f'v_cvt_pk_bf16_f32 v{o}, v{src}, v{o+4}\nv_and_b32 v{o+3}, 0xffff0000, v{o}\nv_sub_f32 v{o+4}, v{o+4}, v{o+3}')
    a(f'v_cvt_pk_bf16_f32 v{o+1}, v{o+4}, 0')
    a(f'v_mov_b32 v{o+2}, s{sTag}\nv_mov_b32 v{o+3}, s{sTag+1}')
def get_tag(a):
    a('s_waitcnt lgkmcnt(0)')
    a(f's_add_u32 s{sTag}, s{sTag}, 0x7f4a7c15\ns_addc_u32 s{sTag+1}, s{sTag+1}, 0x9e3779b9')
CW_OFF = f's_lshl_b32 s{sA2}, s{sCG}, 11\ns_lshl_b32 s{sA3}, s{sJ}, 10\ns_add_u32 s{sA2}, s{sA2}, s{sA3}\ns_lshl_b32 s{sA3}, s{sI}, 9\ns_add_u32 s{sA2}, s{sA2}, s{sA3}\ns_add_u32 s{sA2}, s{sA2}, {CSW}'
def stat_loads(role):
    ld = lambda r: (f'buffer_load_dwordx4 {vr(r)}, v{vU8}, {sr(SM)}, s{sA2} offen sc1', 'SL')
    ins = [(f's_lshl_b32 s{sA2}, s{sSig}, 9', None), ld(MO)]
    if role == 'A':
        ins += [(f's_xor_b32 s{sA2}, s{sA2}, 512', None), ld(MP), (CW_OFF, None), ld(CA), (f's_xor_b32 s{sA2}, s{sA2}, 512', None), ld(CB)]
    ins += [(f's_lshl_b32 s{sA2}, s{sCG}, 9\ns_add_u32 s{sA2}, s{sA2}, {CSZ}', None), ld(CZ)]
    return ins
def stat_check(a, role):
    ok = a.label('ok'); lp = a.label('spin')
    recs = [MO, MP, CA, CB, CZ] if role == 'A' else [MO, CZ]
    def cmp():
        for i, r in enumerate(recs):
            a(f'v_cmp_ne_u64 {"s[22:23]" if i else "vcc"}, s[{sTag}:{sTag+1}], {vr(r+2,2)}')
            if i: a('s_or_b64 vcc, vcc, s[22:23]')
    a.wait_vm('SL')
    cmp()
    a(f's_cbranch_vccz {ok}')
    a(f's_mov_b32 s{sSpin}, {SPIN_MAX}')
    a(f'{lp}:')
    for ins in stat_loads(role): a(ins[0])
    a(f's_sub_u32 s{sSpin}, s{sSpin}, 1\ns_cbranch_scc1 {ok}')
    a('s_waitcnt vmcnt(0)')
    cmp()
    a(f's_cbranch_vccnz {lp}')
    a(f'{ok}:')
def stat_fix(role):
    L = [f'ds_write_b32 v{vZs}, v{MO+1}']
    for r in ([MO, MP] if role == 'A' else [MO]):
        L += [f'v_and_b32 v{r}, v{r}, v{vM8}', f'v_and_b32 v{r+1}, 0xffff, v{r}', f'v_mov_b32 v{r+2}, 0', f'v_mov_b32 v{r+3}, 0']
    for r in ([CA, CB, CZ] if role == 'A' else [CZ]):
        L += [f'v_mov_b32 v{r+2}, 0', f'v_mov_b32 v{r+3}, 0']
    L += [f'ds_read_b128 {vr(ZR+4*q)}, v{vH16} offset:{32*q}' for q in range(4)]
    return L

def rot_next(c): return f's_add_u32 s{c}, s{c}, 1\ns_cmp_eq_u32 s{c}, 7\ns_cselect_b32 s{c}, 0, s{c}'
def dma_group(role, g):
    slot = (g % 4) * SLOT
    ins = []
    if role == 'A':
        ins.append((f's_mov_b32 s{sGc}, s{sG1}' if g == 0 else rot_next(sGc), None))
        ins.append((f's_lshl_b32 s{sA0}, s{sGc}, 7\ns_mul_i32 s{sA1}, s{sGc}, {64*3584}', None))
    else:
        ins.append((f's_movk_i32 s{sA0}, {g*128}\ns_mov_b32 s{sA1}, {g*64*3584}', None))
    if role != 'C':
        ins.append((f's_add_u32 m0, s{sLx}, {slot}\ns_nop 0', None))
        for q in range(4):
            ins.append((f'buffer_load_dwordx4 v{vXo+q}, {sr(SX)}, s{sA0} offen offset:{q*1024} lds', f'G{g}'))
        ins.append((f's_add_u32 m0, s{sLd}, {slot}\ns_nop 0', None))
        ins.append((f'buffer_load_dwordx4 v{vDo}, {sr(SD)}, s{sA0} offen lds', f'G{g}'))
    if role != 'B':
        ins.append((f's_add_u32 m0, s{sLw}, {slot}\ns_nop 0', None))
        for i in range(4):
            ins.append((f'buffer_load_dwordx4 v{vWo+i}, {sr(SW)}, s{sA1} offen offset:{i*1024} lds', f'G{g}'))
    return ins
STG = [3*SLOT, 0]
def w2_group(q):
    base, off = (sStg, STG[q]) if q < 2 else (sArea, 32768 if q == 2 else (q-3)*8192)
    ins = []
    for m in range(8):
        pre = ''
        if m == 0: pre = (f's_mov_b32 s{sGw}, s{sG0}' if q == 0 else rot_next(sGw)) + f'\ns_mul_i32 s{sA4}, s{sGw}, {8*7168}\n'
        if m == 4: pre = f's_add_u32 s{sA4}, s{sA4}, {4*7168}\n'
        pre += f's_add_u32 m0, s{base}, {off + 4096*(m//4)}\ns_nop 0\n' if (q < 2 or m % 4 == 0) else ''
        ins.append((pre + f'buffer_load_dwordx4 v{vW2+m%4}, {sr(SW2)}, s{sA4} offen offset:{(m%4)*1024} lds', f'R{q}'))
    return ins
def stage_reads(part):
    return [f'ds_read_b64_tr_b16 {ar(aW+8*(4*part+kk)+4*blk+2*p,2)}, v{va} offset:{(32768 if part == 2 else 0) + kk*2048 + p*1024}'
            for kk in range(4) for blk, va in enumerate(vSt[part] if part < 2 else (vTra, vTrb)) for p in range(2)]

def p1_addr_dma(a):
    t = FR
    a(f'v_lshrrev_b32 v{t+1}, 3, v{vL}\nv_and_b32 v{t+2}, 7, v{vL}\nv_lshrrev_b32 v{t+3}, 1, v{t+1}')
    a(f'v_xor_b32 v{t+4}, v{t+2}, v{t+3}\nv_lshlrev_b32 v{t+4}, 4, v{t+4}')
    a(f'v_mul_u32_u24 v{t+5}, {64*896}, v{t+1}')
    a(f's_mul_i32 s{sT}, s{sSig}, 896')
    a(f'v_add3_u32 v{vXo}, v{t+5}, v{t+4}, s{sT}')
    a(f'v_xor_b32 v{vXo+1}, 64, v{vXo}')
    a(f'v_add_u32 v{vXo+2}, {2*(458752-1024)}, v{vXo}')
    a(f'v_add_u32 v{vXo+3}, {3*(458752-1024)}, v{vXo+1}')
    a(f'v_add_u32 v{vXo+1}, {1*(458752-1024)}, v{vXo+1}')
    a(f'v_and_b32 v{t+6}, 1, v{t+3}\nv_lshlrev_b32 v{t+6}, 2, v{t+6}\nv_xor_b32 v{t+6}, v{t+6}, v{t+2}\nv_lshlrev_b32 v{t+6}, 4, v{t+6}')
    a(f'v_mul_u32_u24 v{t+7}, 3584, v{t+1}')
    a(f's_mul_i32 s{sT}, s{sI}, {32*3584}\ns_lshl_b32 s{sT2}, s{sCG}, 8\ns_add_u32 s{sT}, s{sT}, s{sT2}\ns_lshl_b32 s{sT2}, s{sJ}, 7\ns_add_u32 s{sT}, s{sT}, s{sT2}')
    a(f'v_add3_u32 v{vWo}, v{t+7}, v{t+6}, s{sT}')
    for i in range(1, 4): a(f'v_add_u32 v{vWo+i}, {i*(8*3584-1024)}, v{vWo}')
    a(f'v_mul_u32_u24 v{t+5}, 896, v{t+1}')
    a(f's_lshl_b32 s{sT}, s{sJ}, 6')
    a(f'v_xor_b32 v{t+6}, s{sT}, v{t+4}')
    a(f's_lshl_b32 s{sT}, s{sCG}, 1\ns_add_u32 s{sT}, s{sT}, s{sJ}\ns_mul_i32 s{sT}, s{sT}, {8*896}')
    a(f'v_add3_u32 v{vDo}, v{t+5}, v{t+6}, s{sT}')
    a(f's_lshl_b32 s{sLx}, s{sW}, 12')
    a(f's_lshl_b32 s{sLw}, s{sJ}, 13\ns_lshl_b32 s{sT}, s{sI}, 12\ns_add_u32 s{sLw}, s{sLw}, s{sT}\ns_add_u32 s{sLw}, s{sLw}, 16384')
    a(f's_lshl_b32 s{sLd}, s{sW}, 10\ns_add_u32 s{sLd}, s{sLd}, 32768')

def p1_addr_read(a):
    t = FR
    a(f'v_and_b32 v{vU}, 31, v{vL}\nv_lshrrev_b32 v{vHH}, 5, v{vL}')
    a(f'v_bfe_u32 v{t}, v{vU}, 1, 3\nv_xor_b32 v{t}, v{t}, v{vHH}')
    a(f'v_lshlrev_b32 v{t+1}, 7, v{vU}')
    a(f's_xor_b32 s{sT}, s{sW}, 1\ns_lshl_b32 s{sT}, s{sT}, 12')
    for jj in range(4):
        a(f'v_xor_b32 v{t+2}, {2*jj}, v{t}\nv_lshl_add_u32 v{t+2}, v{t+2}, 4, v{t+1}')
        a(f'v_add_u32 v{vRb+jj}, s{sLx}, v{t+2}\nv_add_u32 v{vRp+jj}, s{sT}, v{t+2}\nv_add_u32 v{vRd+jj}, 0x8000, v{t+2}')
        for r in (vRb, vRp, vRd): a(f'v_add_u32 v{r+4+jj}, {2*SLOT}, v{r+jj}')
    a(f'v_bfe_u32 v{t}, v{vL}, 2, 2')
    a(f'v_lshl_add_u32 v{t+1}, v{vHH}, 3, v{t}\nv_lshlrev_b32 v{t+1}, 7, v{t+1}')
    a(f'v_lshrrev_b32 v{t}, 1, v{t}\nv_xor_b32 v{t}, s{sI}, v{t}\nv_lshl_add_u32 v{t+1}, v{t}, 6, v{t+1}')
    a(f'v_bfe_u32 v{t}, v{vL}, 4, 1\nv_lshl_add_u32 v{t+1}, v{t}, 5, v{t+1}')
    a(f'v_and_b32 v{t}, 3, v{vL}\nv_lshl_add_u32 v{t+1}, v{t}, 3, v{t+1}')
    a(f's_lshl_b32 s{sT}, s{sJ}, 13\ns_add_u32 s{sT}, s{sT}, 16384')
    a(f'v_add_u32 v{vTa}, s{sT}, v{t+1}\nv_xor_b32 v{vTb}, 64, v{vTa}')
    a(f'v_add_u32 v{vTa+1}, {2*SLOT}, v{vTa}\nv_add_u32 v{vTb+1}, {2*SLOT}, v{vTb}')
def stat_addr():
    return lines(f'v_lshlrev_b32 v{vU8}, 4, v{vU}\nv_add_u32 v{vM8}, -1, v{vHH}') + \
           [f's_lshl_b32 s{sB0}, s{sW}, 7\ns_add_u32 s{sB0}, s{sB0}, {VX+8192}', f'v_lshl_add_u32 v{vZs}, v{vU}, 2, s{sB0}', f'v_lshl_add_u32 v{vH16}, v{vHH}, 4, s{sB0}']

def twiddle_wc(t):
    L = [f'v_cvt_f32_u32 v{t}, v{vU}', f'v_cvt_f32_u32 v{t+1}, v{vHH}', f'v_mul_f32 v{t}, {f2h(1/32)}, v{t}',
         f'v_mul_f32 v{t+1}, 4.0, v{t+1}', f'v_mul_f32 v{t+1}, v{t+1}, v{t}']
    for p in range(8):
        u0 = 16*(p >> 2) + 8*((p & 3) >> 1) + 2*(p & 1)
        L += [f'v_fmamk_f32 v{t+2}, v{t}, {f2h(u0)}, v{t+1}', f'v_fmamk_f32 v{t+3}, v{t}, {f2h(u0+1)}, v{t+1}',
              f'v_cos_f32 v{t+4}, v{t+2}', f'v_cos_f32 v{t+5}, v{t+3}', f'v_sin_f32 v{t+6}, v{t+2}', f'v_sin_f32 v{t+7}, v{t+3}',
              f'v_cvt_pk_bf16_f32 v{WC+p}, v{t+4}, v{t+5}', f'v_cvt_pk_bf16_f32 v{WC+8+p}, -v{t+6}, -v{t+7}']
    return L
def twiddle_tf(t, dst):
    L = [f's_lshl_b32 s{sT}, s{sI}, 5\ns_add_u32 s{sT}, s{sT}, s{sT1}\nv_lshl_add_u32 v{t}, v{vU}, 6, s{sT}',
         f'v_cvt_f32_u32 v{t}, v{t}', f'v_cvt_f32_u32 v{t+1}, v{vHH}', f'v_mul_f32 v{t}, {f2h(1/2048)}, v{t}',
         f'v_mul_f32 v{t+1}, {f2h(16.0)}, v{t+1}', f'v_mul_f32 v{t+1}, v{t+1}, v{t}']
    for j in range(8):
        for h in range(2):
            k0 = 2*j + 32*h
            L += [f'v_fmamk_f32 v{t+2}, v{t}, {f2h(k0)}, v{t+1}', f'v_fmamk_f32 v{t+3}, v{t}, {f2h(k0+1)}, v{t+1}',
                  f'v_cos_f32 v{t+4}, v{t+2}', f'v_sin_f32 v{t+5}, v{t+2}', f'v_cos_f32 v{t+6}, v{t+3}', f'v_sin_f32 v{t+7}, v{t+3}',
                  f'v_cvt_pk_bf16_f32 v{dst+4*j+2*h}, v{t+4}, v{t+5}', f'v_cvt_pk_bf16_f32 v{dst+4*j+2*h+1}, v{t+6}, v{t+7}']
    return L

def p2_addr_early():
    t = vWt; u, w = sB0, sB1
    L = lines(f'v_lshrrev_b32 v{t+1}, 3, v{vL}\nv_and_b32 v{t+2}, 7, v{vL}\nv_bfe_u32 v{t+3}, v{vL}, 4, 1\nv_lshlrev_b32 v{t+3}, 2, v{t+3}\n'
              f'v_xor_b32 v{t+3}, v{t+3}, v{t+2}\nv_lshlrev_b32 v{t+3}, 4, v{t+3}\nv_mul_u32_u24 v{t+4}, 896, v{t+1}')
    L += [f's_mul_i32 s{u}, s{sW}, {448*896}\ns_lshl_b32 s{w}, s{sCT}, 7\ns_add_u32 s{u}, s{u}, s{w}', f'v_add3_u32 v{vW2}, v{t+4}, v{t+3}, s{u}']
    L += [f'v_add_u32 v{vW2+i}, {i*(7168-1024)}, v{vW2}' for i in range(1, 4)]
    L += lines(f'v_bfe_u32 v{t}, v{vL}, 2, 2\nv_lshl_add_u32 v{t+1}, v{vHH}, 2, v{t}\nv_lshlrev_b32 v{t+1}, 7, v{t+1}\nv_lshrrev_b32 v{t}, 1, v{t}\n'
               f'v_xor_b32 v{t}, s{sJ}, v{t}\nv_lshl_add_u32 v{t+1}, v{t}, 6, v{t+1}\nv_bfe_u32 v{t}, v{vL}, 4, 1\nv_lshl_add_u32 v{t+1}, v{t}, 5, v{t+1}\n'
               f'v_and_b32 v{t}, 3, v{vL}\nv_lshl_add_u32 v{t+1}, v{t}, 3, v{t+1}\ns_mul_i32 s{sArea}, s{sW}, {AREA}\n'
               f'v_add_u32 v{vTra}, s{sArea}, v{t+1}\nv_xor_b32 v{vTrb}, 64, v{vTra}\ns_lshl_b32 s{sStg}, s{sW}, 13\nv_add_u32 v{vSt[1][0]}, s{sStg}, v{t+1}\n'
               f'v_xor_b32 v{vSt[1][1]}, 64, v{vSt[1][0]}\nv_add_u32 v{vSt[0][0]}, {STG[0]}, v{vSt[1][0]}\nv_add_u32 v{vSt[0][1]}, {STG[0]}, v{vSt[1][1]}')
    def vmap(el, e_out, tt_out, sg_out):
        M = [f's_lshl_b32 s{u}, s{sCT}, 6\ns_lshl_b32 s{w}, s{sJ}, 5\ns_add_u32 s{u}, s{u}, s{w}', f'v_add_u32 v{e_out}, s{u}, v{el}', f'v_sub_u32 v{t+6}, 448, v{e_out}',
             f's_sub_u32 s{u}, 32, s{sT1}\ns_and_b32 s{u}, s{u}, 31', f'v_mov_b32 v{tt_out}, s{sT1}', f'v_mov_b32 v{t+7}, s{u}',
             f'v_cmp_lt_u32 vcc, 239, v{e_out}\ns_nop 1\nv_cndmask_b32 v{e_out}, v{e_out}, v{t+6}, vcc\nv_cndmask_b32 v{tt_out}, v{tt_out}, v{t+7}, vcc' +
             (f'\nv_mov_b32 v{t+6}, 0\nv_bfrev_b32 v{t+7}, 1\nv_cndmask_b32 v{sg_out}, v{t+6}, v{t+7}, vcc' if sg_out else '')]
        return M
    L += vmap(vU, t, t+1, vSg)
    L += lines(f'v_lshlrev_b32 v{vVo}, 16, v{t+1}\nv_lshl_add_u32 v{vVo}, v{t}, 4, v{vVo}\nv_lshl_add_u32 v{vVo}, v{vHH}, 15, v{vVo}')
    L += lines(f'v_and_b32 v{t+2}, 48, v{vL}\nv_subrev_u32 v{t+2}, 16, v{t+2}\nv_min_u32 v{t+2}, 31, v{t+2}')
    L += vmap(t+2, t, t+1, None)
    L += lines(f'v_and_b32 v{t}, 0x1f0, v{t}\nv_and_b32 v{t+2}, 15, v{vL}\nv_add_u32 v{t}, v{t}, v{t+2}\nv_lshlrev_b32 v{t}, 3, v{t}\nv_add_u32 v{vPa}, {FLV}, v{t}')
    L += [f's_mul_i32 s{u}, s{sW}, 7\ns_lshr_b32 s{u}, s{u}, 1\ns_lshr_b32 s{w}, s{sT1}, 1\ns_lshl_b32 s{w}, s{w}, 4\ns_add_u32 s{u}, s{u}, s{w}',
          f's_lshl_b32 s{u}, s{u}, 3\ns_add_u32 s{u}, s{u}, {FLH}', f'v_and_b32 v{t}, 3, v{vL}', f'v_lshl_add_u32 v{t}, v{t}, 3, s{u}',
          f'v_cmp_gt_u32 vcc, 16, v{vL}\ns_nop 1\nv_cndmask_b32 v{vPa}, v{vPa}, v{t}, vcc']
    L += [f'v_lshrrev_b32 v{t}, 2, v{vL}', f's_lshl_b32 s{u}, s{sI}, 4', f'v_add_u32 v{t}, s{u}, v{t}']
    L += lines(f'v_and_b32 v{t+1}, 3, v{vL}\nv_mul_u32_u24 v{t+2}, {64*896}, v{t}\nv_lshl_add_u32 v{t+2}, v{t+1}, 4, v{t+2}')
    L += [f's_lshl_b32 s{sRi}, s{sI}, 5\ns_add_u32 s{sRi}, s{sRi}, s{sT1}\ns_mul_i32 s{u}, s{sT1}, 896\ns_lshl_b32 s{w}, s{sCT}, 7',
          f's_add_u32 s{u}, s{u}, s{w}\ns_lshl_b32 s{w}, s{sJ}, 6\ns_add_u32 s{u}, s{u}, s{w}\ns_lshl_b32 s{sRi}, s{sRi}, 9',
          f'v_add_u32 v{vOo}, s{u}, v{t+2}', f'v_add_u32 v{vOo+1}, {32*896}, v{vOo}', f'v_lshlrev_b32 v{vRo}, 4, v{t}',
          f's_mul_i32 s{sHb}, s{sT1}, {HB_SIG}\ns_mul_i32 s{u}, s{sW}, {28*1024}\ns_add_u32 s{sHb}, s{sHb}, s{u}']
    return L

def p1_reads(n):
    g, jj = divmod(n, 4)
    half, so = (g % 4) // 2, (g % 2) * SLOT
    f = FR + 20 * (n & 1)
    return [f'ds_read_b64_tr_b16 {vr(f+8,2)}, v{vTa+half} offset:{so + jj*2048}',
            f'ds_read_b64_tr_b16 {vr(f+10,2)}, v{vTa+half} offset:{so + jj*2048 + 512}',
            f'ds_read_b128 {vr(f)}, v{vRb+4*half+jj} offset:{so}',
            f'ds_read_b128 {vr(f+4)}, v{vRp+4*half+jj} offset:{so}',
            f'ds_read_b64_tr_b16 {vr(f+12,2)}, v{vTb+half} offset:{so + jj*2048}',
            f'ds_read_b64_tr_b16 {vr(f+14,2)}, v{vTb+half} offset:{so + jj*2048 + 512}',
            f'ds_read_b128 {vr(f+16)}, v{vRd+4*half+jj} offset:{so}']
def p1_mfmas(n):
    f = FR + 20 * (n & 1)
    def m(acc, A, B): return mfma(vr(acc, 16), vr(A), vr(B), vr(acc, 16) if n else '0')
    return [m(ACC, f+8, f), m(ACC+16, f+8, f+4), m(ACC+32, f+12, f), m(ACC+48, f+12, f+4), m(ACC+64, f, f+16)]

vZsg, vXw, vXr, vVs, vHo = 78, 79, 80, 81, 82
sHA0, sHA1, sHB0, sHB1 = 4, 5, 8, 9
def z_addr(t, u, w):
    L = lines(f'v_bfe_u32 v{t}, v{vL}, 4, 1\nv_xor_b32 v{vZsg}, 1, v{t}\nv_mul_u32_u24 v{vZsg}, 0x8000, v{vZsg}\nv_lshl_or_b32 v{vZsg}, v{vZsg}, 16, v{vZsg}\n'
              f'v_lshl_add_u32 v{t}, v{vHH}, 2, v{t}\nv_lshlrev_b32 v{t}, 8, v{t}\nv_and_b32 v{t+1}, 15, v{vL}\nv_lshl_add_u32 v{t}, v{t+1}, 4, v{t}')
    L += [f's_lshl_b32 s{u}, s{sW}, 2\ns_add_u32 s{u}, s{u}, {VX}', f'v_add_u32 v{vXw}, s{u}, v{t}',
          f's_lshl_b32 s{u}, s{sW}, 11\ns_add_u32 s{u}, s{u}, {VX}', f'v_lshlrev_b32 v{vHo}, 4, v{vL}', f'v_add_u32 v{vXr}, s{u}, v{vHo}']
    L += lines(f'v_lshrrev_b32 v{t}, 4, v{vL}\nv_lshlrev_b32 v{t}, 16, v{t}\nv_lshl_add_u32 v{t}, v{t+1}, 4, v{t}')
    L += [f's_lshl_b32 s{u}, s{sW}, 19\ns_lshl_b32 s{w}, s{sRT}, 12\ns_add_u32 s{u}, s{u}, s{w}\ns_lshl_b32 s{w}, s{sCG}, 8\ns_add_u32 s{u}, s{u}, s{w}',
          f'v_add_u32 v{vVs}, s{u}, v{t}']
    return L
def h_addr(u, w):
    return [f's_lshl_b32 s{u}, s{sCG}, 3\ns_lshl_b32 s{w}, s{sJ}, 2\ns_add_u32 s{u}, s{u}, s{w}\ns_lshl_b32 s{w}, s{sI}, 1\ns_add_u32 s{u}, s{u}, s{w}',
            f's_lshl_b32 s{u}, s{u}, 10\ns_mul_i32 s{w}, s{sSig}, {HB_SIG}\ns_add_u32 s{sHA0}, s{u}, s{w}',
            f's_xor_b32 s{w}, s{sSig}, 1\ns_mul_i32 s{w}, s{w}, {HB_SIG}\ns_add_u32 s{sHA1}, s{u}, s{w}',
            f's_xor_b32 s{sHB0}, s{sHA0}, 2048\ns_xor_b32 s{sHB1}, s{sHA1}, 2048']

def rank1():
    return [mfma(vr(ACC,16), vr(CA), vr(MO), vr(ACC,16)), mfma(vr(ACC+16,16), vr(CA), vr(MP), vr(ACC+16,16)),
            mfma(vr(ACC+32,16), vr(CB), vr(MO), vr(ACC+32,16)), mfma(vr(ACC+48,16), vr(CB), vr(MP), vr(ACC+48,16)),
            mfma(vr(ACC+64,16), vr(MO), vr(CZ), vr(ACC+64,16))]
def p1_loop(a):
    lg = []
    def lds(x, tag):
        a(x); lg.append(tag)
    def wait_lg(tag=None):
        if tag is None:
            if lg: a('s_waitcnt lgkmcnt(0)'); lg.clear()
            return
        if tag not in lg: return
        idx = max(i for i, x in enumerate(lg) if x == tag)
        a(f's_waitcnt lgkmcnt({min(len(lg)-1-idx, 15)})')
        del lg[:idx+1]
    RT = ['m0', 'm0', 'm0', 'm1', 'm2', 'm2', 'm4']
    FG = opt('fg', 5); FINE = opt('fine', 1)
    a.wait_vm('G0')
    a('s_barrier')
    stamp(a, 1); stamp(a, 1, '1')
    for r, t_ in zip(p1_reads(0), RT): lds(r, f'0{t_}')
    q = dma_group('A', 2) + dma_group('A', 3)
    vq = stat_addr() + p2_addr_early() + twiddle_wc(vWt) + z_addr(vWt, sB0, sB1) + h_addr(sB0, sB1) + wg_flag_prep(vFl, sB0, sB1)
    wq = w2_group(0) + w2_group(1)
    midgroup = [False]
    for n in range(28):
        g, jj = divmod(n, 4)
        if not FINE: wait_lg()
        if STAMP and LST == '7' and 0 <= n - opt('s0', 8) <= 8: a(f's_memtime s[{STB+2*(1+n-opt("s0", 8))}:{STB+2*(1+n-opt("s0", 8))+1}]')
        BG = opt('bg', 2)
        def group_barrier():
            assert not any(t == f'G{g+1}' for _, t in q), (n, q)
            wait_lg()
            a.wait_vm(f'G{g+1}')
            a('s_barrier')
            stamp(a, 2 + g, '1')
            if g == 1: cstamp(a, 1)
            if g == 5: cstamp(a, 3)
            if g + 4 < 7: q.extend(dma_group('A', g + 4))
        bar = jj == 3 and g < 6
        if bar and BG == 0: group_barrier()
        if TW > 0 and n == TW:
            q[:0] = [(f'v_and_b32 v{vP}, 15, v{vL}\nv_lshlrev_b32 v{vP}, 7, v{vP}\nbuffer_load_dword v{vP+1}, v{vP}, {sr(SW2)}, s{sA2} offen', 'TW')]
        if n == POLL0: q[:0] = stat_loads('A')
        if n == POLL0 + PCHK:
            assert not any(t == 'SL' for _, t in q)
            if not opt('scg', 1): stat_check(a, 'A'); vq[:0] = stat_fix('A')
        if n == 26 and opt('r1in', 1):
            assert not any(x in vq for x in stat_fix('A'))
            for m in rank1(): a(m)
        rd = list(zip(p1_reads(n + 1), RT)) if n + 1 < 28 else []
        nld = 0; wn = 0
        rate = RATE[n % len(RATE)] if n >= opt('rn0', 0) else 3
        for mi, m in enumerate(p1_mfmas(n)):
            wait_lg(f'{n}m{mi}')
            a(m)
            used = 0
            if bar and mi + 1 == BG: group_barrier(); used += 2
            if n == POLL0 + PCHK and mi == 0 and opt('scg', 1): stat_check(a, 'A'); vq[:0] = stat_fix('A'); used += 9
            for _ in range(opt('rpg', 3) if not (bar and BG) else 4):
                if rd and not (bar and mi + 1 < BG): r, t_ = rd.pop(0); lds(r, f'{n+1}{t_}'); used += 1
            if mi >= opt('dg0', 2):
                cnt = 0
                while nld < rate and (cnt < 1 or mi == 4):
                    wok = n >= W0 and wq and not (bar and mi + 1 < BG) and wn < WPS[n % len(WPS)] and (len(wq) > 8 or n >= opt('w1', 20))
                    if wok and opt('wmix', 0) and not midgroup[0]: ins = wq.pop(0); wn += 1
                    elif q:
                        ins = q.pop(0)
                        midgroup[0] = bool(q) and q[0][1] is not None and 'lds' in q[0][0]
                    elif wok: ins = wq.pop(0); wn += 1
                    else: break
                    a.emit(ins); used += cost(ins[0])
                    if ins[1]: nld += 0.5 if ins[1] == 'SL' else 1; cnt += 1
            while vq and used + min(cost(vq[0]), 3) <= FG:
                x = vq.pop(0); used += cost(x)
                if x.startswith('ds_'): lds(x, 'x')
                else: a(x)
        assert not rd
    assert not vq and not q, vq
    stamp(a, 2); stamp(a, 8, '1'); stamp(a, 1, '3'); stamp(a, 1, '5')
    return wq

def p1_loop_bc(a, role):
    def regs(g): return FR if g % 2 == 0 else ACC + 16
    def reads(g):
        half, so = (g % 4) // 2, (g % 2) * SLOT
        f = regs(g); L = []
        for jj in range(4):
            if role == 'B':
                L.append(f'ds_read_b128 {vr(f+8*jj)}, v{vRb+4*half+jj} offset:{so}')
                L.append(f'ds_read_b128 {vr(f+8*jj+4)}, v{vRd+4*half+jj} offset:{so}')
            else:
                L.append(f'ds_read_b64_tr_b16 {vr(f+8*jj,2)}, v{vTa+half} offset:{so + jj*2048}')
                L.append(f'ds_read_b64_tr_b16 {vr(f+8*jj+2,2)}, v{vTa+half} offset:{so + jj*2048 + 512}')
        return L
    a.wait_vm('G0'); a('s_barrier')
    if role == 'C': stamp(a, 1)
    for r in reads(0): a(r)
    if role == 'C':
        for ins in dma_group(role, 3): a.emit(ins)
    for g in range(7):
        a('s_waitcnt lgkmcnt(0)')
        if g < 6:
            a.wait_vm(f'G{g+1}'); a('s_barrier')
            for r in reads(g + 1): a(r)
            if g + 4 < 7:
                for ins in dma_group(role, g + 4): a.emit(ins)
            if role == 'B' and g == 4:
                for ins in stat_loads('B'): a.emit(ins)
        f = regs(g)
        for jj in range(4):
            n = 4*g + jj
            if role == 'B': a(mfma(vr(ACC+64,16), vr(f+8*jj), vr(f+8*jj+4), vr(ACC+64,16) if n else '0'))
            else: a(mfma(vr(ACC,16), vr(TF), vr(f+8*jj), vr(ACC,16) if n else '0'))
    if role == 'C': stamp(a, 2)

ZA, B1, B2 = ACC + 64, FR, FR + 8
def z1(a):
    for r in range(16): a(f'v_mul_f32 v{ZA+r}, v{ZA+r}, v{ZR+r}')
    for p in range(8): a(f'v_cvt_pk_bf16_f32 v{B1+p}, v{ZA+2*p}, v{ZA+2*p+1}')
    for p in range(8): a(f'ds_swizzle_b32 v{B2+p}, v{B1+p} offset:0x401f')
    a(mfma(vr(ZA,16), vr(WC), vr(B1), '0'))
    a(mfma(vr(ZA,16), vr(WC+4), vr(B1+4), vr(ZA,16)))
def z2(a):
    a('s_waitcnt lgkmcnt(0)')
    for p in range(8): a(f'v_xor_b32 v{B2+p}, v{B2+p}, v{vZsg}')
    a('s_nop 1')
    a(mfma(vr(ZA,16), vr(WC+8), vr(B2), vr(ZA,16)))
    a(mfma(vr(ZA,16), vr(WC+12), vr(B2+4), vr(ZA,16)))
def z3(a):
    for p in range(8): a(f'v_permlane16_swap_b32 v{ZA+2*p}, v{ZA+2*p+1}')
    a('s_nop 1')
    for p in range(8): a(f'v_cvt_pk_bf16_f32 v{B1+p}, v{ZA+2*p}, v{ZA+2*p+1}')
    for p in range(8):
        t1b = (2*p & 3) + 8 * (p >> 1)
        a(f'ds_write_b32 v{vXw}, v{B1+p} offset:{t1b*256}')
def z4a(a):
    a('s_waitcnt lgkmcnt(0)\ns_barrier')
    a(f'ds_read_b128 {vr(B2)}, v{vXr}\nds_read_b128 {vr(B2+4)}, v{vXr} offset:1024')
def z4b(a):
    a(f's_mov_b32 s{sT}, {4*65536}')
    a('s_waitcnt lgkmcnt(0)')
    a.vmem(f'buffer_store_dwordx4 {vr(B2)}, v{vVs}, {sr(SV)}, 0 offen sc1', 'ST')
    a.vmem(f'buffer_store_dwordx4 {vr(B2+4)}, v{vVs}, {sr(SV)}, s{sT} offen sc1', 'ST')

def gen():
    a = Asm()
    a('s_cmp_ge_u32 s2, 256\ns_cbranch_scc1 Lend')
    a('s_load_dwordx2 s[4:5], s[0:1], 0')
    a('s_load_dwordx4 s[8:11], s[0:1], 24')
    a('s_load_dwordx4 s[12:15], s[0:1], 48')
    a('s_load_dwordx2 s[16:17], s[0:1], 64')
    a('s_load_dwordx2 s[18:19], s[0:1], 80')
    stamp(a, 0)
    CPF = opt('cpf', 1)
    if CPF:
        a('s_getpc_b64 s[22:23]')
        a('Lpc:')
        a(f's_bfe_u32 s3, s2, 0x30003\ns_lshl_b32 s3, s3, 12')
        a(f'v_lshrrev_b32 v{vP}, 6, v0\nv_lshlrev_b32 v{vP}, 10, v{vP}\nv_and_b32 v{vP+1}, 7, v0\nv_lshl_add_u32 v{vP}, v{vP+1}, 7, v{vP}\nv_add_u32 v{vP}, s3, v{vP}')
        a(f'v_min_u32 v{vP}, Lend-Lpc, v{vP}')
        a.vmem(f'global_load_dword v{vP+1}, v{vP}, s[22:23]', 'CP')
    a(f'v_lshrrev_b32 v{FR}, 6, v0\nv_and_b32 v{vL}, 63, v0')
    a(f'v_readfirstlane_b32 s{sW}, v{FR}')
    sX8, sN = sA3, sA4
    a(f's_and_b32 s{sX8}, s2, 7\ns_lshr_b32 s{sN}, s2, 3')
    a(f's_and_b32 s{sT}, s{sX8}, 3\ns_lshr_b32 s{sT2}, s{sX8}, 2')
    a(f's_lshr_b32 s{sI}, s{sW}, 1\ns_and_b32 s{sJ}, s{sW}, 1')
    a(f's_cmp_ge_u32 s{sN}, 28\ns_cbranch_scc1 LroleBC')
    def sigma(): a(f's_lshl_b32 s{sSig}, s{sRT}, 1\ns_add_u32 s{sSig}, s{sSig}, s{sJ}\ns_lshl_b32 s{sT}, s{sI}, 5\ns_add_u32 s{sSig}, s{sSig}, s{sT}')
    def p1_srds():
        a('s_waitcnt lgkmcnt(0)')
        srd(a, SX, 4, 2048*896)
        a(f's_cmp_ge_u32 s{sW}, 2')
        a(f's_cselect_b32 s{SD}, s10, s8\ns_cselect_b32 s{SD+1}, s11, s9\ns_mov_b32 s{SD+2}, {448*896}\ns_mov_b32 s{SD+3}, 0x20000')
        srd(a, SW, 12, 448*3584)
    def other_srds():
        srd(a, SM, 18, SM_SIZE, SM_OFF)
        a(f's_load_dwordx2 s[{sTag}:{sTag+1}], s[{SM}:{SM+1}], {EPO}')
        srd(a, SH, 18, HB_SIZE, WS0)
        srd(a, SV, 18, VB_SIZE, VB_OFF)

    a(f's_lshl_b32 s{sRT}, s{sT}, 2\ns_and_b32 s{sT3}, s{sN}, 3\ns_add_u32 s{sRT}, s{sRT}, s{sT3}\ns_lshr_b32 s{sCT}, s{sN}, 2')
    a(f's_mul_i32 s{sCG}, s{sT2}, 7\ns_add_u32 s{sCG}, s{sCG}, s{sCT}')
    a(f's_lshl_b32 s{sG0}, s{sT3}, 1\ns_add_u32 s{sG0}, s{sG0}, s{sCT}\ns_sub_u32 s{sB0}, s{sG0}, 7\ns_cselect_b32 s{sG0}, s{sG0}, s{sB0}')
    if not ROT: a(f's_mov_b32 s{sG0}, 0')
    sCT1 = sCT
    if opt('map2', 0):
        a(f's_mov_b32 s{sB1}, s{sG0}')
        a(f's_and_b32 s{sA0}, s{sX8}, 1\ns_and_b32 s{sA1}, s{sN}, 7\ns_lshr_b32 s{sCT}, s{sN}, 3')
        a(f's_lshl_b32 s{sG0}, s{sCT}, 1\ns_add_u32 s{sG0}, s{sG0}, s{sA1}')
        a(f's_lshl_b32 s{sB0}, s{sA1}, 1\ns_lshl_b32 s{sA0}, s{sA0}, 2\ns_add_u32 s{sT1}, s{sA1}, s{sA0}\ns_add_u32 s{sA0}, s{sA0}, s{sCT}')
        a(f's_cmp_eq_u32 s{sCT}, 3\ns_cselect_b32 s{sCT}, 3, s{sA0}\ns_cselect_b32 s{sA1}, s{sT1}, s{sA1}\ns_cselect_b32 s{sG0}, s{sB0}, s{sG0}')
        a(f's_sub_u32 s{sB0}, s{sG0}, 7\ns_cselect_b32 s{sG0}, s{sG0}, s{sB0}')
        a(f's_lshr_b32 s{sT1}, s{sX8}, 1\ns_lshl_b32 s{sT1}, s{sT1}, 2\ns_lshr_b32 s{sB0}, s{sA1}, 1\ns_add_u32 s{sT1}, s{sT1}, s{sB0}')
        a(f's_sub_u32 s{sB0}, 32, s{sT1}\ns_cmp_eq_u32 s{sT1}, 0\ns_cselect_b32 s{sB0}, 16, s{sB0}')
        a(f's_bitcmp1_b32 s{sA1}, 0\ns_cselect_b32 s{sT1}, s{sB0}, s{sT1}')
        assert ROT1 in (7, 4) and not XOFF
        if ROT1 == 4: a(f's_lshr_b32 s{sB1}, s{sN}, 2\ns_add_u32 s{sB1}, s{sB1}, s{sT3}\ns_and_b32 s{sB1}, s{sB1}, 3\ns_lshl_b32 s{sB1}, s{sB1}, 1')
    else:
        a(f's_lshl_b32 s{sT1}, s{sX8}, 1\ns_lshr_b32 s{sB0}, s{sT3}, 1\ns_add_u32 s{sT1}, s{sT1}, s{sB0}\ns_sub_u32 s{sB0}, 32, s{sT1}\ns_cmp_eq_u32 s{sT1}, 0\ns_cselect_b32 s{sB0}, 16, s{sB0}')
        a(f's_bitcmp1_b32 s{sT3}, 0\ns_cselect_b32 s{sT1}, s{sB0}, s{sT1}')
    if XOFF: a(f's_add_u32 s{sG0}, s{sG0}, s{sX8}\ns_sub_u32 s{sB0}, s{sG0}, 7\ns_cselect_b32 s{sG0}, s{sG0}, s{sB0}\ns_sub_u32 s{sB0}, s{sG0}, 7\ns_cselect_b32 s{sG0}, s{sG0}, s{sB0}')
    if opt('map2', 0): pass
    elif ROT1 == 7: a(f's_mov_b32 s{sB1}, s{sG0}')
    elif ROT1 == 4: a(f's_add_u32 s{sB1}, s{sCT}, s{sT3}\ns_and_b32 s{sB1}, s{sB1}, 3\ns_lshl_b32 s{sB1}, s{sB1}, 1')
    elif ROT1 == 2: a(f's_add_u32 s{sB1}, s{sCT}, s{sT3}\ns_and_b32 s{sB1}, s{sB1}, 1\ns_mul_i32 s{sB1}, s{sB1}, 3')
    elif ROT1 == 3: a(f's_add_u32 s{sB1}, s{sCT}, s{sT3}\ns_mul_i32 s{sB0}, s{sB1}, 43\ns_lshr_b32 s{sB0}, s{sB0}, 7\ns_mul_i32 s{sB0}, s{sB0}, 3\ns_sub_u32 s{sB1}, s{sB1}, s{sB0}\ns_lshl_b32 s{sB1}, s{sB1}, 1')
    else: a(f's_mov_b32 s{sB1}, 0')
    a(f's_mul_i32 s{sOnes}, s{sX8}, 28\ns_add_u32 s{sOnes}, s{sOnes}, s{sN}\ns_lshl_b32 s{sOnes}, s{sOnes}, 2\ns_add_u32 s{sOnes}, s{sOnes}, s{sW}\ns_mul_i32 s{sA2}, s{sOnes}, {14*128}')
    sigma(); p1_addr_dma(a); p1_srds()
    a(f's_mov_b32 s{sG1}, s{sB1}')
    for ins in dma_group('A', 0): a.emit(ins)
    p1_addr_read(a)
    for ins in dma_group('A', 1): a.emit(ins)
    srd(a, SW2, 14, 1792*896)
    if TW < 0: a.vmem(f'v_and_b32 v{vP}, 15, v{vL}\nv_lshlrev_b32 v{vP}, 7, v{vP}\nbuffer_load_dword v{vP+1}, v{vP}, {sr(SW2)}, s{sA2} offen', 'TW')
    other_srds()
    srd(a, SO, 16, 2048*896)
    get_tag(a)
    if STAMP == 3:
        a(f's_add_u32 s{sT}, s2, s{sW}\ns_cmp_lg_u32 s{sT}, 0\ns_cbranch_scc1 Lnopub\nv_mov_b32 v{FR}, {EPO+128}\nv_mov_b32 v{FR+1}, s{STB}\nbuffer_store_dword v{FR+1}, v{FR}, {sr(SM)}, 0 offen sc1\nLnopub:')
    wq = p1_loop(a)
    if not opt('r1in', 1):
        for m in rank1(): a(m)
        a('s_nop 15\ns_waitcnt lgkmcnt(0)')
    else: a(f's_nop {6 if opt("ep", 1) else 11}\ns_waitcnt lgkmcnt(0)')
    def hblock(acc, out, so):
        for p in range(8): a(f'v_cvt_pk_bf16_f32 v{out+p}, v{acc+2*p}, v{acc+2*p+1}')
        for p in range(8): a(f'v_pk_max_i16 v{out+p}, v{out+p}, 0')
        a.vmem(f'buffer_store_dwordx4 {vr(out)}, v{vHo}, {sr(SH)}, s{so} offen sc1', 'ST')
        a.vmem(f'buffer_store_dwordx4 {vr(out+4)}, v{vHo}, {sr(SH)}, s{so} offen offset:1024 sc1', 'ST')
    if opt('ep', 1) == 0:
        z1(a); hblock(ACC, FR+16, sHA0)
        z2(a); hblock(ACC+16, FR+24, sHA1)
        z3(a); hblock(ACC+32, FR+32, sHB0)
        z4a(a); hblock(ACC+48, ACC, sHB1)
        z4b(a)
    elif opt('ep', 1) == 1:
        hblock(ACC, FR+16, sHA0)
        z1(a); hblock(ACC+16, FR+24, sHA1)
        z2(a); hblock(ACC+32, FR+32, sHB0)
        z3(a); hblock(ACC+48, ACC, sHB1)
        z4a(a); z4b(a)
    else:
        hblock(ACC, FR+16, sHA0); hblock(ACC+16, FR+24, sHA1)
        z1(a); hblock(ACC+32, FR+32, sHB0)
        z2(a); hblock(ACC+48, ACC, sHB1)
        z3(a); z4a(a); z4b(a)
    stamp(a, 3); stamp(a, 2, '3'); stamp(a, 2, '5')
    phase2(a, wq)
    a('s_branch Lfin')

    a('LroleBC:')
    a.vm = ['CP'] if CPF else []
    a(f's_cmp_ge_u32 s{sN}, 30\ns_cbranch_scc1 LroleC')
    a(f's_lshl_b32 s{sRT}, s{sT}, 2\ns_lshl_b32 s{sT2}, s{sT2}, 1\ns_add_u32 s{sRT}, s{sRT}, s{sT2}\ns_add_u32 s{sRT}, s{sRT}, s{sN}\ns_sub_u32 s{sRT}, s{sRT}, 28')
    a(f's_mov_b32 s{sCG}, s{sRT}')
    sigma(); p1_addr_dma(a); p1_srds()
    XB, DB, vSb = 104, 224, 92
    for g in range(7):
        a(f's_movk_i32 s{sA0}, {g*128}')
        for q in range(4):
            a.vmem(f'buffer_load_dwordx4 {vr(XB+16*g+4*q)}, v{vXo+q}, {sr(SX)}, s{sA0} offen offset:{q*1024}', f'X{g}')
    for g in range(7):
        a.vmem(f'buffer_load_dwordx4 {vr(DB+4*g)}, v{vDo}, {sr(SD)}, 0 offen offset:{g*128}', 'XD')
    a(f's_sub_u32 s{sT}, 14, s{sRT}\ns_mul_i32 s{sT}, s{sT}, {16*896}\nv_add_u32 v{vDo}, s{sT}, v{vDo}\ns_mov_b32 s{sCG}, 14')
    other_srds()
    a(f's_mov_b32 s{sOnes}, 0x3f803f80')
    for i in range(9): a(f'v_mov_b32 v{vSb+i}, 0')
    for g in range(7):
        a.wait_vm(f'X{g}')
        if g == 0: stamp(a, 1)
        for i in range(4):
            for q in range(4):
                a(f'v_dot2c_f32_bf16 v{vSb+q}, s{sOnes}, v{XB+16*g+4*q+i}')
                a(f'v_dot2c_f32_bf16 v{vSb+4+q}, v{XB+16*g+4*q+i}, v{XB+16*g+4*q+i}')
    t = vt
    def dpp(rng):
        for pat in ('quad_perm:[1,0,3,2]', 'quad_perm:[2,3,0,1]', 'row_half_mirror'):
            for i in rng: a(f'v_add_f32_dpp v{vSb+i}, v{vSb+i}, v{vSb+i} {pat} row_mask:0xf bank_mask:0xf')
            if len(rng) < 3: a('s_nop 1')
    stamp(a, 2)
    a(f'v_and_b32 v{t+6}, 3, v{vL}\ns_nop 1')
    dpp(range(8))
    for q in range(1, 4):
        a(f'v_cmp_eq_u32 vcc, {q}, v{t+6}\ns_nop 1\nv_cndmask_b32 v{vSb}, v{vSb}, v{vSb+q}, vcc\nv_cndmask_b32 v{vSb+4}, v{vSb+4}, v{vSb+4+q}, vcc')
    a(f'v_mul_f32 v{t+4}, {f2h(1/448)}, v{vSb}\nv_mul_f32 v{t+1}, {f2h(1/448)}, v{vSb+4}')
    a(f'v_fma_f32 v{t+1}, -v{t+4}, v{t+4}, v{t+1}\nv_max_f32 v{t+1}, 0, v{t+1}')
    a(f'v_cvt_pk_bf16_f32 v{t}, -v{t+4}, -v{t+4}')
    a(f'v_cvt_pk_bf16_f32 v{t+1}, v{t+1}, v{t+1}\nv_and_b32 v{t+1}, 0xffff0000, v{t+1}')
    a(f'v_add_f32 v{t+1}, {f2h(1e-5)}, v{t+1}')
    a(f'v_cvt_pk_bf16_f32 v{t+1}, v{t+1}, v{t+1}\nv_and_b32 v{t+1}, 0xffff0000, v{t+1}')
    a(f'v_sqrt_f32 v{t+1}, v{t+1}\ns_nop 0')
    a(f'v_cvt_pk_bf16_f32 v{t+1}, v{t+1}, v{t+1}\nv_and_b32 v{t+1}, 0xffff0000, v{t+1}')
    a(f'v_rcp_f32 v{t+1}, v{t+1}')
    get_tag(a)
    a(f'v_mov_b32 v{t+2}, s{sTag}\nv_mov_b32 v{t+3}, s{sTag+1}')
    a(f'v_lshrrev_b32 v{t+7}, 3, v{vL}\nv_lshl_add_u32 v{t+5}, v{t+6}, 3, v{t+7}\nv_lshlrev_b32 v{t+5}, 4, v{t+5}')
    a(f's_lshl_b32 s{sT}, s{sSig}, 9')
    a.vmem(f'buffer_store_dwordx4 {vr(t)}, v{t+5}, {sr(SM)}, s{sT} offen sc1', 'S1')
    a.wait_vm('XD')
    for i in range(28): a(f'v_dot2c_f32_bf16 v{vSb+8}, s{sOnes}, v{DB+i}')
    a('s_nop 2')
    dpp([8])
    col_record(a, DB, vSb+8)
    a(f'v_lshlrev_b32 v{t+7}, 4, v{t+7}\ns_lshl_b32 s{sT}, s{sRT}, 9\ns_lshl_b32 s{sT2}, s{sW}, 7\ns_add_u32 s{sT}, s{sT}, s{sT2}\ns_add_u32 s{sT}, s{sT}, {CSZ}')
    a.vmem(f'buffer_store_dwordx4 {vr(DB)}, v{t+7}, {sr(SM)}, s{sT} offen sc1', 'S1')
    stamp(a, 3)
    for g in range(4):
        for ins in dma_group('B', g): a.emit(ins)
    p1_addr_read(a)
    for x in wg_flag_prep(vFl, sB0, sB1) + stat_addr() + twiddle_wc(vWt) + z_addr(vWt, sB0, sB1): a(x)
    p1_loop_bc(a, 'B')
    stat_check(a, 'B')
    for x in stat_fix('B'): a(x)
    a('s_nop 1')
    a(mfma(vr(ZA,16), vr(MO), vr(CZ), vr(ZA,16)))
    a('s_nop 11\ns_waitcnt lgkmcnt(0)')
    z1(a); z2(a); a('s_nop 11'); z3(a); z4a(a); z4b(a)
    wg_flag(a, vFl)
    a('s_branch Lfin')

    a('LroleC:')
    a.vm = ['CP'] if CPF else []
    a(f's_lshl_b32 s{sT3}, s{sT}, 1\ns_add_u32 s{sT3}, s{sT3}, s{sN}\ns_sub_u32 s{sT3}, s{sT3}, 30')
    a(f's_lshl_b32 s{sRT}, s{sT2}, 3\ns_add_u32 s{sRT}, s{sRT}, s{sT3}')
    a(f's_mul_i32 s{sCG}, s{sT2}, 7\ns_add_u32 s{sCG}, s{sCG}, s{sT3}\ns_add_u32 s{sT2}, s{sT2}, 14')
    a(f's_cmp_eq_u32 s{sT3}, 7\ns_cselect_b32 s{sCG}, s{sT2}, s{sCG}')
    sigma(); p1_addr_dma(a); p1_srds()
    other_srds()
    a(f's_cmp_ge_u32 s{sCG}, 14\ns_cbranch_scc1 LroleE')
    for g in range(3):
        for ins in dma_group('C', g): a.emit(ins)
    p1_addr_read(a)
    for x in stat_addr(): a(x)
    for i in range(4): a(f'v_mov_b32 v{TF+i}, 0x3f803f80')
    get_tag(a)
    p1_loop_bc(a, 'C')
    a('s_nop 11')
    col_record(a, FR, ACC)
    a(CW_OFF)
    a.vmem(f'buffer_store_dwordx4 {vr(FR)}, v{vU8}, {sr(SM)}, s{sA2} offen sc1', 'S1')
    stamp(a, 3)
    a(f's_mov_b32 s{sCG}, 15')
    for x in wg_flag_prep(vFl, sB0, sB1): a(x)
    wg_flag(a, vFl)
    a('s_branch Lfin')

    a('LroleE:')
    a.vm = []
    get_tag(a)
    a(f's_sub_u32 s{sT3}, 15, s{sCG}\ns_add_u32 s{sT3}, s{sT3}, s{sW}\ns_mov_b32 s{sCG}, 15')
    for x in wg_flag_prep(vFl, sB0, sB1): a(x)
    wg_flag(a, vFl)
    a(f's_cmp_lg_u32 s{sT3}, 0\ns_cbranch_scc1 Lfin')
    a(f'v_lshlrev_b32 v{vPa}, 3, v{vL}\nv_add_u32 v{vPa}, {FLV}, v{vPa}')
    for i in range(4):
        poll_issue(a, 'PE', vPa)
        poll_check(a, 'PE', vPa, sleep=16)
        a(f'v_add_u32 v{vPa}, 512, v{vPa}')
    a(f'v_mov_b32 v{vFl+2}, {EPO}\ns_mov_b64 exec, 1')
    a(f'buffer_store_dwordx2 {vr(vFl,2)}, v{vFl+2}, {sr(SM)}, 0 offen sc1')
    a('s_mov_b64 exec, -1')
    a('Lfin:')
    stamp_store(a)
    a('Lend:')
    a('s_endpgm')
    return a.text()

def phase2(a, wq):
    ACC0, ACC1, YA, VF = 144, 176, 208, 104
    TFd = 4
    vRw, vRwb, vRr = 84, 88, 92
    vRi = 36
    XR = 224
    t = 56
    for ins in wq: a.emit(ins)
    rq = []
    for q in range(2, 7): rq += w2_group(q)
    NR = len(rq)
    def rdma(n):
        while rq and n > 0:
            ins = rq.pop(0); a.emit(ins)
            if ins[1]: n -= 1
    vq = twiddle_tf(t, TFd)
    u = t + 8
    vq += lines(f'v_and_b32 v{u}, 7, v{vU}\nv_xor_b32 v{u}, v{u}, v{vHH}\nv_lshlrev_b32 v{u+1}, 7, v{vU}')
    vq += [f's_lshl_b32 s{sT}, s{sJ}, 12\ns_add_u32 s{sT2}, s{sT}, 32768\ns_add_u32 s{sT}, s{sT2}, s{sArea}', f'v_add_u32 v{u+1}, s{sT}, v{u+1}']
    for q in range(4):
        vq += lines(f'v_xor_b32 v{u+2}, {2*q}, v{u}\nv_lshl_add_u32 v{vRw+q}, v{u+2}, 4, v{u+1}\nv_xor_b32 v{vRwb+q}, 0x1000, v{vRw+q}')
    vq += lines(f'v_lshrrev_b32 v{u}, 2, v{vL}\nv_and_b32 v{u+1}, 3, v{vL}\nv_and_b32 v{u+2}, 7, v{u}\nv_lshlrev_b32 v{u+3}, 1, v{u+1}\nv_xor_b32 v{u+2}, v{u+2}, v{u+3}\n'
                f'v_lshlrev_b32 v{u+2}, 4, v{u+2}\nv_lshl_add_u32 v{u+2}, v{u}, 7, v{u+2}')
    vq += [f's_lshl_b32 s{sT}, s{sI}, 11\ns_add_u32 s{sT2}, s{sT2}, s{sT}']
    nsafe = len(vq)
    for k in range(4):
        vq += [f's_xor_b32 s{sT}, s{sJ}, {k}\ns_mul_i32 s{sT}, s{sT}, {AREA}\ns_add_u32 s{sT}, s{sT}, s{sT2}', f'v_add_u32 v{vRr+2*k}, s{sT}, v{u+2}', f'v_xor_b32 v{vRr+2*k+1}, 16, v{vRr+2*k}']
    uq = []
    def vdo(budget):
        while (uq or vq) and budget > 0:
            x = (uq or vq).pop(0)
            if callable(x): x(); continue
            a(x); budget -= cost(x)
    a.wait_vm('R0'); stamp(a, 3, '5')
    for x in stage_reads(0): a(x)
    vdo(opt('tf0', 60))
    stamp(a, 4, '5'); a.wait_vm('R1'); stamp(a, 5, '5')
    for x in stage_reads(1): a(x)
    vdo(opt('tf0b', 40))
    a('s_waitcnt lgkmcnt(0)')
    stamp(a, 3, '3'); stamp(a, 6, '5'); a.wait_vm('ST'); stamp(a, 7, '5')
    wg_flag(a, vFl)
    stamp(a, 8, '5')
    stamp(a, 4); stamp(a, 4, '3')
    nr = opt('rb', 10)
    rdma(nr)
    did2 = False
    while nr < NR - RLATE:
        if nr >= P1POS and 'P1' not in a.vm: poll_issue(a, 'P1', vPa)
        rdma(1); nr += 1
        if nr == 20: uq += [lambda: a.wait_vm('R2')] + stage_reads(2); did2 = True
        vdo(opt('tf1', 8))
    if 'P1' not in a.vm: poll_issue(a, 'P1', vPa)
    stamp(a, 5, '3')
    if not did2: uq += [lambda: a.wait_vm('R2')] + stage_reads(2)
    vdo(10000)
    stamp(a, 5); stamp(a, 6, '3')
    poll_check(a, 'P1', vPa, mask='15' if VSPLIT else None)
    stamp(a, 6); stamp(a, 7, '3'); stamp(a, 1, '4')
    horder = list(range(HN0)) + [28, 29, 30, 31] + list(range(HN0, 28)) + list(range(32, 56))
    sHq = [sB0, sB1]
    def hload(pos):
        i = horder[pos]
        rb, k = divmod(i, 28)
        c = (sGh0, sGh1)[rb]
        if k % 4 == 0:
            a(f's_mov_b32 s{c}, s{sG0}' if k == 0 else rot_next(c))
            a(f's_lshl_b32 s{sHq[rb]}, s{c}, 12\ns_add_u32 s{sHq[rb]}, s{sHq[rb]}, s{sHb}')
            if rb: a(f's_add_u32 s{sHq[rb]}, s{sHq[rb]}, {32*HB_SIG}')
        a.vmem(f'buffer_load_dwordx4 {ar(aH+4*(i%32))}, v{vHo}, {sr(SH)}, s{sHq[rb]} offen offset:{(k % 4)*1024} sc1', f'H{i}')
    def vloads():
        if VSPLIT: poll_check(a, 'P2', vPa, sleep=0)
        for j in range(8):
            a(f's_movk_i32 s{sA2}, {j*4096}')
            a.vmem(f'buffer_load_dwordx4 {vr(VF+4*j)}, v{vVo}, {sr(SV)}, s{sA2} offen sc1', f'V{j}')
    def smalls():
        a.vmem(f'buffer_load_dword v{vRi}, v{vU8}, {sr(SM)}, s{sRi} offen offset:4 sc1', 'RI')
        a(f's_lshl_b32 s{sA2}, s{sT1}, 9')
        a.vmem(f'buffer_load_dword v{vRi+1}, v{vRo}, {sr(SM)}, s{sA2} offen offset:4 sc1', 'RI')
        a(f's_add_u32 s{sA2}, s{sA2}, {32*512}')
        a.vmem(f'buffer_load_dword v{vRi+2}, v{vRo}, {sr(SM)}, s{sA2} offen offset:4 sc1', 'RI')
        a.vmem(f'buffer_load_dwordx4 {vr(XR)}, v{vOo}, {sr(SX)}, 0 offen', 'X')
        a.vmem(f'buffer_load_dwordx4 {vr(XR+4)}, v{vOo+1}, {sr(SX)}, 0 offen', 'X')
    a('s_waitcnt lgkmcnt(0)')
    def vload(j):
        a(f's_movk_i32 s{sA2}, {j*4096}')
        a.vmem(f'buffer_load_dwordx4 {vr(VF+4*j)}, v{vVo}, {sr(SV)}, s{sA2} offen sc1', f'V{j}')
    lq = [('h', i) for i in range(56)]
    vpos = opt('vpos', 14)
    lq = lq[:vpos] + [('v', j) for j in range(8)] + [('s', 0)] + lq[vpos:]
    pos = opt('rpos', 8)
    for _ in range(RLATE):
        lq.insert(pos, ('r', 0)); pos += opt('rstep', 2)
    def lnext(i):
        if not lq: return
        kind, x = lq[0]
        if kind == 'h' and horder[x] - 32 > i: return
        lq.pop(0)
        if kind == 'h': hload(x)
        elif kind == 'v': vload(x)
        elif kind == 'r': rdma(1)
        else: smalls()
    for i in range(HB0): lnext(-1)
    stamp(a, 8, '3'); stamp(a, 2, '4')
    def ard(k):
        s = aF + 8 * (k % (PD + 1))
        return [f'ds_read_b64_tr_b16 {ar(s+4*blk+2*p,2)}, v{va} offset:{(k-12)*2048 + p*1024}'
                for blk, va in enumerate((vTra, vTrb)) for p in range(2)]
    state = dict(lgk=[])
    HPS = [int(c) for c in (OPT.get('hpp', '1112') * opt('hpn', 10) + '1')]
    def lds(s, tag):
        a(s); state['lgk'].append(tag)
    def wait_lgk(tag):
        L = state['lgk']
        if tag not in L: return
        idx = max(i for i, x in enumerate(L) if x == tag)
        a(f's_waitcnt lgkmcnt({min(len(L)-1-idx, 15)})')
        state['lgk'] = L[idx+1:]
    def kstep(rb, k, fill, fill0=()):
        i = 28*rb + k
        acc = ACC0 if rb == 0 else ACC1
        assert not any(kd == 'h' and horder[x] == i for kd, x in lq)
        a.wait_vm(f'H{i}')
        if k >= 12: wait_lgk(f'A{rb}_{k}')
        if rb == 0 and 12 <= k + PD < 28 and (k + PD) % 4 == 0:
            assert not any(t_ == f'R{(k+PD)//4}' for _, t_ in rq)
            a.wait_vm(f'R{(k+PD)//4}')
        A = aW + 8*k if k < 12 else aF + 8*(k % (PD + 1))
        B = ar(aH + 4*(i % 32))
        a(mfma(vr(acc,16), ar(A), B, vr(acc,16) if k else '0'))
        if 12 <= k + PD < 28:
            for r in ard(k+PD): lds(r, f'A{rb}_{k+PD}')
        for f in fill0: f()
        a(mfma(vr(acc+16,16), ar(A+4), B, vr(acc+16,16) if k else '0'))
        for _ in range(HPS[min(i, len(HPS) - 1)]): lnext(i)
        for f in fill: f()
    def take(Q, budget):
        out = []
        while Q and budget > 0:
            x = Q.pop(0)
            if isinstance(x, str): budget -= cost(x); out.append(lambda x=x: a(x))
            else: budget -= 1; out.append(x)
        return out
    def vstep(j):
        def f():
            assert ('v', j) not in lq
            a.wait_vm(f'V{j}')
            for i in range(4): a(f'v_xor_b32 v{VF+4*j+i}, v{VF+4*j+i}, v{vSg}')
            a('s_nop 1')
            a(mfma(vr(YA,16), vr(VF+4*j), vr(TFd+4*j), vr(YA,16) if j else '0'))
        return f
    for k in range(28):
        fill = []; fill0 = []
        if k + PD < 12: fill0 = take(vq, 5)
        if VM0 <= k < VM0 + 8:
            assert not any('cos' in x for x in vq)
            fill.append(vstep(k - VM0))
        else: fill += take(vq, 4)
        kstep(0, k, fill, fill0)
        if k in (0, 7, 15, 27): stamp(a, {0: 3, 7: 4, 15: 5, 27: 6}[k], '4')
    assert not vq
    stamp(a, 7)
    def red_write(acc, base): return [(lambda q=q: lds(f'ds_write_b128 v{base+q}, {vr(acc+4*q)}', 'RW')) for q in range(4)]
    def scale_own(acc, rb):
        def f():
            sk = a.label('noy')
            a(f's_cmp_lg_u32 s{sI}, {rb}\ns_cbranch_scc1 {sk}')
            for r in range(16): a(f'v_fma_f32 v{acc+r}, v{acc+r}, v{vRi}, v{YA+r}')
            a(f'{sk}:')
        return f
    def barrier():
        wait_lgk('RW'); a('s_barrier')
    def finalize(P, rb):
        L = []
        for k in range(4):
            for h in range(2):
                L.append(lambda k=k, h=h: lds(f'ds_read_b128 {vr(P+8*k+4*h)}, v{vRr+2*(k ^ (2*rb))+h}', f'RR{k}'))
        U = 56
        for i in range(4): L += [f'v_lshlrev_b32 v{U+2*i}, 16, v{XR+4*rb+i}', f'v_and_b32 v{U+2*i+1}, 0xffff0000, v{XR+4*rb+i}']
        L.append(lambda: wait_lgk('RR0'))
        L += [f'v_add_f32 v{P+r}, v{P+r}, v{U+r}' for r in range(8)]
        L.append(lambda: wait_lgk('RR2'))
        L += [f'v_add_f32 v{P+8+r}, v{P+8+r}, v{P+16+r}' for r in range(8)]
        L.append(lambda: wait_lgk('RR3'))
        L += [f'v_add_f32 v{P+8+r}, v{P+8+r}, v{P+24+r}' for r in range(8)]
        L += [f'v_fma_f32 v{P+r}, v{P+8+r}, v{vRi+1+rb}, v{P+r}' for r in range(8)]
        L += [f'v_cvt_pk_bf16_f32 v{U+p}, v{P+2*p}, v{P+2*p+1}' for p in range(4)]
        L.append(lambda: a.vmem(f'buffer_store_dwordx4 {vr(U)}, v{vOo+rb}, {sr(SO)}, 0 offen {OST}', 'O'))
        return L
    def run(L):
        for f in take(L, 10**6): f()
    PF = 104
    assert ('s', 0) not in lq
    a.wait_vm('X')
    work = red_write(ACC0+16, vRwb) + [scale_own(ACC0, 0)] + red_write(ACC0, vRw)
    post = finalize(PF, 0)
    KB1, KB2 = opt('kb1', 10), 25
    for k in range(28):
        fill = []; fill0 = []
        if 3 <= k < KB1: fill = take(work, 2)
        if k == KB1:
            assert not work
            fill = [barrier]
        if KB1 < k < KB2:
            fill0 = take(post, 1)
            fill = take(post, FILL)
        if k == KB2:
            assert not post and not any(x.startswith('RR') for x in state['lgk']), post
            fill = [lambda: a('s_barrier')]
        kstep(1, k, fill, fill0)
        if k in (11, 27): stamp(a, {11: 7, 27: 8}[k], '4'); cstamp(a, {11: 5, 27: 7}[k])
    stamp(a, 8)
    a('s_nop 10')
    run([scale_own(ACC1, 1)] + red_write(ACC1, vRw) + red_write(ACC1+16, vRwb))
    barrier()
    run(finalize(PF, 1))

def main():
    body = gen()
    k = NAME + '_kernel'
    print(f'''; FNet mixing (two-stage DFT factorisation, 2048 = 32 x 64) + ReLU FFN + residual in one persistent launch.
; @launch grid=(256,1,1) block=(256,1,1) lds={LDS_SIZE}
.amdgcn_target "amdgcn-amd-amdhsa--gfx950"
.text
.globl {k}
.p2align 8
.type {k},@function
{k}:
{body}
.section .rodata,"a"
.p2align 6
.amdhsa_kernel {k}
  .amdhsa_next_free_vgpr {256+NAGPR}
  .amdhsa_next_free_sgpr 102
  .amdhsa_accum_offset 256
  .amdhsa_group_segment_fixed_size 0
  .amdhsa_kernarg_size 88
  .amdhsa_user_sgpr_count 2
  .amdhsa_user_sgpr_kernarg_segment_ptr 1
  .amdhsa_system_sgpr_workgroup_id_x 1
.end_amdhsa_kernel''')
main()
```

```python
import sys, struct
NAME = 'parallel_sum__spectral_fnet__dense_activation_relu__prompt'
OPT = dict(a.split('=') for a in sys.argv[1:] if '=' in a)
def opt(k, d): return type(d)(OPT.get(k, d))
STAMP = opt('stamp', 0); LST = OPT.get('lst')
RATE = [int(c) for c in OPT.get('rate', '3')]
ROT = opt('rot', 1)
POLL0 = opt('poll0', 15); PCHK = opt('pchk', 6)
NW = opt('nw', 16); W0 = opt('w0', 16); WPS = [int(c) for c in OPT.get('wps', '112')]
RPRE0 = opt('rpre0', 0); P1POS = opt('p1pos', 26); RLATE = opt('rlate', 0)
HB0 = opt('hb0', 14); VM0 = opt('vm0', 20); FILL = opt('fill', 5); SLEEP = opt('sleep', 4)
OST = OPT.get('ost', '').replace('_', ' ')
TW = opt('tw', -1); ROT1 = opt('rot1', 4); XOFF = opt('xoff', 0); VSPLIT = opt('vsplit', 0)

def f2h(x): return '0x%08x' % struct.unpack('<I', struct.pack('<f', x))[0]

WS0 = opt('ws0', 0) << 20
HB_SIG = opt('hbs', 28) * 4096
HB_SIZE = 64 * HB_SIG
VB_OFF = WS0 + 0x800000
VB_SIZE = 32 * 16 * 256 * 16
SM_OFF = WS0 + 0xA00000
SM_SIZE = 0x20000
CSW, CSZ = 0x8000, 0x18000
FLH, FLV, EPO = 0x10000, 0x11000, 0x14000
ST_OFF = 0x1000000
SLOT = 36864
VX = 4 * SLOT
AREA = 40960
LDS_SIZE = 163840
SPIN_MAX = 1 << 17

SX, SW, SD, SH, SV, SM, SW2, SO = 24, 28, 32, 36, 40, 44, 48, 52
sTag = 56
sW, sI, sJ, sRT, sCG, sSig, sLx, sLw, sLd, sT, sT2, sT3, sT1, sCT = 58, 59, 60, 61, 62, 63, 64, 65, 66, 67, 68, 69, 70, 71
sA0, sA1, sA2, sA3, sA4, sOnes, sSpin, sB0, sB1, sG0 = 72, 73, 74, 75, 76, 77, 78, 79, 80, 81
sGc, sGw, sGh0, sGh1 = 6, 7, 3, 6
sArea, sHb, sRi, sG1, sStg = 20, 21, 77, 10, 11
STB = 82
vL, vU, vHH = 1, 2, 3
vXo, vWo, vDo = 4, 8, 12
vRb, vRp, vRd, vTa, vTb = 13, 21, 29, 37, 39
vM8, vU8, vH16, vZs, vP = 41, 42, 43, 44, 46
vt = 48
WC, TF, FR, ACC = 56, 72, 104, 144
MO, MP, CA, CB, CZ, ZR = 224, 228, 232, 236, 100, 240
vWt = 84
vW2, vTra, vTrb, vZw, vPa, vVo, vSg, vOo, vRo = 48, 52, 53, 54, 55, 45, 72, 74, 76
vSt = [(54, 73), (77, 83)]
vFl = 92
aW, aH, aF = 0, 96, 224
aRaw = aH
NAGPR = 256
PD = opt('pd', 3); RL0 = opt('rl0', 0); VL0 = opt('vl0', -1); HN0 = opt('hn0', 28); P2K = opt('p2k', -1)

class Asm:
    def __init__(self):
        self.L = []; self.vm = []; self.nlab = 0
    def __call__(self, s):
        for line in s.split('\n'):
            line = line.strip()
            self.L.append(line if line.endswith(':') else '    ' + line)
    def vmem(self, s, tag):
        self(s); self.vm.append(tag)
    def emit(self, ins):
        s, tag = ins
        if tag: self.vmem(s, tag)
        else: self(s)
    def wait_vm(self, tag):
        if tag not in self.vm: return
        idx = max(i for i, t in enumerate(self.vm) if t == tag)
        n = len(self.vm) - 1 - idx
        self(f's_waitcnt vmcnt({min(n, 63)})')
        self.vm = self.vm[idx + 1:]
    def label(self, p):
        self.nlab += 1
        return f'L{p}_{self.nlab}'
    def text(self): return '\n'.join(self.L)

def vr(b, n=4): return f'v[{b}:{b+n-1}]'
def ar(b, n=4): return f'a[{b}:{b+n-1}]'
def sr(b, n=4): return f's[{b}:{b+n-1}]'
def srd(a, d, lo, size, off=0):
    if off: a(f's_add_u32 s{d}, s{lo}, {off}\ns_addc_u32 s{d+1}, s{lo+1}, 0')
    else: a(f's_mov_b32 s{d}, s{lo}\ns_mov_b32 s{d+1}, s{lo+1}')
    a(f's_mov_b32 s{d+2}, {size}\ns_mov_b32 s{d+3}, 0x20000')
def stamp(a, idx, mode=None):
    if not STAMP: return
    if 1 <= idx <= 8 and mode != LST: return
    a(f's_memrealtime s[{STB+2*idx}:{STB+2*idx+1}]')
def cstamp(a, idx):
    if STAMP and LST == '6': a(f's_memrealtime s[{STB+2*idx}:{STB+2*idx+1}]\ns_memtime s[{STB+2*idx+2}:{STB+2*idx+3}]')
def mfma(D, A, B, C): return f'v_mfma_f32_32x32x16_bf16 {D}, {A}, {B}, {C}'
def lines(s): return s.split('\n')
def cost(x): return sum(2 if ('cos' in y or 'sin' in y) else 1 for y in x.split('\n'))

def stamp_store(a):
    if not STAMP: return
    a('s_waitcnt vmcnt(0) lgkmcnt(0)')
    if LST != '7': stamp(a, 9)
    a('s_waitcnt lgkmcnt(0)')
    if STAMP == 3:
        pa, pb = map(int, OPT['probe'].split(','))
        sk = a.label('pskip'); sp = a.label('pspin')
        a(f's_cmp_lg_u32 s2, {OPT.get("pwg", 0)}\ns_cbranch_scc1 {sk}\ns_cmp_lg_u32 s{sW}, {OPT.get("pwv", 0)}\ns_cbranch_scc1 {sk}')
        if pa < 0:
            a(f'v_mov_b32 v4, {EPO+128}\nbuffer_load_dword v5, v4, {sr(SM)}, 0 offen sc1\ns_waitcnt vmcnt(0)\nv_readfirstlane_b32 s{STB-2}, v5\ns_nop 3')
        a(f's_sub_u32 s{sT}, s{STB+2*pb}, s{STB+2*pa}\ns_add_u32 s{sT}, s{sT}, {opt("poff", 0)}\ns_min_u32 s{sT}, s{sT}, 5000\ns_mul_i32 s{sT}, s{sT}, 10')
        a(f's_memrealtime s[4:5]\ns_waitcnt lgkmcnt(0)\ns_add_u32 s{sT}, s{sT}, s4')
        a(f'{sp}:\ns_memrealtime s[4:5]\ns_waitcnt lgkmcnt(0)\ns_sub_u32 s{sT2}, s{sT}, s4\ns_cmp_gt_i32 s{sT2}, 0\ns_cbranch_scc1 {sp}')
        a(f'{sk}:')
        return
    srd(a, SX, 18, 65536, ST_OFF)
    a(f's_lshl_b32 s{sT}, s2, 2\ns_add_u32 s{sT}, s{sT}, s{sW}\ns_lshl_b32 s{sT}, s{sT}, 6')
    a(f'v_mov_b32 v5, s{sT}')
    for i in range(10):
        a(f'v_mov_b32 v4, s{STB+2*i}')
        a(f'buffer_store_dword v4, v5, {sr(SX)}, 0 offen offset:{4*i}')
        a('s_nop 1')

def poll_issue(a, tag, va, vd=vP):
    a.vmem(f'buffer_load_dwordx2 {vr(vd,2)}, v{va}, {sr(SM)}, 0 offen sc1', tag)
def poll_check(a, tag, va, vd=vP, sleep=SLEEP, mask=None):
    ok = a.label('ok'); lp = a.label('spin')
    a.wait_vm(tag)
    mk = f'\ns_and_b64 vcc, vcc, {mask}' if mask else ''
    a(f'v_cmp_ne_u64 vcc, s[{sTag}:{sTag+1}], {vr(vd,2)}' + mk)
    a(f's_cbranch_vccz {ok}')
    a(f's_mov_b32 s{sSpin}, {SPIN_MAX}')
    a(f'{lp}:')
    if sleep: a(f's_sleep {sleep}')
    a(f'buffer_load_dwordx2 {vr(vd,2)}, v{va}, {sr(SM)}, 0 offen sc1')
    a(f's_sub_u32 s{sSpin}, s{sSpin}, 1\ns_cbranch_scc1 {ok}')
    a('s_waitcnt vmcnt(0)')
    a(f'v_cmp_ne_u64 vcc, s[{sTag}:{sTag+1}], {vr(vd,2)}' + mk)
    a(f's_cbranch_vccnz {lp}')
    a(f'{ok}:')
def wg_flag_prep(tmp, u0, u1):
    return [f's_lshl_b32 s{u0}, s{sCG}, 4\ns_add_u32 s{u0}, s{u0}, s{sRT}\ns_lshl_b32 s{u0}, s{u0}, 3\ns_add_u32 s{u0}, s{u0}, {FLV}',
            f's_lshl_b32 s{u1}, s{sRT}, 4\ns_add_u32 s{u1}, s{u1}, s{sCG}\ns_lshl_b32 s{u1}, s{u1}, 3\ns_add_u32 s{u1}, s{u1}, {FLH}\ns_sub_u32 s{u1}, s{u1}, s{u0}',
            f'v_mul_lo_u32 v{tmp+2}, v{vL}, s{u1}', f'v_add_u32 v{tmp+2}, s{u0}, v{tmp+2}',
            f'v_mov_b32 v{tmp}, s{sTag}', f'v_mov_b32 v{tmp+1}, s{sTag+1}']
def wg_flag(a, tmp, barrier=True):
    a.wait_vm('ST')
    if barrier: a('s_barrier')
    sk = a.label('nofl')
    a(f's_cmp_lg_u32 s{sW}, 0\ns_cbranch_scc1 {sk}')
    a('s_mov_b64 exec, 3')
    a(f'buffer_store_dwordx2 {vr(tmp,2)}, v{tmp+2}, {sr(SM)}, 0 offen sc1')
    a('s_mov_b64 exec, -1')
    a(f'{sk}:')
def col_record(a, o, src):
    a(f'v_cvt_pk_bf16_f32 v{o+2}, v{src}, v{src}\nv_and_b32 v{o+3}, 0xffff0000, v{o+2}\nv_sub_f32 v{o+4}, v{src}, v{o+3}')
    a(f'v_cvt_pk_bf16_f32 v{o}, v{src}, v{o+4}\nv_and_b32 v{o+3}, 0xffff0000, v{o}\nv_sub_f32 v{o+4}, v{o+4}, v{o+3}')
    a(f'v_cvt_pk_bf16_f32 v{o+1}, v{o+4}, 0')
    a(f'v_mov_b32 v{o+2}, s{sTag}\nv_mov_b32 v{o+3}, s{sTag+1}')
def get_tag(a):
    a('s_waitcnt lgkmcnt(0)')
    a(f's_add_u32 s{sTag}, s{sTag}, 0x7f4a7c15\ns_addc_u32 s{sTag+1}, s{sTag+1}, 0x9e3779b9')
CW_OFF = f's_lshl_b32 s{sA2}, s{sCG}, 11\ns_lshl_b32 s{sA3}, s{sJ}, 10\ns_add_u32 s{sA2}, s{sA2}, s{sA3}\ns_lshl_b32 s{sA3}, s{sI}, 9\ns_add_u32 s{sA2}, s{sA2}, s{sA3}\ns_add_u32 s{sA2}, s{sA2}, {CSW}'
def stat_loads(role):
    ld = lambda r: (f'buffer_load_dwordx4 {vr(r)}, v{vU8}, {sr(SM)}, s{sA2} offen sc1', 'SL')
    ins = [(f's_lshl_b32 s{sA2}, s{sSig}, 9', None), ld(MO)]
    if role == 'A':
        ins += [(f's_xor_b32 s{sA2}, s{sA2}, 512', None), ld(MP), (CW_OFF, None), ld(CA), (f's_xor_b32 s{sA2}, s{sA2}, 512', None), ld(CB)]
    ins += [(f's_lshl_b32 s{sA2}, s{sCG}, 9\ns_add_u32 s{sA2}, s{sA2}, {CSZ}', None), ld(CZ)]
    return ins
def stat_check(a, role):
    ok = a.label('ok'); lp = a.label('spin')
    recs = [MO, MP, CA, CB, CZ] if role == 'A' else [MO, CZ]
    def cmp():
        for i, r in enumerate(recs):
            a(f'v_cmp_ne_u64 {"s[22:23]" if i else "vcc"}, s[{sTag}:{sTag+1}], {vr(r+2,2)}')
            if i: a('s_or_b64 vcc, vcc, s[22:23]')
    a.wait_vm('SL')
    cmp()
    a(f's_cbranch_vccz {ok}')
    a(f's_mov_b32 s{sSpin}, {SPIN_MAX}')
    a(f'{lp}:')
    for ins in stat_loads(role): a(ins[0])
    a(f's_sub_u32 s{sSpin}, s{sSpin}, 1\ns_cbranch_scc1 {ok}')
    a('s_waitcnt vmcnt(0)')
    cmp()
    a(f's_cbranch_vccnz {lp}')
    a(f'{ok}:')
def stat_fix(role):
    L = [f'ds_write_b32 v{vZs}, v{MO+1}']
    for r in ([MO, MP] if role == 'A' else [MO]):
        L += [f'v_and_b32 v{r}, v{r}, v{vM8}', f'v_and_b32 v{r+1}, 0xffff, v{r}', f'v_mov_b32 v{r+2}, 0', f'v_mov_b32 v{r+3}, 0']
    for r in ([CA, CB, CZ] if role == 'A' else [CZ]):
        L += [f'v_mov_b32 v{r+2}, 0', f'v_mov_b32 v{r+3}, 0']
    L += [f'ds_read_b128 {vr(ZR+4*q)}, v{vH16} offset:{32*q}' for q in range(4)]
    return L

def rot_next(c): return f's_add_u32 s{c}, s{c}, 1\ns_cmp_eq_u32 s{c}, 7\ns_cselect_b32 s{c}, 0, s{c}'
def dma_group(role, g):
    slot = (g % 4) * SLOT
    ins = []
    if role == 'A':
        ins.append((f's_mov_b32 s{sGc}, s{sG1}' if g == 0 else rot_next(sGc), None))
        ins.append((f's_lshl_b32 s{sA0}, s{sGc}, 7\ns_mul_i32 s{sA1}, s{sGc}, {64*3584}', None))
    else:
        ins.append((f's_movk_i32 s{sA0}, {g*128}\ns_mov_b32 s{sA1}, {g*64*3584}', None))
    if role != 'C':
        ins.append((f's_add_u32 m0, s{sLx}, {slot}\ns_nop 0', None))
        for q in range(4):
            ins.append((f'buffer_load_dwordx4 v{vXo+q}, {sr(SX)}, s{sA0} offen offset:{q*1024} lds', f'G{g}'))
        ins.append((f's_add_u32 m0, s{sLd}, {slot}\ns_nop 0', None))
        ins.append((f'buffer_load_dwordx4 v{vDo}, {sr(SD)}, s{sA0} offen lds', f'G{g}'))
    if role != 'B':
        ins.append((f's_add_u32 m0, s{sLw}, {slot}\ns_nop 0', None))
        for i in range(4):
            ins.append((f'buffer_load_dwordx4 v{vWo+i}, {sr(SW)}, s{sA1} offen offset:{i*1024} lds', f'G{g}'))
    return ins
STG = [3*SLOT, 0, SLOT]
NSTG = opt('nstg', 2)
def w2_group(q):
    base, off = (sStg, STG[q]) if q < NSTG else (sArea, 32768 if q == 2 else (q-3)*8192)
    ins = []
    for m in range(8):
        pre = ''
        if m == 0: pre = (f's_mov_b32 s{sGw}, s{sG0}' if q == 0 else rot_next(sGw)) + f'\ns_mul_i32 s{sA4}, s{sGw}, {8*7168}\n'
        if m == 4: pre = f's_add_u32 s{sA4}, s{sA4}, {4*7168}\n'
        pre += f's_add_u32 m0, s{base}, {off + 4096*(m//4)}\ns_nop 0\n' if (q < NSTG or m % 4 == 0) else ''
        ins.append((pre + f'buffer_load_dwordx4 v{vW2+m%4}, {sr(SW2)}, s{sA4} offen offset:{(m%4)*1024} lds', f'R{q}'))
    return ins
def stage_reads(part):
    va2, off = (vSt[part], 0) if part < 2 else ((vSt[1], SLOT) if NSTG == 3 else ((vTra, vTrb), 32768))
    return [f'ds_read_b64_tr_b16 {ar(aW+8*(4*part+kk)+4*blk+2*p,2)}, v{va} offset:{off + kk*2048 + p*1024}'
            for kk in range(4) for blk, va in enumerate(va2) for p in range(2)]

def p1_addr_dma(a):
    t = FR
    a(f'v_lshrrev_b32 v{t+1}, 3, v{vL}\nv_and_b32 v{t+2}, 7, v{vL}\nv_lshrrev_b32 v{t+3}, 1, v{t+1}')
    a(f'v_xor_b32 v{t+4}, v{t+2}, v{t+3}\nv_lshlrev_b32 v{t+4}, 4, v{t+4}')
    a(f'v_mul_u32_u24 v{t+5}, {64*896}, v{t+1}')
    a(f's_mul_i32 s{sT}, s{sSig}, 896')
    a(f'v_add3_u32 v{vXo}, v{t+5}, v{t+4}, s{sT}')
    a(f'v_xor_b32 v{vXo+1}, 64, v{vXo}')
    a(f'v_add_u32 v{vXo+2}, {2*(458752-1024)}, v{vXo}')
    a(f'v_add_u32 v{vXo+3}, {3*(458752-1024)}, v{vXo+1}')
    a(f'v_add_u32 v{vXo+1}, {1*(458752-1024)}, v{vXo+1}')
    a(f'v_and_b32 v{t+6}, 1, v{t+3}\nv_lshlrev_b32 v{t+6}, 2, v{t+6}\nv_xor_b32 v{t+6}, v{t+6}, v{t+2}\nv_lshlrev_b32 v{t+6}, 4, v{t+6}')
    a(f'v_mul_u32_u24 v{t+7}, 3584, v{t+1}')
    a(f's_mul_i32 s{sT}, s{sI}, {32*3584}\ns_lshl_b32 s{sT2}, s{sCG}, 8\ns_add_u32 s{sT}, s{sT}, s{sT2}\ns_lshl_b32 s{sT2}, s{sJ}, 7\ns_add_u32 s{sT}, s{sT}, s{sT2}')
    a(f'v_add3_u32 v{vWo}, v{t+7}, v{t+6}, s{sT}')
    for i in range(1, 4): a(f'v_add_u32 v{vWo+i}, {i*(8*3584-1024)}, v{vWo}')
    a(f'v_mul_u32_u24 v{t+5}, 896, v{t+1}')
    a(f's_lshl_b32 s{sT}, s{sJ}, 6')
    a(f'v_xor_b32 v{t+6}, s{sT}, v{t+4}')
    a(f's_lshl_b32 s{sT}, s{sCG}, 1\ns_add_u32 s{sT}, s{sT}, s{sJ}\ns_mul_i32 s{sT}, s{sT}, {8*896}')
    a(f'v_add3_u32 v{vDo}, v{t+5}, v{t+6}, s{sT}')
    a(f's_lshl_b32 s{sLx}, s{sW}, 12')
    a(f's_lshl_b32 s{sLw}, s{sJ}, 13\ns_lshl_b32 s{sT}, s{sI}, 12\ns_add_u32 s{sLw}, s{sLw}, s{sT}\ns_add_u32 s{sLw}, s{sLw}, 16384')
    a(f's_lshl_b32 s{sLd}, s{sW}, 10\ns_add_u32 s{sLd}, s{sLd}, 32768')

def p1_addr_read(a):
    t = FR
    a(f'v_and_b32 v{vU}, 31, v{vL}\nv_lshrrev_b32 v{vHH}, 5, v{vL}')
    a(f'v_bfe_u32 v{t}, v{vU}, 1, 3\nv_xor_b32 v{t}, v{t}, v{vHH}')
    a(f'v_lshlrev_b32 v{t+1}, 7, v{vU}')
    a(f's_xor_b32 s{sT}, s{sW}, 1\ns_lshl_b32 s{sT}, s{sT}, 12')
    for jj in range(4):
        a(f'v_xor_b32 v{t+2}, {2*jj}, v{t}\nv_lshl_add_u32 v{t+2}, v{t+2}, 4, v{t+1}')
        a(f'v_add_u32 v{vRb+jj}, s{sLx}, v{t+2}\nv_add_u32 v{vRp+jj}, s{sT}, v{t+2}\nv_add_u32 v{vRd+jj}, 0x8000, v{t+2}')
        for r in (vRb, vRp, vRd): a(f'v_add_u32 v{r+4+jj}, {2*SLOT}, v{r+jj}')
    a(f'v_bfe_u32 v{t}, v{vL}, 2, 2')
    a(f'v_lshl_add_u32 v{t+1}, v{vHH}, 3, v{t}\nv_lshlrev_b32 v{t+1}, 7, v{t+1}')
    a(f'v_lshrrev_b32 v{t}, 1, v{t}\nv_xor_b32 v{t}, s{sI}, v{t}\nv_lshl_add_u32 v{t+1}, v{t}, 6, v{t+1}')
    a(f'v_bfe_u32 v{t}, v{vL}, 4, 1\nv_lshl_add_u32 v{t+1}, v{t}, 5, v{t+1}')
    a(f'v_and_b32 v{t}, 3, v{vL}\nv_lshl_add_u32 v{t+1}, v{t}, 3, v{t+1}')
    a(f's_lshl_b32 s{sT}, s{sJ}, 13\ns_add_u32 s{sT}, s{sT}, 16384')
    a(f'v_add_u32 v{vTa}, s{sT}, v{t+1}\nv_xor_b32 v{vTb}, 64, v{vTa}')
    a(f'v_add_u32 v{vTa+1}, {2*SLOT}, v{vTa}\nv_add_u32 v{vTb+1}, {2*SLOT}, v{vTb}')
def stat_addr():
    return lines(f'v_lshlrev_b32 v{vU8}, 4, v{vU}\nv_add_u32 v{vM8}, -1, v{vHH}') + \
           [f's_lshl_b32 s{sB0}, s{sW}, 7\ns_add_u32 s{sB0}, s{sB0}, {VX+8192}', f'v_lshl_add_u32 v{vZs}, v{vU}, 2, s{sB0}', f'v_lshl_add_u32 v{vH16}, v{vHH}, 4, s{sB0}']

def twiddle_wc(t):
    L = [f'v_cvt_f32_u32 v{t}, v{vU}', f'v_cvt_f32_u32 v{t+1}, v{vHH}', f'v_mul_f32 v{t}, {f2h(1/32)}, v{t}',
         f'v_mul_f32 v{t+1}, 4.0, v{t+1}', f'v_mul_f32 v{t+1}, v{t+1}, v{t}']
    for p in range(8):
        u0 = 16*(p >> 2) + 8*((p & 3) >> 1) + 2*(p & 1)
        L += [f'v_fmamk_f32 v{t+2}, v{t}, {f2h(u0)}, v{t+1}', f'v_fmamk_f32 v{t+3}, v{t}, {f2h(u0+1)}, v{t+1}',
              f'v_cos_f32 v{t+4}, v{t+2}', f'v_cos_f32 v{t+5}, v{t+3}', f'v_sin_f32 v{t+6}, v{t+2}', f'v_sin_f32 v{t+7}, v{t+3}',
              f'v_cvt_pk_bf16_f32 v{WC+p}, v{t+4}, v{t+5}', f'v_cvt_pk_bf16_f32 v{WC+8+p}, -v{t+6}, -v{t+7}']
    return L
def twiddle_tf(t, dst):
    L = [f's_lshl_b32 s{sT}, s{sI}, 5\ns_add_u32 s{sT}, s{sT}, s{sT1}\nv_lshl_add_u32 v{t}, v{vU}, 6, s{sT}',
         f'v_cvt_f32_u32 v{t}, v{t}', f'v_cvt_f32_u32 v{t+1}, v{vHH}', f'v_mul_f32 v{t}, {f2h(1/2048)}, v{t}',
         f'v_mul_f32 v{t+1}, {f2h(16.0)}, v{t+1}', f'v_mul_f32 v{t+1}, v{t+1}, v{t}']
    for j in range(8):
        for h in range(2):
            k0 = 2*j + 32*h
            L += [f'v_fmamk_f32 v{t+2}, v{t}, {f2h(k0)}, v{t+1}', f'v_fmamk_f32 v{t+3}, v{t}, {f2h(k0+1)}, v{t+1}',
                  f'v_cos_f32 v{t+4}, v{t+2}', f'v_sin_f32 v{t+5}, v{t+2}', f'v_cos_f32 v{t+6}, v{t+3}', f'v_sin_f32 v{t+7}, v{t+3}',
                  f'v_cvt_pk_bf16_f32 v{dst+4*j+2*h}, v{t+4}, v{t+5}', f'v_cvt_pk_bf16_f32 v{dst+4*j+2*h+1}, v{t+6}, v{t+7}']
    return L

def p2_addr_early():
    t = vWt; u, w = sB0, sB1
    L = lines(f'v_lshrrev_b32 v{t+1}, 3, v{vL}\nv_and_b32 v{t+2}, 7, v{vL}\nv_bfe_u32 v{t+3}, v{vL}, 4, 1\nv_lshlrev_b32 v{t+3}, 2, v{t+3}\n'
              f'v_xor_b32 v{t+3}, v{t+3}, v{t+2}\nv_lshlrev_b32 v{t+3}, 4, v{t+3}\nv_mul_u32_u24 v{t+4}, 896, v{t+1}')
    L += [f's_mul_i32 s{u}, s{sW}, {448*896}\ns_lshl_b32 s{w}, s{sCT}, 7\ns_add_u32 s{u}, s{u}, s{w}', f'v_add3_u32 v{vW2}, v{t+4}, v{t+3}, s{u}']
    L += [f'v_add_u32 v{vW2+i}, {i*(7168-1024)}, v{vW2}' for i in range(1, 4)]
    L += lines(f'v_bfe_u32 v{t}, v{vL}, 2, 2\nv_lshl_add_u32 v{t+1}, v{vHH}, 2, v{t}\nv_lshlrev_b32 v{t+1}, 7, v{t+1}\nv_lshrrev_b32 v{t}, 1, v{t}\n'
               f'v_xor_b32 v{t}, s{sJ}, v{t}\nv_lshl_add_u32 v{t+1}, v{t}, 6, v{t+1}\nv_bfe_u32 v{t}, v{vL}, 4, 1\nv_lshl_add_u32 v{t+1}, v{t}, 5, v{t+1}\n'
               f'v_and_b32 v{t}, 3, v{vL}\nv_lshl_add_u32 v{t+1}, v{t}, 3, v{t+1}\ns_mul_i32 s{sArea}, s{sW}, {AREA}\n'
               f'v_add_u32 v{vTra}, s{sArea}, v{t+1}\nv_xor_b32 v{vTrb}, 64, v{vTra}\ns_lshl_b32 s{sStg}, s{sW}, 13\nv_add_u32 v{vSt[1][0]}, s{sStg}, v{t+1}\n'
               f'v_xor_b32 v{vSt[1][1]}, 64, v{vSt[1][0]}\nv_add_u32 v{vSt[0][0]}, {STG[0]}, v{vSt[1][0]}\nv_add_u32 v{vSt[0][1]}, {STG[0]}, v{vSt[1][1]}')
    def vmap(el, e_out, tt_out, sg_out):
        M = [f's_lshl_b32 s{u}, s{sCT}, 6\ns_lshl_b32 s{w}, s{sJ}, 5\ns_add_u32 s{u}, s{u}, s{w}', f'v_add_u32 v{e_out}, s{u}, v{el}', f'v_sub_u32 v{t+6}, 448, v{e_out}',
             f's_sub_u32 s{u}, 32, s{sT1}\ns_and_b32 s{u}, s{u}, 31', f'v_mov_b32 v{tt_out}, s{sT1}', f'v_mov_b32 v{t+7}, s{u}',
             f'v_cmp_lt_u32 vcc, 239, v{e_out}\ns_nop 1\nv_cndmask_b32 v{e_out}, v{e_out}, v{t+6}, vcc\nv_cndmask_b32 v{tt_out}, v{tt_out}, v{t+7}, vcc' +
             (f'\nv_mov_b32 v{t+6}, 0\nv_bfrev_b32 v{t+7}, 1\nv_cndmask_b32 v{sg_out}, v{t+6}, v{t+7}, vcc' if sg_out else '')]
        return M
    L += vmap(vU, t, t+1, vSg)
    L += lines(f'v_lshlrev_b32 v{vVo}, 16, v{t+1}\nv_lshl_add_u32 v{vVo}, v{t}, 4, v{vVo}\nv_lshl_add_u32 v{vVo}, v{vHH}, 15, v{vVo}')
    L += lines(f'v_and_b32 v{t+2}, 48, v{vL}\nv_subrev_u32 v{t+2}, 16, v{t+2}\nv_min_u32 v{t+2}, 31, v{t+2}')
    L += vmap(t+2, t, t+1, None)
    L += lines(f'v_and_b32 v{t}, 0x1f0, v{t}\nv_and_b32 v{t+2}, 15, v{vL}\nv_add_u32 v{t}, v{t}, v{t+2}\nv_lshlrev_b32 v{t}, 3, v{t}\nv_add_u32 v{vPa}, {FLV}, v{t}')
    L += [f's_mul_i32 s{u}, s{sW}, 7\ns_lshr_b32 s{u}, s{u}, 1\ns_lshr_b32 s{w}, s{sT1}, 1\ns_lshl_b32 s{w}, s{w}, 4\ns_add_u32 s{u}, s{u}, s{w}',
          f's_lshl_b32 s{u}, s{u}, 3\ns_add_u32 s{u}, s{u}, {FLH}', f'v_and_b32 v{t}, 3, v{vL}', f'v_lshl_add_u32 v{t}, v{t}, 3, s{u}',
          f'v_cmp_gt_u32 vcc, 16, v{vL}\ns_nop 1\nv_cndmask_b32 v{vPa}, v{vPa}, v{t}, vcc']
    L += [f'v_lshrrev_b32 v{t}, 2, v{vL}', f's_lshl_b32 s{u}, s{sI}, 4', f'v_add_u32 v{t}, s{u}, v{t}']
    L += lines(f'v_and_b32 v{t+1}, 3, v{vL}\nv_mul_u32_u24 v{t+2}, {64*896}, v{t}\nv_lshl_add_u32 v{t+2}, v{t+1}, 4, v{t+2}')
    L += [f's_lshl_b32 s{sRi}, s{sI}, 5\ns_add_u32 s{sRi}, s{sRi}, s{sT1}\ns_mul_i32 s{u}, s{sT1}, 896\ns_lshl_b32 s{w}, s{sCT}, 7',
          f's_add_u32 s{u}, s{u}, s{w}\ns_lshl_b32 s{w}, s{sJ}, 6\ns_add_u32 s{u}, s{u}, s{w}\ns_lshl_b32 s{sRi}, s{sRi}, 9',
          f'v_add_u32 v{vOo}, s{u}, v{t+2}', f'v_add_u32 v{vOo+1}, {32*896}, v{vOo}', f'v_lshlrev_b32 v{vRo}, 4, v{t}',
          f's_mul_i32 s{sHb}, s{sT1}, {HB_SIG}\ns_mul_i32 s{u}, s{sW}, {28*1024}\ns_add_u32 s{sHb}, s{sHb}, s{u}']
    return L

def p1_reads(n):
    g, jj = divmod(n, 4)
    half, so = (g % 4) // 2, (g % 2) * SLOT
    f = FR + 20 * (n & 1)
    return [f'ds_read_b64_tr_b16 {vr(f+8,2)}, v{vTa+half} offset:{so + jj*2048}',
            f'ds_read_b64_tr_b16 {vr(f+10,2)}, v{vTa+half} offset:{so + jj*2048 + 512}',
            f'ds_read_b128 {vr(f)}, v{vRb+4*half+jj} offset:{so}',
            f'ds_read_b128 {vr(f+4)}, v{vRp+4*half+jj} offset:{so}',
            f'ds_read_b64_tr_b16 {vr(f+12,2)}, v{vTb+half} offset:{so + jj*2048}',
            f'ds_read_b64_tr_b16 {vr(f+14,2)}, v{vTb+half} offset:{so + jj*2048 + 512}',
            f'ds_read_b128 {vr(f+16)}, v{vRd+4*half+jj} offset:{so}']
def p1_mfmas(n):
    f = FR + 20 * (n & 1)
    def m(acc, A, B): return mfma(vr(acc, 16), vr(A), vr(B), vr(acc, 16) if n else '0')
    return [m(ACC, f+8, f), m(ACC+16, f+8, f+4), m(ACC+32, f+12, f), m(ACC+48, f+12, f+4), m(ACC+64, f, f+16)]

vZsg, vXw, vXr, vVs, vHo = 78, 79, 80, 81, 82
sHA0, sHA1, sHB0, sHB1 = 4, 5, 8, 9
def z_addr(t, u, w):
    L = lines(f'v_bfe_u32 v{t}, v{vL}, 4, 1\nv_xor_b32 v{vZsg}, 1, v{t}\nv_mul_u32_u24 v{vZsg}, 0x8000, v{vZsg}\nv_lshl_or_b32 v{vZsg}, v{vZsg}, 16, v{vZsg}\n'
              f'v_lshl_add_u32 v{t}, v{vHH}, 2, v{t}\nv_lshlrev_b32 v{t}, 8, v{t}\nv_and_b32 v{t+1}, 15, v{vL}\nv_lshl_add_u32 v{t}, v{t+1}, 4, v{t}')
    L += [f's_lshl_b32 s{u}, s{sW}, 2\ns_add_u32 s{u}, s{u}, {VX}', f'v_add_u32 v{vXw}, s{u}, v{t}',
          f's_lshl_b32 s{u}, s{sW}, 11\ns_add_u32 s{u}, s{u}, {VX}', f'v_lshlrev_b32 v{vHo}, 4, v{vL}', f'v_add_u32 v{vXr}, s{u}, v{vHo}']
    L += lines(f'v_lshrrev_b32 v{t}, 4, v{vL}\nv_lshlrev_b32 v{t}, 16, v{t}\nv_lshl_add_u32 v{t}, v{t+1}, 4, v{t}')
    L += [f's_lshl_b32 s{u}, s{sW}, 19\ns_lshl_b32 s{w}, s{sRT}, 12\ns_add_u32 s{u}, s{u}, s{w}\ns_lshl_b32 s{w}, s{sCG}, 8\ns_add_u32 s{u}, s{u}, s{w}',
          f'v_add_u32 v{vVs}, s{u}, v{t}']
    return L
def h_addr(u, w):
    return [f's_lshl_b32 s{u}, s{sCG}, 3\ns_lshl_b32 s{w}, s{sJ}, 2\ns_add_u32 s{u}, s{u}, s{w}\ns_lshl_b32 s{w}, s{sI}, 1\ns_add_u32 s{u}, s{u}, s{w}',
            f's_lshl_b32 s{u}, s{u}, 10\ns_mul_i32 s{w}, s{sSig}, {HB_SIG}\ns_add_u32 s{sHA0}, s{u}, s{w}',
            f's_xor_b32 s{w}, s{sSig}, 1\ns_mul_i32 s{w}, s{w}, {HB_SIG}\ns_add_u32 s{sHA1}, s{u}, s{w}',
            f's_xor_b32 s{sHB0}, s{sHA0}, 2048\ns_xor_b32 s{sHB1}, s{sHA1}, 2048']

def hblock_list(a, acc, so):
    L = [f'v_cvt_pk_bf16_f32 v{acc+p}, v{acc+2*p}, v{acc+2*p+1}' for p in range(8)]
    L += [f'v_pk_max_i16 v{acc+p}, v{acc+p}, 0' for p in range(8)] if not opt('maxf', 0) else []
    L.append(lambda: a.vmem(f'buffer_store_dwordx4 {vr(acc)}, v{vHo}, {sr(SH)}, s{so} offen sc1', 'ST'))
    L.append(lambda: a.vmem(f'buffer_store_dwordx4 {vr(acc+4)}, v{vHo}, {sr(SH)}, s{so} offen offset:1024 sc1', 'ST'))
    if opt('maxf', 0): L = [f'v_max_f32 v{acc+r}, 0, v{acc+r}' for r in range(16)] + L
    return L
def early_epilogue(a, lds, wait_lg):
    ZA = ACC + 64
    T1 = [FR+8, FR+16]; T2 = [FR+28, FR+36]
    b1 = lambda p: T1[p >> 2] + (p & 3)
    b2 = lambda p: T2[p >> 2] + (p & 3)
    L = ['s_nop 3'] + hblock_list(a, ACC, sHA0)
    L += [f'v_mul_f32 v{ZA+r}, v{ZA+r}, v{ZR+r}' for r in range(16)]
    L += [f'v_cvt_pk_bf16_f32 v{b1(p)}, v{ZA+2*p}, v{ZA+2*p+1}' for p in range(8)]
    L += [(lambda p=p: lds(f'ds_swizzle_b32 v{b2(p)}, v{b1(p)} offset:0x401f', 'sw')) for p in range(8)]
    L += [mfma(vr(ZA,16), vr(WC), vr(T1[0]), '0'), mfma(vr(ZA,16), vr(WC+4), vr(T1[1]), vr(ZA,16))]
    L += [lambda: wait_lg('sw')] + [f'v_xor_b32 v{b2(p)}, v{b2(p)}, v{vZsg}' for p in range(8)] + ['s_nop 1']
    L += [mfma(vr(ZA,16), vr(WC+8), vr(T2[0]), vr(ZA,16)), mfma(vr(ZA,16), vr(WC+12), vr(T2[1]), vr(ZA,16))]
    L += hblock_list(a, ACC+16, sHA1)
    L += [f'v_permlane16_swap_b32 v{ZA+2*p}, v{ZA+2*p+1}' for p in range(8)] + ['s_nop 1']
    L += [f'v_cvt_pk_bf16_f32 v{b1(p)}, v{ZA+2*p}, v{ZA+2*p+1}' for p in range(8)]
    L += [(lambda p=p: lds(f'ds_write_b32 v{vXw}, v{b1(p)} offset:{((2*p & 3) + 8*(p >> 1))*256}', 'xw')) for p in range(8)]
    L += [lambda: (wait_lg('xw'), a('s_barrier'))]
    L += [lambda: lds(f'ds_read_b128 {vr(T2[0])}, v{vXr}', 'xr'), lambda: lds(f'ds_read_b128 {vr(T2[1])}, v{vXr} offset:1024', 'xr')]
    L += [f's_mov_b32 s{sT}, {4*65536}', 'MARK']
    L += [lambda: wait_lg('xr'),
          lambda: a.vmem(f'buffer_store_dwordx4 {vr(T2[0])}, v{vVs}, {sr(SV)}, 0 offen sc1', 'ST'),
          lambda: a.vmem(f'buffer_store_dwordx4 {vr(T2[1])}, v{vVs}, {sr(SV)}, s{sT} offen sc1', 'ST')]
    L.remove('MARK')
    return L
def rank1():
    return [mfma(vr(ACC,16), vr(CA), vr(MO), vr(ACC,16)), mfma(vr(ACC+16,16), vr(CA), vr(MP), vr(ACC+16,16)),
            mfma(vr(ACC+32,16), vr(CB), vr(MO), vr(ACC+32,16)), mfma(vr(ACC+48,16), vr(CB), vr(MP), vr(ACC+48,16)),
            mfma(vr(ACC+64,16), vr(MO), vr(CZ), vr(ACC+64,16))]
def p1_loop(a):
    lg = []
    def lds(x, tag):
        a(x); lg.append(tag)
    def wait_lg(tag=None):
        if tag is None:
            if lg: a('s_waitcnt lgkmcnt(0)'); lg.clear()
            return
        if tag not in lg: return
        idx = max(i for i, x in enumerate(lg) if x == tag)
        a(f's_waitcnt lgkmcnt({min(len(lg)-1-idx, 15)})')
        del lg[:idx+1]
    RT = ['m0', 'm0', 'm0', 'm1', 'm2', 'm2', 'm4']
    FG = opt('fg', 5); FINE = opt('fine', 1)
    a.wait_vm('G0')
    a('s_barrier')
    stamp(a, 1); stamp(a, 1, '1')
    for r, t_ in zip(p1_reads(0), RT): lds(r, f'0{t_}')
    a.lgw = wait_lg
    q = dma_group('A', 2) + dma_group('A', 3)
    vq = stat_addr() + p2_addr_early() + twiddle_wc(vWt) + z_addr(vWt, sB0, sB1) + h_addr(sB0, sB1) + wg_flag_prep(vFl, sB0, sB1)
    wq = [x for q_ in range(NSTG) for x in w2_group(q_)]
    midgroup = [False]
    SK = opt('sk', 28)
    seq = [(n, 'AZB') for n in range(SK)] + [(n, 'AZ') for n in range(SK, 28)] + [(n, 'B') for n in range(SK, 28)]
    def reads(pos):
        n, kind = seq[pos]
        g, jj = divmod(n, 4)
        half, so = (g % 4) // 2, (g % 2) * SLOT
        f = FR + 20 * (pos & 1)
        wa = [f'ds_read_b64_tr_b16 {vr(f+8+2*p,2)}, v{vTa+half} offset:{so + jj*2048 + 512*p}' for p in range(2)]
        wb = [f'ds_read_b64_tr_b16 {vr(f+12+2*p,2)}, v{vTb+half} offset:{so + jj*2048 + 512*p}' for p in range(2)]
        x0 = f'ds_read_b128 {vr(f)}, v{vRb+4*half+jj} offset:{so}'
        x1 = f'ds_read_b128 {vr(f+4)}, v{vRp+4*half+jj} offset:{so}'
        d = f'ds_read_b128 {vr(f+16)}, v{vRd+4*half+jj} offset:{so}'
        if kind == 'AZB': L = [(wa[0], 0), (wa[1], 0), (x0, 0), (x1, 1), (wb[0], 2), (wb[1], 2), (d, 4)]
        elif kind == 'AZ': L = [(wa[0], 0), (wa[1], 0), (x0, 0), (x1, 1), (d, 2)]
        else: L = [(wb[0], 0), (wb[1], 0), (x0, 0), (x1, 1)]
        return [(x, f'{pos}m{m_}') for x, m_ in L]
    def mfmas(pos):
        n, kind = seq[pos]
        f = FR + 20 * (pos & 1)
        def m(acc, A, B): return mfma(vr(acc, 16), vr(A), vr(B), vr(acc, 16) if n else '0')
        A_ = [m(ACC, f+8, f), m(ACC+16, f+8, f+4)]; B_ = [m(ACC+32, f+12, f), m(ACC+48, f+12, f+4)]; Z_ = [m(ACC+64, f, f+16)]
        return {'AZB': A_ + B_ + Z_, 'AZ': A_ + Z_, 'B': B_}[kind]
    yq = []
    for pos, (n, kind) in enumerate(seq):
        g, jj = divmod(n, 4)
        first = kind != 'B'
        if STAMP and LST == '7' and 0 <= pos - opt('s0', 8) <= 8: a(f's_memtime s[{STB+2*(1+pos-opt("s0", 8))}:{STB+2*(1+pos-opt("s0", 8))+1}]')
        BG = opt('bg', 2)
        def group_barrier():
            assert not any(t == f'G{g+1}' for _, t in q), (n, q)
            wait_lg()
            a.wait_vm(f'G{g+1}')
            a('s_barrier')
            stamp(a, 2 + g, '1')
            if g == 1: cstamp(a, 1)
            if g == 5: cstamp(a, 3)
            if g + 4 < 7: q.extend(dma_group('A', g + 4))
        bar = first and jj == 3 and g < 6
        if bar and BG == 0: group_barrier()
        if first and TW > 0 and n == TW:
            q[:0] = [(f'v_and_b32 v{vP}, 15, v{vL}\nv_lshlrev_b32 v{vP}, 7, v{vP}\nbuffer_load_dword v{vP+1}, v{vP}, {sr(SW2)}, s{sA2} offen', 'TW')]
        if first and n == POLL0: q[:0] = stat_loads('A')
        chk = first and n == POLL0 + PCHK
        if chk: assert not any(t == 'SL' for _, t in q)
        R1 = rank1()
        if first and n == 27:
            assert not any(x in vq for x in stat_fix('A'))
            for m in (R1 if SK == 28 else R1[:2] + R1[4:]): a(m)
        if kind == 'B' and n == SK:
            for x in vq: a(x)
            vq.clear()
            assert SK >= 20
            stamp(a, 7, '1')
            for m in R1[2:4]: a(m)
            yq = early_epilogue(a, lds, wait_lg)
        rd = reads(pos + 1) if pos + 1 < len(seq) else []
        nld = 0; wn = 0
        rate = RATE[pos % len(RATE)]
        ms = mfmas(pos)
        for mi, m in enumerate(ms):
            last = mi == len(ms) - 1
            wait_lg(f'{pos}m{mi}')
            a(m)
            used = 0
            if bar and mi + 1 == BG: group_barrier(); used += 2
            if chk and mi == 0: stat_check(a, 'A'); vq[:0] = stat_fix('A'); used += 9
            for _ in range(7 if last else (opt('rpg', 3) if not (bar and BG) else 4)):
                if rd and not (bar and mi + 1 < BG): r, t_ = rd.pop(0); lds(r, t_); used += 1
            if mi >= len(ms) - 3:
                cnt = 0
                while nld < rate and (cnt < 1 or last):
                    wok = pos >= W0 and wq and not (bar and mi + 1 < BG) and wn < WPS[pos % len(WPS)] and pos >= 16 + 4 * int(wq[0][1][1])
                    if q: ins = q.pop(0)
                    elif wok: ins = wq.pop(0); wn += 1
                    else: break
                    a.emit(ins); used += cost(ins[0])
                    if ins[1]: nld += 0.5 if ins[1] == 'SL' else 1; cnt += 1
            while vq and used + min(cost(vq[0]), 3) <= FG:
                x = vq.pop(0); used += cost(x)
                if x.startswith('ds_'): lds(x, 'x')
                else: a(x)
            while yq and used < opt('yg', 7):
                x = yq.pop(0); used += 1
                if callable(x): x()
                else: a(x)
        assert not rd
    a.yq = yq
    assert not vq and not q, vq
    stamp(a, 2); stamp(a, 8, '1'); stamp(a, 1, '3'); stamp(a, 1, '5')
    return wq

def p1_loop_bc(a, role):
    def regs(g): return FR if g % 2 == 0 else ACC + 16
    def reads(g):
        half, so = (g % 4) // 2, (g % 2) * SLOT
        f = regs(g); L = []
        for jj in range(4):
            if role == 'B':
                L.append(f'ds_read_b128 {vr(f+8*jj)}, v{vRb+4*half+jj} offset:{so}')
                L.append(f'ds_read_b128 {vr(f+8*jj+4)}, v{vRd+4*half+jj} offset:{so}')
            else:
                L.append(f'ds_read_b64_tr_b16 {vr(f+8*jj,2)}, v{vTa+half} offset:{so + jj*2048}')
                L.append(f'ds_read_b64_tr_b16 {vr(f+8*jj+2,2)}, v{vTa+half} offset:{so + jj*2048 + 512}')
        return L
    a.wait_vm('G0'); a('s_barrier')
    if role == 'C': stamp(a, 1)
    for r in reads(0): a(r)
    if role == 'C':
        for ins in dma_group(role, 3): a.emit(ins)
    for g in range(7):
        a('s_waitcnt lgkmcnt(0)')
        if g < 6:
            a.wait_vm(f'G{g+1}'); a('s_barrier')
            for r in reads(g + 1): a(r)
            if g + 4 < 7:
                for ins in dma_group(role, g + 4): a.emit(ins)
            if role == 'B' and g == 4:
                for ins in stat_loads('B'): a.emit(ins)
        f = regs(g)
        for jj in range(4):
            n = 4*g + jj
            if role == 'B': a(mfma(vr(ACC+64,16), vr(f+8*jj), vr(f+8*jj+4), vr(ACC+64,16) if n else '0'))
            else: a(mfma(vr(ACC,16), vr(TF), vr(f+8*jj), vr(ACC,16) if n else '0'))
    if role == 'C': stamp(a, 2)

ZA, B1, B2 = ACC + 64, FR, FR + 8
def z1(a):
    for r in range(16): a(f'v_mul_f32 v{ZA+r}, v{ZA+r}, v{ZR+r}')
    for p in range(8): a(f'v_cvt_pk_bf16_f32 v{B1+p}, v{ZA+2*p}, v{ZA+2*p+1}')
    for p in range(8): a(f'ds_swizzle_b32 v{B2+p}, v{B1+p} offset:0x401f')
    a(mfma(vr(ZA,16), vr(WC), vr(B1), '0'))
    a(mfma(vr(ZA,16), vr(WC+4), vr(B1+4), vr(ZA,16)))
def z2(a):
    a('s_waitcnt lgkmcnt(0)')
    for p in range(8): a(f'v_xor_b32 v{B2+p}, v{B2+p}, v{vZsg}')
    a('s_nop 1')
    a(mfma(vr(ZA,16), vr(WC+8), vr(B2), vr(ZA,16)))
    a(mfma(vr(ZA,16), vr(WC+12), vr(B2+4), vr(ZA,16)))
def z3(a):
    for p in range(8): a(f'v_permlane16_swap_b32 v{ZA+2*p}, v{ZA+2*p+1}')
    a('s_nop 1')
    for p in range(8): a(f'v_cvt_pk_bf16_f32 v{B1+p}, v{ZA+2*p}, v{ZA+2*p+1}')
    for p in range(8):
        t1b = (2*p & 3) + 8 * (p >> 1)
        a(f'ds_write_b32 v{vXw}, v{B1+p} offset:{t1b*256}')
def z4a(a):
    a('s_waitcnt lgkmcnt(0)\ns_barrier')
    a(f'ds_read_b128 {vr(B2)}, v{vXr}\nds_read_b128 {vr(B2+4)}, v{vXr} offset:1024')
def z4b(a):
    a(f's_mov_b32 s{sT}, {4*65536}')
    a('s_waitcnt lgkmcnt(0)')
    a.vmem(f'buffer_store_dwordx4 {vr(B2)}, v{vVs}, {sr(SV)}, 0 offen sc1', 'ST')
    a.vmem(f'buffer_store_dwordx4 {vr(B2+4)}, v{vVs}, {sr(SV)}, s{sT} offen sc1', 'ST')

def gen():
    a = Asm()
    a('s_cmp_ge_u32 s2, 256\ns_cbranch_scc1 Lend')
    a('s_load_dwordx2 s[4:5], s[0:1], 0')
    a('s_load_dwordx4 s[8:11], s[0:1], 24')
    a('s_load_dwordx4 s[12:15], s[0:1], 48')
    a('s_load_dwordx2 s[16:17], s[0:1], 64')
    a('s_load_dwordx2 s[18:19], s[0:1], 80')
    stamp(a, 0)
    CPF = opt('cpf', 1)
    if CPF:
        a('s_getpc_b64 s[22:23]')
        a('Lpc:')
        a(f's_bfe_u32 s3, s2, 0x30003\ns_lshl_b32 s3, s3, 12')
        a(f'v_lshrrev_b32 v{vP}, 6, v0\nv_lshlrev_b32 v{vP}, 10, v{vP}\nv_and_b32 v{vP+1}, 7, v0\nv_lshl_add_u32 v{vP}, v{vP+1}, 7, v{vP}\nv_add_u32 v{vP}, s3, v{vP}')
        a(f'v_min_u32 v{vP}, Lend-Lpc, v{vP}')
        a.vmem(f'global_load_dword v{vP+1}, v{vP}, s[22:23]', 'CP')
    a(f'v_lshrrev_b32 v{FR}, 6, v0\nv_and_b32 v{vL}, 63, v0')
    a(f'v_readfirstlane_b32 s{sW}, v{FR}')
    sX8, sN = sA3, sA4
    a(f's_and_b32 s{sX8}, s2, 7\ns_lshr_b32 s{sN}, s2, 3')
    a(f's_and_b32 s{sT}, s{sX8}, 3\ns_lshr_b32 s{sT2}, s{sX8}, 2')
    a(f's_lshr_b32 s{sI}, s{sW}, 1\ns_and_b32 s{sJ}, s{sW}, 1')
    a(f's_cmp_ge_u32 s{sN}, 28\ns_cbranch_scc1 LroleBC')
    def sigma(): a(f's_lshl_b32 s{sSig}, s{sRT}, 1\ns_add_u32 s{sSig}, s{sSig}, s{sJ}\ns_lshl_b32 s{sT}, s{sI}, 5\ns_add_u32 s{sSig}, s{sSig}, s{sT}')
    def p1_srds():
        a('s_waitcnt lgkmcnt(0)')
        srd(a, SX, 4, 2048*896)
        a(f's_cmp_ge_u32 s{sW}, 2')
        a(f's_cselect_b32 s{SD}, s10, s8\ns_cselect_b32 s{SD+1}, s11, s9\ns_mov_b32 s{SD+2}, {448*896}\ns_mov_b32 s{SD+3}, 0x20000')
        srd(a, SW, 12, 448*3584)
    def other_srds():
        srd(a, SM, 18, SM_SIZE, SM_OFF)
        a(f's_load_dwordx2 s[{sTag}:{sTag+1}], s[{SM}:{SM+1}], {EPO}')
        srd(a, SH, 18, HB_SIZE, WS0)
        srd(a, SV, 18, VB_SIZE, VB_OFF)

    a(f's_lshl_b32 s{sRT}, s{sT}, 2\ns_and_b32 s{sT3}, s{sN}, 3\ns_add_u32 s{sRT}, s{sRT}, s{sT3}\ns_lshr_b32 s{sCT}, s{sN}, 2')
    a(f's_mul_i32 s{sCG}, s{sT2}, 7\ns_add_u32 s{sCG}, s{sCG}, s{sCT}')
    a(f's_lshl_b32 s{sG0}, s{sT3}, 1\ns_add_u32 s{sG0}, s{sG0}, s{sCT}\ns_sub_u32 s{sB0}, s{sG0}, 7\ns_cselect_b32 s{sG0}, s{sG0}, s{sB0}')
    if not ROT: a(f's_mov_b32 s{sG0}, 0')
    sCT1 = sCT
    if opt('map2', 0):
        a(f's_mov_b32 s{sB1}, s{sG0}')
        a(f's_and_b32 s{sA0}, s{sX8}, 1\ns_and_b32 s{sA1}, s{sN}, 7\ns_lshr_b32 s{sCT}, s{sN}, 3')
        a(f's_lshl_b32 s{sG0}, s{sCT}, 1\ns_add_u32 s{sG0}, s{sG0}, s{sA1}')
        a(f's_lshl_b32 s{sB0}, s{sA1}, 1\ns_lshl_b32 s{sA0}, s{sA0}, 2\ns_add_u32 s{sT1}, s{sA1}, s{sA0}\ns_add_u32 s{sA0}, s{sA0}, s{sCT}')
        a(f's_cmp_eq_u32 s{sCT}, 3\ns_cselect_b32 s{sCT}, 3, s{sA0}\ns_cselect_b32 s{sA1}, s{sT1}, s{sA1}\ns_cselect_b32 s{sG0}, s{sB0}, s{sG0}')
        a(f's_sub_u32 s{sB0}, s{sG0}, 7\ns_cselect_b32 s{sG0}, s{sG0}, s{sB0}')
        a(f's_lshr_b32 s{sT1}, s{sX8}, 1\ns_lshl_b32 s{sT1}, s{sT1}, 2\ns_lshr_b32 s{sB0}, s{sA1}, 1\ns_add_u32 s{sT1}, s{sT1}, s{sB0}')
        a(f's_sub_u32 s{sB0}, 32, s{sT1}\ns_cmp_eq_u32 s{sT1}, 0\ns_cselect_b32 s{sB0}, 16, s{sB0}')
        a(f's_bitcmp1_b32 s{sA1}, 0\ns_cselect_b32 s{sT1}, s{sB0}, s{sT1}')
        assert ROT1 in (7, 4) and not XOFF
        if ROT1 == 4: a(f's_lshr_b32 s{sB1}, s{sN}, 2\ns_add_u32 s{sB1}, s{sB1}, s{sT3}\ns_and_b32 s{sB1}, s{sB1}, 3\ns_lshl_b32 s{sB1}, s{sB1}, 1')
    else:
        a(f's_lshl_b32 s{sT1}, s{sX8}, 1\ns_lshr_b32 s{sB0}, s{sT3}, 1\ns_add_u32 s{sT1}, s{sT1}, s{sB0}\ns_sub_u32 s{sB0}, 32, s{sT1}\ns_cmp_eq_u32 s{sT1}, 0\ns_cselect_b32 s{sB0}, 16, s{sB0}')
        a(f's_bitcmp1_b32 s{sT3}, 0\ns_cselect_b32 s{sT1}, s{sB0}, s{sT1}')
    if XOFF: a(f's_add_u32 s{sG0}, s{sG0}, s{sX8}\ns_sub_u32 s{sB0}, s{sG0}, 7\ns_cselect_b32 s{sG0}, s{sG0}, s{sB0}\ns_sub_u32 s{sB0}, s{sG0}, 7\ns_cselect_b32 s{sG0}, s{sG0}, s{sB0}')
    if opt('map2', 0): pass
    elif ROT1 == 7: a(f's_mov_b32 s{sB1}, s{sG0}')
    elif ROT1 == 4: a(f's_add_u32 s{sB1}, s{sCT}, s{sT3}\ns_and_b32 s{sB1}, s{sB1}, 3\ns_lshl_b32 s{sB1}, s{sB1}, 1')
    elif ROT1 == 2: a(f's_add_u32 s{sB1}, s{sCT}, s{sT3}\ns_and_b32 s{sB1}, s{sB1}, 1\ns_mul_i32 s{sB1}, s{sB1}, 3')
    elif ROT1 == 3: a(f's_add_u32 s{sB1}, s{sCT}, s{sT3}\ns_mul_i32 s{sB0}, s{sB1}, 43\ns_lshr_b32 s{sB0}, s{sB0}, 7\ns_mul_i32 s{sB0}, s{sB0}, 3\ns_sub_u32 s{sB1}, s{sB1}, s{sB0}\ns_lshl_b32 s{sB1}, s{sB1}, 1')
    else: a(f's_mov_b32 s{sB1}, 0')
    a(f's_mul_i32 s{sOnes}, s{sX8}, 28\ns_add_u32 s{sOnes}, s{sOnes}, s{sN}\ns_lshl_b32 s{sOnes}, s{sOnes}, 2\ns_add_u32 s{sOnes}, s{sOnes}, s{sW}\ns_mul_i32 s{sA2}, s{sOnes}, {14*128}')
    sigma(); p1_addr_dma(a); p1_srds()
    a(f's_mov_b32 s{sG1}, s{sB1}')
    for ins in dma_group('A', 0): a.emit(ins)
    p1_addr_read(a)
    for ins in dma_group('A', 1): a.emit(ins)
    srd(a, SW2, 14, 1792*896)
    if TW < 0: a.vmem(f'v_and_b32 v{vP}, 15, v{vL}\nv_lshlrev_b32 v{vP}, 7, v{vP}\nbuffer_load_dword v{vP+1}, v{vP}, {sr(SW2)}, s{sA2} offen', 'TW')
    other_srds()
    srd(a, SO, 16, 2048*896)
    get_tag(a)
    if STAMP == 3:
        a(f's_add_u32 s{sT}, s2, s{sW}\ns_cmp_lg_u32 s{sT}, 0\ns_cbranch_scc1 Lnopub\nv_mov_b32 v{FR}, {EPO+128}\nv_mov_b32 v{FR+1}, s{STB}\nbuffer_store_dword v{FR+1}, v{FR}, {sr(SM)}, 0 offen sc1\nLnopub:')
    wq = p1_loop(a)
    def run_list(L):
        for x in L:
            if callable(x): x()
            else: a(x)
    if opt('sk', 28) == 28:
        a('s_nop 6\ns_waitcnt lgkmcnt(0)')
        run_list(hblock_list(a, ACC, sHA0))
        z1(a); run_list(hblock_list(a, ACC+16, sHA1))
        z2(a); run_list(hblock_list(a, ACC+32, sHB0))
        if RPRE0:
            for ins in wq: a.emit(ins)
            wq = []
            a.wait_vm('R0'); run_list(stage_reads(0))
        z3(a); run_list(hblock_list(a, ACC+48, sHB1))
        if RPRE0:
            a.wait_vm('R1'); run_list(stage_reads(1))
        z4a(a); z4b(a)
    else:
        k = min(len(a.yq), 11)
        run_list(a.yq[:k])
        if k < 11: a(f's_nop {10 - k}')
        run_list(hblock_list(a, ACC+32, sHB0) + hblock_list(a, ACC+48, sHB1))
        run_list(a.yq[k:])
    stamp(a, 3); stamp(a, 2, '3'); stamp(a, 2, '5')
    phase2(a, wq)
    a('s_branch Lfin')

    a('LroleBC:')
    a.vm = ['CP'] if CPF else []
    a(f's_cmp_ge_u32 s{sN}, 30\ns_cbranch_scc1 LroleC')
    a(f's_lshl_b32 s{sRT}, s{sT}, 2\ns_lshl_b32 s{sT2}, s{sT2}, 1\ns_add_u32 s{sRT}, s{sRT}, s{sT2}\ns_add_u32 s{sRT}, s{sRT}, s{sN}\ns_sub_u32 s{sRT}, s{sRT}, 28')
    a(f's_mov_b32 s{sCG}, s{sRT}')
    sigma(); p1_addr_dma(a); p1_srds()
    XB, DB, vSb = 104, 224, 92
    for g in range(7):
        a(f's_movk_i32 s{sA0}, {g*128}')
        for q in range(4):
            a.vmem(f'buffer_load_dwordx4 {vr(XB+16*g+4*q)}, v{vXo+q}, {sr(SX)}, s{sA0} offen offset:{q*1024}', f'X{g}')
    for g in range(7):
        a.vmem(f'buffer_load_dwordx4 {vr(DB+4*g)}, v{vDo}, {sr(SD)}, 0 offen offset:{g*128}', 'XD')
    a(f's_sub_u32 s{sT}, 14, s{sRT}\ns_mul_i32 s{sT}, s{sT}, {16*896}\nv_add_u32 v{vDo}, s{sT}, v{vDo}\ns_mov_b32 s{sCG}, 14')
    other_srds()
    a(f's_mov_b32 s{sOnes}, 0x3f803f80')
    for i in range(9): a(f'v_mov_b32 v{vSb+i}, 0')
    for g in range(7):
        a.wait_vm(f'X{g}')
        if g == 0: stamp(a, 1)
        for i in range(4):
            for q in range(4):
                a(f'v_dot2c_f32_bf16 v{vSb+q}, s{sOnes}, v{XB+16*g+4*q+i}')
                a(f'v_dot2c_f32_bf16 v{vSb+4+q}, v{XB+16*g+4*q+i}, v{XB+16*g+4*q+i}')
    t = vt
    def dpp(rng):
        for pat in ('quad_perm:[1,0,3,2]', 'quad_perm:[2,3,0,1]', 'row_half_mirror'):
            for i in rng: a(f'v_add_f32_dpp v{vSb+i}, v{vSb+i}, v{vSb+i} {pat} row_mask:0xf bank_mask:0xf')
            if len(rng) < 3: a('s_nop 1')
    stamp(a, 2)
    a(f'v_and_b32 v{t+6}, 3, v{vL}\ns_nop 1')
    dpp(range(8))
    for q in range(1, 4):
        a(f'v_cmp_eq_u32 vcc, {q}, v{t+6}\ns_nop 1\nv_cndmask_b32 v{vSb}, v{vSb}, v{vSb+q}, vcc\nv_cndmask_b32 v{vSb+4}, v{vSb+4}, v{vSb+4+q}, vcc')
    a(f'v_mul_f32 v{t+4}, {f2h(1/448)}, v{vSb}\nv_mul_f32 v{t+1}, {f2h(1/448)}, v{vSb+4}')
    a(f'v_fma_f32 v{t+1}, -v{t+4}, v{t+4}, v{t+1}\nv_max_f32 v{t+1}, 0, v{t+1}')
    a(f'v_cvt_pk_bf16_f32 v{t}, -v{t+4}, -v{t+4}')
    a(f'v_cvt_pk_bf16_f32 v{t+1}, v{t+1}, v{t+1}\nv_and_b32 v{t+1}, 0xffff0000, v{t+1}')
    a(f'v_add_f32 v{t+1}, {f2h(1e-5)}, v{t+1}')
    a(f'v_cvt_pk_bf16_f32 v{t+1}, v{t+1}, v{t+1}\nv_and_b32 v{t+1}, 0xffff0000, v{t+1}')
    a(f'v_sqrt_f32 v{t+1}, v{t+1}\ns_nop 0')
    a(f'v_cvt_pk_bf16_f32 v{t+1}, v{t+1}, v{t+1}\nv_and_b32 v{t+1}, 0xffff0000, v{t+1}')
    a(f'v_rcp_f32 v{t+1}, v{t+1}')
    get_tag(a)
    a(f'v_mov_b32 v{t+2}, s{sTag}\nv_mov_b32 v{t+3}, s{sTag+1}')
    a(f'v_lshrrev_b32 v{t+7}, 3, v{vL}\nv_lshl_add_u32 v{t+5}, v{t+6}, 3, v{t+7}\nv_lshlrev_b32 v{t+5}, 4, v{t+5}')
    a(f's_lshl_b32 s{sT}, s{sSig}, 9')
    a.vmem(f'buffer_store_dwordx4 {vr(t)}, v{t+5}, {sr(SM)}, s{sT} offen sc1', 'S1')
    a.wait_vm('XD')
    for i in range(28): a(f'v_dot2c_f32_bf16 v{vSb+8}, s{sOnes}, v{DB+i}')
    a('s_nop 2')
    dpp([8])
    col_record(a, DB, vSb+8)
    a(f'v_lshlrev_b32 v{t+7}, 4, v{t+7}\ns_lshl_b32 s{sT}, s{sRT}, 9\ns_lshl_b32 s{sT2}, s{sW}, 7\ns_add_u32 s{sT}, s{sT}, s{sT2}\ns_add_u32 s{sT}, s{sT}, {CSZ}')
    a.vmem(f'buffer_store_dwordx4 {vr(DB)}, v{t+7}, {sr(SM)}, s{sT} offen sc1', 'S1')
    stamp(a, 3)
    for g in range(4):
        for ins in dma_group('B', g): a.emit(ins)
    p1_addr_read(a)
    for x in wg_flag_prep(vFl, sB0, sB1) + stat_addr() + twiddle_wc(vWt) + z_addr(vWt, sB0, sB1): a(x)
    p1_loop_bc(a, 'B')
    stat_check(a, 'B')
    for x in stat_fix('B'): a(x)
    a('s_nop 1')
    a(mfma(vr(ZA,16), vr(MO), vr(CZ), vr(ZA,16)))
    a('s_nop 11\ns_waitcnt lgkmcnt(0)')
    z1(a); z2(a); a('s_nop 11'); z3(a); z4a(a); z4b(a)
    wg_flag(a, vFl)
    a('s_branch Lfin')

    a('LroleC:')
    a.vm = ['CP'] if CPF else []
    a(f's_lshl_b32 s{sT3}, s{sT}, 1\ns_add_u32 s{sT3}, s{sT3}, s{sN}\ns_sub_u32 s{sT3}, s{sT3}, 30')
    a(f's_lshl_b32 s{sRT}, s{sT2}, 3\ns_add_u32 s{sRT}, s{sRT}, s{sT3}')
    a(f's_mul_i32 s{sCG}, s{sT2}, 7\ns_add_u32 s{sCG}, s{sCG}, s{sT3}\ns_add_u32 s{sT2}, s{sT2}, 14')
    a(f's_cmp_eq_u32 s{sT3}, 7\ns_cselect_b32 s{sCG}, s{sT2}, s{sCG}')
    sigma(); p1_addr_dma(a); p1_srds()
    other_srds()
    a(f's_cmp_ge_u32 s{sCG}, 14\ns_cbranch_scc1 LroleE')
    for g in range(3):
        for ins in dma_group('C', g): a.emit(ins)
    p1_addr_read(a)
    for x in stat_addr(): a(x)
    for i in range(4): a(f'v_mov_b32 v{TF+i}, 0x3f803f80')
    get_tag(a)
    p1_loop_bc(a, 'C')
    a('s_nop 11')
    col_record(a, FR, ACC)
    a(CW_OFF)
    a.vmem(f'buffer_store_dwordx4 {vr(FR)}, v{vU8}, {sr(SM)}, s{sA2} offen sc1', 'S1')
    stamp(a, 3)
    a(f's_mov_b32 s{sCG}, 15')
    for x in wg_flag_prep(vFl, sB0, sB1): a(x)
    wg_flag(a, vFl)
    a('s_branch Lfin')

    a('LroleE:')
    a.vm = []
    get_tag(a)
    a(f's_sub_u32 s{sT3}, 15, s{sCG}\ns_add_u32 s{sT3}, s{sT3}, s{sW}\ns_mov_b32 s{sCG}, 15')
    for x in wg_flag_prep(vFl, sB0, sB1): a(x)
    wg_flag(a, vFl)
    a(f's_cmp_lg_u32 s{sT3}, 0\ns_cbranch_scc1 Lfin')
    a(f'v_lshlrev_b32 v{vPa}, 3, v{vL}\nv_add_u32 v{vPa}, {FLV}, v{vPa}')
    for i in range(4):
        poll_issue(a, 'PE', vPa)
        poll_check(a, 'PE', vPa, sleep=16)
        a(f'v_add_u32 v{vPa}, 512, v{vPa}')
    a(f'v_mov_b32 v{vFl+2}, {EPO}\ns_mov_b64 exec, 1')
    a(f'buffer_store_dwordx2 {vr(vFl,2)}, v{vFl+2}, {sr(SM)}, 0 offen sc1')
    a('s_mov_b64 exec, -1')
    a('Lfin:')
    stamp_store(a)
    a('Lend:')
    a('s_endpgm')
    return a.text()

def phase2(a, wq):
    ACC0, ACC1, YA, VF = 144, 176, 208, 104
    TFd = 4
    vRw, vRwb, vRr = 84, 88, 92
    vRi = 36
    XR = 224
    t = 56
    for ins in wq: a.emit(ins)
    rq = []
    for q in range(NSTG, 7): rq += w2_group(q)
    NR = len(rq)
    def rdma(n):
        while rq and n > 0:
            ins = rq.pop(0); a.emit(ins)
            if ins[1]: n -= 1
    vq = twiddle_tf(t, TFd)
    u = t + 8
    vq += lines(f'v_and_b32 v{u}, 7, v{vU}\nv_xor_b32 v{u}, v{u}, v{vHH}\nv_lshlrev_b32 v{u+1}, 7, v{vU}')
    vq += [f's_lshl_b32 s{sT}, s{sJ}, 12\ns_add_u32 s{sT2}, s{sT}, 32768\ns_add_u32 s{sT}, s{sT2}, s{sArea}', f'v_add_u32 v{u+1}, s{sT}, v{u+1}']
    for q in range(4):
        vq += lines(f'v_xor_b32 v{u+2}, {2*q}, v{u}\nv_lshl_add_u32 v{vRw+q}, v{u+2}, 4, v{u+1}\nv_xor_b32 v{vRwb+q}, 0x1000, v{vRw+q}')
    vq += lines(f'v_lshrrev_b32 v{u}, 2, v{vL}\nv_and_b32 v{u+1}, 3, v{vL}\nv_and_b32 v{u+2}, 7, v{u}\nv_lshlrev_b32 v{u+3}, 1, v{u+1}\nv_xor_b32 v{u+2}, v{u+2}, v{u+3}\n'
                f'v_lshlrev_b32 v{u+2}, 4, v{u+2}\nv_lshl_add_u32 v{u+2}, v{u}, 7, v{u+2}')
    vq += [f's_lshl_b32 s{sT}, s{sI}, 11\ns_add_u32 s{sT2}, s{sT2}, s{sT}']
    nsafe = len(vq)
    for k in range(4):
        vq += [f's_xor_b32 s{sT}, s{sJ}, {k}\ns_mul_i32 s{sT}, s{sT}, {AREA}\ns_add_u32 s{sT}, s{sT}, s{sT2}', f'v_add_u32 v{vRr+2*k}, s{sT}, v{u+2}', f'v_xor_b32 v{vRr+2*k+1}, 16, v{vRr+2*k}']
    uq = []
    def vdo(budget):
        while (uq or vq) and budget > 0:
            x = (uq or vq).pop(0)
            if callable(x): x(); continue
            a(x); budget -= cost(x)
    if RPRE0:
        assert opt('sk', 28) == 28 and RPRE0 <= 32
        rdma(RPRE0)
        vdo(opt('tf0', 60) + opt('tf0b', 40))
    else:
        a.wait_vm('R0'); stamp(a, 3, '5')
        for x in stage_reads(0): a(x)
        vdo(opt('tf0', 60))
        stamp(a, 4, '5'); a.wait_vm('R1'); stamp(a, 5, '5')
        for x in stage_reads(1): a(x)
        vdo(opt('tf0b', 40))
        if NSTG == 3:
            a.wait_vm('R2')
            for x in stage_reads(2): a(x)
    a('s_waitcnt lgkmcnt(0)')
    stamp(a, 3, '3'); stamp(a, 6, '5'); a.wait_vm('ST'); stamp(a, 7, '5')
    wg_flag(a, vFl)
    stamp(a, 8, '5')
    stamp(a, 4); stamp(a, 4, '3')
    nr = max(opt('rb', 10), RPRE0)
    rdma(nr - RPRE0)
    did2 = NSTG == 3
    while nr < NR - RLATE:
        if nr >= P1POS and 'P1' not in a.vm: poll_issue(a, 'P1', vPa)
        rdma(1); nr += 1
        if nr == 20 and not did2: uq += [lambda: a.wait_vm('R2')] + stage_reads(2); did2 = True
        vdo(opt('tf1', 8))
    if 'P1' not in a.vm: poll_issue(a, 'P1', vPa)
    stamp(a, 5, '3')
    if not did2: uq += [lambda: a.wait_vm('R2')] + stage_reads(2)
    vdo(10000)
    stamp(a, 5); stamp(a, 6, '3')
    poll_check(a, 'P1', vPa, mask='15' if VSPLIT else None)
    stamp(a, 6); stamp(a, 7, '3'); stamp(a, 1, '4')
    horder = list(range(HN0)) + [28, 29, 30, 31] + list(range(HN0, 28)) + list(range(32, 56))
    sHq = [sB0, sB1]
    def hload(pos):
        i = horder[pos]
        rb, k = divmod(i, 28)
        c = (sGh0, sGh1)[rb]
        if k % 4 == 0:
            a(f's_mov_b32 s{c}, s{sG0}' if k == 0 else rot_next(c))
            a(f's_lshl_b32 s{sHq[rb]}, s{c}, 12\ns_add_u32 s{sHq[rb]}, s{sHq[rb]}, s{sHb}')
            if rb: a(f's_add_u32 s{sHq[rb]}, s{sHq[rb]}, {32*HB_SIG}')
        a.vmem(f'buffer_load_dwordx4 {ar(aH+4*(i%32))}, v{vHo}, {sr(SH)}, s{sHq[rb]} offen offset:{(k % 4)*1024} sc1', f'H{i}')
    def vloads():
        if VSPLIT: poll_check(a, 'P2', vPa, sleep=0)
        for j in range(8):
            a(f's_movk_i32 s{sA2}, {j*4096}')
            a.vmem(f'buffer_load_dwordx4 {vr(VF+4*j)}, v{vVo}, {sr(SV)}, s{sA2} offen sc1', f'V{j}')
    def smalls():
        a.vmem(f'buffer_load_dword v{vRi}, v{vU8}, {sr(SM)}, s{sRi} offen offset:4 sc1', 'RI')
        a(f's_lshl_b32 s{sA2}, s{sT1}, 9')
        a.vmem(f'buffer_load_dword v{vRi+1}, v{vRo}, {sr(SM)}, s{sA2} offen offset:4 sc1', 'RI')
        a(f's_add_u32 s{sA2}, s{sA2}, {32*512}')
        a.vmem(f'buffer_load_dword v{vRi+2}, v{vRo}, {sr(SM)}, s{sA2} offen offset:4 sc1', 'RI')
        a.vmem(f'buffer_load_dwordx4 {vr(XR)}, v{vOo}, {sr(SX)}, 0 offen', 'X')
        a.vmem(f'buffer_load_dwordx4 {vr(XR+4)}, v{vOo+1}, {sr(SX)}, 0 offen', 'X')
    a('s_waitcnt lgkmcnt(0)')
    def vload(j):
        a(f's_movk_i32 s{sA2}, {j*4096}')
        a.vmem(f'buffer_load_dwordx4 {vr(VF+4*j)}, v{vVo}, {sr(SV)}, s{sA2} offen sc1', f'V{j}')
    lq = [('h', i) for i in range(56)]
    vpos = opt('vpos', 14)
    lq = lq[:vpos] + [('v', j) for j in range(8)] + [('s', 0)] + lq[vpos:]
    pos = opt('rpos', 8)
    for _ in range(RLATE):
        lq.insert(pos, ('r', 0)); pos += opt('rstep', 2)
    def lnext(i):
        if not lq: return
        kind, x = lq[0]
        if kind == 'h' and horder[x] - 32 > i: return
        lq.pop(0)
        if kind == 'h': hload(x)
        elif kind == 'v': vload(x)
        elif kind == 'r': rdma(1)
        else: smalls()
    for i in range(HB0): lnext(-1)
    stamp(a, 8, '3'); stamp(a, 2, '4')
    def ard(k):
        s = aF + 8 * (k % (PD + 1))
        return [f'ds_read_b64_tr_b16 {ar(s+4*blk+2*p,2)}, v{va} offset:{(k-12)*2048 + p*1024}'
                for blk, va in enumerate((vTra, vTrb)) for p in range(2)]
    state = dict(lgk=[])
    HPS = [int(c) for c in (OPT.get('hpp', '1112') * opt('hpn', 10) + '1')]
    def lds(s, tag):
        a(s); state['lgk'].append(tag)
    def wait_lgk(tag):
        L = state['lgk']
        if tag not in L: return
        idx = max(i for i, x in enumerate(L) if x == tag)
        a(f's_waitcnt lgkmcnt({min(len(L)-1-idx, 15)})')
        state['lgk'] = L[idx+1:]
    def kstep(rb, k, fill, fill0=()):
        i = 28*rb + k
        acc = ACC0 if rb == 0 else ACC1
        assert not any(kd == 'h' and horder[x] == i for kd, x in lq)
        a.wait_vm(f'H{i}')
        if k >= 12: wait_lgk(f'A{rb}_{k}')
        if rb == 0 and 12 <= k + PD < 28 and (k + PD) % 4 == 0:
            assert not any(t_ == f'R{(k+PD)//4}' for _, t_ in rq)
            a.wait_vm(f'R{(k+PD)//4}')
        A = aW + 8*k if k < 12 else aF + 8*(k % (PD + 1))
        B = ar(aH + 4*(i % 32))
        a(mfma(vr(acc,16), ar(A), B, vr(acc,16) if k else '0'))
        if 12 <= k + PD < 28:
            for r in ard(k+PD): lds(r, f'A{rb}_{k+PD}')
        for f in fill0: f()
        a(mfma(vr(acc+16,16), ar(A+4), B, vr(acc+16,16) if k else '0'))
        for _ in range(HPS[min(i, len(HPS) - 1)]): lnext(i)
        for f in fill: f()
    def take(Q, budget):
        out = []
        while Q and budget > 0:
            x = Q.pop(0)
            if isinstance(x, str): budget -= cost(x); out.append(lambda x=x: a(x))
            else: budget -= 1; out.append(x)
        return out
    def vstep(j):
        def f():
            assert ('v', j) not in lq
            a.wait_vm(f'V{j}')
            for i in range(4): a(f'v_xor_b32 v{VF+4*j+i}, v{VF+4*j+i}, v{vSg}')
            a('s_nop 1')
            a(mfma(vr(YA,16), vr(VF+4*j), vr(TFd+4*j), vr(YA,16) if j else '0'))
        return f
    for k in range(28):
        fill = []; fill0 = []
        if k + PD < 12: fill0 = take(vq, 5)
        if VM0 <= k < VM0 + 8:
            assert not any('cos' in x for x in vq)
            fill.append(vstep(k - VM0))
        else: fill += take(vq, 4)
        kstep(0, k, fill, fill0)
        if k in (0, 7, 15, 27): stamp(a, {0: 3, 7: 4, 15: 5, 27: 6}[k], '4')
    assert not vq
    stamp(a, 7)
    def red_write(acc, base): return [(lambda q=q: lds(f'ds_write_b128 v{base+q}, {vr(acc+4*q)}', 'RW')) for q in range(4)]
    def scale_own(acc, rb):
        def f():
            sk = a.label('noy')
            a(f's_cmp_lg_u32 s{sI}, {rb}\ns_cbranch_scc1 {sk}')
            for r in range(16): a(f'v_fma_f32 v{acc+r}, v{acc+r}, v{vRi}, v{YA+r}')
            a(f'{sk}:')
        return f
    def barrier():
        wait_lgk('RW'); a('s_barrier')
    def finalize(P, rb):
        L = []
        for k in range(4):
            for h in range(2):
                L.append(lambda k=k, h=h: lds(f'ds_read_b128 {vr(P+8*k+4*h)}, v{vRr+2*(k ^ (2*rb))+h}', f'RR{k}'))
        U = 56
        for i in range(4): L += [f'v_lshlrev_b32 v{U+2*i}, 16, v{XR+4*rb+i}', f'v_and_b32 v{U+2*i+1}, 0xffff0000, v{XR+4*rb+i}']
        L.append(lambda: wait_lgk('RR0'))
        L += [f'v_add_f32 v{P+r}, v{P+r}, v{U+r}' for r in range(8)]
        L.append(lambda: wait_lgk('RR2'))
        L += [f'v_add_f32 v{P+8+r}, v{P+8+r}, v{P+16+r}' for r in range(8)]
        L.append(lambda: wait_lgk('RR3'))
        L += [f'v_add_f32 v{P+8+r}, v{P+8+r}, v{P+24+r}' for r in range(8)]
        L += [f'v_fma_f32 v{P+r}, v{P+8+r}, v{vRi+1+rb}, v{P+r}' for r in range(8)]
        L += [f'v_cvt_pk_bf16_f32 v{U+p}, v{P+2*p}, v{P+2*p+1}' for p in range(4)]
        L.append(lambda: a.vmem(f'buffer_store_dwordx4 {vr(U)}, v{vOo+rb}, {sr(SO)}, 0 offen {OST}', 'O'))
        return L
    def run(L):
        for f in take(L, 10**6): f()
    PF = 104
    assert ('s', 0) not in lq
    a.wait_vm('X')
    work = red_write(ACC0+16, vRwb) + [scale_own(ACC0, 0)] + red_write(ACC0, vRw)
    post = finalize(PF, 0)
    KB1, KB2 = opt('kb1', 10), 25
    for k in range(28):
        fill = []; fill0 = []
        if 3 <= k < KB1: fill = take(work, 2)
        if k == KB1:
            assert not work
            fill = [barrier]
        if KB1 < k < KB2:
            fill0 = take(post, 1)
            fill = take(post, FILL)
        if k == KB2:
            assert not post and not any(x.startswith('RR') for x in state['lgk']), post
            fill = [lambda: a('s_barrier')]
        kstep(1, k, fill, fill0)
        if k in (11, 27): stamp(a, {11: 7, 27: 8}[k], '4'); cstamp(a, {11: 5, 27: 7}[k])
    stamp(a, 8)
    a('s_nop 10')
    run([scale_own(ACC1, 1)] + red_write(ACC1, vRw) + red_write(ACC1+16, vRwb))
    barrier()
    run(finalize(PF, 1))

def main():
    body = gen()
    k = NAME + '_kernel'
    print(f'''; FNet mixing (two-stage DFT factorisation, 2048 = 32 x 64) + ReLU FFN + residual in one persistent launch.
; @launch grid=(256,1,1) block=(256,1,1) lds={LDS_SIZE}
.amdgcn_target "amdgcn-amd-amdhsa--gfx950"
.text
.globl {k}
.p2align 8
.type {k},@function
{k}:
{body}
.section .rodata,"a"
.p2align 6
.amdhsa_kernel {k}
  .amdhsa_next_free_vgpr {256+NAGPR}
  .amdhsa_next_free_sgpr 102
  .amdhsa_accum_offset 256
  .amdhsa_group_segment_fixed_size 0
  .amdhsa_kernarg_size 88
  .amdhsa_user_sgpr_count 2
  .amdhsa_user_sgpr_kernarg_segment_ptr 1
  .amdhsa_system_sgpr_workgroup_id_x 1
.end_amdhsa_kernel''')
main()
```

```python
import sys, struct
NAME = 'parallel_sum__spectral_fnet__dense_activation_relu__prompt'
OPT = dict(a.split('=') for a in sys.argv[1:] if '=' in a)
def opt(k, d): return type(d)(OPT.get(k, d))
STAMP = opt('stamp', 0); LST = OPT.get('lst')
RATE = [int(c) for c in OPT.get('rate', '3')]
ROT = opt('rot', 1)
POLL0 = opt('poll0', 15); PCHK = opt('pchk', 6)
NW = opt('nw', 16); W0 = opt('w0', 16); WPS = [int(c) for c in OPT.get('wps', '112')]
RPRE0 = opt('rpre0', 0); P1POS = opt('p1pos', 26); RLATE = opt('rlate', 0)
HB0 = opt('hb0', 14); VM0 = opt('vm0', 20); FILL = opt('fill', 5); SLEEP = opt('sleep', 4)
OST = OPT.get('ost', '').replace('_', ' ')
TW = opt('tw', -1); ROT1 = opt('rot1', 4); XOFF = opt('xoff', 0); VSPLIT = opt('vsplit', 0)

def f2h(x): return '0x%08x' % struct.unpack('<I', struct.pack('<f', x))[0]

WS0 = opt('ws0', 0) << 20
HB_SIG = opt('hbs', 29) * 4096
HB_SIZE = 64 * HB_SIG
VB_OFF = WS0 + 0x800000
VB_SIZE = 32 * 16 * 256 * 16
SM_OFF = WS0 + 0xA00000
SM_SIZE = 0x20000
CSW, CSZ = 0x8000, 0x18000
FLH, FLV, EPO = 0x10000, 0x11000, 0x14000
ST_OFF = 0x1000000
SLOT = 36864
VX = 4 * SLOT
AREA = 40960
LDS_SIZE = 163840
SPIN_MAX = 1 << 17

SX, SW, SD, SH, SV, SM, SW2, SO = 24, 28, 32, 36, 40, 44, 48, 52
sTag = 56
sW, sI, sJ, sRT, sCG, sSig, sLx, sLw, sLd, sT, sT2, sT3, sT1, sCT = 58, 59, 60, 61, 62, 63, 64, 65, 66, 67, 68, 69, 70, 71
sA0, sA1, sA2, sA3, sA4, sOnes, sSpin, sB0, sB1, sG0 = 72, 73, 74, 75, 76, 77, 78, 79, 80, 81
sGc, sGw, sGh0, sGh1 = 6, 7, 3, 6
sArea, sHb, sRi, sG1, sStg = 20, 21, 77, 10, 11
STB = 82
vL, vU, vHH = 1, 2, 3
vXo, vWo, vDo = 4, 8, 12
vRb, vRp, vRd, vTa, vTb = 13, 21, 29, 37, 39
vM8, vU8, vH16, vZs, vP = 41, 42, 43, 44, 46
vt = 48
WC, TF, FR, ACC = 56, 72, 104, 144
MO, MP, CA, CB, CZ, ZR = 224, 228, 232, 236, 100, 240
vWt = 84
vW2, vTra, vTrb, vZw, vPa, vVo, vSg, vOo, vRo = 48, 52, 53, 54, 55, 45, 72, 74, 76
vSt = [(54, 73), (77, 83)]
vFl = 92
aW, aH, aF = 0, 96, 224
aRaw = aH
NAGPR = 256
PD = opt('pd', 3); RL0 = opt('rl0', 0); VL0 = opt('vl0', -1); HN0 = opt('hn0', 28); P2K = opt('p2k', -1)

class Asm:
    def __init__(self):
        self.L = []; self.vm = []; self.nlab = 0
    def __call__(self, s):
        for line in s.split('\n'):
            line = line.strip()
            self.L.append(line if line.endswith(':') else '    ' + line)
    def vmem(self, s, tag):
        self(s); self.vm.append(tag)
    def emit(self, ins):
        s, tag = ins
        if tag: self.vmem(s, tag)
        else: self(s)
    def wait_vm(self, tag):
        if tag not in self.vm: return
        idx = max(i for i, t in enumerate(self.vm) if t == tag)
        n = len(self.vm) - 1 - idx
        self(f's_waitcnt vmcnt({min(n, 63)})')
        self.vm = self.vm[idx + 1:]
    def label(self, p):
        self.nlab += 1
        return f'L{p}_{self.nlab}'
    def text(self): return '\n'.join(self.L)

def vr(b, n=4): return f'v[{b}:{b+n-1}]'
def ar(b, n=4): return f'a[{b}:{b+n-1}]'
def sr(b, n=4): return f's[{b}:{b+n-1}]'
def srd(a, d, lo, size, off=0):
    if off: a(f's_add_u32 s{d}, s{lo}, {off}\ns_addc_u32 s{d+1}, s{lo+1}, 0')
    else: a(f's_mov_b32 s{d}, s{lo}\ns_mov_b32 s{d+1}, s{lo+1}')
    a(f's_mov_b32 s{d+2}, {size}\ns_mov_b32 s{d+3}, 0x20000')
def stamp(a, idx, mode=None):
    if not STAMP: return
    if 1 <= idx <= 8 and mode != LST: return
    a(f's_memrealtime s[{STB+2*idx}:{STB+2*idx+1}]')
def cstamp(a, idx):
    if STAMP and LST == '6': a(f's_memrealtime s[{STB+2*idx}:{STB+2*idx+1}]\ns_memtime s[{STB+2*idx+2}:{STB+2*idx+3}]')
def mfma(D, A, B, C): return f'v_mfma_f32_32x32x16_bf16 {D}, {A}, {B}, {C}'
def lines(s): return s.split('\n')
def cost(x): return sum(2 if ('cos' in y or 'sin' in y) else 1 for y in x.split('\n'))

def stamp_store(a):
    if not STAMP: return
    a('s_waitcnt vmcnt(0) lgkmcnt(0)')
    if LST != '7': stamp(a, 9)
    a('s_waitcnt lgkmcnt(0)')
    if STAMP == 3:
        pa, pb = map(int, OPT['probe'].split(','))
        sk = a.label('pskip'); sp = a.label('pspin')
        a(f's_cmp_lg_u32 s2, {OPT.get("pwg", 0)}\ns_cbranch_scc1 {sk}\ns_cmp_lg_u32 s{sW}, {OPT.get("pwv", 0)}\ns_cbranch_scc1 {sk}')
        if pa < 0:
            a(f'v_mov_b32 v4, {EPO+128}\nbuffer_load_dword v5, v4, {sr(SM)}, 0 offen sc1\ns_waitcnt vmcnt(0)\nv_readfirstlane_b32 s{STB-2}, v5\ns_nop 3')
        a(f's_sub_u32 s{sT}, s{STB+2*pb}, s{STB+2*pa}\ns_add_u32 s{sT}, s{sT}, {opt("poff", 0)}\ns_min_u32 s{sT}, s{sT}, 5000\ns_mul_i32 s{sT}, s{sT}, 10')
        a(f's_memrealtime s[4:5]\ns_waitcnt lgkmcnt(0)\ns_add_u32 s{sT}, s{sT}, s4')
        a(f'{sp}:\ns_memrealtime s[4:5]\ns_waitcnt lgkmcnt(0)\ns_sub_u32 s{sT2}, s{sT}, s4\ns_cmp_gt_i32 s{sT2}, 0\ns_cbranch_scc1 {sp}')
        a(f'{sk}:')
        return
    srd(a, SX, 18, 65536, ST_OFF)
    a(f's_lshl_b32 s{sT}, s2, 2\ns_add_u32 s{sT}, s{sT}, s{sW}\ns_lshl_b32 s{sT}, s{sT}, 6')
    a(f'v_mov_b32 v5, s{sT}')
    for i in range(10):
        a(f'v_mov_b32 v4, s{STB+2*i}')
        a(f'buffer_store_dword v4, v5, {sr(SX)}, 0 offen offset:{4*i}')
        a('s_nop 1')

def poll_issue(a, tag, va, vd=vP):
    a.vmem(f'buffer_load_dwordx2 {vr(vd,2)}, v{va}, {sr(SM)}, 0 offen sc1', tag)
def poll_check(a, tag, va, vd=vP, sleep=SLEEP, mask=None):
    ok = a.label('ok'); lp = a.label('spin')
    a.wait_vm(tag)
    mk = f'\ns_and_b64 vcc, vcc, {mask}' if mask else ''
    a(f'v_cmp_ne_u64 vcc, s[{sTag}:{sTag+1}], {vr(vd,2)}' + mk)
    a(f's_cbranch_vccz {ok}')
    a(f's_mov_b32 s{sSpin}, {SPIN_MAX}')
    a(f'{lp}:')
    if sleep: a(f's_sleep {sleep}')
    a(f'buffer_load_dwordx2 {vr(vd,2)}, v{va}, {sr(SM)}, 0 offen sc1')
    a(f's_sub_u32 s{sSpin}, s{sSpin}, 1\ns_cbranch_scc1 {ok}')
    a('s_waitcnt vmcnt(0)')
    a(f'v_cmp_ne_u64 vcc, s[{sTag}:{sTag+1}], {vr(vd,2)}' + mk)
    a(f's_cbranch_vccnz {lp}')
    a(f'{ok}:')
def wg_flag_prep(tmp, u0, u1):
    return [f's_lshl_b32 s{u0}, s{sCG}, 4\ns_add_u32 s{u0}, s{u0}, s{sRT}\ns_lshl_b32 s{u0}, s{u0}, 3\ns_add_u32 s{u0}, s{u0}, {FLV}',
            f's_lshl_b32 s{u1}, s{sRT}, 4\ns_add_u32 s{u1}, s{u1}, s{sCG}\ns_lshl_b32 s{u1}, s{u1}, 3\ns_add_u32 s{u1}, s{u1}, {FLH}\ns_sub_u32 s{u1}, s{u1}, s{u0}',
            f'v_mul_lo_u32 v{tmp+2}, v{vL}, s{u1}', f'v_add_u32 v{tmp+2}, s{u0}, v{tmp+2}',
            f'v_mov_b32 v{tmp}, s{sTag}', f'v_mov_b32 v{tmp+1}, s{sTag+1}']
def wg_flag(a, tmp, barrier=True):
    a.wait_vm('ST')
    if barrier: a('s_barrier')
    sk = a.label('nofl')
    a(f's_cmp_lg_u32 s{sW}, 0\ns_cbranch_scc1 {sk}')
    a('s_mov_b64 exec, 3')
    a(f'buffer_store_dwordx2 {vr(tmp,2)}, v{tmp+2}, {sr(SM)}, 0 offen sc1')
    a('s_mov_b64 exec, -1')
    a(f'{sk}:')
def col_record(a, o, src):
    a(f'v_cvt_pk_bf16_f32 v{o+2}, v{src}, v{src}\nv_and_b32 v{o+3}, 0xffff0000, v{o+2}\nv_sub_f32 v{o+4}, v{src}, v{o+3}')
    a(f'v_cvt_pk_bf16_f32 v{o}, v{src}, v{o+4}\nv_and_b32 v{o+3}, 0xffff0000, v{o}\nv_sub_f32 v{o+4}, v{o+4}, v{o+3}')
    a(f'v_cvt_pk_bf16_f32 v{o+1}, v{o+4}, 0')
    a(f'v_mov_b32 v{o+2}, s{sTag}\nv_mov_b32 v{o+3}, s{sTag+1}')
def get_tag(a):
    a('s_waitcnt lgkmcnt(0)')
    a(f's_add_u32 s{sTag}, s{sTag}, 0x7f4a7c15\ns_addc_u32 s{sTag+1}, s{sTag+1}, 0x9e3779b9')
CW_OFF = f's_lshl_b32 s{sA2}, s{sCG}, 11\ns_lshl_b32 s{sA3}, s{sJ}, 10\ns_add_u32 s{sA2}, s{sA2}, s{sA3}\ns_lshl_b32 s{sA3}, s{sI}, 9\ns_add_u32 s{sA2}, s{sA2}, s{sA3}\ns_add_u32 s{sA2}, s{sA2}, {CSW}'
def stat_loads(role):
    ld = lambda r: (f'buffer_load_dwordx4 {vr(r)}, v{vU8}, {sr(SM)}, s{sA2} offen sc1', 'SL')
    ins = [(f's_lshl_b32 s{sA2}, s{sSig}, 9', None), ld(MO)]
    if role == 'A':
        ins += [(f's_xor_b32 s{sA2}, s{sA2}, 512', None), ld(MP), (CW_OFF, None), ld(CA), (f's_xor_b32 s{sA2}, s{sA2}, 512', None), ld(CB)]
    ins += [(f's_lshl_b32 s{sA2}, s{sCG}, 9\ns_add_u32 s{sA2}, s{sA2}, {CSZ}', None), ld(CZ)]
    return ins
def stat_check(a, role):
    ok = a.label('ok'); lp = a.label('spin')
    recs = [MO, MP, CA, CB, CZ] if role == 'A' else [MO, CZ]
    def cmp():
        for i, r in enumerate(recs):
            a(f'v_cmp_ne_u64 {"s[22:23]" if i else "vcc"}, s[{sTag}:{sTag+1}], {vr(r+2,2)}')
            if i: a('s_or_b64 vcc, vcc, s[22:23]')
    a.wait_vm('SL')
    cmp()
    a(f's_cbranch_vccz {ok}')
    a(f's_mov_b32 s{sSpin}, {SPIN_MAX}')
    a(f'{lp}:')
    for ins in stat_loads(role): a(ins[0])
    a(f's_sub_u32 s{sSpin}, s{sSpin}, 1\ns_cbranch_scc1 {ok}')
    a('s_waitcnt vmcnt(0)')
    cmp()
    a(f's_cbranch_vccnz {lp}')
    a(f'{ok}:')
def stat_fix(role):
    L = [f'ds_write_b32 v{vZs}, v{MO+1}']
    for r in ([MO, MP] if role == 'A' else [MO]):
        L += [f'v_and_b32 v{r}, v{r}, v{vM8}', f'v_and_b32 v{r+1}, 0xffff, v{r}', f'v_mov_b32 v{r+2}, 0', f'v_mov_b32 v{r+3}, 0']
    for r in ([CA, CB, CZ] if role == 'A' else [CZ]):
        L += [f'v_mov_b32 v{r+2}, 0', f'v_mov_b32 v{r+3}, 0']
    L += [f'ds_read_b128 {vr(ZR+4*q)}, v{vH16} offset:{32*q}' for q in range(4)]
    return L

def rot_next(c): return f's_add_u32 s{c}, s{c}, 1\ns_cmp_eq_u32 s{c}, 7\ns_cselect_b32 s{c}, 0, s{c}'
def dma_group(role, g):
    slot = (g % 4) * SLOT
    ins = []
    if role == 'A':
        ins.append((f's_mov_b32 s{sGc}, s{sG1}' if g == 0 else rot_next(sGc), None))
        ins.append((f's_lshl_b32 s{sA0}, s{sGc}, 7\ns_mul_i32 s{sA1}, s{sGc}, {64*3584}', None))
    else:
        ins.append((f's_movk_i32 s{sA0}, {g*128}\ns_mov_b32 s{sA1}, {g*64*3584}', None))
    if role != 'C':
        ins.append((f's_add_u32 m0, s{sLx}, {slot}\ns_nop 0', None))
        for q in range(4):
            ins.append((f'buffer_load_dwordx4 v{vXo+q}, {sr(SX)}, s{sA0} offen offset:{q*1024} lds', f'G{g}'))
        ins.append((f's_add_u32 m0, s{sLd}, {slot}\ns_nop 0', None))
        ins.append((f'buffer_load_dwordx4 v{vDo}, {sr(SD)}, s{sA0} offen lds', f'G{g}'))
    if role != 'B':
        ins.append((f's_add_u32 m0, s{sLw}, {slot}\ns_nop 0', None))
        for i in range(4):
            ins.append((f'buffer_load_dwordx4 v{vWo+i}, {sr(SW)}, s{sA1} offen offset:{i*1024} lds', f'G{g}'))
    return ins
STG = [3*SLOT, 0, SLOT]
NSTG = opt('nstg', 2)
def w2_group(q):
    base, off = (sStg, STG[q]) if q < NSTG else (sArea, 32768 if q == 2 else (q-3)*8192)
    ins = []
    for m in range(8):
        pre = ''
        if m == 0: pre = (f's_mov_b32 s{sGw}, s{sG0}' if q == 0 else rot_next(sGw)) + f'\ns_mul_i32 s{sA4}, s{sGw}, {8*7168}\n'
        if m == 4: pre = f's_add_u32 s{sA4}, s{sA4}, {4*7168}\n'
        pre += f's_add_u32 m0, s{base}, {off + 4096*(m//4)}\ns_nop 0\n' if (q < NSTG or m % 4 == 0) else ''
        ins.append((pre + f'buffer_load_dwordx4 v{vW2+m%4}, {sr(SW2)}, s{sA4} offen offset:{(m%4)*1024} lds', f'R{q}'))
    return ins
def stage_reads(part):
    va2, off = (vSt[part], 0) if part < 2 else ((vSt[1], SLOT) if NSTG == 3 else ((vTra, vTrb), 32768))
    return [f'ds_read_b64_tr_b16 {ar(aW+8*(4*part+kk)+4*blk+2*p,2)}, v{va} offset:{off + kk*2048 + p*1024}'
            for kk in range(4) for blk, va in enumerate(va2) for p in range(2)]

def p1_addr_dma(a):
    t = FR
    a(f'v_lshrrev_b32 v{t+1}, 3, v{vL}\nv_and_b32 v{t+2}, 7, v{vL}\nv_lshrrev_b32 v{t+3}, 1, v{t+1}')
    a(f'v_xor_b32 v{t+4}, v{t+2}, v{t+3}\nv_lshlrev_b32 v{t+4}, 4, v{t+4}')
    a(f'v_mul_u32_u24 v{t+5}, {64*896}, v{t+1}')
    a(f's_mul_i32 s{sT}, s{sSig}, 896')
    a(f'v_add3_u32 v{vXo}, v{t+5}, v{t+4}, s{sT}')
    a(f'v_xor_b32 v{vXo+1}, 64, v{vXo}')
    a(f'v_add_u32 v{vXo+2}, {2*(458752-1024)}, v{vXo}')
    a(f'v_add_u32 v{vXo+3}, {3*(458752-1024)}, v{vXo+1}')
    a(f'v_add_u32 v{vXo+1}, {1*(458752-1024)}, v{vXo+1}')
    a(f'v_and_b32 v{t+6}, 1, v{t+3}\nv_lshlrev_b32 v{t+6}, 2, v{t+6}\nv_xor_b32 v{t+6}, v{t+6}, v{t+2}\nv_lshlrev_b32 v{t+6}, 4, v{t+6}')
    a(f'v_mul_u32_u24 v{t+7}, 3584, v{t+1}')
    a(f's_mul_i32 s{sT}, s{sI}, {32*3584}\ns_lshl_b32 s{sT2}, s{sCG}, 8\ns_add_u32 s{sT}, s{sT}, s{sT2}\ns_lshl_b32 s{sT2}, s{sJ}, 7\ns_add_u32 s{sT}, s{sT}, s{sT2}')
    a(f'v_add3_u32 v{vWo}, v{t+7}, v{t+6}, s{sT}')
    for i in range(1, 4): a(f'v_add_u32 v{vWo+i}, {i*(8*3584-1024)}, v{vWo}')
    a(f'v_mul_u32_u24 v{t+5}, 896, v{t+1}')
    a(f's_lshl_b32 s{sT}, s{sJ}, 6')
    a(f'v_xor_b32 v{t+6}, s{sT}, v{t+4}')
    a(f's_lshl_b32 s{sT}, s{sCG}, 1\ns_add_u32 s{sT}, s{sT}, s{sJ}\ns_mul_i32 s{sT}, s{sT}, {8*896}')
    a(f'v_add3_u32 v{vDo}, v{t+5}, v{t+6}, s{sT}')
    a(f's_lshl_b32 s{sLx}, s{sW}, 12')
    a(f's_lshl_b32 s{sLw}, s{sJ}, 13\ns_lshl_b32 s{sT}, s{sI}, 12\ns_add_u32 s{sLw}, s{sLw}, s{sT}\ns_add_u32 s{sLw}, s{sLw}, 16384')
    a(f's_lshl_b32 s{sLd}, s{sW}, 10\ns_add_u32 s{sLd}, s{sLd}, 32768')

def p1_addr_read(a):
    t = FR
    a(f'v_and_b32 v{vU}, 31, v{vL}\nv_lshrrev_b32 v{vHH}, 5, v{vL}')
    a(f'v_bfe_u32 v{t}, v{vU}, 1, 3\nv_xor_b32 v{t}, v{t}, v{vHH}')
    a(f'v_lshlrev_b32 v{t+1}, 7, v{vU}')
    a(f's_xor_b32 s{sT}, s{sW}, 1\ns_lshl_b32 s{sT}, s{sT}, 12')
    for jj in range(4):
        a(f'v_xor_b32 v{t+2}, {2*jj}, v{t}\nv_lshl_add_u32 v{t+2}, v{t+2}, 4, v{t+1}')
        a(f'v_add_u32 v{vRb+jj}, s{sLx}, v{t+2}\nv_add_u32 v{vRp+jj}, s{sT}, v{t+2}\nv_add_u32 v{vRd+jj}, 0x8000, v{t+2}')
        for r in (vRb, vRp, vRd): a(f'v_add_u32 v{r+4+jj}, {2*SLOT}, v{r+jj}')
    a(f'v_bfe_u32 v{t}, v{vL}, 2, 2')
    a(f'v_lshl_add_u32 v{t+1}, v{vHH}, 3, v{t}\nv_lshlrev_b32 v{t+1}, 7, v{t+1}')
    a(f'v_lshrrev_b32 v{t}, 1, v{t}\nv_xor_b32 v{t}, s{sI}, v{t}\nv_lshl_add_u32 v{t+1}, v{t}, 6, v{t+1}')
    a(f'v_bfe_u32 v{t}, v{vL}, 4, 1\nv_lshl_add_u32 v{t+1}, v{t}, 5, v{t+1}')
    a(f'v_and_b32 v{t}, 3, v{vL}\nv_lshl_add_u32 v{t+1}, v{t}, 3, v{t+1}')
    a(f's_lshl_b32 s{sT}, s{sJ}, 13\ns_add_u32 s{sT}, s{sT}, 16384')
    a(f'v_add_u32 v{vTa}, s{sT}, v{t+1}\nv_xor_b32 v{vTb}, 64, v{vTa}')
    a(f'v_add_u32 v{vTa+1}, {2*SLOT}, v{vTa}\nv_add_u32 v{vTb+1}, {2*SLOT}, v{vTb}')
def stat_addr():
    return lines(f'v_lshlrev_b32 v{vU8}, 4, v{vU}\nv_add_u32 v{vM8}, -1, v{vHH}') + \
           [f's_lshl_b32 s{sB0}, s{sW}, 7\ns_add_u32 s{sB0}, s{sB0}, {VX+8192}', f'v_lshl_add_u32 v{vZs}, v{vU}, 2, s{sB0}', f'v_lshl_add_u32 v{vH16}, v{vHH}, 4, s{sB0}']

def twiddle_wc(t):
    L = [f'v_cvt_f32_u32 v{t}, v{vU}', f'v_cvt_f32_u32 v{t+1}, v{vHH}', f'v_mul_f32 v{t}, {f2h(1/32)}, v{t}',
         f'v_mul_f32 v{t+1}, 4.0, v{t+1}', f'v_mul_f32 v{t+1}, v{t+1}, v{t}']
    for p in range(8):
        u0 = 16*(p >> 2) + 8*((p & 3) >> 1) + 2*(p & 1)
        L += [f'v_fmamk_f32 v{t+2}, v{t}, {f2h(u0)}, v{t+1}', f'v_fmamk_f32 v{t+3}, v{t}, {f2h(u0+1)}, v{t+1}',
              f'v_cos_f32 v{t+4}, v{t+2}', f'v_cos_f32 v{t+5}, v{t+3}', f'v_sin_f32 v{t+6}, v{t+2}', f'v_sin_f32 v{t+7}, v{t+3}',
              f'v_cvt_pk_bf16_f32 v{WC+p}, v{t+4}, v{t+5}', f'v_cvt_pk_bf16_f32 v{WC+8+p}, -v{t+6}, -v{t+7}']
    return L
def twiddle_tf(t, dst):
    L = []
    for rb in range(2):
        L += [f's_add_u32 s{sT}, s{sT1}, {32*rb}\nv_lshl_add_u32 v{t}, v{vU}, 6, s{sT}', f'v_lshl_add_u32 v{t+1}, v{vHH}, 1, s{sI}',
              f'v_cvt_f32_u32 v{t}, v{t}', f'v_cvt_f32_u32 v{t+1}, v{t+1}', f'v_mul_f32 v{t}, {f2h(1/2048)}, v{t}',
              f'v_mul_f32 v{t+1}, {f2h(8.0)}, v{t+1}', f'v_mul_f32 v{t+1}, v{t+1}, v{t}']
        for jj in range(4):
            for h in range(2):
                k0 = 2*jj + 32*h
                d = dst + 16*rb + 4*jj + 2*h
                L += [f'v_fmamk_f32 v{t+2}, v{t}, {f2h(k0)}, v{t+1}', f'v_fmamk_f32 v{t+3}, v{t}, {f2h(k0+1)}, v{t+1}',
                      f'v_cos_f32 v{t+4}, v{t+2}', f'v_sin_f32 v{t+5}, v{t+2}', f'v_cos_f32 v{t+6}, v{t+3}', f'v_sin_f32 v{t+7}, v{t+3}',
                      f'v_cvt_pk_bf16_f32 v{d}, v{t+4}, v{t+5}', f'v_cvt_pk_bf16_f32 v{d+1}, v{t+6}, v{t+7}']
    return L

def p2_addr_early():
    t = vWt; u, w = sB0, sB1
    L = lines(f'v_lshrrev_b32 v{t+1}, 3, v{vL}\nv_and_b32 v{t+2}, 7, v{vL}\nv_bfe_u32 v{t+3}, v{vL}, 4, 1\nv_lshlrev_b32 v{t+3}, 2, v{t+3}\n'
              f'v_xor_b32 v{t+3}, v{t+3}, v{t+2}\nv_lshlrev_b32 v{t+3}, 4, v{t+3}\nv_mul_u32_u24 v{t+4}, 896, v{t+1}')
    L += [f's_mul_i32 s{u}, s{sW}, {448*896}\ns_lshl_b32 s{w}, s{sCT}, 7\ns_add_u32 s{u}, s{u}, s{w}', f'v_add3_u32 v{vW2}, v{t+4}, v{t+3}, s{u}']
    L += [f'v_add_u32 v{vW2+i}, {i*(7168-1024)}, v{vW2}' for i in range(1, 4)]
    L += lines(f'v_bfe_u32 v{t}, v{vL}, 2, 2\nv_lshl_add_u32 v{t+1}, v{vHH}, 2, v{t}\nv_lshlrev_b32 v{t+1}, 7, v{t+1}\nv_lshrrev_b32 v{t}, 1, v{t}\n'
               f'v_xor_b32 v{t}, s{sJ}, v{t}\nv_lshl_add_u32 v{t+1}, v{t}, 6, v{t+1}\nv_bfe_u32 v{t}, v{vL}, 4, 1\nv_lshl_add_u32 v{t+1}, v{t}, 5, v{t+1}\n'
               f'v_and_b32 v{t}, 3, v{vL}\nv_lshl_add_u32 v{t+1}, v{t}, 3, v{t+1}\ns_mul_i32 s{sArea}, s{sW}, {AREA}\n'
               f'v_add_u32 v{vTra}, s{sArea}, v{t+1}\nv_xor_b32 v{vTrb}, 64, v{vTra}\ns_lshl_b32 s{sStg}, s{sW}, 13\nv_add_u32 v{vSt[1][0]}, s{sStg}, v{t+1}\n'
               f'v_xor_b32 v{vSt[1][1]}, 64, v{vSt[1][0]}\nv_add_u32 v{vSt[0][0]}, {STG[0]}, v{vSt[1][0]}\nv_add_u32 v{vSt[0][1]}, {STG[0]}, v{vSt[1][1]}')
    def vmap(el, e_out, tt_out, sg_out):
        M = [f's_lshl_b32 s{u}, s{sCT}, 6\ns_lshl_b32 s{w}, s{sJ}, 5\ns_add_u32 s{u}, s{u}, s{w}', f'v_add_u32 v{e_out}, s{u}, v{el}', f'v_sub_u32 v{t+6}, 448, v{e_out}',
             f's_sub_u32 s{u}, 32, s{sT1}\ns_and_b32 s{u}, s{u}, 31', f'v_mov_b32 v{tt_out}, s{sT1}', f'v_mov_b32 v{t+7}, s{u}',
             f'v_cmp_lt_u32 vcc, 239, v{e_out}\ns_nop 1\nv_cndmask_b32 v{e_out}, v{e_out}, v{t+6}, vcc\nv_cndmask_b32 v{tt_out}, v{tt_out}, v{t+7}, vcc' +
             (f'\nv_mov_b32 v{t+6}, 0\nv_bfrev_b32 v{t+7}, 1\nv_cndmask_b32 v{sg_out}, v{t+6}, v{t+7}, vcc' if sg_out else '')]
        return M
    L += vmap(vU, t, t+1, vSg)
    L += lines(f'v_lshlrev_b32 v{vVo}, 16, v{t+1}\nv_lshl_add_u32 v{vVo}, v{t}, 4, v{vVo}\nv_lshl_add_u32 v{vVo}, v{vHH}, 15, v{vVo}')
    L += [f's_lshl_b32 s{u}, s{sI}, 14', f'v_add_u32 v{vVo}, s{u}, v{vVo}']
    L += lines(f'v_and_b32 v{t+2}, 48, v{vL}\nv_subrev_u32 v{t+2}, 16, v{t+2}\nv_min_u32 v{t+2}, 31, v{t+2}')
    L += vmap(t+2, t, t+1, None)
    L += lines(f'v_and_b32 v{t}, 0x1f0, v{t}\nv_and_b32 v{t+2}, 15, v{vL}\nv_add_u32 v{t}, v{t}, v{t+2}\nv_lshlrev_b32 v{t}, 3, v{t}\nv_add_u32 v{vPa}, {FLV}, v{t}')
    L += [f's_mul_i32 s{u}, s{sW}, 7\ns_lshr_b32 s{u}, s{u}, 1\ns_lshr_b32 s{w}, s{sT1}, 1\ns_lshl_b32 s{w}, s{w}, 4\ns_add_u32 s{u}, s{u}, s{w}',
          f's_lshl_b32 s{u}, s{u}, 3\ns_add_u32 s{u}, s{u}, {FLH}', f'v_and_b32 v{t}, 3, v{vL}', f'v_lshl_add_u32 v{t}, v{t}, 3, s{u}',
          f'v_cmp_gt_u32 vcc, 16, v{vL}\ns_nop 1\nv_cndmask_b32 v{vPa}, v{vPa}, v{t}, vcc']
    L += [f'v_lshrrev_b32 v{t}, 2, v{vL}', f's_lshl_b32 s{u}, s{sI}, 4', f'v_add_u32 v{t}, s{u}, v{t}']
    L += lines(f'v_and_b32 v{t+1}, 3, v{vL}\nv_mul_u32_u24 v{t+2}, {64*896}, v{t}\nv_lshl_add_u32 v{t+2}, v{t+1}, 4, v{t+2}')
    L += [f's_lshl_b32 s{sRi}, s{sI}, 5\ns_add_u32 s{sRi}, s{sRi}, s{sT1}\ns_mul_i32 s{u}, s{sT1}, 896\ns_lshl_b32 s{w}, s{sCT}, 7',
          f's_add_u32 s{u}, s{u}, s{w}\ns_lshl_b32 s{w}, s{sJ}, 6\ns_add_u32 s{u}, s{u}, s{w}\ns_lshl_b32 s{sRi}, s{sRi}, 9',
          f'v_add_u32 v{vOo}, s{u}, v{t+2}', f'v_add_u32 v{vOo+1}, {32*896}, v{vOo}', f'v_lshlrev_b32 v{vRo}, 4, v{t}',
          f's_mul_i32 s{sHb}, s{sT1}, {HB_SIG}\ns_mul_i32 s{u}, s{sW}, {28*1024}\ns_add_u32 s{sHb}, s{sHb}, s{u}']
    return L

def p1_reads(n):
    g, jj = divmod(n, 4)
    half, so = (g % 4) // 2, (g % 2) * SLOT
    f = FR + 20 * (n & 1)
    return [f'ds_read_b64_tr_b16 {vr(f+8,2)}, v{vTa+half} offset:{so + jj*2048}',
            f'ds_read_b64_tr_b16 {vr(f+10,2)}, v{vTa+half} offset:{so + jj*2048 + 512}',
            f'ds_read_b128 {vr(f)}, v{vRb+4*half+jj} offset:{so}',
            f'ds_read_b128 {vr(f+4)}, v{vRp+4*half+jj} offset:{so}',
            f'ds_read_b64_tr_b16 {vr(f+12,2)}, v{vTb+half} offset:{so + jj*2048}',
            f'ds_read_b64_tr_b16 {vr(f+14,2)}, v{vTb+half} offset:{so + jj*2048 + 512}',
            f'ds_read_b128 {vr(f+16)}, v{vRd+4*half+jj} offset:{so}']
def p1_mfmas(n):
    f = FR + 20 * (n & 1)
    def m(acc, A, B): return mfma(vr(acc, 16), vr(A), vr(B), vr(acc, 16) if n else '0')
    return [m(ACC, f+8, f), m(ACC+16, f+8, f+4), m(ACC+32, f+12, f), m(ACC+48, f+12, f+4), m(ACC+64, f, f+16)]

vZsg, vXw, vXr, vVs, vHo = 78, 79, 80, 81, 82
sHA0, sHA1, sHB0, sHB1 = 4, 5, 8, 9
def z_addr(t, u, w):
    L = lines(f'v_bfe_u32 v{t}, v{vL}, 4, 1\nv_xor_b32 v{vZsg}, 1, v{t}\nv_mul_u32_u24 v{vZsg}, 0x8000, v{vZsg}\nv_lshl_or_b32 v{vZsg}, v{vZsg}, 16, v{vZsg}\n'
              f'v_lshl_add_u32 v{t}, v{vHH}, 2, v{t}\nv_lshlrev_b32 v{t}, 8, v{t}\nv_and_b32 v{t+1}, 15, v{vL}\nv_lshl_add_u32 v{t}, v{t+1}, 4, v{t}')
    L += [f's_lshl_b32 s{u}, s{sW}, 2\ns_add_u32 s{u}, s{u}, {VX}', f'v_add_u32 v{vXw}, s{u}, v{t}',
          f's_lshl_b32 s{u}, s{sW}, 11\ns_add_u32 s{u}, s{u}, {VX}', f'v_lshlrev_b32 v{vHo}, 4, v{vL}', f'v_add_u32 v{vXr}, s{u}, v{vHo}']
    L += lines(f'v_lshrrev_b32 v{t}, 4, v{vL}\nv_lshlrev_b32 v{t}, 16, v{t}\nv_lshl_add_u32 v{t}, v{t+1}, 4, v{t}')
    L += [f's_lshl_b32 s{u}, s{sW}, 19\ns_lshl_b32 s{w}, s{sRT}, 12\ns_add_u32 s{u}, s{u}, s{w}\ns_lshl_b32 s{w}, s{sCG}, 8\ns_add_u32 s{u}, s{u}, s{w}',
          f'v_add_u32 v{vVs}, s{u}, v{t}']
    return L
def h_addr(u, w):
    return [f's_lshl_b32 s{u}, s{sCG}, 3\ns_lshl_b32 s{w}, s{sJ}, 2\ns_add_u32 s{u}, s{u}, s{w}\ns_lshl_b32 s{w}, s{sI}, 1\ns_add_u32 s{u}, s{u}, s{w}',
            f's_lshl_b32 s{u}, s{u}, 10\ns_mul_i32 s{w}, s{sSig}, {HB_SIG}\ns_add_u32 s{sHA0}, s{u}, s{w}',
            f's_xor_b32 s{w}, s{sSig}, 1\ns_mul_i32 s{w}, s{w}, {HB_SIG}\ns_add_u32 s{sHA1}, s{u}, s{w}',
            f's_xor_b32 s{sHB0}, s{sHA0}, 2048\ns_xor_b32 s{sHB1}, s{sHA1}, 2048']

def hblock_list(a, acc, so):
    L = [f'v_cvt_pk_bf16_f32 v{acc+p}, v{acc+2*p}, v{acc+2*p+1}' for p in range(8)]
    L += [f'v_pk_max_i16 v{acc+p}, v{acc+p}, 0' for p in range(8)] if not opt('maxf', 0) else []
    L.append(lambda: a.vmem(f'buffer_store_dwordx4 {vr(acc)}, v{vHo}, {sr(SH)}, s{so} offen sc1', 'ST'))
    L.append(lambda: a.vmem(f'buffer_store_dwordx4 {vr(acc+4)}, v{vHo}, {sr(SH)}, s{so} offen offset:1024 sc1', 'ST'))
    if opt('maxf', 0): L = [f'v_max_f32 v{acc+r}, 0, v{acc+r}' for r in range(16)] + L
    return L
def early_epilogue(a, lds, wait_lg):
    ZA = ACC + 64
    T1 = [FR+8, FR+16]; T2 = [FR+28, FR+36]
    b1 = lambda p: T1[p >> 2] + (p & 3)
    b2 = lambda p: T2[p >> 2] + (p & 3)
    L = ['s_nop 3'] + hblock_list(a, ACC, sHA0)
    L += [f'v_mul_f32 v{ZA+r}, v{ZA+r}, v{ZR+r}' for r in range(16)]
    L += [f'v_cvt_pk_bf16_f32 v{b1(p)}, v{ZA+2*p}, v{ZA+2*p+1}' for p in range(8)]
    L += [(lambda p=p: lds(f'ds_swizzle_b32 v{b2(p)}, v{b1(p)} offset:0x401f', 'sw')) for p in range(8)]
    L += [mfma(vr(ZA,16), vr(WC), vr(T1[0]), '0'), mfma(vr(ZA,16), vr(WC+4), vr(T1[1]), vr(ZA,16))]
    L += [lambda: wait_lg('sw')] + [f'v_xor_b32 v{b2(p)}, v{b2(p)}, v{vZsg}' for p in range(8)] + ['s_nop 1']
    L += [mfma(vr(ZA,16), vr(WC+8), vr(T2[0]), vr(ZA,16)), mfma(vr(ZA,16), vr(WC+12), vr(T2[1]), vr(ZA,16))]
    L += hblock_list(a, ACC+16, sHA1)
    L += [f'v_permlane16_swap_b32 v{ZA+2*p}, v{ZA+2*p+1}' for p in range(8)] + ['s_nop 1']
    L += [f'v_cvt_pk_bf16_f32 v{b1(p)}, v{ZA+2*p}, v{ZA+2*p+1}' for p in range(8)]
    L += [(lambda p=p: lds(f'ds_write_b32 v{vXw}, v{b1(p)} offset:{((2*p & 3) + 8*(p >> 1))*256}', 'xw')) for p in range(8)]
    L += [lambda: (wait_lg('xw'), a('s_barrier'))]
    L += [lambda: lds(f'ds_read_b128 {vr(T2[0])}, v{vXr}', 'xr'), lambda: lds(f'ds_read_b128 {vr(T2[1])}, v{vXr} offset:1024', 'xr')]
    L += [f's_mov_b32 s{sT}, {4*65536}', 'MARK']
    L += [lambda: wait_lg('xr'),
          lambda: a.vmem(f'buffer_store_dwordx4 {vr(T2[0])}, v{vVs}, {sr(SV)}, 0 offen sc1', 'ST'),
          lambda: a.vmem(f'buffer_store_dwordx4 {vr(T2[1])}, v{vVs}, {sr(SV)}, s{sT} offen sc1', 'ST')]
    L.remove('MARK')
    return L
def rank1():
    return [mfma(vr(ACC,16), vr(CA), vr(MO), vr(ACC,16)), mfma(vr(ACC+16,16), vr(CA), vr(MP), vr(ACC+16,16)),
            mfma(vr(ACC+32,16), vr(CB), vr(MO), vr(ACC+32,16)), mfma(vr(ACC+48,16), vr(CB), vr(MP), vr(ACC+48,16)),
            mfma(vr(ACC+64,16), vr(MO), vr(CZ), vr(ACC+64,16))]
def p1_loop(a):
    lg = []
    def lds(x, tag):
        a(x); lg.append(tag)
    def wait_lg(tag=None):
        if tag is None:
            if lg: a('s_waitcnt lgkmcnt(0)'); lg.clear()
            return
        if tag not in lg: return
        idx = max(i for i, x in enumerate(lg) if x == tag)
        a(f's_waitcnt lgkmcnt({min(len(lg)-1-idx, 15)})')
        del lg[:idx+1]
    RT = ['m0', 'm0', 'm0', 'm1', 'm2', 'm2', 'm4']
    FG = opt('fg', 5); FINE = opt('fine', 1)
    a.wait_vm('G0')
    a('s_barrier')
    stamp(a, 1); stamp(a, 1, '1')
    for r, t_ in zip(p1_reads(0), RT): lds(r, f'0{t_}')
    a.lgw = wait_lg
    q = dma_group('A', 2) + dma_group('A', 3)
    vq = stat_addr() + p2_addr_early() + twiddle_wc(vWt) + z_addr(vWt, sB0, sB1) + h_addr(sB0, sB1) + wg_flag_prep(vFl, sB0, sB1)
    wq = [x for q_ in range(NSTG) for x in w2_group(q_)]
    midgroup = [False]
    SK = opt('sk', 28)
    seq = [(n, 'AZB') for n in range(SK)] + [(n, 'AZ') for n in range(SK, 28)] + [(n, 'B') for n in range(SK, 28)]
    def reads(pos):
        n, kind = seq[pos]
        g, jj = divmod(n, 4)
        half, so = (g % 4) // 2, (g % 2) * SLOT
        f = FR + 20 * (pos & 1)
        wa = [f'ds_read_b64_tr_b16 {vr(f+8+2*p,2)}, v{vTa+half} offset:{so + jj*2048 + 512*p}' for p in range(2)]
        wb = [f'ds_read_b64_tr_b16 {vr(f+12+2*p,2)}, v{vTb+half} offset:{so + jj*2048 + 512*p}' for p in range(2)]
        x0 = f'ds_read_b128 {vr(f)}, v{vRb+4*half+jj} offset:{so}'
        x1 = f'ds_read_b128 {vr(f+4)}, v{vRp+4*half+jj} offset:{so}'
        d = f'ds_read_b128 {vr(f+16)}, v{vRd+4*half+jj} offset:{so}'
        if kind == 'AZB': L = [(wa[0], 0), (wa[1], 0), (x0, 0), (x1, 1), (wb[0], 2), (wb[1], 2), (d, 4)]
        elif kind == 'AZ': L = [(wa[0], 0), (wa[1], 0), (x0, 0), (x1, 1), (d, 2)]
        else: L = [(wb[0], 0), (wb[1], 0), (x0, 0), (x1, 1)]
        return [(x, f'{pos}m{m_}') for x, m_ in L]
    def mfmas(pos):
        n, kind = seq[pos]
        f = FR + 20 * (pos & 1)
        def m(acc, A, B): return mfma(vr(acc, 16), vr(A), vr(B), vr(acc, 16) if n else '0')
        A_ = [m(ACC, f+8, f), m(ACC+16, f+8, f+4)]; B_ = [m(ACC+32, f+12, f), m(ACC+48, f+12, f+4)]; Z_ = [m(ACC+64, f, f+16)]
        return {'AZB': A_ + B_ + Z_, 'AZ': A_ + Z_, 'B': B_}[kind]
    yq = []
    for pos, (n, kind) in enumerate(seq):
        g, jj = divmod(n, 4)
        first = kind != 'B'
        if STAMP and LST == '7' and 0 <= pos - opt('s0', 8) <= 8: a(f's_memtime s[{STB+2*(1+pos-opt("s0", 8))}:{STB+2*(1+pos-opt("s0", 8))+1}]')
        BG = opt('bg', 2)
        def group_barrier():
            assert not any(t == f'G{g+1}' for _, t in q), (n, q)
            wait_lg()
            a.wait_vm(f'G{g+1}')
            a('s_barrier')
            stamp(a, 2 + g, '1')
            if g == 1: cstamp(a, 1)
            if g == 5: cstamp(a, 3)
            if g + 4 < 7: q.extend(dma_group('A', g + 4))
        bar = first and jj == 3 and g < 6
        if bar and BG == 0: group_barrier()
        if first and TW > 0 and n == TW:
            q[:0] = [(f'v_and_b32 v{vP}, 15, v{vL}\nv_lshlrev_b32 v{vP}, 7, v{vP}\nbuffer_load_dword v{vP+1}, v{vP}, {sr(SW2)}, s{sA2} offen', 'TW')]
        if first and n == POLL0: q[:0] = stat_loads('A')
        chk = first and n == POLL0 + PCHK
        if chk: assert not any(t == 'SL' for _, t in q)
        R1 = rank1()
        if first and n == 27:
            assert not any(x in vq for x in stat_fix('A'))
            for m in (R1 if SK == 28 else R1[:2] + R1[4:]): a(m)
        if kind == 'B' and n == SK:
            for x in vq: a(x)
            vq.clear()
            assert SK >= 20
            stamp(a, 7, '1')
            for m in R1[2:4]: a(m)
            yq = early_epilogue(a, lds, wait_lg)
        rd = reads(pos + 1) if pos + 1 < len(seq) else []
        nld = 0; wn = 0
        rate = RATE[pos % len(RATE)]
        ms = mfmas(pos)
        for mi, m in enumerate(ms):
            last = mi == len(ms) - 1
            wait_lg(f'{pos}m{mi}')
            a(m)
            used = 0
            if bar and mi + 1 == BG: group_barrier(); used += 2
            if chk and mi == 0: stat_check(a, 'A'); vq[:0] = stat_fix('A'); used += 9
            for _ in range(7 if last else (opt('rpg', 3) if not (bar and BG) else 4)):
                if rd and not (bar and mi + 1 < BG): r, t_ = rd.pop(0); lds(r, t_); used += 1
            if mi >= len(ms) - 3:
                cnt = 0
                while nld < rate and (cnt < 1 or last):
                    wok = pos >= W0 and wq and not (bar and mi + 1 < BG) and wn < WPS[pos % len(WPS)] and pos >= 16 + 4 * int(wq[0][1][1])
                    if q: ins = q.pop(0)
                    elif wok: ins = wq.pop(0); wn += 1
                    else: break
                    a.emit(ins); used += cost(ins[0])
                    if ins[1]: nld += 0.5 if ins[1] == 'SL' else 1; cnt += 1
            while vq and used + min(cost(vq[0]), 3) <= FG:
                x = vq.pop(0); used += cost(x)
                if x.startswith('ds_'): lds(x, 'x')
                else: a(x)
            while yq and used < opt('yg', 7):
                x = yq.pop(0); used += 1
                if callable(x): x()
                else: a(x)
        assert not rd
    a.yq = yq
    assert not vq and not q, vq
    stamp(a, 2); stamp(a, 8, '1'); stamp(a, 1, '3'); stamp(a, 1, '5')
    return wq

def p1_loop_bc(a, role):
    def regs(g): return FR if g % 2 == 0 else ACC + 16
    def reads(g):
        half, so = (g % 4) // 2, (g % 2) * SLOT
        f = regs(g); L = []
        for jj in range(4):
            if role == 'B':
                L.append(f'ds_read_b128 {vr(f+8*jj)}, v{vRb+4*half+jj} offset:{so}')
                L.append(f'ds_read_b128 {vr(f+8*jj+4)}, v{vRd+4*half+jj} offset:{so}')
            else:
                L.append(f'ds_read_b64_tr_b16 {vr(f+8*jj,2)}, v{vTa+half} offset:{so + jj*2048}')
                L.append(f'ds_read_b64_tr_b16 {vr(f+8*jj+2,2)}, v{vTa+half} offset:{so + jj*2048 + 512}')
        return L
    a.wait_vm('G0'); a('s_barrier')
    if role == 'C': stamp(a, 1)
    for r in reads(0): a(r)
    if role == 'C':
        for ins in dma_group(role, 3): a.emit(ins)
    for g in range(7):
        a('s_waitcnt lgkmcnt(0)')
        if g < 6:
            a.wait_vm(f'G{g+1}'); a('s_barrier')
            for r in reads(g + 1): a(r)
            if g + 4 < 7:
                for ins in dma_group(role, g + 4): a.emit(ins)
            if role == 'B' and g == 4:
                for ins in stat_loads('B'): a.emit(ins)
        f = regs(g)
        for jj in range(4):
            n = 4*g + jj
            if role == 'B': a(mfma(vr(ACC+64,16), vr(f+8*jj), vr(f+8*jj+4), vr(ACC+64,16) if n else '0'))
            else: a(mfma(vr(ACC,16), vr(TF), vr(f+8*jj), vr(ACC,16) if n else '0'))
    if role == 'C': stamp(a, 2)

ZA, B1, B2 = ACC + 64, FR, FR + 8
def z1(a):
    for r in range(16): a(f'v_mul_f32 v{ZA+r}, v{ZA+r}, v{ZR+r}')
    for p in range(8): a(f'v_cvt_pk_bf16_f32 v{B1+p}, v{ZA+2*p}, v{ZA+2*p+1}')
    for p in range(8): a(f'ds_swizzle_b32 v{B2+p}, v{B1+p} offset:0x401f')
    a(mfma(vr(ZA,16), vr(WC), vr(B1), '0'))
    a(mfma(vr(ZA,16), vr(WC+4), vr(B1+4), vr(ZA,16)))
def z2(a):
    a('s_waitcnt lgkmcnt(0)')
    for p in range(8): a(f'v_xor_b32 v{B2+p}, v{B2+p}, v{vZsg}')
    a('s_nop 1')
    a(mfma(vr(ZA,16), vr(WC+8), vr(B2), vr(ZA,16)))
    a(mfma(vr(ZA,16), vr(WC+12), vr(B2+4), vr(ZA,16)))
def z3(a):
    for p in range(8): a(f'v_permlane16_swap_b32 v{ZA+2*p}, v{ZA+2*p+1}')
    a('s_nop 1')
    for p in range(8): a(f'v_cvt_pk_bf16_f32 v{B1+p}, v{ZA+2*p}, v{ZA+2*p+1}')
    for p in range(8):
        t1b = (2*p & 3) + 8 * (p >> 1)
        a(f'ds_write_b32 v{vXw}, v{B1+p} offset:{t1b*256}')
def z4a(a):
    a('s_waitcnt lgkmcnt(0)\ns_barrier')
    a(f'ds_read_b128 {vr(B2)}, v{vXr}\nds_read_b128 {vr(B2+4)}, v{vXr} offset:1024')
def z4b(a):
    a(f's_mov_b32 s{sT}, {4*65536}')
    a('s_waitcnt lgkmcnt(0)')
    a.vmem(f'buffer_store_dwordx4 {vr(B2)}, v{vVs}, {sr(SV)}, 0 offen sc1', 'ST')
    a.vmem(f'buffer_store_dwordx4 {vr(B2+4)}, v{vVs}, {sr(SV)}, s{sT} offen sc1', 'ST')

def gen():
    a = Asm()
    a('s_cmp_ge_u32 s2, 256\ns_cbranch_scc1 Lend')
    a('s_load_dwordx2 s[4:5], s[0:1], 0')
    a('s_load_dwordx4 s[8:11], s[0:1], 24')
    a('s_load_dwordx4 s[12:15], s[0:1], 48')
    a('s_load_dwordx2 s[16:17], s[0:1], 64')
    a('s_load_dwordx2 s[18:19], s[0:1], 80')
    stamp(a, 0)
    CPF = opt('cpf', 1)
    if CPF:
        a('s_getpc_b64 s[22:23]')
        a('Lpc:')
        a(f's_bfe_u32 s3, s2, 0x30003\ns_lshl_b32 s3, s3, 12')
        a(f'v_lshrrev_b32 v{vP}, 6, v0\nv_lshlrev_b32 v{vP}, 10, v{vP}\nv_and_b32 v{vP+1}, 7, v0\nv_lshl_add_u32 v{vP}, v{vP+1}, 7, v{vP}\nv_add_u32 v{vP}, s3, v{vP}')
        a(f'v_min_u32 v{vP}, Lend-Lpc, v{vP}')
        a.vmem(f'global_load_dword v{vP+1}, v{vP}, s[22:23]', 'CP')
    a(f'v_lshrrev_b32 v{FR}, 6, v0\nv_and_b32 v{vL}, 63, v0')
    a(f'v_readfirstlane_b32 s{sW}, v{FR}')
    sX8, sN = sA3, sA4
    a(f's_and_b32 s{sX8}, s2, 7\ns_lshr_b32 s{sN}, s2, 3')
    a(f's_and_b32 s{sT}, s{sX8}, 3\ns_lshr_b32 s{sT2}, s{sX8}, 2')
    a(f's_lshr_b32 s{sI}, s{sW}, 1\ns_and_b32 s{sJ}, s{sW}, 1')
    a(f's_cmp_ge_u32 s{sN}, 28\ns_cbranch_scc1 LroleBC')
    def sigma(): a(f's_lshl_b32 s{sSig}, s{sRT}, 1\ns_add_u32 s{sSig}, s{sSig}, s{sJ}\ns_lshl_b32 s{sT}, s{sI}, 5\ns_add_u32 s{sSig}, s{sSig}, s{sT}')
    def p1_srds():
        a('s_waitcnt lgkmcnt(0)')
        srd(a, SX, 4, 2048*896)
        a(f's_cmp_ge_u32 s{sW}, 2')
        a(f's_cselect_b32 s{SD}, s10, s8\ns_cselect_b32 s{SD+1}, s11, s9\ns_mov_b32 s{SD+2}, {448*896}\ns_mov_b32 s{SD+3}, 0x20000')
        srd(a, SW, 12, 448*3584)
    def other_srds():
        srd(a, SM, 18, SM_SIZE, SM_OFF)
        a(f's_load_dwordx2 s[{sTag}:{sTag+1}], s[{SM}:{SM+1}], {EPO}')
        srd(a, SH, 18, HB_SIZE, WS0)
        srd(a, SV, 18, VB_SIZE, VB_OFF)

    a(f's_lshl_b32 s{sRT}, s{sT}, 2\ns_and_b32 s{sT3}, s{sN}, 3\ns_add_u32 s{sRT}, s{sRT}, s{sT3}\ns_lshr_b32 s{sCT}, s{sN}, 2')
    a(f's_mul_i32 s{sCG}, s{sT2}, 7\ns_add_u32 s{sCG}, s{sCG}, s{sCT}')
    a(f's_lshl_b32 s{sG0}, s{sT3}, 1\ns_add_u32 s{sG0}, s{sG0}, s{sCT}\ns_sub_u32 s{sB0}, s{sG0}, 7\ns_cselect_b32 s{sG0}, s{sG0}, s{sB0}')
    if not ROT: a(f's_mov_b32 s{sG0}, 0')
    sCT1 = sCT
    if opt('map2', 0):
        a(f's_mov_b32 s{sB1}, s{sG0}')
        a(f's_and_b32 s{sA0}, s{sX8}, 1\ns_and_b32 s{sA1}, s{sN}, 7\ns_lshr_b32 s{sCT}, s{sN}, 3')
        a(f's_lshl_b32 s{sG0}, s{sCT}, 1\ns_add_u32 s{sG0}, s{sG0}, s{sA1}')
        a(f's_lshl_b32 s{sB0}, s{sA1}, 1\ns_lshl_b32 s{sA0}, s{sA0}, 2\ns_add_u32 s{sT1}, s{sA1}, s{sA0}\ns_add_u32 s{sA0}, s{sA0}, s{sCT}')
        a(f's_cmp_eq_u32 s{sCT}, 3\ns_cselect_b32 s{sCT}, 3, s{sA0}\ns_cselect_b32 s{sA1}, s{sT1}, s{sA1}\ns_cselect_b32 s{sG0}, s{sB0}, s{sG0}')
        a(f's_sub_u32 s{sB0}, s{sG0}, 7\ns_cselect_b32 s{sG0}, s{sG0}, s{sB0}')
        a(f's_lshr_b32 s{sT1}, s{sX8}, 1\ns_lshl_b32 s{sT1}, s{sT1}, 2\ns_lshr_b32 s{sB0}, s{sA1}, 1\ns_add_u32 s{sT1}, s{sT1}, s{sB0}')
        a(f's_sub_u32 s{sB0}, 32, s{sT1}\ns_cmp_eq_u32 s{sT1}, 0\ns_cselect_b32 s{sB0}, 16, s{sB0}')
        a(f's_bitcmp1_b32 s{sA1}, 0\ns_cselect_b32 s{sT1}, s{sB0}, s{sT1}')
        assert ROT1 in (7, 4) and not XOFF
        if ROT1 == 4: a(f's_lshr_b32 s{sB1}, s{sN}, 2\ns_add_u32 s{sB1}, s{sB1}, s{sT3}\ns_and_b32 s{sB1}, s{sB1}, 3\ns_lshl_b32 s{sB1}, s{sB1}, 1')
    else:
        a(f's_lshl_b32 s{sT1}, s{sX8}, 1\ns_lshr_b32 s{sB0}, s{sT3}, 1\ns_add_u32 s{sT1}, s{sT1}, s{sB0}\ns_sub_u32 s{sB0}, 32, s{sT1}\ns_cmp_eq_u32 s{sT1}, 0\ns_cselect_b32 s{sB0}, 16, s{sB0}')
        a(f's_bitcmp1_b32 s{sT3}, 0\ns_cselect_b32 s{sT1}, s{sB0}, s{sT1}')
    if XOFF: a(f's_add_u32 s{sG0}, s{sG0}, s{sX8}\ns_sub_u32 s{sB0}, s{sG0}, 7\ns_cselect_b32 s{sG0}, s{sG0}, s{sB0}\ns_sub_u32 s{sB0}, s{sG0}, 7\ns_cselect_b32 s{sG0}, s{sG0}, s{sB0}')
    if opt('map2', 0): pass
    elif ROT1 == 7: a(f's_mov_b32 s{sB1}, s{sG0}')
    elif ROT1 == 4: a(f's_add_u32 s{sB1}, s{sCT}, s{sT3}\ns_and_b32 s{sB1}, s{sB1}, 3\ns_lshl_b32 s{sB1}, s{sB1}, 1')
    elif ROT1 == 2: a(f's_add_u32 s{sB1}, s{sCT}, s{sT3}\ns_and_b32 s{sB1}, s{sB1}, 1\ns_mul_i32 s{sB1}, s{sB1}, 3')
    elif ROT1 == 3: a(f's_add_u32 s{sB1}, s{sCT}, s{sT3}\ns_mul_i32 s{sB0}, s{sB1}, 43\ns_lshr_b32 s{sB0}, s{sB0}, 7\ns_mul_i32 s{sB0}, s{sB0}, 3\ns_sub_u32 s{sB1}, s{sB1}, s{sB0}\ns_lshl_b32 s{sB1}, s{sB1}, 1')
    else: a(f's_mov_b32 s{sB1}, 0')
    a(f's_mul_i32 s{sOnes}, s{sX8}, 28\ns_add_u32 s{sOnes}, s{sOnes}, s{sN}\ns_lshl_b32 s{sOnes}, s{sOnes}, 2\ns_add_u32 s{sOnes}, s{sOnes}, s{sW}\ns_mul_i32 s{sA2}, s{sOnes}, {14*128}')
    sigma(); p1_addr_dma(a); p1_srds()
    a(f's_mov_b32 s{sG1}, s{sB1}')
    for ins in dma_group('A', 0): a.emit(ins)
    p1_addr_read(a)
    for ins in dma_group('A', 1): a.emit(ins)
    srd(a, SW2, 14, 1792*896)
    if TW < 0: a.vmem(f'v_and_b32 v{vP}, 15, v{vL}\nv_lshlrev_b32 v{vP}, 7, v{vP}\nbuffer_load_dword v{vP+1}, v{vP}, {sr(SW2)}, s{sA2} offen', 'TW')
    other_srds()
    srd(a, SO, 16, 2048*896)
    if opt('tlb', 0):
        a(f's_mov_b32 s{sT}, {HB_SIG}\nv_mul_lo_u32 v{FR}, v{vL}, s{sT}\nv_mov_b32 v{FR+1}, {248*16}\nv_mul_u32_u24 v{FR+2}, {32*896}, v{vL}')
        a(f's_mov_b32 s{sT}, {112*1024}')
        a.vmem(f'buffer_load_dword v{vP}, v{FR}, {sr(SH)}, s{sT} offen', 'TL')
        a.vmem(f'buffer_load_dword v{vP+1}, v{FR+1}, {sr(SV)}, 0 offen', 'TL')
        if opt('tlb', 0) > 1: a.vmem(f'buffer_load_dword v{vP+1}, v{FR+2}, {sr(SO)}, 0 offen', 'TL')
    get_tag(a)
    if STAMP == 3:
        a(f's_add_u32 s{sT}, s2, s{sW}\ns_cmp_lg_u32 s{sT}, 0\ns_cbranch_scc1 Lnopub\nv_mov_b32 v{FR}, {EPO+128}\nv_mov_b32 v{FR+1}, s{STB}\nbuffer_store_dword v{FR+1}, v{FR}, {sr(SM)}, 0 offen sc1\nLnopub:')
    wq = p1_loop(a)
    def run_list(L):
        for x in L:
            if callable(x): x()
            else: a(x)
    if opt('sk', 28) == 28:
        a('s_nop 6\ns_waitcnt lgkmcnt(0)')
        run_list(hblock_list(a, ACC, sHA0))
        z1(a); run_list(hblock_list(a, ACC+16, sHA1))
        z2(a); run_list(hblock_list(a, ACC+32, sHB0))
        if RPRE0:
            for ins in wq: a.emit(ins)
            wq = []
            a.wait_vm('R0'); run_list(stage_reads(0))
        z3(a); run_list(hblock_list(a, ACC+48, sHB1))
        if RPRE0:
            a.wait_vm('R1'); run_list(stage_reads(1))
        z4a(a); z4b(a)
    else:
        k = min(len(a.yq), 11)
        run_list(a.yq[:k])
        if k < 11: a(f's_nop {10 - k}')
        run_list(hblock_list(a, ACC+32, sHB0) + hblock_list(a, ACC+48, sHB1))
        run_list(a.yq[k:])
    stamp(a, 3); stamp(a, 2, '3'); stamp(a, 2, '5')
    phase2(a, wq)
    a('s_branch Lfin')

    a('LroleBC:')
    a.vm = ['CP'] if CPF else []
    a(f's_cmp_ge_u32 s{sN}, 30\ns_cbranch_scc1 LroleC')
    a(f's_lshl_b32 s{sRT}, s{sT}, 2\ns_lshl_b32 s{sT2}, s{sT2}, 1\ns_add_u32 s{sRT}, s{sRT}, s{sT2}\ns_add_u32 s{sRT}, s{sRT}, s{sN}\ns_sub_u32 s{sRT}, s{sRT}, 28')
    a(f's_mov_b32 s{sCG}, s{sRT}')
    sigma(); p1_addr_dma(a); p1_srds()
    XB, DB, vSb = 104, 224, 92
    for g in range(7):
        a(f's_movk_i32 s{sA0}, {g*128}')
        for q in range(4):
            a.vmem(f'buffer_load_dwordx4 {vr(XB+16*g+4*q)}, v{vXo+q}, {sr(SX)}, s{sA0} offen offset:{q*1024}', f'X{g}')
    for g in range(7):
        a.vmem(f'buffer_load_dwordx4 {vr(DB+4*g)}, v{vDo}, {sr(SD)}, 0 offen offset:{g*128}', 'XD')
    a(f's_sub_u32 s{sT}, 14, s{sRT}\ns_mul_i32 s{sT}, s{sT}, {16*896}\nv_add_u32 v{vDo}, s{sT}, v{vDo}\ns_mov_b32 s{sCG}, 14')
    other_srds()
    a(f's_mov_b32 s{sOnes}, 0x3f803f80')
    for i in range(9): a(f'v_mov_b32 v{vSb+i}, 0')
    for g in range(7):
        a.wait_vm(f'X{g}')
        if g == 0: stamp(a, 1)
        for i in range(4):
            for q in range(4):
                a(f'v_dot2c_f32_bf16 v{vSb+q}, s{sOnes}, v{XB+16*g+4*q+i}')
                a(f'v_dot2c_f32_bf16 v{vSb+4+q}, v{XB+16*g+4*q+i}, v{XB+16*g+4*q+i}')
    t = vt
    def dpp(rng):
        for pat in ('quad_perm:[1,0,3,2]', 'quad_perm:[2,3,0,1]', 'row_half_mirror'):
            for i in rng: a(f'v_add_f32_dpp v{vSb+i}, v{vSb+i}, v{vSb+i} {pat} row_mask:0xf bank_mask:0xf')
            if len(rng) < 3: a('s_nop 1')
    stamp(a, 2)
    a(f'v_and_b32 v{t+6}, 3, v{vL}\ns_nop 1')
    dpp(range(8))
    for q in range(1, 4):
        a(f'v_cmp_eq_u32 vcc, {q}, v{t+6}\ns_nop 1\nv_cndmask_b32 v{vSb}, v{vSb}, v{vSb+q}, vcc\nv_cndmask_b32 v{vSb+4}, v{vSb+4}, v{vSb+4+q}, vcc')
    a(f'v_mul_f32 v{t+4}, {f2h(1/448)}, v{vSb}\nv_mul_f32 v{t+1}, {f2h(1/448)}, v{vSb+4}')
    a(f'v_fma_f32 v{t+1}, -v{t+4}, v{t+4}, v{t+1}\nv_max_f32 v{t+1}, 0, v{t+1}')
    a(f'v_cvt_pk_bf16_f32 v{t}, -v{t+4}, -v{t+4}')
    a(f'v_cvt_pk_bf16_f32 v{t+1}, v{t+1}, v{t+1}\nv_and_b32 v{t+1}, 0xffff0000, v{t+1}')
    a(f'v_add_f32 v{t+1}, {f2h(1e-5)}, v{t+1}')
    a(f'v_cvt_pk_bf16_f32 v{t+1}, v{t+1}, v{t+1}\nv_and_b32 v{t+1}, 0xffff0000, v{t+1}')
    a(f'v_sqrt_f32 v{t+1}, v{t+1}\ns_nop 0')
    a(f'v_cvt_pk_bf16_f32 v{t+1}, v{t+1}, v{t+1}\nv_and_b32 v{t+1}, 0xffff0000, v{t+1}')
    a(f'v_rcp_f32 v{t+1}, v{t+1}')
    get_tag(a)
    a(f'v_mov_b32 v{t+2}, s{sTag}\nv_mov_b32 v{t+3}, s{sTag+1}')
    a(f'v_lshrrev_b32 v{t+7}, 3, v{vL}\nv_lshl_add_u32 v{t+5}, v{t+6}, 3, v{t+7}\nv_lshlrev_b32 v{t+5}, 4, v{t+5}')
    a(f's_lshl_b32 s{sT}, s{sSig}, 9')
    a.vmem(f'buffer_store_dwordx4 {vr(t)}, v{t+5}, {sr(SM)}, s{sT} offen sc1', 'S1')
    a.wait_vm('XD')
    for i in range(28): a(f'v_dot2c_f32_bf16 v{vSb+8}, s{sOnes}, v{DB+i}')
    a('s_nop 2')
    dpp([8])
    col_record(a, DB, vSb+8)
    a(f'v_lshlrev_b32 v{t+7}, 4, v{t+7}\ns_lshl_b32 s{sT}, s{sRT}, 9\ns_lshl_b32 s{sT2}, s{sW}, 7\ns_add_u32 s{sT}, s{sT}, s{sT2}\ns_add_u32 s{sT}, s{sT}, {CSZ}')
    a.vmem(f'buffer_store_dwordx4 {vr(DB)}, v{t+7}, {sr(SM)}, s{sT} offen sc1', 'S1')
    stamp(a, 3)
    for g in range(4):
        for ins in dma_group('B', g): a.emit(ins)
    p1_addr_read(a)
    for x in wg_flag_prep(vFl, sB0, sB1) + stat_addr() + twiddle_wc(vWt) + z_addr(vWt, sB0, sB1): a(x)
    p1_loop_bc(a, 'B')
    stat_check(a, 'B')
    for x in stat_fix('B'): a(x)
    a('s_nop 1')
    a(mfma(vr(ZA,16), vr(MO), vr(CZ), vr(ZA,16)))
    a('s_nop 11\ns_waitcnt lgkmcnt(0)')
    z1(a); z2(a); a('s_nop 11'); z3(a); z4a(a); z4b(a)
    wg_flag(a, vFl)
    a('s_branch Lfin')

    a('LroleC:')
    a.vm = ['CP'] if CPF else []
    a(f's_lshl_b32 s{sT3}, s{sT}, 1\ns_add_u32 s{sT3}, s{sT3}, s{sN}\ns_sub_u32 s{sT3}, s{sT3}, 30')
    a(f's_lshl_b32 s{sRT}, s{sT2}, 3\ns_add_u32 s{sRT}, s{sRT}, s{sT3}')
    a(f's_mul_i32 s{sCG}, s{sT2}, 7\ns_add_u32 s{sCG}, s{sCG}, s{sT3}\ns_add_u32 s{sT2}, s{sT2}, 14')
    a(f's_cmp_eq_u32 s{sT3}, 7\ns_cselect_b32 s{sCG}, s{sT2}, s{sCG}')
    sigma(); p1_addr_dma(a); p1_srds()
    other_srds()
    a(f's_cmp_ge_u32 s{sCG}, 14\ns_cbranch_scc1 LroleE')
    for g in range(3):
        for ins in dma_group('C', g): a.emit(ins)
    p1_addr_read(a)
    for x in stat_addr(): a(x)
    for i in range(4): a(f'v_mov_b32 v{TF+i}, 0x3f803f80')
    get_tag(a)
    p1_loop_bc(a, 'C')
    a('s_nop 11')
    col_record(a, FR, ACC)
    a(CW_OFF)
    a.vmem(f'buffer_store_dwordx4 {vr(FR)}, v{vU8}, {sr(SM)}, s{sA2} offen sc1', 'S1')
    stamp(a, 3)
    a(f's_mov_b32 s{sCG}, 15')
    for x in wg_flag_prep(vFl, sB0, sB1): a(x)
    wg_flag(a, vFl)
    a('s_branch Lfin')

    a('LroleE:')
    a.vm = []
    get_tag(a)
    a(f's_sub_u32 s{sT3}, 15, s{sCG}\ns_add_u32 s{sT3}, s{sT3}, s{sW}\ns_mov_b32 s{sCG}, 15')
    for x in wg_flag_prep(vFl, sB0, sB1): a(x)
    wg_flag(a, vFl)
    a(f's_cmp_lg_u32 s{sT3}, 0\ns_cbranch_scc1 Lfin')
    a(f'v_lshlrev_b32 v{vPa}, 3, v{vL}\nv_add_u32 v{vPa}, {FLV}, v{vPa}')
    for i in range(4):
        poll_issue(a, 'PE', vPa)
        poll_check(a, 'PE', vPa, sleep=16)
        a(f'v_add_u32 v{vPa}, 512, v{vPa}')
    a(f'v_mov_b32 v{vFl+2}, {EPO}\ns_mov_b64 exec, 1')
    a(f'buffer_store_dwordx2 {vr(vFl,2)}, v{vFl+2}, {sr(SM)}, 0 offen sc1')
    a('s_mov_b64 exec, -1')
    a('Lfin:')
    stamp_store(a)
    a('Lend:')
    a('s_endpgm')
    return a.text()

def phase2(a, wq):
    ACC0, ACC1, YA, VF = 144, 176, 208, 104
    TFd = 4
    vRw, vRwb, vRr = 84, 88, 92
    vRi = 36
    YS = [208, 240]
    XR = 224
    t = 56
    for ins in wq: a.emit(ins)
    rq = []
    for q in range(NSTG, 7): rq += w2_group(q)
    NR = len(rq)
    def rdma(n):
        while rq and n > 0:
            ins = rq.pop(0); a.emit(ins)
            if ins[1]: n -= 1
    vq = twiddle_tf(t, TFd)
    u = t + 8
    vq += lines(f'v_and_b32 v{u}, 7, v{vU}\nv_xor_b32 v{u}, v{u}, v{vHH}\nv_lshlrev_b32 v{u+1}, 7, v{vU}')
    vq += [f's_lshl_b32 s{sT}, s{sJ}, 12\ns_add_u32 s{sT2}, s{sT}, 32768\ns_add_u32 s{sT}, s{sT2}, s{sArea}', f'v_add_u32 v{u+1}, s{sT}, v{u+1}']
    for q in range(4):
        vq += lines(f'v_xor_b32 v{u+2}, {2*q}, v{u}\nv_lshl_add_u32 v{vRw+q}, v{u+2}, 4, v{u+1}\nv_xor_b32 v{vRwb+q}, 0x1000, v{vRw+q}')
    vq += lines(f'v_lshrrev_b32 v{u}, 2, v{vL}\nv_and_b32 v{u+1}, 3, v{vL}\nv_and_b32 v{u+2}, 7, v{u}\nv_lshlrev_b32 v{u+3}, 1, v{u+1}\nv_xor_b32 v{u+2}, v{u+2}, v{u+3}\n'
                f'v_lshlrev_b32 v{u+2}, 4, v{u+2}\nv_lshl_add_u32 v{u+2}, v{u}, 7, v{u+2}')
    vq += [f's_lshl_b32 s{sT}, s{sI}, 11\ns_add_u32 s{sT2}, s{sT2}, s{sT}']
    nsafe = len(vq)
    for k in range(4):
        vq += [f's_xor_b32 s{sT}, s{sJ}, {k}\ns_mul_i32 s{sT}, s{sT}, {AREA}\ns_add_u32 s{sT}, s{sT}, s{sT2}', f'v_add_u32 v{vRr+2*k}, s{sT}, v{u+2}', f'v_xor_b32 v{vRr+2*k+1}, 16, v{vRr+2*k}']
    uq = []
    def vdo(budget):
        while (uq or vq) and budget > 0:
            x = (uq or vq).pop(0)
            if callable(x): x(); continue
            a(x); budget -= cost(x)
    if RPRE0:
        assert opt('sk', 28) == 28 and RPRE0 <= 32
        rdma(RPRE0)
        vdo(opt('tf0', 60) + opt('tf0b', 40))
    else:
        a.wait_vm('R0'); stamp(a, 3, '5')
        for x in stage_reads(0): a(x)
        vdo(opt('tf0', 60))
        stamp(a, 4, '5'); a.wait_vm('R1'); stamp(a, 5, '5')
        for x in stage_reads(1): a(x)
        vdo(opt('tf0b', 40))
        if NSTG == 3:
            a.wait_vm('R2')
            for x in stage_reads(2): a(x)
    a('s_waitcnt lgkmcnt(0)')
    stamp(a, 3, '3'); stamp(a, 6, '5'); a.wait_vm('ST'); stamp(a, 7, '5')
    wg_flag(a, vFl)
    stamp(a, 8, '5')
    stamp(a, 4); stamp(a, 4, '3')
    nr = max(opt('rb', 10), RPRE0)
    rdma(nr - RPRE0)
    did2 = NSTG == 3
    while nr < NR - RLATE:
        if nr >= P1POS and 'P1' not in a.vm: poll_issue(a, 'P1', vPa)
        rdma(1); nr += 1
        if nr == 20 and not did2: uq += [lambda: a.wait_vm('R2')] + stage_reads(2); did2 = True
        vdo(opt('tf1', 8))
    if 'P1' not in a.vm: poll_issue(a, 'P1', vPa)
    stamp(a, 5, '3')
    if not did2: uq += [lambda: a.wait_vm('R2')] + stage_reads(2)
    vdo(10000)
    stamp(a, 5); stamp(a, 6, '3')
    poll_check(a, 'P1', vPa, mask='15' if VSPLIT else None)
    stamp(a, 6); stamp(a, 7, '3'); stamp(a, 1, '4')
    horder = list(range(HN0)) + [28, 29, 30, 31] + list(range(HN0, 28)) + list(range(32, 56))
    sHq = [sB0, sB1]
    def hload(pos):
        i = horder[pos]
        rb, k = divmod(i, 28)
        c = (sGh0, sGh1)[rb]
        if k % 4 == 0:
            a(f's_mov_b32 s{c}, s{sG0}' if k == 0 else rot_next(c))
            a(f's_lshl_b32 s{sHq[rb]}, s{c}, 12\ns_add_u32 s{sHq[rb]}, s{sHq[rb]}, s{sHb}')
            if rb: a(f's_add_u32 s{sHq[rb]}, s{sHq[rb]}, {32*HB_SIG}')
        a.vmem(f'buffer_load_dwordx4 {ar(aH+4*(i%32))}, v{vHo}, {sr(SH)}, s{sHq[rb]} offen offset:{(k % 4)*1024} sc1', f'H{i}')
    def vloads():
        if VSPLIT: poll_check(a, 'P2', vPa, sleep=0)
        for j in range(8):
            a(f's_movk_i32 s{sA2}, {j*4096}')
            a.vmem(f'buffer_load_dwordx4 {vr(VF+4*j)}, v{vVo}, {sr(SV)}, s{sA2} offen sc1', f'V{j}')
    def smalls():
        for rb in range(2):
            a(f's_lshl_b32 s{sA2}, s{sT1}, 9' if rb == 0 else f's_add_u32 s{sA2}, s{sA2}, {32*512}')
            a.vmem(f'buffer_load_dword v{vRi+rb}, v{vRo}, {sr(SM)}, s{sA2} offen offset:4 sc1', 'RI')
            a.vmem(f'buffer_load_dword v{vRi+2+rb}, v{vU8}, {sr(SM)}, s{sA2} offen offset:4 sc1', 'RI')
        a.vmem(f'buffer_load_dwordx4 {vr(XR)}, v{vOo}, {sr(SX)}, 0 offen', 'X')
        a.vmem(f'buffer_load_dwordx4 {vr(XR+4)}, v{vOo+1}, {sr(SX)}, 0 offen', 'X')
    a('s_waitcnt lgkmcnt(0)')
    def vload(j):
        a(f's_movk_i32 s{sA2}, {j*4096}')
        a.vmem(f'buffer_load_dwordx4 {vr(VF+4*j)}, v{vVo}, {sr(SV)}, s{sA2} offen sc1', f'V{j}')
    lq = [('h', i) for i in range(56)]
    vpos = opt('vpos', 14)
    lq = lq[:vpos] + [('v', j) for j in range(4)] + [('s', 0)] + lq[vpos:]
    pos = opt('rpos', 8)
    for _ in range(RLATE):
        lq.insert(pos, ('r', 0)); pos += opt('rstep', 2)
    def lnext(i):
        if not lq: return
        kind, x = lq[0]
        if kind == 'h' and horder[x] - 32 > i: return
        lq.pop(0)
        if kind == 'h': hload(x)
        elif kind == 'v': vload(x)
        elif kind == 'r': rdma(1)
        else: smalls()
    for i in range(HB0): lnext(-1)
    stamp(a, 8, '3'); stamp(a, 2, '4')
    def ard(k):
        s = aF + 8 * (k % (PD + 1))
        return [f'ds_read_b64_tr_b16 {ar(s+4*blk+2*p,2)}, v{va} offset:{(k-12)*2048 + p*1024}'
                for blk, va in enumerate((vTra, vTrb)) for p in range(2)]
    state = dict(lgk=[])
    HPS = [int(c) for c in (OPT.get('hpp', '1112') * opt('hpn', 10) + '1')]
    def lds(s, tag):
        a(s); state['lgk'].append(tag)
    def wait_lgk(tag):
        L = state['lgk']
        if tag not in L: return
        idx = max(i for i, x in enumerate(L) if x == tag)
        a(f's_waitcnt lgkmcnt({min(len(L)-1-idx, 15)})')
        state['lgk'] = L[idx+1:]
    def kstep(rb, k, fill, fill0=()):
        i = 28*rb + k
        acc = ACC0 if rb == 0 else ACC1
        assert not any(kd == 'h' and horder[x] == i for kd, x in lq)
        a.wait_vm(f'H{i}')
        if k >= 12: wait_lgk(f'A{rb}_{k}')
        if rb == 0 and 12 <= k + PD < 28 and (k + PD) % 4 == 0:
            assert not any(t_ == f'R{(k+PD)//4}' for _, t_ in rq)
            a.wait_vm(f'R{(k+PD)//4}')
        A = aW + 8*k if k < 12 else aF + 8*(k % (PD + 1))
        B = ar(aH + 4*(i % 32))
        a(mfma(vr(acc,16), ar(A), B, vr(acc,16) if k else '0'))
        if 12 <= k + PD < 28:
            for r in ard(k+PD): lds(r, f'A{rb}_{k+PD}')
        for f in fill0: f()
        a(mfma(vr(acc+16,16), ar(A+4), B, vr(acc+16,16) if k else '0'))
        for _ in range(HPS[min(i, len(HPS) - 1)]): lnext(i)
        for f in fill: f()
    def take(Q, budget):
        out = []
        while Q and budget > 0:
            x = Q.pop(0)
            if isinstance(x, str): budget -= cost(x); out.append(lambda x=x: a(x))
            else: budget -= 1; out.append(x)
        return out
    def vstep(m_):
        def f():
            j, rb = divmod(m_, 2)
            if rb == 0:
                assert ('v', j) not in lq
                a.wait_vm(f'V{j}')
                for i in range(4): a(f'v_xor_b32 v{VF+4*j+i}, v{VF+4*j+i}, v{vSg}')
                a('s_nop 1')
            a(mfma(vr(YS[rb],16), vr(VF+4*j), vr(TFd+16*rb+4*j), vr(YS[rb],16) if j else '0'))
        return f
    for k in range(28):
        fill = []; fill0 = []
        if k + PD < 12: fill0 = take(vq, 5)
        if VM0 <= k < VM0 + 8:
            assert not any('cos' in x for x in vq)
            fill.append(vstep(k - VM0))
        else: fill += take(vq, 4)
        kstep(0, k, fill, fill0)
        if k in (0, 7, 15, 27): stamp(a, {0: 3, 7: 4, 15: 5, 27: 6}[k], '4')
    assert not vq
    stamp(a, 7)
    def red_write(acc, base): return [(lambda q=q: lds(f'ds_write_b128 v{base+q}, {vr(acc+4*q)}', 'RW')) for q in range(4)]
    def scale_own(acc, rb): return [f'v_fmac_f32 v{acc+r}, v{YS[rb]+r}, v{vRi+2+rb}' for r in range(16)]
    def barrier():
        wait_lgk('RW'); a('s_barrier')
    def finalize(P, rb):
        L = []
        for k in range(4):
            for h in range(2):
                L.append(lambda k=k, h=h: lds(f'ds_read_b128 {vr(P+8*k+4*h)}, v{vRr+2*k+h}', f'RR{k}'))
        U = 56
        for i in range(4): L += [f'v_lshlrev_b32 v{U+2*i}, 16, v{XR+4*rb+i}', f'v_and_b32 v{U+2*i+1}, 0xffff0000, v{XR+4*rb+i}']
        L.append(lambda: wait_lgk('RR1'))
        L += [f'v_add_f32 v{P+r}, v{P+r}, v{P+8+r}' for r in range(8)]
        L.append(lambda: wait_lgk('RR3'))
        L += [f'v_add_f32 v{P+16+r}, v{P+16+r}, v{P+24+r}' for r in range(8)]
        L += [f'v_add_f32 v{P+r}, v{P+r}, v{P+16+r}' for r in range(8)]
        L += [f'v_fma_f32 v{P+r}, v{P+r}, v{vRi+rb}, v{U+r}' for r in range(8)]
        L += [f'v_cvt_pk_bf16_f32 v{U+p}, v{P+2*p}, v{P+2*p+1}' for p in range(4)]
        L.append(lambda: a.vmem(f'buffer_store_dwordx4 {vr(U)}, v{vOo+rb}, {sr(SO)}, 0 offen {OST}', 'O'))
        return L
    def run(L):
        for f in take(L, 10**6): f()
    PF = 104
    assert ('s', 0) not in lq
    a.wait_vm('X')
    a(f'v_rcp_f32 v{vRi+2}, v{vRi+2}\nv_rcp_f32 v{vRi+3}, v{vRi+3}')
    work = red_write(ACC0+16, vRwb) + scale_own(ACC0, 0) + red_write(ACC0, vRw)
    post = finalize(PF, 0)
    KB1, KB2 = opt('kb1', 10), 25
    for k in range(28):
        fill = []; fill0 = []
        if 3 <= k < KB1: fill0 = take(work, 2); fill = take(work, 3)
        if k == KB1:
            assert not work
            fill = [barrier]
        if KB1 < k < KB2:
            fill0 = take(post, 1)
            fill = take(post, FILL)
        if k == KB2:
            assert not post and not any(x.startswith('RR') for x in state['lgk']), post
            fill = [lambda: a('s_barrier')]
        kstep(1, k, fill, fill0)
        if k in (11, 27): stamp(a, {11: 7, 27: 8}[k], '4'); cstamp(a, {11: 5, 27: 7}[k])
    stamp(a, 8)
    a('s_nop 10')
    run(scale_own(ACC1, 1) + red_write(ACC1, vRw) + red_write(ACC1+16, vRwb))
    barrier()
    run(finalize(PF, 1))

def main():
    body = gen()
    k = NAME + '_kernel'
    print(f'''; FNet mixing (two-stage DFT factorisation, 2048 = 32 x 64) + ReLU FFN + residual in one persistent launch.
; @launch grid=(256,1,1) block=(256,1,1) lds={LDS_SIZE}
.amdgcn_target "amdgcn-amd-amdhsa--gfx950"
.text
.globl {k}
.p2align 8
.type {k},@function
{k}:
{body}
.section .rodata,"a"
.p2align 6
.amdhsa_kernel {k}
  .amdhsa_next_free_vgpr {256+NAGPR}
  .amdhsa_next_free_sgpr 102
  .amdhsa_accum_offset 256
  .amdhsa_group_segment_fixed_size 0
  .amdhsa_kernarg_size 88
  .amdhsa_user_sgpr_count 2
  .amdhsa_user_sgpr_kernarg_segment_ptr 1
  .amdhsa_system_sgpr_workgroup_id_x 1
.end_amdhsa_kernel''')
main()
```

```python
import sys, struct
NAME = 'parallel_sum__spectral_fnet__dense_activation_relu__prompt'
OPT = dict(a.split('=') for a in sys.argv[1:] if '=' in a)
def opt(k, d): return type(d)(OPT.get(k, d))
STAMP = opt('stamp', 0); LST = OPT.get('lst')
RATE = [int(c) for c in OPT.get('rate', '3')]
ROT = opt('rot', 1)
POLL0 = opt('poll0', 15); PCHK = opt('pchk', 6)
NW = opt('nw', 16); W0 = opt('w0', 16); WPS = [int(c) for c in OPT.get('wps', '112')]
RPRE0 = opt('rpre0', 0); P1POS = opt('p1pos', 26); RLATE = opt('rlate', 0)
HB0 = opt('hb0', 14); VM0 = opt('vm0', 20); FILL = opt('fill', 5); SLEEP = opt('sleep', 4)
OST = OPT.get('ost', '').replace('_', ' ')
TW = opt('tw', -1); ROT1 = opt('rot1', 2); XOFF = opt('xoff', 0); VSPLIT = opt('vsplit', 0)

def f2h(x): return '0x%08x' % struct.unpack('<I', struct.pack('<f', x))[0]

WS0 = opt('ws0', 0) << 20
HB_SIG = opt('hbs', 29) * 4096
HB_SIZE = 64 * HB_SIG
VB_OFF = WS0 + 0x800000
VB_SIZE = 32 * 16 * 256 * 16
SM_OFF = WS0 + 0xA00000
SM_SIZE = 0x20000
CSW, CSZ = 0x8000, 0x18000
FLH, FLV, EPO = 0x10000, 0x11000, 0x14000
ST_OFF = 0x1000000
SLOT = 36864
VX = 4 * SLOT
AREA = 40960
LDS_SIZE = 163840
SPIN_MAX = 1 << 17

SX, SW, SD, SH, SV, SM, SW2, SO = 24, 28, 32, 36, 40, 44, 48, 52
sTag = 56
sW, sI, sJ, sRT, sCG, sSig, sLx, sLw, sLd, sT, sT2, sT3, sT1, sCT = 58, 59, 60, 61, 62, 63, 64, 65, 66, 67, 68, 69, 70, 71
sA0, sA1, sA2, sA3, sA4, sOnes, sSpin, sB0, sB1, sG0 = 72, 73, 74, 75, 76, 77, 78, 79, 80, 81
sGc, sGw, sGh0, sGh1 = 6, 7, 3, 6
sArea, sHb, sRi, sG1, sStg = 20, 21, 77, 10, 11
STB = 82
vL, vU, vHH = 1, 2, 3
vXo, vWo, vDo = 4, 8, 12
vRb, vRp, vRd, vTa, vTb = 13, 21, 29, 37, 39
vM8, vU8, vH16, vZs, vP = 41, 42, 43, 44, 46
vt = 48
WC, TF, FR, ACC = 56, 72, 104, 144
MO, MP, CA, CB, CZ, ZR = 224, 228, 232, 236, 100, 240
vWt = 84
vW2, vTra, vTrb, vZw, vPa, vVo, vSg, vOo, vRo = 48, 52, 53, 54, 55, 45, 72, 74, 76
vSt = [(54, 73), (77, 83)]
vFl = 92
aW, aH, aF = 0, 96, 224
aRaw = aH
NAGPR = 256
PD = opt('pd', 3); RL0 = opt('rl0', 0); VL0 = opt('vl0', -1); HN0 = opt('hn0', 28); P2K = opt('p2k', -1)

class Asm:
    def __init__(self):
        self.L = []; self.vm = []; self.nlab = 0
    def __call__(self, s):
        for line in s.split('\n'):
            line = line.strip()
            self.L.append(line if line.endswith(':') else '    ' + line)
    def vmem(self, s, tag):
        self(s); self.vm.append(tag)
    def emit(self, ins):
        s, tag = ins
        if tag: self.vmem(s, tag)
        else: self(s)
    def wait_vm(self, tag):
        if tag not in self.vm: return
        idx = max(i for i, t in enumerate(self.vm) if t == tag)
        n = len(self.vm) - 1 - idx
        self(f's_waitcnt vmcnt({min(n, 63)})')
        self.vm = self.vm[idx + 1:]
    def label(self, p):
        self.nlab += 1
        return f'L{p}_{self.nlab}'
    def text(self): return '\n'.join(self.L)

def vr(b, n=4): return f'v[{b}:{b+n-1}]'
def ar(b, n=4): return f'a[{b}:{b+n-1}]'
def sr(b, n=4): return f's[{b}:{b+n-1}]'
def srd(a, d, lo, size, off=0):
    if off: a(f's_add_u32 s{d}, s{lo}, {off}\ns_addc_u32 s{d+1}, s{lo+1}, 0')
    else: a(f's_mov_b32 s{d}, s{lo}\ns_mov_b32 s{d+1}, s{lo+1}')
    a(f's_mov_b32 s{d+2}, {size}\ns_mov_b32 s{d+3}, 0x20000')
def stamp(a, idx, mode=None):
    if not STAMP: return
    if 1 <= idx <= 8 and mode != LST: return
    a(f's_memrealtime s[{STB+2*idx}:{STB+2*idx+1}]')
def cstamp(a, idx):
    if STAMP and LST == '6': a(f's_memrealtime s[{STB+2*idx}:{STB+2*idx+1}]\ns_memtime s[{STB+2*idx+2}:{STB+2*idx+3}]')
def mfma(D, A, B, C): return f'v_mfma_f32_32x32x16_bf16 {D}, {A}, {B}, {C}'
def lines(s): return s.split('\n')
def cost(x): return sum(2 if ('cos' in y or 'sin' in y) else 1 for y in x.split('\n'))

def stamp_store(a):
    if not STAMP: return
    a('s_waitcnt vmcnt(0) lgkmcnt(0)')
    if LST != '7': stamp(a, 9)
    a('s_waitcnt lgkmcnt(0)')
    if STAMP == 3:
        pa, pb = map(int, OPT['probe'].split(','))
        sk = a.label('pskip'); sp = a.label('pspin')
        a(f's_cmp_lg_u32 s2, {OPT.get("pwg", 0)}\ns_cbranch_scc1 {sk}\ns_cmp_lg_u32 s{sW}, {OPT.get("pwv", 0)}\ns_cbranch_scc1 {sk}')
        if pa < 0:
            a(f'v_mov_b32 v4, {EPO+128}\nbuffer_load_dword v5, v4, {sr(SM)}, 0 offen sc1\ns_waitcnt vmcnt(0)\nv_readfirstlane_b32 s{STB-2}, v5\ns_nop 3')
        a(f's_sub_u32 s{sT}, s{STB+2*pb}, s{STB+2*pa}\ns_add_u32 s{sT}, s{sT}, {opt("poff", 0)}\ns_min_u32 s{sT}, s{sT}, 5000\ns_mul_i32 s{sT}, s{sT}, 10')
        a(f's_memrealtime s[4:5]\ns_waitcnt lgkmcnt(0)\ns_add_u32 s{sT}, s{sT}, s4')
        a(f'{sp}:\ns_memrealtime s[4:5]\ns_waitcnt lgkmcnt(0)\ns_sub_u32 s{sT2}, s{sT}, s4\ns_cmp_gt_i32 s{sT2}, 0\ns_cbranch_scc1 {sp}')
        a(f'{sk}:')
        return
    srd(a, SX, 18, 65536, ST_OFF)
    a(f's_lshl_b32 s{sT}, s2, 2\ns_add_u32 s{sT}, s{sT}, s{sW}\ns_lshl_b32 s{sT}, s{sT}, 6')
    a(f'v_mov_b32 v5, s{sT}')
    for i in range(10):
        a(f'v_mov_b32 v4, s{STB+2*i}')
        a(f'buffer_store_dword v4, v5, {sr(SX)}, 0 offen offset:{4*i}')
        a('s_nop 1')

def poll_issue(a, tag, va, vd=vP):
    a.vmem(f'buffer_load_dwordx2 {vr(vd,2)}, v{va}, {sr(SM)}, 0 offen sc1', tag)
def poll_check(a, tag, va, vd=vP, sleep=SLEEP, mask=None):
    ok = a.label('ok'); lp = a.label('spin')
    a.wait_vm(tag)
    mk = f'\ns_and_b64 vcc, vcc, {mask}' if mask else ''
    a(f'v_cmp_ne_u64 vcc, s[{sTag}:{sTag+1}], {vr(vd,2)}' + mk)
    a(f's_cbranch_vccz {ok}')
    a(f's_mov_b32 s{sSpin}, {SPIN_MAX}')
    a(f'{lp}:')
    if sleep: a(f's_sleep {sleep}')
    a(f'buffer_load_dwordx2 {vr(vd,2)}, v{va}, {sr(SM)}, 0 offen sc1')
    a(f's_sub_u32 s{sSpin}, s{sSpin}, 1\ns_cbranch_scc1 {ok}')
    a('s_waitcnt vmcnt(0)')
    a(f'v_cmp_ne_u64 vcc, s[{sTag}:{sTag+1}], {vr(vd,2)}' + mk)
    a(f's_cbranch_vccnz {lp}')
    a(f'{ok}:')
def wg_flag_prep(tmp, u0, u1):
    return [f's_lshl_b32 s{u0}, s{sCG}, 4\ns_add_u32 s{u0}, s{u0}, s{sRT}\ns_lshl_b32 s{u0}, s{u0}, 3\ns_add_u32 s{u0}, s{u0}, {FLV}',
            f's_lshl_b32 s{u1}, s{sRT}, 4\ns_add_u32 s{u1}, s{u1}, s{sCG}\ns_lshl_b32 s{u1}, s{u1}, 3\ns_add_u32 s{u1}, s{u1}, {FLH}\ns_sub_u32 s{u1}, s{u1}, s{u0}',
            f'v_mul_lo_u32 v{tmp+2}, v{vL}, s{u1}', f'v_add_u32 v{tmp+2}, s{u0}, v{tmp+2}',
            f'v_mov_b32 v{tmp}, s{sTag}', f'v_mov_b32 v{tmp+1}, s{sTag+1}']
def wg_flag(a, tmp, barrier=True):
    a.wait_vm('ST')
    if barrier: a('s_barrier')
    sk = a.label('nofl')
    a(f's_cmp_lg_u32 s{sW}, 0\ns_cbranch_scc1 {sk}')
    a('s_mov_b64 exec, 3')
    a(f'buffer_store_dwordx2 {vr(tmp,2)}, v{tmp+2}, {sr(SM)}, 0 offen sc1')
    a('s_mov_b64 exec, -1')
    a(f'{sk}:')
def col_record(a, o, src):
    a(f'v_cvt_pk_bf16_f32 v{o+2}, v{src}, v{src}\nv_and_b32 v{o+3}, 0xffff0000, v{o+2}\nv_sub_f32 v{o+4}, v{src}, v{o+3}')
    a(f'v_cvt_pk_bf16_f32 v{o}, v{src}, v{o+4}\nv_and_b32 v{o+3}, 0xffff0000, v{o}\nv_sub_f32 v{o+4}, v{o+4}, v{o+3}')
    a(f'v_cvt_pk_bf16_f32 v{o+1}, v{o+4}, 0')
    a(f'v_mov_b32 v{o+2}, s{sTag}\nv_mov_b32 v{o+3}, s{sTag+1}')
def get_tag(a):
    a('s_waitcnt lgkmcnt(0)')
    a(f's_add_u32 s{sTag}, s{sTag}, 0x7f4a7c15\ns_addc_u32 s{sTag+1}, s{sTag+1}, 0x9e3779b9')
CW_OFF = f's_lshl_b32 s{sA2}, s{sCG}, 11\ns_lshl_b32 s{sA3}, s{sJ}, 10\ns_add_u32 s{sA2}, s{sA2}, s{sA3}\ns_lshl_b32 s{sA3}, s{sI}, 9\ns_add_u32 s{sA2}, s{sA2}, s{sA3}\ns_add_u32 s{sA2}, s{sA2}, {CSW}'
def stat_loads(role):
    ld = lambda r: (f'buffer_load_dwordx4 {vr(r)}, v{vU8}, {sr(SM)}, s{sA2} offen sc1', 'SL')
    ins = [(f's_lshl_b32 s{sA2}, s{sSig}, 9', None), ld(MO)]
    if role == 'A':
        ins += [(f's_xor_b32 s{sA2}, s{sA2}, 512', None), ld(MP), (CW_OFF, None), ld(CA), (f's_xor_b32 s{sA2}, s{sA2}, 512', None), ld(CB)]
    ins += [(f's_lshl_b32 s{sA2}, s{sCG}, 9\ns_add_u32 s{sA2}, s{sA2}, {CSZ}', None), ld(CZ)]
    return ins
def stat_check(a, role):
    ok = a.label('ok'); lp = a.label('spin')
    recs = [MO, MP, CA, CB, CZ] if role == 'A' else [MO, CZ]
    def cmp():
        for i, r in enumerate(recs):
            a(f'v_cmp_ne_u64 {"s[22:23]" if i else "vcc"}, s[{sTag}:{sTag+1}], {vr(r+2,2)}')
            if i: a('s_or_b64 vcc, vcc, s[22:23]')
    a.wait_vm('SL')
    cmp()
    a(f's_cbranch_vccz {ok}')
    a(f's_mov_b32 s{sSpin}, {SPIN_MAX}')
    a(f'{lp}:')
    for ins in stat_loads(role): a(ins[0])
    a(f's_sub_u32 s{sSpin}, s{sSpin}, 1\ns_cbranch_scc1 {ok}')
    a('s_waitcnt vmcnt(0)')
    cmp()
    a(f's_cbranch_vccnz {lp}')
    a(f'{ok}:')
def stat_fix(role):
    L = [f'ds_write_b32 v{vZs}, v{MO+1}']
    for r in ([MO, MP] if role == 'A' else [MO]):
        L += [f'v_and_b32 v{r}, v{r}, v{vM8}', f'v_and_b32 v{r+1}, 0xffff, v{r}', f'v_mov_b32 v{r+2}, 0', f'v_mov_b32 v{r+3}, 0']
    for r in ([CA, CB, CZ] if role == 'A' else [CZ]):
        L += [f'v_mov_b32 v{r+2}, 0', f'v_mov_b32 v{r+3}, 0']
    L += [f'ds_read_b128 {vr(ZR+4*q)}, v{vH16} offset:{32*q}' for q in range(4)]
    return L

def rot_next(c): return f's_add_u32 s{c}, s{c}, 1\ns_cmp_eq_u32 s{c}, 7\ns_cselect_b32 s{c}, 0, s{c}'
def dma_group(role, g):
    slot = (g % 4) * SLOT
    ins = []
    if role == 'A':
        ins.append((f's_mov_b32 s{sGc}, s{sG1}' if g == 0 else rot_next(sGc), None))
        ins.append((f's_lshl_b32 s{sA0}, s{sGc}, 7\ns_mul_i32 s{sA1}, s{sGc}, {64*3584}', None))
    else:
        ins.append((f's_movk_i32 s{sA0}, {g*128}\ns_mov_b32 s{sA1}, {g*64*3584}', None))
    if role != 'C':
        ins.append((f's_add_u32 m0, s{sLx}, {slot}\ns_nop 0', None))
        for q in range(4):
            ins.append((f'buffer_load_dwordx4 v{vXo+q}, {sr(SX)}, s{sA0} offen offset:{q*1024} lds', f'G{g}'))
        ins.append((f's_add_u32 m0, s{sLd}, {slot}\ns_nop 0', None))
        ins.append((f'buffer_load_dwordx4 v{vDo}, {sr(SD)}, s{sA0} offen lds', f'G{g}'))
    if role != 'B':
        ins.append((f's_add_u32 m0, s{sLw}, {slot}\ns_nop 0', None))
        for i in range(4):
            ins.append((f'buffer_load_dwordx4 v{vWo+i}, {sr(SW)}, s{sA1} offen offset:{i*1024} lds', f'G{g}'))
    return ins
STG = [3*SLOT, 0, SLOT]
NSTG = opt('nstg', 2)
def w2_group(q):
    base, off = (sStg, STG[q]) if q < NSTG else (sArea, 32768 if q == 2 else (q-3)*8192)
    ins = []
    for m in range(8):
        pre = ''
        if m == 0: pre = (f's_mov_b32 s{sGw}, s{sG0}' if q == 0 else rot_next(sGw)) + f'\ns_mul_i32 s{sA4}, s{sGw}, {8*7168}\n'
        if m == 4: pre = f's_add_u32 s{sA4}, s{sA4}, {4*7168}\n'
        pre += f's_add_u32 m0, s{base}, {off + 4096*(m//4)}\ns_nop 0\n' if (q < NSTG or m % 4 == 0) else ''
        ins.append((pre + f'buffer_load_dwordx4 v{vW2+m%4}, {sr(SW2)}, s{sA4} offen offset:{(m%4)*1024} lds', f'R{q}'))
    return ins
def stage_reads(part):
    va2, off = (vSt[part], 0) if part < 2 else ((vSt[1], SLOT) if NSTG == 3 else ((vTra, vTrb), 32768))
    return [f'ds_read_b64_tr_b16 {ar(aW+8*(4*part+kk)+4*blk+2*p,2)}, v{va} offset:{off + kk*2048 + p*1024}'
            for kk in range(4) for blk, va in enumerate(va2) for p in range(2)]

def p1_addr_dma(a):
    t = FR
    a(f'v_lshrrev_b32 v{t+1}, 3, v{vL}\nv_and_b32 v{t+2}, 7, v{vL}\nv_lshrrev_b32 v{t+3}, 1, v{t+1}')
    a(f'v_xor_b32 v{t+4}, v{t+2}, v{t+3}\nv_lshlrev_b32 v{t+4}, 4, v{t+4}')
    a(f'v_mul_u32_u24 v{t+5}, {64*896}, v{t+1}')
    a(f's_mul_i32 s{sT}, s{sSig}, 896')
    a(f'v_add3_u32 v{vXo}, v{t+5}, v{t+4}, s{sT}')
    a(f'v_xor_b32 v{vXo+1}, 64, v{vXo}')
    a(f'v_add_u32 v{vXo+2}, {2*(458752-1024)}, v{vXo}')
    a(f'v_add_u32 v{vXo+3}, {3*(458752-1024)}, v{vXo+1}')
    a(f'v_add_u32 v{vXo+1}, {1*(458752-1024)}, v{vXo+1}')
    a(f'v_and_b32 v{t+6}, 1, v{t+3}\nv_lshlrev_b32 v{t+6}, 2, v{t+6}\nv_xor_b32 v{t+6}, v{t+6}, v{t+2}\nv_lshlrev_b32 v{t+6}, 4, v{t+6}')
    a(f'v_mul_u32_u24 v{t+7}, 3584, v{t+1}')
    a(f's_mul_i32 s{sT}, s{sI}, {32*3584}\ns_lshl_b32 s{sT2}, s{sCG}, 8\ns_add_u32 s{sT}, s{sT}, s{sT2}\ns_lshl_b32 s{sT2}, s{sJ}, 7\ns_add_u32 s{sT}, s{sT}, s{sT2}')
    a(f'v_add3_u32 v{vWo}, v{t+7}, v{t+6}, s{sT}')
    for i in range(1, 4): a(f'v_add_u32 v{vWo+i}, {i*(8*3584-1024)}, v{vWo}')
    a(f'v_mul_u32_u24 v{t+5}, 896, v{t+1}')
    a(f's_lshl_b32 s{sT}, s{sJ}, 6')
    a(f'v_xor_b32 v{t+6}, s{sT}, v{t+4}')
    a(f's_lshl_b32 s{sT}, s{sCG}, 1\ns_add_u32 s{sT}, s{sT}, s{sJ}\ns_mul_i32 s{sT}, s{sT}, {8*896}')
    a(f'v_add3_u32 v{vDo}, v{t+5}, v{t+6}, s{sT}')
    a(f's_lshl_b32 s{sLx}, s{sW}, 12')
    a(f's_lshl_b32 s{sLw}, s{sJ}, 13\ns_lshl_b32 s{sT}, s{sI}, 12\ns_add_u32 s{sLw}, s{sLw}, s{sT}\ns_add_u32 s{sLw}, s{sLw}, 16384')
    a(f's_lshl_b32 s{sLd}, s{sW}, 10\ns_add_u32 s{sLd}, s{sLd}, 32768')

def p1_addr_read(a):
    t = FR
    a(f'v_and_b32 v{vU}, 31, v{vL}\nv_lshrrev_b32 v{vHH}, 5, v{vL}')
    a(f'v_bfe_u32 v{t}, v{vU}, 1, 3\nv_xor_b32 v{t}, v{t}, v{vHH}')
    a(f'v_lshlrev_b32 v{t+1}, 7, v{vU}')
    a(f's_xor_b32 s{sT}, s{sW}, 1\ns_lshl_b32 s{sT}, s{sT}, 12')
    for jj in range(4):
        a(f'v_xor_b32 v{t+2}, {2*jj}, v{t}\nv_lshl_add_u32 v{t+2}, v{t+2}, 4, v{t+1}')
        a(f'v_add_u32 v{vRb+jj}, s{sLx}, v{t+2}\nv_add_u32 v{vRp+jj}, s{sT}, v{t+2}\nv_add_u32 v{vRd+jj}, 0x8000, v{t+2}')
        for r in (vRb, vRp, vRd): a(f'v_add_u32 v{r+4+jj}, {2*SLOT}, v{r+jj}')
    a(f'v_bfe_u32 v{t}, v{vL}, 2, 2')
    a(f'v_lshl_add_u32 v{t+1}, v{vHH}, 3, v{t}\nv_lshlrev_b32 v{t+1}, 7, v{t+1}')
    a(f'v_lshrrev_b32 v{t}, 1, v{t}\nv_xor_b32 v{t}, s{sI}, v{t}\nv_lshl_add_u32 v{t+1}, v{t}, 6, v{t+1}')
    a(f'v_bfe_u32 v{t}, v{vL}, 4, 1\nv_lshl_add_u32 v{t+1}, v{t}, 5, v{t+1}')
    a(f'v_and_b32 v{t}, 3, v{vL}\nv_lshl_add_u32 v{t+1}, v{t}, 3, v{t+1}')
    a(f's_lshl_b32 s{sT}, s{sJ}, 13\ns_add_u32 s{sT}, s{sT}, 16384')
    a(f'v_add_u32 v{vTa}, s{sT}, v{t+1}\nv_xor_b32 v{vTb}, 64, v{vTa}')
    a(f'v_add_u32 v{vTa+1}, {2*SLOT}, v{vTa}\nv_add_u32 v{vTb+1}, {2*SLOT}, v{vTb}')
def stat_addr():
    return lines(f'v_lshlrev_b32 v{vU8}, 4, v{vU}\nv_add_u32 v{vM8}, -1, v{vHH}') + \
           [f's_lshl_b32 s{sB0}, s{sW}, 7\ns_add_u32 s{sB0}, s{sB0}, {VX+8192}', f'v_lshl_add_u32 v{vZs}, v{vU}, 2, s{sB0}', f'v_lshl_add_u32 v{vH16}, v{vHH}, 4, s{sB0}']

def twiddle_wc(t):
    L = [f'v_cvt_f32_u32 v{t}, v{vU}', f'v_cvt_f32_u32 v{t+1}, v{vHH}', f'v_mul_f32 v{t}, {f2h(1/32)}, v{t}',
         f'v_mul_f32 v{t+1}, 4.0, v{t+1}', f'v_mul_f32 v{t+1}, v{t+1}, v{t}']
    for p in range(8):
        u0 = 16*(p >> 2) + 8*((p & 3) >> 1) + 2*(p & 1)
        L += [f'v_fmamk_f32 v{t+2}, v{t}, {f2h(u0)}, v{t+1}', f'v_fmamk_f32 v{t+3}, v{t}, {f2h(u0+1)}, v{t+1}',
              f'v_cos_f32 v{t+4}, v{t+2}', f'v_cos_f32 v{t+5}, v{t+3}', f'v_sin_f32 v{t+6}, v{t+2}', f'v_sin_f32 v{t+7}, v{t+3}',
              f'v_cvt_pk_bf16_f32 v{WC+p}, v{t+4}, v{t+5}', f'v_cvt_pk_bf16_f32 v{WC+8+p}, -v{t+6}, -v{t+7}']
    return L
def twiddle_tf(t, dst):
    L = []
    for rb in range(2):
        L += [f's_add_u32 s{sT}, s{sT1}, {32*rb}\nv_lshl_add_u32 v{t}, v{vU}, 6, s{sT}', f'v_lshl_add_u32 v{t+1}, v{vHH}, 1, s{sI}',
              f'v_cvt_f32_u32 v{t}, v{t}', f'v_cvt_f32_u32 v{t+1}, v{t+1}', f'v_mul_f32 v{t}, {f2h(1/2048)}, v{t}',
              f'v_mul_f32 v{t+1}, {f2h(8.0)}, v{t+1}', f'v_mul_f32 v{t+1}, v{t+1}, v{t}']
        for jj in range(4):
            for h in range(2):
                k0 = 2*jj + 32*h
                d = dst + 16*rb + 4*jj + 2*h
                L += [f'v_fmamk_f32 v{t+2}, v{t}, {f2h(k0)}, v{t+1}', f'v_fmamk_f32 v{t+3}, v{t}, {f2h(k0+1)}, v{t+1}',
                      f'v_cos_f32 v{t+4}, v{t+2}', f'v_sin_f32 v{t+5}, v{t+2}', f'v_cos_f32 v{t+6}, v{t+3}', f'v_sin_f32 v{t+7}, v{t+3}',
                      f'v_cvt_pk_bf16_f32 v{d}, v{t+4}, v{t+5}', f'v_cvt_pk_bf16_f32 v{d+1}, v{t+6}, v{t+7}']
    return L

def p2_addr_early():
    t = vWt; u, w = sB0, sB1
    L = lines(f'v_lshrrev_b32 v{t+1}, 3, v{vL}\nv_and_b32 v{t+2}, 7, v{vL}\nv_bfe_u32 v{t+3}, v{vL}, 4, 1\nv_lshlrev_b32 v{t+3}, 2, v{t+3}\n'
              f'v_xor_b32 v{t+3}, v{t+3}, v{t+2}\nv_lshlrev_b32 v{t+3}, 4, v{t+3}\nv_mul_u32_u24 v{t+4}, 896, v{t+1}')
    L += [f's_mul_i32 s{u}, s{sW}, {448*896}\ns_lshl_b32 s{w}, s{sCT}, 7\ns_add_u32 s{u}, s{u}, s{w}', f'v_add3_u32 v{vW2}, v{t+4}, v{t+3}, s{u}']
    L += [f'v_add_u32 v{vW2+i}, {i*(7168-1024)}, v{vW2}' for i in range(1, 4)]
    L += lines(f'v_bfe_u32 v{t}, v{vL}, 2, 2\nv_lshl_add_u32 v{t+1}, v{vHH}, 2, v{t}\nv_lshlrev_b32 v{t+1}, 7, v{t+1}\nv_lshrrev_b32 v{t}, 1, v{t}\n'
               f'v_xor_b32 v{t}, s{sJ}, v{t}\nv_lshl_add_u32 v{t+1}, v{t}, 6, v{t+1}\nv_bfe_u32 v{t}, v{vL}, 4, 1\nv_lshl_add_u32 v{t+1}, v{t}, 5, v{t+1}\n'
               f'v_and_b32 v{t}, 3, v{vL}\nv_lshl_add_u32 v{t+1}, v{t}, 3, v{t+1}\ns_mul_i32 s{sArea}, s{sW}, {AREA}\n'
               f'v_add_u32 v{vTra}, s{sArea}, v{t+1}\nv_xor_b32 v{vTrb}, 64, v{vTra}\ns_lshl_b32 s{sStg}, s{sW}, 13\nv_add_u32 v{vSt[1][0]}, s{sStg}, v{t+1}\n'
               f'v_xor_b32 v{vSt[1][1]}, 64, v{vSt[1][0]}\nv_add_u32 v{vSt[0][0]}, {STG[0]}, v{vSt[1][0]}\nv_add_u32 v{vSt[0][1]}, {STG[0]}, v{vSt[1][1]}')
    def vmap(el, e_out, tt_out, sg_out):
        M = [f's_lshl_b32 s{u}, s{sCT}, 6\ns_lshl_b32 s{w}, s{sJ}, 5\ns_add_u32 s{u}, s{u}, s{w}', f'v_add_u32 v{e_out}, s{u}, v{el}', f'v_sub_u32 v{t+6}, 448, v{e_out}',
             f's_sub_u32 s{u}, 32, s{sT1}\ns_and_b32 s{u}, s{u}, 31', f'v_mov_b32 v{tt_out}, s{sT1}', f'v_mov_b32 v{t+7}, s{u}',
             f'v_cmp_lt_u32 vcc, 239, v{e_out}\ns_nop 1\nv_cndmask_b32 v{e_out}, v{e_out}, v{t+6}, vcc\nv_cndmask_b32 v{tt_out}, v{tt_out}, v{t+7}, vcc' +
             (f'\nv_mov_b32 v{t+6}, 0\nv_bfrev_b32 v{t+7}, 1\nv_cndmask_b32 v{sg_out}, v{t+6}, v{t+7}, vcc' if sg_out else '')]
        return M
    L += vmap(vU, t, t+1, vSg)
    L += lines(f'v_lshlrev_b32 v{vVo}, 16, v{t+1}\nv_lshl_add_u32 v{vVo}, v{t}, 4, v{vVo}\nv_lshl_add_u32 v{vVo}, v{vHH}, 15, v{vVo}')
    L += [f's_lshl_b32 s{u}, s{sI}, 14', f'v_add_u32 v{vVo}, s{u}, v{vVo}']
    L += lines(f'v_and_b32 v{t+2}, 48, v{vL}\nv_subrev_u32 v{t+2}, 16, v{t+2}\nv_min_u32 v{t+2}, 31, v{t+2}')
    L += vmap(t+2, t, t+1, None)
    L += lines(f'v_and_b32 v{t}, 0x1f0, v{t}\nv_and_b32 v{t+2}, 15, v{vL}\nv_add_u32 v{t}, v{t}, v{t+2}\nv_lshlrev_b32 v{t}, 3, v{t}\nv_add_u32 v{vPa}, {FLV}, v{t}')
    L += [f's_mul_i32 s{u}, s{sW}, 7\ns_lshr_b32 s{u}, s{u}, 1\ns_lshr_b32 s{w}, s{sT1}, 1\ns_lshl_b32 s{w}, s{w}, 4\ns_add_u32 s{u}, s{u}, s{w}',
          f's_lshl_b32 s{u}, s{u}, 3\ns_add_u32 s{u}, s{u}, {FLH}', f'v_and_b32 v{t}, 3, v{vL}', f'v_lshl_add_u32 v{t}, v{t}, 3, s{u}',
          f'v_cmp_gt_u32 vcc, 16, v{vL}\ns_nop 1\nv_cndmask_b32 v{vPa}, v{vPa}, v{t}, vcc']
    L += [f'v_lshrrev_b32 v{t}, 2, v{vL}', f's_lshl_b32 s{u}, s{sI}, 4', f'v_add_u32 v{t}, s{u}, v{t}']
    L += lines(f'v_and_b32 v{t+1}, 3, v{vL}\nv_mul_u32_u24 v{t+2}, {64*896}, v{t}\nv_lshl_add_u32 v{t+2}, v{t+1}, 4, v{t+2}')
    L += [f's_lshl_b32 s{sRi}, s{sI}, 5\ns_add_u32 s{sRi}, s{sRi}, s{sT1}\ns_mul_i32 s{u}, s{sT1}, 896\ns_lshl_b32 s{w}, s{sCT}, 7',
          f's_add_u32 s{u}, s{u}, s{w}\ns_lshl_b32 s{w}, s{sJ}, 6\ns_add_u32 s{u}, s{u}, s{w}\ns_lshl_b32 s{sRi}, s{sRi}, 9',
          f'v_add_u32 v{vOo}, s{u}, v{t+2}', f'v_add_u32 v{vOo+1}, {32*896}, v{vOo}', f'v_lshlrev_b32 v{vRo}, 4, v{t}',
          f's_mul_i32 s{sHb}, s{sT1}, {HB_SIG}\ns_mul_i32 s{u}, s{sW}, {28*1024}\ns_add_u32 s{sHb}, s{sHb}, s{u}']
    return L

def p1_reads(n):
    g, jj = divmod(n, 4)
    half, so = (g % 4) // 2, (g % 2) * SLOT
    f = FR + 20 * (n & 1)
    return [f'ds_read_b64_tr_b16 {vr(f+8,2)}, v{vTa+half} offset:{so + jj*2048}',
            f'ds_read_b64_tr_b16 {vr(f+10,2)}, v{vTa+half} offset:{so + jj*2048 + 512}',
            f'ds_read_b128 {vr(f)}, v{vRb+4*half+jj} offset:{so}',
            f'ds_read_b128 {vr(f+4)}, v{vRp+4*half+jj} offset:{so}',
            f'ds_read_b64_tr_b16 {vr(f+12,2)}, v{vTb+half} offset:{so + jj*2048}',
            f'ds_read_b64_tr_b16 {vr(f+14,2)}, v{vTb+half} offset:{so + jj*2048 + 512}',
            f'ds_read_b128 {vr(f+16)}, v{vRd+4*half+jj} offset:{so}']
def p1_mfmas(n):
    f = FR + 20 * (n & 1)
    def m(acc, A, B): return mfma(vr(acc, 16), vr(A), vr(B), vr(acc, 16) if n else '0')
    return [m(ACC, f+8, f), m(ACC+16, f+8, f+4), m(ACC+32, f+12, f), m(ACC+48, f+12, f+4), m(ACC+64, f, f+16)]

vZsg, vXw, vXr, vVs, vHo = 78, 79, 80, 81, 82
sHA0, sHA1, sHB0, sHB1 = 4, 5, 8, 9
def z_addr(t, u, w):
    L = lines(f'v_bfe_u32 v{t}, v{vL}, 4, 1\nv_xor_b32 v{vZsg}, 1, v{t}\nv_mul_u32_u24 v{vZsg}, 0x8000, v{vZsg}\nv_lshl_or_b32 v{vZsg}, v{vZsg}, 16, v{vZsg}\n'
              f'v_lshl_add_u32 v{t}, v{vHH}, 2, v{t}\nv_lshlrev_b32 v{t}, 8, v{t}\nv_and_b32 v{t+1}, 15, v{vL}\nv_lshl_add_u32 v{t}, v{t+1}, 4, v{t}')
    L += [f's_lshl_b32 s{u}, s{sW}, 2\ns_add_u32 s{u}, s{u}, {VX}', f'v_add_u32 v{vXw}, s{u}, v{t}',
          f's_lshl_b32 s{u}, s{sW}, 11\ns_add_u32 s{u}, s{u}, {VX}', f'v_lshlrev_b32 v{vHo}, 4, v{vL}', f'v_add_u32 v{vXr}, s{u}, v{vHo}']
    L += lines(f'v_lshrrev_b32 v{t}, 4, v{vL}\nv_lshlrev_b32 v{t}, 16, v{t}\nv_lshl_add_u32 v{t}, v{t+1}, 4, v{t}')
    L += [f's_lshl_b32 s{u}, s{sW}, 19\ns_lshl_b32 s{w}, s{sRT}, 12\ns_add_u32 s{u}, s{u}, s{w}\ns_lshl_b32 s{w}, s{sCG}, 8\ns_add_u32 s{u}, s{u}, s{w}',
          f'v_add_u32 v{vVs}, s{u}, v{t}']
    return L
def h_addr(u, w):
    return [f's_lshl_b32 s{u}, s{sCG}, 3\ns_lshl_b32 s{w}, s{sJ}, 2\ns_add_u32 s{u}, s{u}, s{w}\ns_lshl_b32 s{w}, s{sI}, 1\ns_add_u32 s{u}, s{u}, s{w}',
            f's_lshl_b32 s{u}, s{u}, 10\ns_mul_i32 s{w}, s{sSig}, {HB_SIG}\ns_add_u32 s{sHA0}, s{u}, s{w}',
            f's_xor_b32 s{w}, s{sSig}, 1\ns_mul_i32 s{w}, s{w}, {HB_SIG}\ns_add_u32 s{sHA1}, s{u}, s{w}',
            f's_xor_b32 s{sHB0}, s{sHA0}, 2048\ns_xor_b32 s{sHB1}, s{sHA1}, 2048']

def hblock_list(a, acc, so):
    L = [f'v_cvt_pk_bf16_f32 v{acc+p}, v{acc+2*p}, v{acc+2*p+1}' for p in range(8)]
    L += [f'v_pk_max_i16 v{acc+p}, v{acc+p}, 0' for p in range(8)] if not opt('maxf', 0) else []
    L.append(lambda: a.vmem(f'buffer_store_dwordx4 {vr(acc)}, v{vHo}, {sr(SH)}, s{so} offen sc1', 'ST'))
    L.append(lambda: a.vmem(f'buffer_store_dwordx4 {vr(acc+4)}, v{vHo}, {sr(SH)}, s{so} offen offset:1024 sc1', 'ST'))
    if opt('maxf', 0): L = [f'v_max_f32 v{acc+r}, 0, v{acc+r}' for r in range(16)] + L
    return L
def early_epilogue(a, lds, wait_lg):
    ZA = ACC + 64
    T1 = [FR+8, FR+16]; T2 = [FR+28, FR+36]
    b1 = lambda p: T1[p >> 2] + (p & 3)
    b2 = lambda p: T2[p >> 2] + (p & 3)
    L = ['s_nop 3'] + hblock_list(a, ACC, sHA0)
    L += [f'v_mul_f32 v{ZA+r}, v{ZA+r}, v{ZR+r}' for r in range(16)]
    L += [f'v_cvt_pk_bf16_f32 v{b1(p)}, v{ZA+2*p}, v{ZA+2*p+1}' for p in range(8)]
    L += [(lambda p=p: lds(f'ds_swizzle_b32 v{b2(p)}, v{b1(p)} offset:0x401f', 'sw')) for p in range(8)]
    L += [mfma(vr(ZA,16), vr(WC), vr(T1[0]), '0'), mfma(vr(ZA,16), vr(WC+4), vr(T1[1]), vr(ZA,16))]
    L += [lambda: wait_lg('sw')] + [f'v_xor_b32 v{b2(p)}, v{b2(p)}, v{vZsg}' for p in range(8)] + ['s_nop 1']
    L += [mfma(vr(ZA,16), vr(WC+8), vr(T2[0]), vr(ZA,16)), mfma(vr(ZA,16), vr(WC+12), vr(T2[1]), vr(ZA,16))]
    L += hblock_list(a, ACC+16, sHA1)
    L += [f'v_permlane16_swap_b32 v{ZA+2*p}, v{ZA+2*p+1}' for p in range(8)] + ['s_nop 1']
    L += [f'v_cvt_pk_bf16_f32 v{b1(p)}, v{ZA+2*p}, v{ZA+2*p+1}' for p in range(8)]
    L += [(lambda p=p: lds(f'ds_write_b32 v{vXw}, v{b1(p)} offset:{((2*p & 3) + 8*(p >> 1))*256}', 'xw')) for p in range(8)]
    L += [lambda: (wait_lg('xw'), a('s_barrier'))]
    L += [lambda: lds(f'ds_read_b128 {vr(T2[0])}, v{vXr}', 'xr'), lambda: lds(f'ds_read_b128 {vr(T2[1])}, v{vXr} offset:1024', 'xr')]
    L += [f's_mov_b32 s{sT}, {4*65536}', 'MARK']
    L += [lambda: wait_lg('xr'),
          lambda: a.vmem(f'buffer_store_dwordx4 {vr(T2[0])}, v{vVs}, {sr(SV)}, 0 offen sc1', 'ST'),
          lambda: a.vmem(f'buffer_store_dwordx4 {vr(T2[1])}, v{vVs}, {sr(SV)}, s{sT} offen sc1', 'ST')]
    L.remove('MARK')
    return L
def rank1():
    return [mfma(vr(ACC,16), vr(CA), vr(MO), vr(ACC,16)), mfma(vr(ACC+16,16), vr(CA), vr(MP), vr(ACC+16,16)),
            mfma(vr(ACC+32,16), vr(CB), vr(MO), vr(ACC+32,16)), mfma(vr(ACC+48,16), vr(CB), vr(MP), vr(ACC+48,16)),
            mfma(vr(ACC+64,16), vr(MO), vr(CZ), vr(ACC+64,16))]
def p1_loop(a):
    lg = []
    def lds(x, tag):
        a(x); lg.append(tag)
    def wait_lg(tag=None):
        if tag is None:
            if lg: a('s_waitcnt lgkmcnt(0)'); lg.clear()
            return
        if tag not in lg: return
        idx = max(i for i, x in enumerate(lg) if x == tag)
        a(f's_waitcnt lgkmcnt({min(len(lg)-1-idx, 15)})')
        del lg[:idx+1]
    RT = ['m0', 'm0', 'm0', 'm1', 'm2', 'm2', 'm4']
    FG = opt('fg', 5); FINE = opt('fine', 1)
    a.wait_vm('G0')
    a('s_barrier')
    stamp(a, 1); stamp(a, 1, '1')
    for r, t_ in zip(p1_reads(0), RT): lds(r, f'0{t_}')
    a.lgw = wait_lg
    q = [x for g_ in range(2 + opt('gpre', 0), 4) for x in dma_group('A', g_)]
    vq = stat_addr() + p2_addr_early() + twiddle_wc(vWt) + z_addr(vWt, sB0, sB1) + h_addr(sB0, sB1) + wg_flag_prep(vFl, sB0, sB1)
    wq = [x for q_ in range(NSTG) for x in w2_group(q_)]
    midgroup = [False]
    SK = opt('sk', 28)
    seq = [(n, 'AZB') for n in range(SK)] + [(n, 'AZ') for n in range(SK, 28)] + [(n, 'B') for n in range(SK, 28)]
    def reads(pos):
        n, kind = seq[pos]
        g, jj = divmod(n, 4)
        half, so = (g % 4) // 2, (g % 2) * SLOT
        f = FR + 20 * (pos & 1)
        wa = [f'ds_read_b64_tr_b16 {vr(f+8+2*p,2)}, v{vTa+half} offset:{so + jj*2048 + 512*p}' for p in range(2)]
        wb = [f'ds_read_b64_tr_b16 {vr(f+12+2*p,2)}, v{vTb+half} offset:{so + jj*2048 + 512*p}' for p in range(2)]
        x0 = f'ds_read_b128 {vr(f)}, v{vRb+4*half+jj} offset:{so}'
        x1 = f'ds_read_b128 {vr(f+4)}, v{vRp+4*half+jj} offset:{so}'
        d = f'ds_read_b128 {vr(f+16)}, v{vRd+4*half+jj} offset:{so}'
        if kind == 'AZB': L = [(wa[0], 0), (wa[1], 0), (x0, 0), (x1, 1), (wb[0], 2), (wb[1], 2), (d, 4)]
        elif kind == 'AZ': L = [(wa[0], 0), (wa[1], 0), (x0, 0), (x1, 1), (d, 2)]
        else: L = [(wb[0], 0), (wb[1], 0), (x0, 0), (x1, 1)]
        return [(x, f'{pos}m{m_}') for x, m_ in L]
    def mfmas(pos):
        n, kind = seq[pos]
        f = FR + 20 * (pos & 1)
        def m(acc, A, B): return mfma(vr(acc, 16), vr(A), vr(B), vr(acc, 16) if n else '0')
        A_ = [m(ACC, f+8, f), m(ACC+16, f+8, f+4)]; B_ = [m(ACC+32, f+12, f), m(ACC+48, f+12, f+4)]; Z_ = [m(ACC+64, f, f+16)]
        return {'AZB': A_ + B_ + Z_, 'AZ': A_ + Z_, 'B': B_}[kind]
    yq = []
    for pos, (n, kind) in enumerate(seq):
        g, jj = divmod(n, 4)
        first = kind != 'B'
        if STAMP and LST == '7' and 0 <= pos - opt('s0', 8) <= 8: a(f's_memtime s[{STB+2*(1+pos-opt("s0", 8))}:{STB+2*(1+pos-opt("s0", 8))+1}]')
        BG = opt('bg', 2)
        def group_barrier():
            assert not any(t == f'G{g+1}' for _, t in q), (n, q)
            wait_lg()
            a.wait_vm(f'G{g+1}')
            a('s_barrier')
            stamp(a, 2 + g, '1')
            if g == 1: cstamp(a, 1)
            if g == 5: cstamp(a, 3)
            if g + 4 < 7: q.extend(dma_group('A', g + 4))
        bar = first and jj == 3 and g < 6
        if bar and BG == 0: group_barrier()
        if first and TW > 0 and n == TW:
            q[:0] = [(f'v_and_b32 v{vP}, 15, v{vL}\nv_lshlrev_b32 v{vP}, 7, v{vP}\nbuffer_load_dword v{vP+1}, v{vP}, {sr(SW2)}, s{sA2} offen', 'TW')]
        if first and n == POLL0: q[:0] = stat_loads('A')
        chk = first and n == POLL0 + PCHK
        if chk: assert not any(t == 'SL' for _, t in q)
        R1 = rank1()
        if first and n == 27:
            assert not any(x in vq for x in stat_fix('A'))
            for m in (R1 if SK == 28 else R1[:2] + R1[4:]): a(m)
        if kind == 'B' and n == SK:
            for x in vq: a(x)
            vq.clear()
            assert SK >= 20
            stamp(a, 7, '1')
            for m in R1[2:4]: a(m)
            yq = early_epilogue(a, lds, wait_lg)
        rd = reads(pos + 1) if pos + 1 < len(seq) else []
        nld = 0; wn = 0
        rate = RATE[pos % len(RATE)]
        ms = mfmas(pos)
        for mi, m in enumerate(ms):
            last = mi == len(ms) - 1
            wait_lg(f'{pos}m{mi}')
            a(m)
            used = 0
            if bar and mi + 1 == BG: group_barrier(); used += 2
            if chk and mi == 0: stat_check(a, 'A'); vq[:0] = stat_fix('A'); used += 9
            for _ in range(7 if last else (opt('rpg', 3) if not (bar and BG) else 4)):
                if rd and not (bar and mi + 1 < BG): r, t_ = rd.pop(0); lds(r, t_); used += 1
            if mi >= len(ms) - 3:
                cnt = 0
                while nld < rate and (cnt < 1 or last):
                    wok = pos >= W0 and wq and not (bar and mi + 1 < BG) and wn < WPS[pos % len(WPS)] and pos >= 16 + 4 * int(wq[0][1][1])
                    if q: ins = q.pop(0)
                    elif wok: ins = wq.pop(0); wn += 1
                    else: break
                    a.emit(ins); used += cost(ins[0])
                    if ins[1]: nld += 0.5 if ins[1] == 'SL' else 1; cnt += 1
            while vq and used + min(cost(vq[0]), 3) <= FG:
                x = vq.pop(0); used += cost(x)
                if x.startswith('ds_'): lds(x, 'x')
                else: a(x)
            while yq and used < opt('yg', 7):
                x = yq.pop(0); used += 1
                if callable(x): x()
                else: a(x)
        assert not rd
    a.yq = yq
    assert not vq and not q, vq
    stamp(a, 2); stamp(a, 8, '1'); stamp(a, 1, '3'); stamp(a, 1, '5')
    return wq

def p1_loop_bc(a, role):
    def regs(g): return FR if g % 2 == 0 else ACC + 16
    def reads(g):
        half, so = (g % 4) // 2, (g % 2) * SLOT
        f = regs(g); L = []
        for jj in range(4):
            if role == 'B':
                L.append(f'ds_read_b128 {vr(f+8*jj)}, v{vRb+4*half+jj} offset:{so}')
                L.append(f'ds_read_b128 {vr(f+8*jj+4)}, v{vRd+4*half+jj} offset:{so}')
            else:
                L.append(f'ds_read_b64_tr_b16 {vr(f+8*jj,2)}, v{vTa+half} offset:{so + jj*2048}')
                L.append(f'ds_read_b64_tr_b16 {vr(f+8*jj+2,2)}, v{vTa+half} offset:{so + jj*2048 + 512}')
        return L
    a.wait_vm('G0'); a('s_barrier')
    if role == 'C': stamp(a, 1)
    for r in reads(0): a(r)
    if role == 'C':
        for ins in dma_group(role, 3): a.emit(ins)
    for g in range(7):
        a('s_waitcnt lgkmcnt(0)')
        if g < 6:
            a.wait_vm(f'G{g+1}'); a('s_barrier')
            for r in reads(g + 1): a(r)
            if g + 4 < 7:
                for ins in dma_group(role, g + 4): a.emit(ins)
            if role == 'B' and g == 4:
                for ins in stat_loads('B'): a.emit(ins)
        f = regs(g)
        for jj in range(4):
            n = 4*g + jj
            if role == 'B': a(mfma(vr(ACC+64,16), vr(f+8*jj), vr(f+8*jj+4), vr(ACC+64,16) if n else '0'))
            else: a(mfma(vr(ACC,16), vr(TF), vr(f+8*jj), vr(ACC,16) if n else '0'))
    if role == 'C': stamp(a, 2)

ZA, B1, B2 = ACC + 64, FR, FR + 8
def z1(a):
    for r in range(16): a(f'v_mul_f32 v{ZA+r}, v{ZA+r}, v{ZR+r}')
    for p in range(8): a(f'v_cvt_pk_bf16_f32 v{B1+p}, v{ZA+2*p}, v{ZA+2*p+1}')
    for p in range(8): a(f'ds_swizzle_b32 v{B2+p}, v{B1+p} offset:0x401f')
    a(mfma(vr(ZA,16), vr(WC), vr(B1), '0'))
    a(mfma(vr(ZA,16), vr(WC+4), vr(B1+4), vr(ZA,16)))
def z2(a):
    a('s_waitcnt lgkmcnt(0)')
    for p in range(8): a(f'v_xor_b32 v{B2+p}, v{B2+p}, v{vZsg}')
    a('s_nop 1')
    a(mfma(vr(ZA,16), vr(WC+8), vr(B2), vr(ZA,16)))
    a(mfma(vr(ZA,16), vr(WC+12), vr(B2+4), vr(ZA,16)))
def z3(a):
    for p in range(8): a(f'v_permlane16_swap_b32 v{ZA+2*p}, v{ZA+2*p+1}')
    a('s_nop 1')
    for p in range(8): a(f'v_cvt_pk_bf16_f32 v{B1+p}, v{ZA+2*p}, v{ZA+2*p+1}')
    for p in range(8):
        t1b = (2*p & 3) + 8 * (p >> 1)
        a(f'ds_write_b32 v{vXw}, v{B1+p} offset:{t1b*256}')
def z4a(a):
    a('s_waitcnt lgkmcnt(0)\ns_barrier')
    a(f'ds_read_b128 {vr(B2)}, v{vXr}\nds_read_b128 {vr(B2+4)}, v{vXr} offset:1024')
def z4b(a):
    a(f's_mov_b32 s{sT}, {4*65536}')
    a('s_waitcnt lgkmcnt(0)')
    a.vmem(f'buffer_store_dwordx4 {vr(B2)}, v{vVs}, {sr(SV)}, 0 offen sc1', 'ST')
    a.vmem(f'buffer_store_dwordx4 {vr(B2+4)}, v{vVs}, {sr(SV)}, s{sT} offen sc1', 'ST')

def gen():
    a = Asm()
    a('s_cmp_ge_u32 s2, 256\ns_cbranch_scc1 Lend')
    a('s_load_dwordx2 s[4:5], s[0:1], 0')
    a('s_load_dwordx4 s[8:11], s[0:1], 24')
    a('s_load_dwordx4 s[12:15], s[0:1], 48')
    a('s_load_dwordx2 s[16:17], s[0:1], 64')
    a('s_load_dwordx2 s[18:19], s[0:1], 80')
    stamp(a, 0)
    CPF = opt('cpf', 1)
    if CPF:
        a('s_getpc_b64 s[22:23]')
        a('Lpc:')
        a(f's_bfe_u32 s3, s2, 0x30003\ns_lshl_b32 s3, s3, 12')
        a(f'v_lshrrev_b32 v{vP}, 6, v0\nv_lshlrev_b32 v{vP}, 10, v{vP}\nv_and_b32 v{vP+1}, 7, v0\nv_lshl_add_u32 v{vP}, v{vP+1}, 7, v{vP}\nv_add_u32 v{vP}, s3, v{vP}')
        a(f'v_min_u32 v{vP}, Lend-Lpc, v{vP}')
        a.vmem(f'global_load_dword v{vP+1}, v{vP}, s[22:23]', 'CP')
    a(f'v_lshrrev_b32 v{FR}, 6, v0\nv_and_b32 v{vL}, 63, v0')
    a(f'v_readfirstlane_b32 s{sW}, v{FR}')
    sX8, sN = sA3, sA4
    a(f's_and_b32 s{sX8}, s2, 7\ns_lshr_b32 s{sN}, s2, 3')
    a(f's_and_b32 s{sT}, s{sX8}, 3\ns_lshr_b32 s{sT2}, s{sX8}, 2')
    a(f's_lshr_b32 s{sI}, s{sW}, 1\ns_and_b32 s{sJ}, s{sW}, 1')
    a(f's_cmp_ge_u32 s{sN}, 28\ns_cbranch_scc1 LroleBC')
    def sigma(): a(f's_lshl_b32 s{sSig}, s{sRT}, 1\ns_add_u32 s{sSig}, s{sSig}, s{sJ}\ns_lshl_b32 s{sT}, s{sI}, 5\ns_add_u32 s{sSig}, s{sSig}, s{sT}')
    def p1_srds():
        a('s_waitcnt lgkmcnt(0)')
        srd(a, SX, 4, 2048*896)
        a(f's_cmp_ge_u32 s{sW}, 2')
        a(f's_cselect_b32 s{SD}, s10, s8\ns_cselect_b32 s{SD+1}, s11, s9\ns_mov_b32 s{SD+2}, {448*896}\ns_mov_b32 s{SD+3}, 0x20000')
        srd(a, SW, 12, 448*3584)
    def other_srds():
        srd(a, SM, 18, SM_SIZE, SM_OFF)
        a(f's_load_dwordx2 s[{sTag}:{sTag+1}], s[{SM}:{SM+1}], {EPO}')
        srd(a, SH, 18, HB_SIZE, WS0)
        srd(a, SV, 18, VB_SIZE, VB_OFF)

    a(f's_lshl_b32 s{sRT}, s{sT}, 2\ns_and_b32 s{sT3}, s{sN}, 3\ns_add_u32 s{sRT}, s{sRT}, s{sT3}\ns_lshr_b32 s{sCT}, s{sN}, 2')
    a(f's_mul_i32 s{sCG}, s{sT2}, 7\ns_add_u32 s{sCG}, s{sCG}, s{sCT}')
    a(f's_lshl_b32 s{sG0}, s{sT3}, 1\ns_add_u32 s{sG0}, s{sG0}, s{sCT}\ns_sub_u32 s{sB0}, s{sG0}, 7\ns_cselect_b32 s{sG0}, s{sG0}, s{sB0}')
    if not ROT: a(f's_mov_b32 s{sG0}, 0')
    sCT1 = sCT
    if opt('map2', 0):
        a(f's_mov_b32 s{sB1}, s{sG0}')
        a(f's_and_b32 s{sA0}, s{sX8}, 1\ns_and_b32 s{sA1}, s{sN}, 7\ns_lshr_b32 s{sCT}, s{sN}, 3')
        a(f's_lshl_b32 s{sG0}, s{sCT}, 1\ns_add_u32 s{sG0}, s{sG0}, s{sA1}')
        a(f's_lshl_b32 s{sB0}, s{sA1}, 1\ns_lshl_b32 s{sA0}, s{sA0}, 2\ns_add_u32 s{sT1}, s{sA1}, s{sA0}\ns_add_u32 s{sA0}, s{sA0}, s{sCT}')
        a(f's_cmp_eq_u32 s{sCT}, 3\ns_cselect_b32 s{sCT}, 3, s{sA0}\ns_cselect_b32 s{sA1}, s{sT1}, s{sA1}\ns_cselect_b32 s{sG0}, s{sB0}, s{sG0}')
        a(f's_sub_u32 s{sB0}, s{sG0}, 7\ns_cselect_b32 s{sG0}, s{sG0}, s{sB0}')
        a(f's_lshr_b32 s{sT1}, s{sX8}, 1\ns_lshl_b32 s{sT1}, s{sT1}, 2\ns_lshr_b32 s{sB0}, s{sA1}, 1\ns_add_u32 s{sT1}, s{sT1}, s{sB0}')
        a(f's_sub_u32 s{sB0}, 32, s{sT1}\ns_cmp_eq_u32 s{sT1}, 0\ns_cselect_b32 s{sB0}, 16, s{sB0}')
        a(f's_bitcmp1_b32 s{sA1}, 0\ns_cselect_b32 s{sT1}, s{sB0}, s{sT1}')
        assert ROT1 in (7, 4) and not XOFF
        if ROT1 == 4: a(f's_lshr_b32 s{sB1}, s{sN}, 2\ns_add_u32 s{sB1}, s{sB1}, s{sT3}\ns_and_b32 s{sB1}, s{sB1}, 3\ns_lshl_b32 s{sB1}, s{sB1}, 1')
    else:
        a(f's_lshl_b32 s{sT1}, s{sX8}, 1\ns_lshr_b32 s{sB0}, s{sT3}, 1\ns_add_u32 s{sT1}, s{sT1}, s{sB0}\ns_sub_u32 s{sB0}, 32, s{sT1}\ns_cmp_eq_u32 s{sT1}, 0\ns_cselect_b32 s{sB0}, 16, s{sB0}')
        a(f's_bitcmp1_b32 s{sT3}, 0\ns_cselect_b32 s{sT1}, s{sB0}, s{sT1}')
    if XOFF: a(f's_add_u32 s{sG0}, s{sG0}, s{sX8}\ns_sub_u32 s{sB0}, s{sG0}, 7\ns_cselect_b32 s{sG0}, s{sG0}, s{sB0}\ns_sub_u32 s{sB0}, s{sG0}, 7\ns_cselect_b32 s{sG0}, s{sG0}, s{sB0}')
    if opt('map2', 0): pass
    elif ROT1 == 7: a(f's_mov_b32 s{sB1}, s{sG0}')
    elif ROT1 == 4: a(f's_add_u32 s{sB1}, s{sCT}, s{sT3}\ns_and_b32 s{sB1}, s{sB1}, 3\ns_lshl_b32 s{sB1}, s{sB1}, 1')
    elif ROT1 == 2: a(f's_add_u32 s{sB1}, s{sCT}, s{sT3}\ns_and_b32 s{sB1}, s{sB1}, 1\ns_mul_i32 s{sB1}, s{sB1}, 3')
    elif ROT1 == 3: a(f's_add_u32 s{sB1}, s{sCT}, s{sT3}\ns_mul_i32 s{sB0}, s{sB1}, 43\ns_lshr_b32 s{sB0}, s{sB0}, 7\ns_mul_i32 s{sB0}, s{sB0}, 3\ns_sub_u32 s{sB1}, s{sB1}, s{sB0}\ns_lshl_b32 s{sB1}, s{sB1}, 1')
    else: a(f's_mov_b32 s{sB1}, 0')
    a(f's_mul_i32 s{sOnes}, s{sX8}, 28\ns_add_u32 s{sOnes}, s{sOnes}, s{sN}\ns_lshl_b32 s{sOnes}, s{sOnes}, 2\ns_add_u32 s{sOnes}, s{sOnes}, s{sW}\ns_mul_i32 s{sA2}, s{sOnes}, {14*128}')
    sigma(); p1_addr_dma(a); p1_srds()
    a(f's_mov_b32 s{sG1}, s{sB1}')
    def tw():
        srd(a, SW2, 14, 1792*896)
        a.vmem(f'v_and_b32 v{vt}, 15, v{vL}\nv_lshlrev_b32 v{vt}, 7, v{vt}\nbuffer_load_dword v{vP+1}, v{vt}, {sr(SW2)}, s{sA2} offen', 'TW')
    if TW == -3: tw()
    for ins in dma_group('A', 0): a.emit(ins)
    if TW == -2: tw()
    p1_addr_read(a)
    for ins in dma_group('A', 1): a.emit(ins)
    if TW == -1: tw()
    if TW >= 0: srd(a, SW2, 14, 1792*896)
    for g_ in range(2, 2 + opt('gpre', 0)):
        for ins in dma_group('A', g_): a.emit(ins)
    other_srds()
    srd(a, SO, 16, 2048*896)
    if opt('tlb', 0):
        a(f's_mov_b32 s{sT}, {HB_SIG}\nv_mul_lo_u32 v{FR}, v{vL}, s{sT}\nv_mov_b32 v{FR+1}, {248*16}\nv_mul_u32_u24 v{FR+2}, {32*896}, v{vL}')
        a(f's_mov_b32 s{sT}, {112*1024}')
        a.vmem(f'buffer_load_dword v{vP}, v{FR}, {sr(SH)}, s{sT} offen', 'TL')
        a.vmem(f'buffer_load_dword v{vP+1}, v{FR+1}, {sr(SV)}, 0 offen', 'TL')
        if opt('tlb', 0) > 1: a.vmem(f'buffer_load_dword v{vP+1}, v{FR+2}, {sr(SO)}, 0 offen', 'TL')
    get_tag(a)
    if STAMP == 3:
        a(f's_add_u32 s{sT}, s2, s{sW}\ns_cmp_lg_u32 s{sT}, 0\ns_cbranch_scc1 Lnopub\nv_mov_b32 v{FR}, {EPO+128}\nv_mov_b32 v{FR+1}, s{STB}\nbuffer_store_dword v{FR+1}, v{FR}, {sr(SM)}, 0 offen sc1\nLnopub:')
    wq = p1_loop(a)
    def run_list(L):
        for x in L:
            if callable(x): x()
            else: a(x)
    if opt('sk', 28) == 28:
        a('s_nop 6\ns_waitcnt lgkmcnt(0)')
        run_list(hblock_list(a, ACC, sHA0))
        z1(a); run_list(hblock_list(a, ACC+16, sHA1))
        z2(a); run_list(hblock_list(a, ACC+32, sHB0))
        if RPRE0:
            for ins in wq: a.emit(ins)
            wq = []
            a.wait_vm('R0'); run_list(stage_reads(0))
        z3(a); run_list(hblock_list(a, ACC+48, sHB1))
        if RPRE0:
            a.wait_vm('R1'); run_list(stage_reads(1))
        z4a(a); z4b(a)
    else:
        k = min(len(a.yq), 11)
        run_list(a.yq[:k])
        if k < 11: a(f's_nop {10 - k}')
        run_list(hblock_list(a, ACC+32, sHB0) + hblock_list(a, ACC+48, sHB1))
        run_list(a.yq[k:])
    stamp(a, 3); stamp(a, 2, '3'); stamp(a, 2, '5')
    phase2(a, wq)
    a('s_branch Lfin')

    a('LroleBC:')
    a.vm = ['CP'] if CPF else []
    TWL = opt('twl', 0)
    if TWL: a(f's_lshl_b32 s{sG0}, s{sX8}, 2\ns_add_u32 s{sG0}, s{sG0}, s{sN}\ns_sub_u32 s{sG0}, s{sG0}, 28\ns_lshl_b32 s{sG0}, s{sG0}, 2\ns_add_u32 s{sG0}, s{sG0}, s{sW}\ns_mul_i32 s{sG0}, s{sG0}, {98*128}')
    def light_tw():
        if not TWL: return
        srd(a, SW2, 14, 1792*896)
        a(f'v_lshlrev_b32 v{vP}, 7, v{vL}\ns_add_u32 s{sT}, s{sG0}, {34*128}')
        a.vmem(f'buffer_load_dword v{vP+1}, v{vP}, {sr(SW2)}, s{sG0} offen', 'TW')
        a.vmem(f'buffer_load_dword v{vP+1}, v{vP}, {sr(SW2)}, s{sT} offen', 'TW')
    a(f's_cmp_ge_u32 s{sN}, 30\ns_cbranch_scc1 LroleC')
    a(f's_lshl_b32 s{sRT}, s{sT}, 2\ns_lshl_b32 s{sT2}, s{sT2}, 1\ns_add_u32 s{sRT}, s{sRT}, s{sT2}\ns_add_u32 s{sRT}, s{sRT}, s{sN}\ns_sub_u32 s{sRT}, s{sRT}, 28')
    a(f's_mov_b32 s{sCG}, s{sRT}')
    sigma(); p1_addr_dma(a); p1_srds()
    XB, DB, vSb = 104, 224, 92
    for g in range(7):
        a(f's_movk_i32 s{sA0}, {g*128}')
        for q in range(4):
            a.vmem(f'buffer_load_dwordx4 {vr(XB+16*g+4*q)}, v{vXo+q}, {sr(SX)}, s{sA0} offen offset:{q*1024}', f'X{g}')
    for g in range(7):
        a.vmem(f'buffer_load_dwordx4 {vr(DB+4*g)}, v{vDo}, {sr(SD)}, 0 offen offset:{g*128}', 'XD')
    a(f's_sub_u32 s{sT}, 14, s{sRT}\ns_mul_i32 s{sT}, s{sT}, {16*896}\nv_add_u32 v{vDo}, s{sT}, v{vDo}\ns_mov_b32 s{sCG}, 14')
    other_srds()
    a(f's_mov_b32 s{sOnes}, 0x3f803f80')
    for i in range(9): a(f'v_mov_b32 v{vSb+i}, 0')
    for g in range(7):
        a.wait_vm(f'X{g}')
        if g == 0: stamp(a, 1)
        for i in range(4):
            for q in range(4):
                a(f'v_dot2c_f32_bf16 v{vSb+q}, s{sOnes}, v{XB+16*g+4*q+i}')
                a(f'v_dot2c_f32_bf16 v{vSb+4+q}, v{XB+16*g+4*q+i}, v{XB+16*g+4*q+i}')
    t = vt
    def dpp(rng):
        for pat in ('quad_perm:[1,0,3,2]', 'quad_perm:[2,3,0,1]', 'row_half_mirror'):
            for i in rng: a(f'v_add_f32_dpp v{vSb+i}, v{vSb+i}, v{vSb+i} {pat} row_mask:0xf bank_mask:0xf')
            if len(rng) < 3: a('s_nop 1')
    stamp(a, 2)
    a(f'v_and_b32 v{t+6}, 3, v{vL}\ns_nop 1')
    dpp(range(8))
    for q in range(1, 4):
        a(f'v_cmp_eq_u32 vcc, {q}, v{t+6}\ns_nop 1\nv_cndmask_b32 v{vSb}, v{vSb}, v{vSb+q}, vcc\nv_cndmask_b32 v{vSb+4}, v{vSb+4}, v{vSb+4+q}, vcc')
    a(f'v_mul_f32 v{t+4}, {f2h(1/448)}, v{vSb}\nv_mul_f32 v{t+1}, {f2h(1/448)}, v{vSb+4}')
    a(f'v_fma_f32 v{t+1}, -v{t+4}, v{t+4}, v{t+1}\nv_max_f32 v{t+1}, 0, v{t+1}')
    a(f'v_cvt_pk_bf16_f32 v{t}, -v{t+4}, -v{t+4}')
    a(f'v_cvt_pk_bf16_f32 v{t+1}, v{t+1}, v{t+1}\nv_and_b32 v{t+1}, 0xffff0000, v{t+1}')
    a(f'v_add_f32 v{t+1}, {f2h(1e-5)}, v{t+1}')
    a(f'v_cvt_pk_bf16_f32 v{t+1}, v{t+1}, v{t+1}\nv_and_b32 v{t+1}, 0xffff0000, v{t+1}')
    a(f'v_sqrt_f32 v{t+1}, v{t+1}\ns_nop 0')
    a(f'v_cvt_pk_bf16_f32 v{t+1}, v{t+1}, v{t+1}\nv_and_b32 v{t+1}, 0xffff0000, v{t+1}')
    a(f'v_rcp_f32 v{t+1}, v{t+1}')
    get_tag(a)
    a(f'v_mov_b32 v{t+2}, s{sTag}\nv_mov_b32 v{t+3}, s{sTag+1}')
    a(f'v_lshrrev_b32 v{t+7}, 3, v{vL}\nv_lshl_add_u32 v{t+5}, v{t+6}, 3, v{t+7}\nv_lshlrev_b32 v{t+5}, 4, v{t+5}')
    a(f's_lshl_b32 s{sT}, s{sSig}, 9')
    a.vmem(f'buffer_store_dwordx4 {vr(t)}, v{t+5}, {sr(SM)}, s{sT} offen sc1', 'S1')
    a.wait_vm('XD')
    for i in range(28): a(f'v_dot2c_f32_bf16 v{vSb+8}, s{sOnes}, v{DB+i}')
    a('s_nop 2')
    dpp([8])
    col_record(a, DB, vSb+8)
    a(f'v_lshlrev_b32 v{t+7}, 4, v{t+7}\ns_lshl_b32 s{sT}, s{sRT}, 9\ns_lshl_b32 s{sT2}, s{sW}, 7\ns_add_u32 s{sT}, s{sT}, s{sT2}\ns_add_u32 s{sT}, s{sT}, {CSZ}')
    a.vmem(f'buffer_store_dwordx4 {vr(DB)}, v{t+7}, {sr(SM)}, s{sT} offen sc1', 'S1')
    stamp(a, 3)
    if TWL == 1: light_tw()
    for g in range(4):
        for ins in dma_group('B', g): a.emit(ins)
    if TWL == 2: light_tw()
    p1_addr_read(a)
    for x in wg_flag_prep(vFl, sB0, sB1) + stat_addr() + twiddle_wc(vWt) + z_addr(vWt, sB0, sB1): a(x)
    p1_loop_bc(a, 'B')
    stat_check(a, 'B')
    for x in stat_fix('B'): a(x)
    a('s_nop 1')
    a(mfma(vr(ZA,16), vr(MO), vr(CZ), vr(ZA,16)))
    a('s_nop 11\ns_waitcnt lgkmcnt(0)')
    z1(a); z2(a); a('s_nop 11'); z3(a); z4a(a); z4b(a)
    wg_flag(a, vFl)
    a('s_branch Lfin')

    a('LroleC:')
    a.vm = ['CP'] if CPF else []
    a(f's_lshl_b32 s{sT3}, s{sT}, 1\ns_add_u32 s{sT3}, s{sT3}, s{sN}\ns_sub_u32 s{sT3}, s{sT3}, 30')
    a(f's_lshl_b32 s{sRT}, s{sT2}, 3\ns_add_u32 s{sRT}, s{sRT}, s{sT3}')
    a(f's_mul_i32 s{sCG}, s{sT2}, 7\ns_add_u32 s{sCG}, s{sCG}, s{sT3}\ns_add_u32 s{sT2}, s{sT2}, 14')
    a(f's_cmp_eq_u32 s{sT3}, 7\ns_cselect_b32 s{sCG}, s{sT2}, s{sCG}')
    sigma(); p1_addr_dma(a); p1_srds()
    other_srds()
    a(f's_cmp_ge_u32 s{sCG}, 14\ns_cbranch_scc1 LroleE')
    for g in range(3):
        for ins in dma_group('C', g): a.emit(ins)
    p1_addr_read(a)
    for x in stat_addr(): a(x)
    for i in range(4): a(f'v_mov_b32 v{TF+i}, 0x3f803f80')
    get_tag(a)
    p1_loop_bc(a, 'C')
    a('s_nop 11')
    col_record(a, FR, ACC)
    a(CW_OFF)
    a.vmem(f'buffer_store_dwordx4 {vr(FR)}, v{vU8}, {sr(SM)}, s{sA2} offen sc1', 'S1')
    stamp(a, 3)
    light_tw()
    a(f's_mov_b32 s{sCG}, 15')
    for x in wg_flag_prep(vFl, sB0, sB1): a(x)
    wg_flag(a, vFl)
    a('s_branch Lfin')

    a('LroleE:')
    a.vm = []
    light_tw()
    get_tag(a)
    a(f's_sub_u32 s{sT3}, 15, s{sCG}\ns_add_u32 s{sT3}, s{sT3}, s{sW}\ns_mov_b32 s{sCG}, 15')
    for x in wg_flag_prep(vFl, sB0, sB1): a(x)
    wg_flag(a, vFl)
    a(f's_cmp_lg_u32 s{sT3}, 0\ns_cbranch_scc1 Lfin')
    a(f'v_lshlrev_b32 v{vPa}, 3, v{vL}\nv_add_u32 v{vPa}, {FLV}, v{vPa}')
    for i in range(4):
        poll_issue(a, 'PE', vPa)
        poll_check(a, 'PE', vPa, sleep=16)
        a(f'v_add_u32 v{vPa}, 512, v{vPa}')
    a(f'v_mov_b32 v{vFl+2}, {EPO}\ns_mov_b64 exec, 1')
    a(f'buffer_store_dwordx2 {vr(vFl,2)}, v{vFl+2}, {sr(SM)}, 0 offen sc1')
    a('s_mov_b64 exec, -1')
    a('Lfin:')
    stamp_store(a)
    a('Lend:')
    a('s_endpgm')
    return a.text()

def phase2(a, wq):
    ACC0, ACC1, YA, VF = 144, 176, 208, 104
    TFd = 4
    vRw, vRwb, vRr = 84, 88, 92
    vRi = 36
    YS = [208, 240]
    XR = 224
    t = 56
    for ins in wq: a.emit(ins)
    rq = []
    for q in range(NSTG, 7): rq += w2_group(q)
    NR = len(rq)
    def rdma(n):
        while rq and n > 0:
            ins = rq.pop(0); a.emit(ins)
            if ins[1]: n -= 1
    vq = twiddle_tf(t, TFd)
    u = t + 8
    vq += lines(f'v_and_b32 v{u}, 7, v{vU}\nv_xor_b32 v{u}, v{u}, v{vHH}\nv_lshlrev_b32 v{u+1}, 7, v{vU}')
    vq += [f's_lshl_b32 s{sT}, s{sJ}, 12\ns_add_u32 s{sT2}, s{sT}, 32768\ns_add_u32 s{sT}, s{sT2}, s{sArea}', f'v_add_u32 v{u+1}, s{sT}, v{u+1}']
    for q in range(4):
        vq += lines(f'v_xor_b32 v{u+2}, {2*q}, v{u}\nv_lshl_add_u32 v{vRw+q}, v{u+2}, 4, v{u+1}\nv_xor_b32 v{vRwb+q}, 0x1000, v{vRw+q}')
    vq += lines(f'v_lshrrev_b32 v{u}, 2, v{vL}\nv_and_b32 v{u+1}, 3, v{vL}\nv_and_b32 v{u+2}, 7, v{u}\nv_lshlrev_b32 v{u+3}, 1, v{u+1}\nv_xor_b32 v{u+2}, v{u+2}, v{u+3}\n'
                f'v_lshlrev_b32 v{u+2}, 4, v{u+2}\nv_lshl_add_u32 v{u+2}, v{u}, 7, v{u+2}')
    vq += [f's_lshl_b32 s{sT}, s{sI}, 11\ns_add_u32 s{sT2}, s{sT2}, s{sT}']
    nsafe = len(vq)
    for k in range(4):
        vq += [f's_xor_b32 s{sT}, s{sJ}, {k}\ns_mul_i32 s{sT}, s{sT}, {AREA}\ns_add_u32 s{sT}, s{sT}, s{sT2}', f'v_add_u32 v{vRr+2*k}, s{sT}, v{u+2}', f'v_xor_b32 v{vRr+2*k+1}, 16, v{vRr+2*k}']
    uq = []
    def vdo(budget):
        while (uq or vq) and budget > 0:
            x = (uq or vq).pop(0)
            if callable(x): x(); continue
            a(x); budget -= cost(x)
    if RPRE0:
        assert opt('sk', 28) == 28 and RPRE0 <= 32
        rdma(RPRE0)
        vdo(opt('tf0', 60) + opt('tf0b', 40))
    else:
        a.wait_vm('R0'); stamp(a, 3, '5')
        for x in stage_reads(0): a(x)
        vdo(opt('tf0', 60))
        stamp(a, 4, '5'); a.wait_vm('R1'); stamp(a, 5, '5')
        for x in stage_reads(1): a(x)
        vdo(opt('tf0b', 40))
        if NSTG == 3:
            a.wait_vm('R2')
            for x in stage_reads(2): a(x)
    a('s_waitcnt lgkmcnt(0)')
    stamp(a, 3, '3'); stamp(a, 6, '5'); a.wait_vm('ST'); stamp(a, 7, '5')
    wg_flag(a, vFl)
    stamp(a, 8, '5')
    stamp(a, 4); stamp(a, 4, '3')
    nr = max(opt('rb', 10), RPRE0)
    rdma(nr - RPRE0)
    did2 = NSTG == 3
    while nr < NR - RLATE:
        if nr >= P1POS and 'P1' not in a.vm: poll_issue(a, 'P1', vPa)
        rdma(1); nr += 1
        if nr == 20 and not did2: uq += [lambda: a.wait_vm('R2')] + stage_reads(2); did2 = True
        vdo(opt('tf1', 8))
    if 'P1' not in a.vm: poll_issue(a, 'P1', vPa)
    stamp(a, 5, '3')
    if not did2: uq += [lambda: a.wait_vm('R2')] + stage_reads(2)
    vdo(10000)
    stamp(a, 5); stamp(a, 6, '3')
    poll_check(a, 'P1', vPa, mask='15' if VSPLIT else None)
    stamp(a, 6); stamp(a, 7, '3'); stamp(a, 1, '4')
    horder = list(range(HN0)) + [28, 29, 30, 31] + list(range(HN0, 28)) + list(range(32, 56))
    sHq = [sB0, sB1]
    def hload(pos):
        i = horder[pos]
        rb, k = divmod(i, 28)
        c = (sGh0, sGh1)[rb]
        if k % 4 == 0:
            a(f's_mov_b32 s{c}, s{sG0}' if k == 0 else rot_next(c))
            a(f's_lshl_b32 s{sHq[rb]}, s{c}, 12\ns_add_u32 s{sHq[rb]}, s{sHq[rb]}, s{sHb}')
            if rb: a(f's_add_u32 s{sHq[rb]}, s{sHq[rb]}, {32*HB_SIG}')
        a.vmem(f'buffer_load_dwordx4 {ar(aH+4*(i%32))}, v{vHo}, {sr(SH)}, s{sHq[rb]} offen offset:{(k % 4)*1024} sc1', f'H{i}')
    def vloads():
        if VSPLIT: poll_check(a, 'P2', vPa, sleep=0)
        for j in range(8):
            a(f's_movk_i32 s{sA2}, {j*4096}')
            a.vmem(f'buffer_load_dwordx4 {vr(VF+4*j)}, v{vVo}, {sr(SV)}, s{sA2} offen sc1', f'V{j}')
    def smalls():
        for rb in range(2):
            a(f's_lshl_b32 s{sA2}, s{sT1}, 9' if rb == 0 else f's_add_u32 s{sA2}, s{sA2}, {32*512}')
            a.vmem(f'buffer_load_dword v{vRi+rb}, v{vRo}, {sr(SM)}, s{sA2} offen offset:4 sc1', 'RI')
            a.vmem(f'buffer_load_dword v{vRi+2+rb}, v{vU8}, {sr(SM)}, s{sA2} offen offset:4 sc1', 'RI')
        a.vmem(f'buffer_load_dwordx4 {vr(XR)}, v{vOo}, {sr(SX)}, 0 offen', 'X')
        a.vmem(f'buffer_load_dwordx4 {vr(XR+4)}, v{vOo+1}, {sr(SX)}, 0 offen', 'X')
    a('s_waitcnt lgkmcnt(0)')
    def vload(j):
        a(f's_movk_i32 s{sA2}, {j*4096}')
        a.vmem(f'buffer_load_dwordx4 {vr(VF+4*j)}, v{vVo}, {sr(SV)}, s{sA2} offen sc1', f'V{j}')
    lq = [('h', i) for i in range(56)]
    vpos = opt('vpos', 14)
    lq = lq[:vpos] + [('v', j) for j in range(4)] + [('s', 0)] + lq[vpos:]
    pos = opt('rpos', 8)
    for _ in range(RLATE):
        lq.insert(pos, ('r', 0)); pos += opt('rstep', 2)
    def lnext(i):
        if not lq: return
        kind, x = lq[0]
        if kind == 'h' and horder[x] - 32 > i: return
        lq.pop(0)
        if kind == 'h': hload(x)
        elif kind == 'v': vload(x)
        elif kind == 'r': rdma(1)
        else: smalls()
    for i in range(HB0): lnext(-1)
    stamp(a, 8, '3'); stamp(a, 2, '4')
    def ard(k):
        s = aF + 8 * (k % (PD + 1))
        return [f'ds_read_b64_tr_b16 {ar(s+4*blk+2*p,2)}, v{va} offset:{(k-12)*2048 + p*1024}'
                for blk, va in enumerate((vTra, vTrb)) for p in range(2)]
    state = dict(lgk=[])
    HPS = [int(c) for c in (OPT.get('hpp', '1112') * opt('hpn', 10) + '1')]
    def lds(s, tag):
        a(s); state['lgk'].append(tag)
    def wait_lgk(tag):
        L = state['lgk']
        if tag not in L: return
        idx = max(i for i, x in enumerate(L) if x == tag)
        a(f's_waitcnt lgkmcnt({min(len(L)-1-idx, 15)})')
        state['lgk'] = L[idx+1:]
    def kstep(rb, k, fill, fill0=()):
        i = 28*rb + k
        acc = ACC0 if rb == 0 else ACC1
        assert not any(kd == 'h' and horder[x] == i for kd, x in lq)
        a.wait_vm(f'H{i}')
        if k >= 12: wait_lgk(f'A{rb}_{k}')
        if rb == 0 and 12 <= k + PD < 28 and (k + PD) % 4 == 0:
            assert not any(t_ == f'R{(k+PD)//4}' for _, t_ in rq)
            a.wait_vm(f'R{(k+PD)//4}')
        A = aW + 8*k if k < 12 else aF + 8*(k % (PD + 1))
        B = ar(aH + 4*(i % 32))
        a(mfma(vr(acc,16), ar(A), B, vr(acc,16) if k else '0'))
        if 12 <= k + PD < 28:
            for r in ard(k+PD): lds(r, f'A{rb}_{k+PD}')
        for f in fill0: f()
        a(mfma(vr(acc+16,16), ar(A+4), B, vr(acc+16,16) if k else '0'))
        for _ in range(HPS[min(i, len(HPS) - 1)]): lnext(i)
        for f in fill: f()
    def take(Q, budget):
        out = []
        while Q and budget > 0:
            x = Q.pop(0)
            if isinstance(x, str): budget -= cost(x); out.append(lambda x=x: a(x))
            else: budget -= 1; out.append(x)
        return out
    def vstep(m_):
        def f():
            j, rb = divmod(m_, 2)
            if rb == 0:
                assert ('v', j) not in lq
                a.wait_vm(f'V{j}')
                for i in range(4): a(f'v_xor_b32 v{VF+4*j+i}, v{VF+4*j+i}, v{vSg}')
                a('s_nop 1')
            a(mfma(vr(YS[rb],16), vr(VF+4*j), vr(TFd+16*rb+4*j), vr(YS[rb],16) if j else '0'))
        return f
    for k in range(28):
        fill = []; fill0 = []
        if k + PD < 12: fill0 = take(vq, 5)
        if VM0 <= k < VM0 + 8:
            assert not any('cos' in x for x in vq)
            fill.append(vstep(k - VM0))
        else: fill += take(vq, 4)
        kstep(0, k, fill, fill0)
        if k in (0, 7, 15, 27): stamp(a, {0: 3, 7: 4, 15: 5, 27: 6}[k], '4')
    assert not vq
    stamp(a, 7)
    def red_write(acc, base): return [(lambda q=q: lds(f'ds_write_b128 v{base+q}, {vr(acc+4*q)}', 'RW')) for q in range(4)]
    def scale_own(acc, rb): return [f'v_fmac_f32 v{acc+r}, v{YS[rb]+r}, v{vRi+2+rb}' for r in range(16)]
    def barrier():
        wait_lgk('RW'); a('s_barrier')
    def finalize(P, rb):
        L = []
        for k in range(4):
            for h in range(2):
                L.append(lambda k=k, h=h: lds(f'ds_read_b128 {vr(P+8*k+4*h)}, v{vRr+2*k+h}', f'RR{k}'))
        U = 56
        for i in range(4): L += [f'v_lshlrev_b32 v{U+2*i}, 16, v{XR+4*rb+i}', f'v_and_b32 v{U+2*i+1}, 0xffff0000, v{XR+4*rb+i}']
        L.append(lambda: wait_lgk('RR1'))
        L += [f'v_add_f32 v{P+r}, v{P+r}, v{P+8+r}' for r in range(8)]
        L.append(lambda: wait_lgk('RR3'))
        L += [f'v_add_f32 v{P+16+r}, v{P+16+r}, v{P+24+r}' for r in range(8)]
        L += [f'v_add_f32 v{P+r}, v{P+r}, v{P+16+r}' for r in range(8)]
        L += [f'v_fma_f32 v{P+r}, v{P+r}, v{vRi+rb}, v{U+r}' for r in range(8)]
        if opt('pert', 0.0) and rb == 1:
            L.append(f's_add_u32 s{sT}, s2, s{sW}\ns_cmp_eq_u32 s{sT}, 0\ns_cselect_b64 exec, 1, 0\nv_add_f32 v{P}, {f2h(opt("pert", 0.0))}, v{P}\ns_mov_b64 exec, -1')
        if opt('pscale', 0.0): L += [f'v_mul_f32 v{P+r}, {f2h(1 + opt("pscale", 0.0))}, v{P+r}' for r in range(8)]
        L += [f'v_cvt_pk_bf16_f32 v{U+p}, v{P+2*p}, v{P+2*p+1}' for p in range(4)]
        L.append(lambda: a.vmem(f'buffer_store_dwordx4 {vr(U)}, v{vOo+rb}, {sr(SO)}, 0 offen {OST}', 'O'))
        return L
    def run(L):
        for f in take(L, 10**6): f()
    PF = 104
    assert ('s', 0) not in lq
    a.wait_vm('X')
    a(f'v_rcp_f32 v{vRi+2}, v{vRi+2}\nv_rcp_f32 v{vRi+3}, v{vRi+3}')
    work = red_write(ACC0+16, vRwb) + scale_own(ACC0, 0) + red_write(ACC0, vRw)
    post = finalize(PF, 0)
    KB1, KB2 = opt('kb1', 10), 25
    for k in range(28):
        fill = []; fill0 = []
        if 3 <= k < KB1: fill0 = take(work, 2); fill = take(work, 3)
        if k == KB1:
            assert not work
            fill = [barrier]
        if KB1 < k < KB2:
            fill0 = take(post, 1)
            fill = take(post, FILL + (1 if opt('pscale', 0.0) else 0))
        if k == KB2:
            assert not post and not any(x.startswith('RR') for x in state['lgk']), post
            fill = [lambda: a('s_barrier')]
        kstep(1, k, fill, fill0)
        if k in (11, 27): stamp(a, {11: 7, 27: 8}[k], '4'); cstamp(a, {11: 5, 27: 7}[k])
    stamp(a, 8)
    a('s_nop 10')
    run(scale_own(ACC1, 1) + red_write(ACC1, vRw) + red_write(ACC1+16, vRwb))
    barrier()
    run(finalize(PF, 1))

def main():
    body = gen()
    k = NAME + '_kernel'
    print(f'''; FNet mixing (two-stage DFT factorisation, 2048 = 32 x 64) + ReLU FFN + residual in one persistent launch.
; @launch grid=(256,1,1) block=(256,1,1) lds={LDS_SIZE}
.amdgcn_target "amdgcn-amd-amdhsa--gfx950"
.text
.globl {k}
.p2align 8
.type {k},@function
{k}:
{body}
.section .rodata,"a"
.p2align 6
.amdhsa_kernel {k}
  .amdhsa_next_free_vgpr {256+NAGPR}
  .amdhsa_next_free_sgpr 102
  .amdhsa_accum_offset 256
  .amdhsa_group_segment_fixed_size 0
  .amdhsa_kernarg_size 88
  .amdhsa_user_sgpr_count 2
  .amdhsa_user_sgpr_kernarg_segment_ptr 1
  .amdhsa_system_sgpr_workgroup_id_x 1
.end_amdhsa_kernel''')
main()
```

```python
import sys, struct
NAME = 'parallel_sum__spectral_fnet__dense_activation_relu__prompt'
OPT = dict(a.split('=') for a in sys.argv[1:] if '=' in a)
def opt(k, d): return type(d)(OPT.get(k, d))
STAMP = opt('stamp', 0); LST = OPT.get('lst')
RATE = [int(c) for c in OPT.get('rate', '3')]
ROT = opt('rot', 1)
POLL0 = opt('poll0', 15); PCHK = opt('pchk', 6)
NW = opt('nw', 16); W0 = opt('w0', 16); WPS = [int(c) for c in OPT.get('wps', '112')]
RPRE0 = opt('rpre0', 0); P1POS = opt('p1pos', 26); RLATE = opt('rlate', 0)
HB0 = opt('hb0', 14); VM0 = opt('vm0', 20); FILL = opt('fill', 5); SLEEP = opt('sleep', 4)
OST = OPT.get('ost', '').replace('_', ' ')
STF = OPT.get('stf', 'sc1').replace('_', ' ')
TW = opt('tw', -1); ROT1 = opt('rot1', 2); XOFF = opt('xoff', 0); VSPLIT = opt('vsplit', 0)

def f2h(x): return '0x%08x' % struct.unpack('<I', struct.pack('<f', x))[0]

WS0 = opt('ws0', 0) << 20
HB_SIG = opt('hbs', 29) * 4096
HB_SIZE = 64 * HB_SIG
VB_OFF = WS0 + 0x800000
VB_SIZE = 32 * 16 * 256 * 16
SM_OFF = WS0 + 0xA00000
SM_SIZE = 0x20000
CSW, CSZ = 0x8000, 0x18000
FLH, FLV, EPO = 0x10000, 0x11000, 0x14000
ST_OFF = 0x1000000
SLOT = 36864
VX = 4 * SLOT
AREA = 40960
LDS_SIZE = 163840
SPIN_MAX = 1 << 17

SX, SW, SD, SH, SV, SM, SW2, SO = 24, 28, 32, 36, 40, 44, 48, 52
sTag = 56
sW, sI, sJ, sRT, sCG, sSig, sLx, sLw, sLd, sT, sT2, sT3, sT1, sCT = 58, 59, 60, 61, 62, 63, 64, 65, 66, 67, 68, 69, 70, 71
sA0, sA1, sA2, sA3, sA4, sOnes, sSpin, sB0, sB1, sG0 = 72, 73, 74, 75, 76, 77, 78, 79, 80, 81
sGc, sGw, sGh0, sGh1 = 6, 7, 3, 6
sArea, sHb, sRi, sG1, sStg = 20, 21, 77, 10, 11
STB = 82
vL, vU, vHH = 1, 2, 3
vXo, vWo, vDo = 4, 8, 12
vRb, vRp, vRd, vTa, vTb = 13, 21, 29, 37, 39
vM8, vU8, vH16, vZs, vP = 41, 42, 43, 44, 46
vt = 48
WC, TF, FR, ACC = 56, 72, 104, 144
MO, MP, CA, CB, CZ, ZR = 224, 228, 232, 236, 100, 240
vWt = 84
vW2, vTra, vTrb, vZw, vPa, vVo, vSg, vOo, vRo = 48, 52, 53, 54, 55, 45, 72, 74, 76
vSt = [(54, 73), (77, 83)]
vFl = 92
aW, aH, aF = 0, 96, 224
aRaw = aH
NAGPR = 256
PD = opt('pd', 3); RL0 = opt('rl0', 0); VL0 = opt('vl0', -1); HN0 = opt('hn0', 28); P2K = opt('p2k', -1)

class Asm:
    def __init__(self):
        self.L = []; self.vm = []; self.nlab = 0
    def __call__(self, s):
        for line in s.split('\n'):
            line = line.strip()
            self.L.append(line if line.endswith(':') else '    ' + line)
    def vmem(self, s, tag):
        self(s); self.vm.append(tag)
    def emit(self, ins):
        s, tag = ins
        if tag == 'TL': self.vm += ['TL'] * (s.count('buffer_load') - 1)
        if tag: self.vmem(s, tag)
        else: self(s)
    def wait_vm(self, tag):
        if tag not in self.vm: return
        idx = max(i for i, t in enumerate(self.vm) if t == tag)
        n = len(self.vm) - 1 - idx
        self(f's_waitcnt vmcnt({min(n, 63)})')
        self.vm = self.vm[idx + 1:]
    def label(self, p):
        self.nlab += 1
        return f'L{p}_{self.nlab}'
    def text(self): return '\n'.join(self.L)

def vr(b, n=4): return f'v[{b}:{b+n-1}]'
def ar(b, n=4): return f'a[{b}:{b+n-1}]'
def sr(b, n=4): return f's[{b}:{b+n-1}]'
def srd(a, d, lo, size, off=0):
    if off: a(f's_add_u32 s{d}, s{lo}, {off}\ns_addc_u32 s{d+1}, s{lo+1}, 0')
    else: a(f's_mov_b32 s{d}, s{lo}\ns_mov_b32 s{d+1}, s{lo+1}')
    a(f's_mov_b32 s{d+2}, {size}\ns_mov_b32 s{d+3}, 0x20000')
def stamp(a, idx, mode=None):
    if not STAMP: return
    if 1 <= idx <= 8 and mode != LST: return
    a(f's_memrealtime s[{STB+2*idx}:{STB+2*idx+1}]')
def cstamp(a, idx, mode='6'):
    if STAMP and LST == mode: a(f's_memrealtime s[{STB+2*idx}:{STB+2*idx+1}]\ns_memtime s[{STB+2*idx+2}:{STB+2*idx+3}]')
def mfma(D, A, B, C): return f'v_mfma_f32_32x32x16_bf16 {D}, {A}, {B}, {C}'
def lines(s): return s.split('\n')
def cost(x): return sum(2 if ('cos' in y or 'sin' in y) else 1 for y in x.split('\n'))

def stamp_store(a):
    if not STAMP: return
    a('s_waitcnt vmcnt(0) lgkmcnt(0)')
    if LST != '7': stamp(a, 9)
    a('s_waitcnt lgkmcnt(0)')
    if STAMP == 3:
        pa, pb = map(int, OPT['probe'].split(','))
        sk = a.label('pskip'); sp = a.label('pspin')
        a(f's_cmp_lg_u32 s2, {OPT.get("pwg", 0)}\ns_cbranch_scc1 {sk}\ns_cmp_lg_u32 s{sW}, {OPT.get("pwv", 0)}\ns_cbranch_scc1 {sk}')
        if pa < 0:
            a(f'v_mov_b32 v4, {EPO+128}\nbuffer_load_dword v5, v4, {sr(SM)}, 0 offen sc1\ns_waitcnt vmcnt(0)\nv_readfirstlane_b32 s{STB-2}, v5\ns_nop 3')
        a(f's_sub_u32 s{sT}, s{STB+2*pb}, s{STB+2*pa}\ns_add_u32 s{sT}, s{sT}, {opt("poff", 0)}\ns_min_u32 s{sT}, s{sT}, 5000\ns_mul_i32 s{sT}, s{sT}, 10')
        a(f's_memrealtime s[4:5]\ns_waitcnt lgkmcnt(0)\ns_add_u32 s{sT}, s{sT}, s4')
        a(f'{sp}:\ns_memrealtime s[4:5]\ns_waitcnt lgkmcnt(0)\ns_sub_u32 s{sT2}, s{sT}, s4\ns_cmp_gt_i32 s{sT2}, 0\ns_cbranch_scc1 {sp}')
        a(f'{sk}:')
        return
    srd(a, SX, 18, 65536, ST_OFF)
    a(f's_lshl_b32 s{sT}, s2, 2\ns_add_u32 s{sT}, s{sT}, s{sW}\ns_lshl_b32 s{sT}, s{sT}, 6')
    a(f'v_mov_b32 v5, s{sT}')
    for i in range(10):
        a(f'v_mov_b32 v4, s{STB+2*i}')
        a(f'buffer_store_dword v4, v5, {sr(SX)}, 0 offen offset:{4*i}')
        a('s_nop 1')

def poll_issue(a, tag, va, vd=vP):
    a.vmem(f'buffer_load_dwordx2 {vr(vd,2)}, v{va}, {sr(SM)}, 0 offen sc1', tag)
def poll_check(a, tag, va, vd=vP, sleep=SLEEP, mask=None):
    ok = a.label('ok'); lp = a.label('spin')
    a.wait_vm(tag)
    mk = f'\ns_and_b64 vcc, vcc, {mask}' if mask else ''
    a(f'v_cmp_ne_u64 vcc, s[{sTag}:{sTag+1}], {vr(vd,2)}' + mk)
    a(f's_cbranch_vccz {ok}')
    a(f's_mov_b32 s{sSpin}, {SPIN_MAX}')
    a(f'{lp}:')
    if sleep: a(f's_sleep {sleep}')
    a(f'buffer_load_dwordx2 {vr(vd,2)}, v{va}, {sr(SM)}, 0 offen sc1')
    a(f's_sub_u32 s{sSpin}, s{sSpin}, 1\ns_cbranch_scc1 {ok}')
    a('s_waitcnt vmcnt(0)')
    a(f'v_cmp_ne_u64 vcc, s[{sTag}:{sTag+1}], {vr(vd,2)}' + mk)
    a(f's_cbranch_vccnz {lp}')
    a(f'{ok}:')
def wg_flag_prep(tmp, u0, u1):
    return [f's_lshl_b32 s{u0}, s{sCG}, 4\ns_add_u32 s{u0}, s{u0}, s{sRT}\ns_lshl_b32 s{u0}, s{u0}, 3\ns_add_u32 s{u0}, s{u0}, {FLV}',
            f's_lshl_b32 s{u1}, s{sRT}, 4\ns_add_u32 s{u1}, s{u1}, s{sCG}\ns_lshl_b32 s{u1}, s{u1}, 3\ns_add_u32 s{u1}, s{u1}, {FLH}\ns_sub_u32 s{u1}, s{u1}, s{u0}',
            f'v_mul_lo_u32 v{tmp+2}, v{vL}, s{u1}', f'v_add_u32 v{tmp+2}, s{u0}, v{tmp+2}',
            f'v_mov_b32 v{tmp}, s{sTag}', f'v_mov_b32 v{tmp+1}, s{sTag+1}']
def wg_flag(a, tmp, barrier=True):
    a.wait_vm('ST')
    if barrier: a('s_barrier')
    sk = a.label('nofl')
    a(f's_cmp_lg_u32 s{sW}, 0\ns_cbranch_scc1 {sk}')
    a('s_mov_b64 exec, 3')
    a(f'buffer_store_dwordx2 {vr(tmp,2)}, v{tmp+2}, {sr(SM)}, 0 offen sc1')
    a('s_mov_b64 exec, -1')
    a(f'{sk}:')
def col_record(a, o, src):
    a(f'v_cvt_pk_bf16_f32 v{o+2}, v{src}, v{src}\nv_and_b32 v{o+3}, 0xffff0000, v{o+2}\nv_sub_f32 v{o+4}, v{src}, v{o+3}')
    a(f'v_cvt_pk_bf16_f32 v{o}, v{src}, v{o+4}\nv_and_b32 v{o+3}, 0xffff0000, v{o}\nv_sub_f32 v{o+4}, v{o+4}, v{o+3}')
    a(f'v_cvt_pk_bf16_f32 v{o+1}, v{o+4}, 0')
    a(f'v_mov_b32 v{o+2}, s{sTag}\nv_mov_b32 v{o+3}, s{sTag+1}')
def get_tag(a):
    a('s_waitcnt lgkmcnt(0)')
    a(f's_add_u32 s{sTag}, s{sTag}, 0x7f4a7c15\ns_addc_u32 s{sTag+1}, s{sTag+1}, 0x9e3779b9')
CW_OFF = f's_lshl_b32 s{sA2}, s{sCG}, 11\ns_lshl_b32 s{sA3}, s{sJ}, 10\ns_add_u32 s{sA2}, s{sA2}, s{sA3}\ns_lshl_b32 s{sA3}, s{sI}, 9\ns_add_u32 s{sA2}, s{sA2}, s{sA3}\ns_add_u32 s{sA2}, s{sA2}, {CSW}'
def stat_loads(role):
    ld = lambda r: (f'buffer_load_dwordx4 {vr(r)}, v{vU8}, {sr(SM)}, s{sA2} offen sc1', 'SL')
    ins = [(f's_lshl_b32 s{sA2}, s{sSig}, 9', None), ld(MO)]
    if role == 'A':
        ins += [(f's_xor_b32 s{sA2}, s{sA2}, 512', None), ld(MP), (CW_OFF, None), ld(CA), (f's_xor_b32 s{sA2}, s{sA2}, 512', None), ld(CB)]
    ins += [(f's_lshl_b32 s{sA2}, s{sCG}, 9\ns_add_u32 s{sA2}, s{sA2}, {CSZ}', None), ld(CZ)]
    return ins
def stat_check(a, role):
    ok = a.label('ok'); lp = a.label('spin')
    recs = [MO, MP, CA, CB, CZ] if role == 'A' else [MO, CZ]
    def cmp():
        for i, r in enumerate(recs):
            a(f'v_cmp_ne_u64 {"s[22:23]" if i else "vcc"}, s[{sTag}:{sTag+1}], {vr(r+2,2)}')
            if i: a('s_or_b64 vcc, vcc, s[22:23]')
    a.wait_vm('SL')
    cmp()
    a(f's_cbranch_vccz {ok}')
    a(f's_mov_b32 s{sSpin}, {SPIN_MAX}')
    a(f'{lp}:')
    for ins in stat_loads(role): a(ins[0])
    a(f's_sub_u32 s{sSpin}, s{sSpin}, 1\ns_cbranch_scc1 {ok}')
    a('s_waitcnt vmcnt(0)')
    cmp()
    a(f's_cbranch_vccnz {lp}')
    a(f'{ok}:')
def stat_fix(role):
    L = [f'ds_write_b32 v{vZs}, v{MO+1}']
    for r in ([MO, MP] if role == 'A' else [MO]):
        L += [f'v_and_b32 v{r}, v{r}, v{vM8}', f'v_and_b32 v{r+1}, 0xffff, v{r}', f'v_mov_b32 v{r+2}, 0', f'v_mov_b32 v{r+3}, 0']
    for r in ([CA, CB, CZ] if role == 'A' else [CZ]):
        L += [f'v_mov_b32 v{r+2}, 0', f'v_mov_b32 v{r+3}, 0']
    L += [f'ds_read_b128 {vr(ZR+4*q)}, v{vH16} offset:{32*q}' for q in range(4)]
    return L

def rot_next(c): return f's_add_u32 s{c}, s{c}, 1\ns_cmp_eq_u32 s{c}, 7\ns_cselect_b32 s{c}, 0, s{c}'
def dma_group(role, g):
    slot = (g % 4) * SLOT
    ins = []
    if role == 'A':
        ins.append((f's_mov_b32 s{sGc}, s{sG1}' if g == 0 else rot_next(sGc), None))
        ins.append((f's_lshl_b32 s{sA0}, s{sGc}, 7\ns_mul_i32 s{sA1}, s{sGc}, {64*3584}', None))
    else:
        ins.append((f's_movk_i32 s{sA0}, {g*128}\ns_mov_b32 s{sA1}, {g*64*3584}', None))
    if role != 'C':
        ins.append((f's_add_u32 m0, s{sLx}, {slot}\ns_nop 0', None))
        for q in range(4):
            ins.append((f'buffer_load_dwordx4 v{vXo+q}, {sr(SX)}, s{sA0} offen offset:{q*1024} lds', f'G{g}'))
        ins.append((f's_add_u32 m0, s{sLd}, {slot}\ns_nop 0', None))
        ins.append((f'buffer_load_dwordx4 v{vDo}, {sr(SD)}, s{sA0} offen lds', f'G{g}'))
    if role != 'B':
        ins.append((f's_add_u32 m0, s{sLw}, {slot}\ns_nop 0', None))
        for i in range(4):
            ins.append((f'buffer_load_dwordx4 v{vWo+i}, {sr(SW)}, s{sA1} offen offset:{i*1024} lds', f'G{g}'))
    return ins
STG = [3*SLOT, 0, SLOT]
NSTG = opt('nstg', 2)
def w2_group(q):
    base, off = (sStg, STG[q]) if q < NSTG else (sArea, 32768 if q == 2 else (q-3)*8192)
    ins = []
    for m in range(8):
        pre = ''
        if m == 0: pre = (f's_mov_b32 s{sGw}, s{sG0}' if q == 0 else rot_next(sGw)) + f'\ns_mul_i32 s{sA4}, s{sGw}, {8*7168}\n'
        if m == 4: pre = f's_add_u32 s{sA4}, s{sA4}, {4*7168}\n'
        pre += f's_add_u32 m0, s{base}, {off + 4096*(m//4)}\ns_nop 0\n' if (q < NSTG or m % 4 == 0) else ''
        ins.append((pre + f'buffer_load_dwordx4 v{vW2+m%4}, {sr(SW2)}, s{sA4} offen offset:{(m%4)*1024} lds', f'R{q}'))
    return ins
def stage_reads(part):
    va2, off = (vSt[part], 0) if part < 2 else ((vSt[1], SLOT) if NSTG == 3 else ((vTra, vTrb), 32768))
    return [f'ds_read_b64_tr_b16 {ar(aW+8*(4*part+kk)+4*blk+2*p,2)}, v{va} offset:{off + kk*2048 + p*1024}'
            for kk in range(4) for blk, va in enumerate(va2) for p in range(2)]

def p1_addr_dma(a):
    t = FR
    a(f'v_lshrrev_b32 v{t+1}, 3, v{vL}\nv_and_b32 v{t+2}, 7, v{vL}\nv_lshrrev_b32 v{t+3}, 1, v{t+1}')
    a(f'v_xor_b32 v{t+4}, v{t+2}, v{t+3}\nv_lshlrev_b32 v{t+4}, 4, v{t+4}')
    a(f'v_mul_u32_u24 v{t+5}, {64*896}, v{t+1}')
    a(f's_mul_i32 s{sT}, s{sSig}, 896')
    a(f'v_add3_u32 v{vXo}, v{t+5}, v{t+4}, s{sT}')
    a(f'v_xor_b32 v{vXo+1}, 64, v{vXo}')
    a(f'v_add_u32 v{vXo+2}, {2*(458752-1024)}, v{vXo}')
    a(f'v_add_u32 v{vXo+3}, {3*(458752-1024)}, v{vXo+1}')
    a(f'v_add_u32 v{vXo+1}, {1*(458752-1024)}, v{vXo+1}')
    a(f'v_and_b32 v{t+6}, 1, v{t+3}\nv_lshlrev_b32 v{t+6}, 2, v{t+6}\nv_xor_b32 v{t+6}, v{t+6}, v{t+2}\nv_lshlrev_b32 v{t+6}, 4, v{t+6}')
    a(f'v_mul_u32_u24 v{t+7}, 3584, v{t+1}')
    a(f's_mul_i32 s{sT}, s{sI}, {32*3584}\ns_lshl_b32 s{sT2}, s{sCG}, 8\ns_add_u32 s{sT}, s{sT}, s{sT2}\ns_lshl_b32 s{sT2}, s{sJ}, 7\ns_add_u32 s{sT}, s{sT}, s{sT2}')
    a(f'v_add3_u32 v{vWo}, v{t+7}, v{t+6}, s{sT}')
    for i in range(1, 4): a(f'v_add_u32 v{vWo+i}, {i*(8*3584-1024)}, v{vWo}')
    a(f'v_mul_u32_u24 v{t+5}, 896, v{t+1}')
    a(f's_lshl_b32 s{sT}, s{sJ}, 6')
    a(f'v_xor_b32 v{t+6}, s{sT}, v{t+4}')
    a(f's_lshl_b32 s{sT}, s{sCG}, 1\ns_add_u32 s{sT}, s{sT}, s{sJ}\ns_mul_i32 s{sT}, s{sT}, {8*896}')
    a(f'v_add3_u32 v{vDo}, v{t+5}, v{t+6}, s{sT}')
    a(f's_lshl_b32 s{sLx}, s{sW}, 12')
    a(f's_lshl_b32 s{sLw}, s{sJ}, 13\ns_lshl_b32 s{sT}, s{sI}, 12\ns_add_u32 s{sLw}, s{sLw}, s{sT}\ns_add_u32 s{sLw}, s{sLw}, 16384')
    a(f's_lshl_b32 s{sLd}, s{sW}, 10\ns_add_u32 s{sLd}, s{sLd}, 32768')

def p1_addr_read(a):
    t = FR
    a(f'v_and_b32 v{vU}, 31, v{vL}\nv_lshrrev_b32 v{vHH}, 5, v{vL}')
    a(f'v_bfe_u32 v{t}, v{vU}, 1, 3\nv_xor_b32 v{t}, v{t}, v{vHH}')
    a(f'v_lshlrev_b32 v{t+1}, 7, v{vU}')
    a(f's_xor_b32 s{sT}, s{sW}, 1\ns_lshl_b32 s{sT}, s{sT}, 12')
    for jj in range(4):
        a(f'v_xor_b32 v{t+2}, {2*jj}, v{t}\nv_lshl_add_u32 v{t+2}, v{t+2}, 4, v{t+1}')
        a(f'v_add_u32 v{vRb+jj}, s{sLx}, v{t+2}\nv_add_u32 v{vRp+jj}, s{sT}, v{t+2}\nv_add_u32 v{vRd+jj}, 0x8000, v{t+2}')
        for r in (vRb, vRp, vRd): a(f'v_add_u32 v{r+4+jj}, {2*SLOT}, v{r+jj}')
    a(f'v_bfe_u32 v{t}, v{vL}, 2, 2')
    a(f'v_lshl_add_u32 v{t+1}, v{vHH}, 3, v{t}\nv_lshlrev_b32 v{t+1}, 7, v{t+1}')
    a(f'v_lshrrev_b32 v{t}, 1, v{t}\nv_xor_b32 v{t}, s{sI}, v{t}\nv_lshl_add_u32 v{t+1}, v{t}, 6, v{t+1}')
    a(f'v_bfe_u32 v{t}, v{vL}, 4, 1\nv_lshl_add_u32 v{t+1}, v{t}, 5, v{t+1}')
    a(f'v_and_b32 v{t}, 3, v{vL}\nv_lshl_add_u32 v{t+1}, v{t}, 3, v{t+1}')
    a(f's_lshl_b32 s{sT}, s{sJ}, 13\ns_add_u32 s{sT}, s{sT}, 16384')
    a(f'v_add_u32 v{vTa}, s{sT}, v{t+1}\nv_xor_b32 v{vTb}, 64, v{vTa}')
    a(f'v_add_u32 v{vTa+1}, {2*SLOT}, v{vTa}\nv_add_u32 v{vTb+1}, {2*SLOT}, v{vTb}')
def stat_addr():
    return lines(f'v_lshlrev_b32 v{vU8}, 4, v{vU}\nv_add_u32 v{vM8}, -1, v{vHH}') + \
           [f's_lshl_b32 s{sB0}, s{sW}, 7\ns_add_u32 s{sB0}, s{sB0}, {VX+8192}', f'v_lshl_add_u32 v{vZs}, v{vU}, 2, s{sB0}', f'v_lshl_add_u32 v{vH16}, v{vHH}, 4, s{sB0}']

def twiddle_wc(t):
    L = [f'v_cvt_f32_u32 v{t}, v{vU}', f'v_cvt_f32_u32 v{t+1}, v{vHH}', f'v_mul_f32 v{t}, {f2h(1/32)}, v{t}',
         f'v_mul_f32 v{t+1}, 4.0, v{t+1}', f'v_mul_f32 v{t+1}, v{t+1}, v{t}']
    for p in range(8):
        u0 = 16*(p >> 2) + 8*((p & 3) >> 1) + 2*(p & 1)
        L += [f'v_fmamk_f32 v{t+2}, v{t}, {f2h(u0)}, v{t+1}', f'v_fmamk_f32 v{t+3}, v{t}, {f2h(u0+1)}, v{t+1}',
              f'v_cos_f32 v{t+4}, v{t+2}', f'v_cos_f32 v{t+5}, v{t+3}', f'v_sin_f32 v{t+6}, v{t+2}', f'v_sin_f32 v{t+7}, v{t+3}',
              f'v_cvt_pk_bf16_f32 v{WC+p}, v{t+4}, v{t+5}', f'v_cvt_pk_bf16_f32 v{WC+8+p}, -v{t+6}, -v{t+7}']
    return L
def twiddle_tf(t, dst):
    L = []
    for rb in range(2):
        L += [f's_add_u32 s{sT}, s{sT1}, {32*rb}\nv_lshl_add_u32 v{t}, v{vU}, 6, s{sT}', f'v_lshl_add_u32 v{t+1}, v{vHH}, 1, s{sI}',
              f'v_cvt_f32_u32 v{t}, v{t}', f'v_cvt_f32_u32 v{t+1}, v{t+1}', f'v_mul_f32 v{t}, {f2h(1/2048)}, v{t}',
              f'v_mul_f32 v{t+1}, {f2h(8.0)}, v{t+1}', f'v_mul_f32 v{t+1}, v{t+1}, v{t}']
        for jj in range(4):
            for h in range(2):
                k0 = 2*jj + 32*h
                d = dst + 16*rb + 4*jj + 2*h
                L += [f'v_fmamk_f32 v{t+2}, v{t}, {f2h(k0)}, v{t+1}', f'v_fmamk_f32 v{t+3}, v{t}, {f2h(k0+1)}, v{t+1}',
                      f'v_cos_f32 v{t+4}, v{t+2}', f'v_sin_f32 v{t+5}, v{t+2}', f'v_cos_f32 v{t+6}, v{t+3}', f'v_sin_f32 v{t+7}, v{t+3}',
                      f'v_cvt_pk_bf16_f32 v{d}, v{t+4}, v{t+5}', f'v_cvt_pk_bf16_f32 v{d+1}, v{t+6}, v{t+7}']
    return L

def p2_addr_early():
    t = vWt; u, w = sB0, sB1
    L = lines(f'v_lshrrev_b32 v{t+1}, 3, v{vL}\nv_and_b32 v{t+2}, 7, v{vL}\nv_bfe_u32 v{t+3}, v{vL}, 4, 1\nv_lshlrev_b32 v{t+3}, 2, v{t+3}\n'
              f'v_xor_b32 v{t+3}, v{t+3}, v{t+2}\nv_lshlrev_b32 v{t+3}, 4, v{t+3}\nv_mul_u32_u24 v{t+4}, 896, v{t+1}')
    L += [f's_mul_i32 s{u}, s{sW}, {448*896}\ns_lshl_b32 s{w}, s{sCT}, 7\ns_add_u32 s{u}, s{u}, s{w}', f'v_add3_u32 v{vW2}, v{t+4}, v{t+3}, s{u}']
    L += [f'v_add_u32 v{vW2+i}, {i*(7168-1024)}, v{vW2}' for i in range(1, 4)]
    L += lines(f'v_bfe_u32 v{t}, v{vL}, 2, 2\nv_lshl_add_u32 v{t+1}, v{vHH}, 2, v{t}\nv_lshlrev_b32 v{t+1}, 7, v{t+1}\nv_lshrrev_b32 v{t}, 1, v{t}\n'
               f'v_xor_b32 v{t}, s{sJ}, v{t}\nv_lshl_add_u32 v{t+1}, v{t}, 6, v{t+1}\nv_bfe_u32 v{t}, v{vL}, 4, 1\nv_lshl_add_u32 v{t+1}, v{t}, 5, v{t+1}\n'
               f'v_and_b32 v{t}, 3, v{vL}\nv_lshl_add_u32 v{t+1}, v{t}, 3, v{t+1}\ns_mul_i32 s{sArea}, s{sW}, {AREA}\n'
               f'v_add_u32 v{vTra}, s{sArea}, v{t+1}\nv_xor_b32 v{vTrb}, 64, v{vTra}\ns_lshl_b32 s{sStg}, s{sW}, 13\nv_add_u32 v{vSt[1][0]}, s{sStg}, v{t+1}\n'
               f'v_xor_b32 v{vSt[1][1]}, 64, v{vSt[1][0]}\nv_add_u32 v{vSt[0][0]}, {STG[0]}, v{vSt[1][0]}\nv_add_u32 v{vSt[0][1]}, {STG[0]}, v{vSt[1][1]}')
    def vmap(el, e_out, tt_out, sg_out):
        M = [f's_lshl_b32 s{u}, s{sCT}, 6\ns_lshl_b32 s{w}, s{sJ}, 5\ns_add_u32 s{u}, s{u}, s{w}', f'v_add_u32 v{e_out}, s{u}, v{el}', f'v_sub_u32 v{t+6}, 448, v{e_out}',
             f's_sub_u32 s{u}, 32, s{sT1}\ns_and_b32 s{u}, s{u}, 31', f'v_mov_b32 v{tt_out}, s{sT1}', f'v_mov_b32 v{t+7}, s{u}',
             f'v_cmp_lt_u32 vcc, 239, v{e_out}\ns_nop 1\nv_cndmask_b32 v{e_out}, v{e_out}, v{t+6}, vcc\nv_cndmask_b32 v{tt_out}, v{tt_out}, v{t+7}, vcc' +
             (f'\nv_mov_b32 v{t+6}, 0\nv_bfrev_b32 v{t+7}, 1\nv_cndmask_b32 v{sg_out}, v{t+6}, v{t+7}, vcc' if sg_out else '')]
        return M
    L += vmap(vU, t, t+1, vSg)
    L += lines(f'v_lshlrev_b32 v{vVo}, 16, v{t+1}\nv_lshl_add_u32 v{vVo}, v{t}, 4, v{vVo}\nv_lshl_add_u32 v{vVo}, v{vHH}, 15, v{vVo}')
    L += [f's_lshl_b32 s{u}, s{sI}, 14', f'v_add_u32 v{vVo}, s{u}, v{vVo}']
    L += lines(f'v_and_b32 v{t+2}, 48, v{vL}\nv_subrev_u32 v{t+2}, 16, v{t+2}\nv_min_u32 v{t+2}, 31, v{t+2}')
    L += vmap(t+2, t, t+1, None)
    L += lines(f'v_and_b32 v{t}, 0x1f0, v{t}\nv_and_b32 v{t+2}, 15, v{vL}\nv_add_u32 v{t}, v{t}, v{t+2}\nv_lshlrev_b32 v{t}, 3, v{t}\nv_add_u32 v{vPa}, {FLV}, v{t}')
    L += [f's_mul_i32 s{u}, s{sW}, 7\ns_lshr_b32 s{u}, s{u}, 1\ns_lshr_b32 s{w}, s{sT1}, 1\ns_lshl_b32 s{w}, s{w}, 4\ns_add_u32 s{u}, s{u}, s{w}',
          f's_lshl_b32 s{u}, s{u}, 3\ns_add_u32 s{u}, s{u}, {FLH}', f'v_and_b32 v{t}, 3, v{vL}', f'v_lshl_add_u32 v{t}, v{t}, 3, s{u}',
          f'v_cmp_gt_u32 vcc, 16, v{vL}\ns_nop 1\nv_cndmask_b32 v{vPa}, v{vPa}, v{t}, vcc']
    L += [f'v_lshrrev_b32 v{t}, 2, v{vL}', f's_lshl_b32 s{u}, s{sI}, 4', f'v_add_u32 v{t}, s{u}, v{t}']
    L += lines(f'v_and_b32 v{t+1}, 3, v{vL}\nv_mul_u32_u24 v{t+2}, {64*896}, v{t}\nv_lshl_add_u32 v{t+2}, v{t+1}, 4, v{t+2}')
    L += [f's_lshl_b32 s{sRi}, s{sI}, 5\ns_add_u32 s{sRi}, s{sRi}, s{sT1}\ns_mul_i32 s{u}, s{sT1}, 896\ns_lshl_b32 s{w}, s{sCT}, 7',
          f's_add_u32 s{u}, s{u}, s{w}\ns_lshl_b32 s{w}, s{sJ}, 6\ns_add_u32 s{u}, s{u}, s{w}\ns_lshl_b32 s{sRi}, s{sRi}, 9',
          f'v_add_u32 v{vOo}, s{u}, v{t+2}', f'v_add_u32 v{vOo+1}, {32*896}, v{vOo}', f'v_lshlrev_b32 v{vRo}, 4, v{t}',
          f's_mul_i32 s{sHb}, s{sT1}, {HB_SIG}\ns_mul_i32 s{u}, s{sW}, {28*1024}\ns_add_u32 s{sHb}, s{sHb}, s{u}']
    return L

def p1_reads(n):
    g, jj = divmod(n, 4)
    half, so = (g % 4) // 2, (g % 2) * SLOT
    f = FR + 20 * (n & 1)
    return [f'ds_read_b64_tr_b16 {vr(f+8,2)}, v{vTa+half} offset:{so + jj*2048}',
            f'ds_read_b64_tr_b16 {vr(f+10,2)}, v{vTa+half} offset:{so + jj*2048 + 512}',
            f'ds_read_b128 {vr(f)}, v{vRb+4*half+jj} offset:{so}',
            f'ds_read_b128 {vr(f+4)}, v{vRp+4*half+jj} offset:{so}',
            f'ds_read_b64_tr_b16 {vr(f+12,2)}, v{vTb+half} offset:{so + jj*2048}',
            f'ds_read_b64_tr_b16 {vr(f+14,2)}, v{vTb+half} offset:{so + jj*2048 + 512}',
            f'ds_read_b128 {vr(f+16)}, v{vRd+4*half+jj} offset:{so}']
def p1_mfmas(n):
    f = FR + 20 * (n & 1)
    def m(acc, A, B): return mfma(vr(acc, 16), vr(A), vr(B), vr(acc, 16) if n else '0')
    return [m(ACC, f+8, f), m(ACC+16, f+8, f+4), m(ACC+32, f+12, f), m(ACC+48, f+12, f+4), m(ACC+64, f, f+16)]

vZsg, vXw, vXr, vVs, vHo = 78, 79, 80, 81, 82
sHA0, sHA1, sHB0, sHB1 = 4, 5, 8, 9
def z_addr(t, u, w):
    L = lines(f'v_bfe_u32 v{t}, v{vL}, 4, 1\nv_xor_b32 v{vZsg}, 1, v{t}\nv_mul_u32_u24 v{vZsg}, 0x8000, v{vZsg}\nv_lshl_or_b32 v{vZsg}, v{vZsg}, 16, v{vZsg}\n'
              f'v_lshl_add_u32 v{t}, v{vHH}, 2, v{t}\nv_lshlrev_b32 v{t}, 8, v{t}\nv_and_b32 v{t+1}, 15, v{vL}\nv_lshl_add_u32 v{t}, v{t+1}, 4, v{t}')
    L += [f's_lshl_b32 s{u}, s{sW}, 2\ns_add_u32 s{u}, s{u}, {VX}', f'v_add_u32 v{vXw}, s{u}, v{t}',
          f's_lshl_b32 s{u}, s{sW}, 11\ns_add_u32 s{u}, s{u}, {VX}', f'v_lshlrev_b32 v{vHo}, 4, v{vL}', f'v_add_u32 v{vXr}, s{u}, v{vHo}']
    L += lines(f'v_lshrrev_b32 v{t}, 4, v{vL}\nv_lshlrev_b32 v{t}, 16, v{t}\nv_lshl_add_u32 v{t}, v{t+1}, 4, v{t}')
    L += [f's_lshl_b32 s{u}, s{sW}, 19\ns_lshl_b32 s{w}, s{sRT}, 12\ns_add_u32 s{u}, s{u}, s{w}\ns_lshl_b32 s{w}, s{sCG}, 8\ns_add_u32 s{u}, s{u}, s{w}',
          f'v_add_u32 v{vVs}, s{u}, v{t}']
    return L
def h_addr(u, w):
    return [f's_lshl_b32 s{u}, s{sCG}, 3\ns_lshl_b32 s{w}, s{sJ}, 2\ns_add_u32 s{u}, s{u}, s{w}\ns_lshl_b32 s{w}, s{sI}, 1\ns_add_u32 s{u}, s{u}, s{w}',
            f's_lshl_b32 s{u}, s{u}, 10\ns_mul_i32 s{w}, s{sSig}, {HB_SIG}\ns_add_u32 s{sHA0}, s{u}, s{w}',
            f's_xor_b32 s{w}, s{sSig}, 1\ns_mul_i32 s{w}, s{w}, {HB_SIG}\ns_add_u32 s{sHA1}, s{u}, s{w}',
            f's_xor_b32 s{sHB0}, s{sHA0}, 2048\ns_xor_b32 s{sHB1}, s{sHA1}, 2048']

def hblock_list(a, acc, so):
    L = [f'v_cvt_pk_bf16_f32 v{acc+p}, v{acc+2*p}, v{acc+2*p+1}' for p in range(8)]
    L += [f'v_pk_max_i16 v{acc+p}, v{acc+p}, 0' for p in range(8)] if not opt('maxf', 0) else []
    L.append(lambda: a.vmem(f'buffer_store_dwordx4 {vr(acc)}, v{vHo}, {sr(SH)}, s{so} offen {STF}', 'ST'))
    L.append(lambda: a.vmem(f'buffer_store_dwordx4 {vr(acc+4)}, v{vHo}, {sr(SH)}, s{so} offen offset:1024 {STF}', 'ST'))
    if opt('maxf', 0): L = [f'v_max_f32 v{acc+r}, 0, v{acc+r}' for r in range(16)] + L
    return L
def early_epilogue(a, lds, wait_lg):
    ZA = ACC + 64
    T1 = [FR+8, FR+16]; T2 = [FR+28, FR+36]
    b1 = lambda p: T1[p >> 2] + (p & 3)
    b2 = lambda p: T2[p >> 2] + (p & 3)
    L = ['s_nop 3'] + hblock_list(a, ACC, sHA0)
    L += [f'v_mul_f32 v{ZA+r}, v{ZA+r}, v{ZR+r}' for r in range(16)]
    L += [f'v_cvt_pk_bf16_f32 v{b1(p)}, v{ZA+2*p}, v{ZA+2*p+1}' for p in range(8)]
    L += [(lambda p=p: lds(f'ds_swizzle_b32 v{b2(p)}, v{b1(p)} offset:0x401f', 'sw')) for p in range(8)]
    L += [mfma(vr(ZA,16), vr(WC), vr(T1[0]), '0'), mfma(vr(ZA,16), vr(WC+4), vr(T1[1]), vr(ZA,16))]
    L += [lambda: wait_lg('sw')] + [f'v_xor_b32 v{b2(p)}, v{b2(p)}, v{vZsg}' for p in range(8)] + ['s_nop 1']
    L += [mfma(vr(ZA,16), vr(WC+8), vr(T2[0]), vr(ZA,16)), mfma(vr(ZA,16), vr(WC+12), vr(T2[1]), vr(ZA,16))]
    L += hblock_list(a, ACC+16, sHA1)
    L += [f'v_permlane16_swap_b32 v{ZA+2*p}, v{ZA+2*p+1}' for p in range(8)] + ['s_nop 1']
    L += [f'v_cvt_pk_bf16_f32 v{b1(p)}, v{ZA+2*p}, v{ZA+2*p+1}' for p in range(8)]
    L += [(lambda p=p: lds(f'ds_write_b32 v{vXw}, v{b1(p)} offset:{((2*p & 3) + 8*(p >> 1))*256}', 'xw')) for p in range(8)]
    L += [lambda: (wait_lg('xw'), a('s_barrier'))]
    L += [lambda: lds(f'ds_read_b128 {vr(T2[0])}, v{vXr}', 'xr'), lambda: lds(f'ds_read_b128 {vr(T2[1])}, v{vXr} offset:1024', 'xr')]
    L += [f's_mov_b32 s{sT}, {4*65536}', 'MARK']
    L += [lambda: wait_lg('xr'),
          lambda: a.vmem(f'buffer_store_dwordx4 {vr(T2[0])}, v{vVs}, {sr(SV)}, 0 offen {STF}', 'ST'),
          lambda: a.vmem(f'buffer_store_dwordx4 {vr(T2[1])}, v{vVs}, {sr(SV)}, s{sT} offen {STF}', 'ST')]
    L.remove('MARK')
    return L
def own_touch():
    if opt('tfull', 0):
        return (f's_and_b32 s{sT}, s{sHA0}, 0xfffff000\nv_and_b32 v{vP+1}, 31, v{vL}\nv_lshlrev_b32 v{vP+1}, 7, v{vP+1}\ns_mov_b64 exec, 0xffffffff\nbuffer_load_dword v{vP}, v{vP+1}, {sr(SH)}, s{sT} offen\n'
                f's_and_b32 s{sT}, s{sHA1}, 0xfffff000\nbuffer_load_dword v{vP}, v{vP+1}, {sr(SH)}, s{sT} offen\n'
                f's_mov_b32 exec_lo, 0x01010101\ns_mov_b32 exec_hi, 0x01010101\nbuffer_load_dword v{vP}, v{vVs}, {sr(SV)}, 0 offen\n'
                f's_mov_b32 s{sT}, {4*65536}\nbuffer_load_dword v{vP}, v{vVs}, {sr(SV)}, s{sT} offen\ns_mov_b64 exec, -1', 'TL')
    return (f's_mov_b64 exec, 1\nbuffer_load_dword v{vP}, v{vHo}, {sr(SH)}, s{sHA0} offen\nbuffer_load_dword v{vP}, v{vHo}, {sr(SH)}, s{sHA1} offen\n'
            f's_mov_b32 exec_lo, 0x00010001\ns_mov_b32 exec_hi, 0x00010001\nbuffer_load_dword v{vP}, v{vVs}, {sr(SV)}, 0 offen\n'
            f's_mov_b32 s{sT}, {4*65536}\nbuffer_load_dword v{vP}, v{vVs}, {sr(SV)}, s{sT} offen\ns_mov_b64 exec, -1', 'TL')
def rank1():
    return [mfma(vr(ACC,16), vr(CA), vr(MO), vr(ACC,16)), mfma(vr(ACC+16,16), vr(CA), vr(MP), vr(ACC+16,16)),
            mfma(vr(ACC+32,16), vr(CB), vr(MO), vr(ACC+32,16)), mfma(vr(ACC+48,16), vr(CB), vr(MP), vr(ACC+48,16)),
            mfma(vr(ACC+64,16), vr(MO), vr(CZ), vr(ACC+64,16))]
def p1_loop(a):
    lg = []
    def lds(x, tag):
        a(x); lg.append(tag)
    def wait_lg(tag=None):
        if tag is None:
            if lg: a('s_waitcnt lgkmcnt(0)'); lg.clear()
            return
        if tag not in lg: return
        idx = max(i for i, x in enumerate(lg) if x == tag)
        a(f's_waitcnt lgkmcnt({min(len(lg)-1-idx, 15)})')
        del lg[:idx+1]
    RT = ['m0', 'm0', 'm0', 'm1', 'm2', 'm2', 'm4']
    FG = opt('fg', 5); FINE = opt('fine', 1)
    a.wait_vm('G0')
    a('s_barrier')
    stamp(a, 1); stamp(a, 1, '1'); cstamp(a, 1, '8')
    for r, t_ in zip(p1_reads(0), RT): lds(r, f'0{t_}')
    a.lgw = wait_lg
    q = [x for g_ in range(2 + opt('gpre', 0), 4) for x in dma_group('A', g_)]
    vq = stat_addr() + (z_addr(vWt, sB0, sB1) + h_addr(sB0, sB1) if opt('tln', 4) >= 0 else []) + p2_addr_early() + twiddle_wc(vWt) + wg_flag_prep(vFl, sB0, sB1)
    wq = [x for q_ in range(NSTG) for x in w2_group(q_)]
    midgroup = [False]
    SK = opt('sk', 28)
    seq = [(n, 'AZB') for n in range(SK)] + [(n, 'AZ') for n in range(SK, 28)] + [(n, 'B') for n in range(SK, 28)]
    def reads(pos):
        n, kind = seq[pos]
        g, jj = divmod(n, 4)
        half, so = (g % 4) // 2, (g % 2) * SLOT
        f = FR + 20 * (pos & 1)
        wa = [f'ds_read_b64_tr_b16 {vr(f+8+2*p,2)}, v{vTa+half} offset:{so + jj*2048 + 512*p}' for p in range(2)]
        wb = [f'ds_read_b64_tr_b16 {vr(f+12+2*p,2)}, v{vTb+half} offset:{so + jj*2048 + 512*p}' for p in range(2)]
        x0 = f'ds_read_b128 {vr(f)}, v{vRb+4*half+jj} offset:{so}'
        x1 = f'ds_read_b128 {vr(f+4)}, v{vRp+4*half+jj} offset:{so}'
        d = f'ds_read_b128 {vr(f+16)}, v{vRd+4*half+jj} offset:{so}'
        if kind == 'AZB': L = [(wa[0], 0), (wa[1], 0), (x0, 0), (x1, 1), (wb[0], 2), (wb[1], 2), (d, 4)]
        elif kind == 'AZ': L = [(wa[0], 0), (wa[1], 0), (x0, 0), (x1, 1), (d, 2)]
        else: L = [(wb[0], 0), (wb[1], 0), (x0, 0), (x1, 1)]
        return [(x, f'{pos}m{m_}') for x, m_ in L]
    def mfmas(pos):
        n, kind = seq[pos]
        f = FR + 20 * (pos & 1)
        def m(acc, A, B): return mfma(vr(acc, 16), vr(A), vr(B), vr(acc, 16) if n else '0')
        A_ = [m(ACC, f+8, f), m(ACC+16, f+8, f+4)]; B_ = [m(ACC+32, f+12, f), m(ACC+48, f+12, f+4)]; Z_ = [m(ACC+64, f, f+16)]
        return {'AZB': A_ + B_ + Z_, 'AZ': A_ + Z_, 'B': B_}[kind]
    yq = []
    for pos, (n, kind) in enumerate(seq):
        g, jj = divmod(n, 4)
        first = kind != 'B'
        if STAMP and LST == '7' and 0 <= pos - opt('s0', 8) <= 8: a(f's_memtime s[{STB+2*(1+pos-opt("s0", 8))}:{STB+2*(1+pos-opt("s0", 8))+1}]')
        BG = opt('bg', 2)
        def group_barrier():
            assert not any(t == f'G{g+1}' for _, t in q), (n, q)
            wait_lg()
            a.wait_vm(f'G{g+1}')
            a('s_barrier')
            stamp(a, 2 + g, '1')
            if g == 1: cstamp(a, 1)
            if g == 5: cstamp(a, 3)
            if g + 4 < 7: q.extend(dma_group('A', g + 4))
        bar = first and jj == 3 and g < 6
        if bar and BG == 0: group_barrier()
        if first and TW > 0 and n == TW:
            q[:0] = [(f'v_and_b32 v{vP}, 15, v{vL}\nv_lshlrev_b32 v{vP}, 7, v{vP}\nbuffer_load_dword v{vP+1}, v{vP}, {sr(SW2)}, s{sA2} offen', 'TW')]
        if first and n == opt('tln', 4):
            assert not any(x.startswith(f'v_add_u32 v{vVs},') or f's{sHA1}, s' in x for x in vq), 'addresses not ready'
            q[:0] = [own_touch()]
        if first and n == opt('tlo', 99):
            assert not any(x.startswith(f'v_add_u32 v{vOo+1},') for x in vq), 'addresses not ready'
            q[:0] = [(f'buffer_load_dword v{vP}, v{vOo}, {sr(SO)}, 0 offen\nbuffer_load_dword v{vP}, v{vOo+1}, {sr(SO)}, 0 offen', 'TL')]
        if first and n == POLL0: q[:0] = stat_loads('A')
        chk = first and n == POLL0 + PCHK
        if chk: assert not any(t == 'SL' for _, t in q)
        R1 = rank1()
        if first and n == 27:
            assert not any(x in vq for x in stat_fix('A'))
            for m in (R1 if SK == 28 else R1[:2] + R1[4:]): a(m)
        if kind == 'B' and n == SK:
            for x in vq: a(x)
            vq.clear()
            assert SK >= 20
            stamp(a, 7, '1')
            for m in R1[2:4]: a(m)
            yq = early_epilogue(a, lds, wait_lg)
        rd = reads(pos + 1) if pos + 1 < len(seq) else []
        nld = 0; wn = 0
        rate = RATE[pos % len(RATE)]
        ms = mfmas(pos)
        for mi, m in enumerate(ms):
            last = mi == len(ms) - 1
            wait_lg(f'{pos}m{mi}')
            a(m)
            used = 0
            if bar and mi + 1 == BG: group_barrier(); used += 2
            if chk and mi == 0: stat_check(a, 'A'); vq[:0] = stat_fix('A'); used += 9
            for _ in range(7 if last else (opt('rpg', 3) if not (bar and BG) else 4)):
                if rd and not (bar and mi + 1 < BG): r, t_ = rd.pop(0); lds(r, t_); used += 1
            if mi >= len(ms) - 3:
                cnt = 0
                while nld < rate and (cnt < 1 or last):
                    wok = pos >= W0 and wq and not (bar and mi + 1 < BG) and wn < WPS[pos % len(WPS)] and pos >= 16 + 4 * int(wq[0][1][1])
                    if q: ins = q.pop(0)
                    elif wok: ins = wq.pop(0); wn += 1
                    else: break
                    a.emit(ins); used += cost(ins[0])
                    if ins[1]: nld += 0.5 if ins[1] == 'SL' else 1; cnt += 1
            while vq and used + min(cost(vq[0]), 3) <= FG:
                x = vq.pop(0); used += cost(x)
                if x.startswith('ds_'): lds(x, 'x')
                else: a(x)
            while yq and used < opt('yg', 7):
                x = yq.pop(0); used += 1
                if callable(x): x()
                else: a(x)
        assert not rd
    a.yq = yq
    assert not vq and not q, vq
    stamp(a, 2); stamp(a, 8, '1'); stamp(a, 1, '3'); stamp(a, 1, '5'); cstamp(a, 3, '8')
    return wq

def p1_loop_bc(a, role):
    def regs(g): return FR if g % 2 == 0 else ACC + 16
    def reads(g):
        half, so = (g % 4) // 2, (g % 2) * SLOT
        f = regs(g); L = []
        for jj in range(4):
            if role == 'B':
                L.append(f'ds_read_b128 {vr(f+8*jj)}, v{vRb+4*half+jj} offset:{so}')
                L.append(f'ds_read_b128 {vr(f+8*jj+4)}, v{vRd+4*half+jj} offset:{so}')
            else:
                L.append(f'ds_read_b64_tr_b16 {vr(f+8*jj,2)}, v{vTa+half} offset:{so + jj*2048}')
                L.append(f'ds_read_b64_tr_b16 {vr(f+8*jj+2,2)}, v{vTa+half} offset:{so + jj*2048 + 512}')
        return L
    a.wait_vm('G0'); a('s_barrier')
    if role == 'C': stamp(a, 1)
    for r in reads(0): a(r)
    if role == 'C':
        for ins in dma_group(role, 3): a.emit(ins)
    for g in range(7):
        a('s_waitcnt lgkmcnt(0)')
        if g < 6:
            a.wait_vm(f'G{g+1}'); a('s_barrier')
            for r in reads(g + 1): a(r)
            if g + 4 < 7:
                for ins in dma_group(role, g + 4): a.emit(ins)
            if role == 'B' and g == 4:
                for ins in stat_loads('B'): a.emit(ins)
        f = regs(g)
        for jj in range(4):
            n = 4*g + jj
            if role == 'B': a(mfma(vr(ACC+64,16), vr(f+8*jj), vr(f+8*jj+4), vr(ACC+64,16) if n else '0'))
            else: a(mfma(vr(ACC,16), vr(TF), vr(f+8*jj), vr(ACC,16) if n else '0'))
    if role == 'C': stamp(a, 2)

ZA, B1, B2 = ACC + 64, FR, FR + 8
def z1(a):
    for r in range(16): a(f'v_mul_f32 v{ZA+r}, v{ZA+r}, v{ZR+r}')
    for p in range(8): a(f'v_cvt_pk_bf16_f32 v{B1+p}, v{ZA+2*p}, v{ZA+2*p+1}')
    for p in range(8): a(f'ds_swizzle_b32 v{B2+p}, v{B1+p} offset:0x401f')
    a(mfma(vr(ZA,16), vr(WC), vr(B1), '0'))
    a(mfma(vr(ZA,16), vr(WC+4), vr(B1+4), vr(ZA,16)))
def z2(a):
    a('s_waitcnt lgkmcnt(0)')
    for p in range(8): a(f'v_xor_b32 v{B2+p}, v{B2+p}, v{vZsg}')
    a('s_nop 1')
    a(mfma(vr(ZA,16), vr(WC+8), vr(B2), vr(ZA,16)))
    a(mfma(vr(ZA,16), vr(WC+12), vr(B2+4), vr(ZA,16)))
def z3(a):
    for p in range(8): a(f'v_permlane16_swap_b32 v{ZA+2*p}, v{ZA+2*p+1}')
    a('s_nop 1')
    for p in range(8): a(f'v_cvt_pk_bf16_f32 v{B1+p}, v{ZA+2*p}, v{ZA+2*p+1}')
    for p in range(8):
        t1b = (2*p & 3) + 8 * (p >> 1)
        a(f'ds_write_b32 v{vXw}, v{B1+p} offset:{t1b*256}')
def z4a(a):
    a('s_waitcnt lgkmcnt(0)\ns_barrier')
    a(f'ds_read_b128 {vr(B2)}, v{vXr}\nds_read_b128 {vr(B2+4)}, v{vXr} offset:1024')
def z4b(a):
    a(f's_mov_b32 s{sT}, {4*65536}')
    a('s_waitcnt lgkmcnt(0)')
    a.vmem(f'buffer_store_dwordx4 {vr(B2)}, v{vVs}, {sr(SV)}, 0 offen {STF}', 'ST')
    a.vmem(f'buffer_store_dwordx4 {vr(B2+4)}, v{vVs}, {sr(SV)}, s{sT} offen {STF}', 'ST')

def gen():
    a = Asm()
    a('s_cmp_ge_u32 s2, 256\ns_cbranch_scc1 Lend')
    a('s_load_dwordx2 s[4:5], s[0:1], 0')
    a('s_load_dwordx4 s[8:11], s[0:1], 24')
    a('s_load_dwordx4 s[12:15], s[0:1], 48')
    a('s_load_dwordx2 s[16:17], s[0:1], 64')
    a('s_load_dwordx2 s[18:19], s[0:1], 80')
    stamp(a, 0)
    CPF = opt('cpf', 1)
    if CPF:
        a('s_getpc_b64 s[22:23]')
        a('Lpc:')
        a(f's_bfe_u32 s3, s2, 0x30003\ns_lshl_b32 s3, s3, 12')
        a(f'v_lshrrev_b32 v{vP}, 6, v0\nv_lshlrev_b32 v{vP}, 10, v{vP}\nv_and_b32 v{vP+1}, 7, v0\nv_lshl_add_u32 v{vP}, v{vP+1}, 7, v{vP}\nv_add_u32 v{vP}, s3, v{vP}')
        a(f'v_min_u32 v{vP}, Lend-Lpc, v{vP}')
        a.vmem(f'global_load_dword v{vP+1}, v{vP}, s[22:23]', 'CP')
    a(f'v_lshrrev_b32 v{FR}, 6, v0\nv_and_b32 v{vL}, 63, v0')
    a(f'v_readfirstlane_b32 s{sW}, v{FR}')
    sX8, sN = sA3, sA4
    a(f's_and_b32 s{sX8}, s2, 7\ns_lshr_b32 s{sN}, s2, 3')
    a(f's_and_b32 s{sT}, s{sX8}, 3\ns_lshr_b32 s{sT2}, s{sX8}, 2')
    a(f's_lshr_b32 s{sI}, s{sW}, 1\ns_and_b32 s{sJ}, s{sW}, 1')
    a(f's_cmp_ge_u32 s{sN}, 28\ns_cbranch_scc1 LroleBC')
    def sigma(): a(f's_lshl_b32 s{sSig}, s{sRT}, 1\ns_add_u32 s{sSig}, s{sSig}, s{sJ}\ns_lshl_b32 s{sT}, s{sI}, 5\ns_add_u32 s{sSig}, s{sSig}, s{sT}')
    def p1_srds():
        a('s_waitcnt lgkmcnt(0)')
        srd(a, SX, 4, 2048*896)
        a(f's_cmp_ge_u32 s{sW}, 2')
        a(f's_cselect_b32 s{SD}, s10, s8\ns_cselect_b32 s{SD+1}, s11, s9\ns_mov_b32 s{SD+2}, {448*896}\ns_mov_b32 s{SD+3}, 0x20000')
        srd(a, SW, 12, 448*3584)
    def other_srds():
        srd(a, SM, 18, SM_SIZE, SM_OFF)
        a(f's_load_dwordx2 s[{sTag}:{sTag+1}], s[{SM}:{SM+1}], {EPO}')
        srd(a, SH, 18, HB_SIZE, WS0)
        srd(a, SV, 18, VB_SIZE, VB_OFF)

    a(f's_lshl_b32 s{sRT}, s{sT}, 2\ns_and_b32 s{sT3}, s{sN}, 3\ns_add_u32 s{sRT}, s{sRT}, s{sT3}\ns_lshr_b32 s{sCT}, s{sN}, 2')
    a(f's_mul_i32 s{sCG}, s{sT2}, 7\ns_add_u32 s{sCG}, s{sCG}, s{sCT}')
    a(f's_lshl_b32 s{sG0}, s{sT3}, 1\ns_add_u32 s{sG0}, s{sG0}, s{sCT}\ns_sub_u32 s{sB0}, s{sG0}, 7\ns_cselect_b32 s{sG0}, s{sG0}, s{sB0}')
    if not ROT: a(f's_mov_b32 s{sG0}, 0')
    sCT1 = sCT
    if opt('map2', 0):
        a(f's_mov_b32 s{sB1}, s{sG0}')
        a(f's_and_b32 s{sA0}, s{sX8}, 1\ns_and_b32 s{sA1}, s{sN}, 7\ns_lshr_b32 s{sCT}, s{sN}, 3')
        a(f's_lshl_b32 s{sG0}, s{sCT}, 1\ns_add_u32 s{sG0}, s{sG0}, s{sA1}')
        a(f's_lshl_b32 s{sB0}, s{sA1}, 1\ns_lshl_b32 s{sA0}, s{sA0}, 2\ns_add_u32 s{sT1}, s{sA1}, s{sA0}\ns_add_u32 s{sA0}, s{sA0}, s{sCT}')
        a(f's_cmp_eq_u32 s{sCT}, 3\ns_cselect_b32 s{sCT}, 3, s{sA0}\ns_cselect_b32 s{sA1}, s{sT1}, s{sA1}\ns_cselect_b32 s{sG0}, s{sB0}, s{sG0}')
        a(f's_sub_u32 s{sB0}, s{sG0}, 7\ns_cselect_b32 s{sG0}, s{sG0}, s{sB0}')
        a(f's_lshr_b32 s{sT1}, s{sX8}, 1\ns_lshl_b32 s{sT1}, s{sT1}, 2\ns_lshr_b32 s{sB0}, s{sA1}, 1\ns_add_u32 s{sT1}, s{sT1}, s{sB0}')
        a(f's_sub_u32 s{sB0}, 32, s{sT1}\ns_cmp_eq_u32 s{sT1}, 0\ns_cselect_b32 s{sB0}, 16, s{sB0}')
        a(f's_bitcmp1_b32 s{sA1}, 0\ns_cselect_b32 s{sT1}, s{sB0}, s{sT1}')
        assert ROT1 in (7, 4) and not XOFF
        if ROT1 == 4: a(f's_lshr_b32 s{sB1}, s{sN}, 2\ns_add_u32 s{sB1}, s{sB1}, s{sT3}\ns_and_b32 s{sB1}, s{sB1}, 3\ns_lshl_b32 s{sB1}, s{sB1}, 1')
    else:
        a(f's_lshl_b32 s{sT1}, s{sX8}, 1\ns_lshr_b32 s{sB0}, s{sT3}, 1\ns_add_u32 s{sT1}, s{sT1}, s{sB0}\ns_sub_u32 s{sB0}, 32, s{sT1}\ns_cmp_eq_u32 s{sT1}, 0\ns_cselect_b32 s{sB0}, 16, s{sB0}')
        a(f's_bitcmp1_b32 s{sT3}, 0\ns_cselect_b32 s{sT1}, s{sB0}, s{sT1}')
    if XOFF: a(f's_add_u32 s{sG0}, s{sG0}, s{sX8}\ns_sub_u32 s{sB0}, s{sG0}, 7\ns_cselect_b32 s{sG0}, s{sG0}, s{sB0}\ns_sub_u32 s{sB0}, s{sG0}, 7\ns_cselect_b32 s{sG0}, s{sG0}, s{sB0}')
    if opt('map2', 0): pass
    elif ROT1 == 7: a(f's_mov_b32 s{sB1}, s{sG0}')
    elif ROT1 == 4: a(f's_add_u32 s{sB1}, s{sCT}, s{sT3}\ns_and_b32 s{sB1}, s{sB1}, 3\ns_lshl_b32 s{sB1}, s{sB1}, 1')
    elif ROT1 == 2: a(f's_add_u32 s{sB1}, s{sCT}, s{sT3}\ns_and_b32 s{sB1}, s{sB1}, 1\ns_mul_i32 s{sB1}, s{sB1}, 3')
    elif ROT1 == 3: a(f's_add_u32 s{sB1}, s{sCT}, s{sT3}\ns_mul_i32 s{sB0}, s{sB1}, 43\ns_lshr_b32 s{sB0}, s{sB0}, 7\ns_mul_i32 s{sB0}, s{sB0}, 3\ns_sub_u32 s{sB1}, s{sB1}, s{sB0}\ns_lshl_b32 s{sB1}, s{sB1}, 1')
    else: a(f's_mov_b32 s{sB1}, 0')
    a(f's_mul_i32 s{sOnes}, s{sX8}, 28\ns_add_u32 s{sOnes}, s{sOnes}, s{sN}\ns_lshl_b32 s{sOnes}, s{sOnes}, 2\ns_add_u32 s{sOnes}, s{sOnes}, s{sW}\ns_mul_i32 s{sA2}, s{sOnes}, {14*128}')
    sigma(); p1_addr_dma(a); p1_srds()
    a(f's_mov_b32 s{sG1}, s{sB1}')
    def tw():
        srd(a, SW2, 14, 1792*896)
        a.vmem(f'v_and_b32 v{vt}, 15, v{vL}\nv_lshlrev_b32 v{vt}, 7, v{vt}\nbuffer_load_dword v{vP+1}, v{vt}, {sr(SW2)}, s{sA2} offen', 'TW')
    if TW == -3: tw()
    for ins in dma_group('A', 0): a.emit(ins)
    if TW == -2: tw()
    TLN = opt('tln', 4)
    def early_touch():
        srd(a, SH, 18, HB_SIZE, WS0); srd(a, SV, 18, VB_SIZE, VB_OFF)
        a.emit(own_touch())
    p1_addr_read(a)
    if TLN < 0:
        for x in z_addr(vWt, sB0, sB1) + h_addr(sB0, sB1): a(x)
    if TLN == -2: early_touch()
    for ins in dma_group('A', 1): a.emit(ins)
    if TW == -1: tw()
    if TLN == -1: early_touch()
    if TW >= 0: srd(a, SW2, 14, 1792*896)
    for g_ in range(2, 2 + opt('gpre', 0)):
        for ins in dma_group('A', g_): a.emit(ins)
    other_srds()
    srd(a, SO, 16, 2048*896)
    if opt('tlb', 0):
        a(f's_mov_b32 s{sT}, {HB_SIG}\nv_mul_lo_u32 v{FR}, v{vL}, s{sT}\nv_mov_b32 v{FR+1}, {248*16}\nv_mul_u32_u24 v{FR+2}, {32*896}, v{vL}')
        a(f's_mov_b32 s{sT}, {112*1024}')
        a.vmem(f'buffer_load_dword v{vP}, v{FR}, {sr(SH)}, s{sT} offen', 'TL')
        a.vmem(f'buffer_load_dword v{vP+1}, v{FR+1}, {sr(SV)}, 0 offen', 'TL')
        if opt('tlb', 0) > 1: a.vmem(f'buffer_load_dword v{vP+1}, v{FR+2}, {sr(SO)}, 0 offen', 'TL')
    get_tag(a)
    if STAMP == 3:
        a(f's_add_u32 s{sT}, s2, s{sW}\ns_cmp_lg_u32 s{sT}, 0\ns_cbranch_scc1 Lnopub\nv_mov_b32 v{FR}, {EPO+128}\nv_mov_b32 v{FR+1}, s{STB}\nbuffer_store_dword v{FR+1}, v{FR}, {sr(SM)}, 0 offen sc1\nLnopub:')
    wq = p1_loop(a)
    def run_list(L):
        for x in L:
            if callable(x): x()
            else: a(x)
    if opt('sk', 28) == 28:
        a('s_nop 6\ns_waitcnt lgkmcnt(0)')
        run_list(hblock_list(a, ACC, sHA0))
        z1(a); run_list(hblock_list(a, ACC+16, sHA1))
        z2(a); run_list(hblock_list(a, ACC+32, sHB0))
        if RPRE0:
            for ins in wq: a.emit(ins)
            wq = []
            a.wait_vm('R0'); run_list(stage_reads(0))
        z3(a); run_list(hblock_list(a, ACC+48, sHB1))
        if RPRE0:
            a.wait_vm('R1'); run_list(stage_reads(1))
        z4a(a); z4b(a)
    else:
        k = min(len(a.yq), 11)
        run_list(a.yq[:k])
        if k < 11: a(f's_nop {10 - k}')
        run_list(hblock_list(a, ACC+32, sHB0) + hblock_list(a, ACC+48, sHB1))
        run_list(a.yq[k:])
    stamp(a, 3); stamp(a, 2, '3'); stamp(a, 2, '5')
    phase2(a, wq)
    a('s_branch Lfin')

    a('LroleBC:')
    a.vm = ['CP'] if CPF else []
    TWL = opt('twl', 0)
    if TWL: a(f's_lshl_b32 s{sG0}, s{sX8}, 2\ns_add_u32 s{sG0}, s{sG0}, s{sN}\ns_sub_u32 s{sG0}, s{sG0}, 28\ns_lshl_b32 s{sG0}, s{sG0}, 2\ns_add_u32 s{sG0}, s{sG0}, s{sW}\ns_mul_i32 s{sG0}, s{sG0}, {98*128}')
    def light_tw():
        if not TWL: return
        srd(a, SW2, 14, 1792*896)
        a(f'v_lshlrev_b32 v{vP}, 7, v{vL}\ns_add_u32 s{sT}, s{sG0}, {34*128}')
        a.vmem(f'buffer_load_dword v{vP+1}, v{vP}, {sr(SW2)}, s{sG0} offen', 'TW')
        a.vmem(f'buffer_load_dword v{vP+1}, v{vP}, {sr(SW2)}, s{sT} offen', 'TW')
    a(f's_cmp_ge_u32 s{sN}, 30\ns_cbranch_scc1 LroleC')
    a(f's_lshl_b32 s{sRT}, s{sT}, 2\ns_lshl_b32 s{sT2}, s{sT2}, 1\ns_add_u32 s{sRT}, s{sRT}, s{sT2}\ns_add_u32 s{sRT}, s{sRT}, s{sN}\ns_sub_u32 s{sRT}, s{sRT}, 28')
    a(f's_mov_b32 s{sCG}, s{sRT}')
    sigma(); p1_addr_dma(a); p1_srds()
    XB, DB, vSb = 104, 224, 92
    for g in range(7):
        a(f's_movk_i32 s{sA0}, {g*128}')
        for q in range(4):
            a.vmem(f'buffer_load_dwordx4 {vr(XB+16*g+4*q)}, v{vXo+q}, {sr(SX)}, s{sA0} offen offset:{q*1024}', f'X{g}')
    for g in range(7):
        a.vmem(f'buffer_load_dwordx4 {vr(DB+4*g)}, v{vDo}, {sr(SD)}, 0 offen offset:{g*128}', 'XD')
    a(f's_sub_u32 s{sT}, 14, s{sRT}\ns_mul_i32 s{sT}, s{sT}, {16*896}\nv_add_u32 v{vDo}, s{sT}, v{vDo}\ns_mov_b32 s{sCG}, 14')
    other_srds()
    a(f's_mov_b32 s{sOnes}, 0x3f803f80')
    for i in range(9): a(f'v_mov_b32 v{vSb+i}, 0')
    for g in range(7):
        a.wait_vm(f'X{g}')
        if g == 0: stamp(a, 1)
        for i in range(4):
            for q in range(4):
                a(f'v_dot2c_f32_bf16 v{vSb+q}, s{sOnes}, v{XB+16*g+4*q+i}')
                a(f'v_dot2c_f32_bf16 v{vSb+4+q}, v{XB+16*g+4*q+i}, v{XB+16*g+4*q+i}')
    t = vt
    def dpp(rng):
        for pat in ('quad_perm:[1,0,3,2]', 'quad_perm:[2,3,0,1]', 'row_half_mirror'):
            for i in rng: a(f'v_add_f32_dpp v{vSb+i}, v{vSb+i}, v{vSb+i} {pat} row_mask:0xf bank_mask:0xf')
            if len(rng) < 3: a('s_nop 1')
    stamp(a, 2)
    a(f'v_and_b32 v{t+6}, 3, v{vL}\ns_nop 1')
    dpp(range(8))
    for q in range(1, 4):
        a(f'v_cmp_eq_u32 vcc, {q}, v{t+6}\ns_nop 1\nv_cndmask_b32 v{vSb}, v{vSb}, v{vSb+q}, vcc\nv_cndmask_b32 v{vSb+4}, v{vSb+4}, v{vSb+4+q}, vcc')
    a(f'v_mul_f32 v{t+4}, {f2h(1/448)}, v{vSb}\nv_mul_f32 v{t+1}, {f2h(1/448)}, v{vSb+4}')
    a(f'v_fma_f32 v{t+1}, -v{t+4}, v{t+4}, v{t+1}\nv_max_f32 v{t+1}, 0, v{t+1}')
    a(f'v_cvt_pk_bf16_f32 v{t}, -v{t+4}, -v{t+4}')
    a(f'v_cvt_pk_bf16_f32 v{t+1}, v{t+1}, v{t+1}\nv_and_b32 v{t+1}, 0xffff0000, v{t+1}')
    a(f'v_add_f32 v{t+1}, {f2h(1e-5)}, v{t+1}')
    a(f'v_cvt_pk_bf16_f32 v{t+1}, v{t+1}, v{t+1}\nv_and_b32 v{t+1}, 0xffff0000, v{t+1}')
    a(f'v_sqrt_f32 v{t+1}, v{t+1}\ns_nop 0')
    a(f'v_cvt_pk_bf16_f32 v{t+1}, v{t+1}, v{t+1}\nv_and_b32 v{t+1}, 0xffff0000, v{t+1}')
    a(f'v_rcp_f32 v{t+1}, v{t+1}')
    get_tag(a)
    a(f'v_mov_b32 v{t+2}, s{sTag}\nv_mov_b32 v{t+3}, s{sTag+1}')
    a(f'v_lshrrev_b32 v{t+7}, 3, v{vL}\nv_lshl_add_u32 v{t+5}, v{t+6}, 3, v{t+7}\nv_lshlrev_b32 v{t+5}, 4, v{t+5}')
    a(f's_lshl_b32 s{sT}, s{sSig}, 9')
    a.vmem(f'buffer_store_dwordx4 {vr(t)}, v{t+5}, {sr(SM)}, s{sT} offen sc1', 'S1')
    a.wait_vm('XD')
    for i in range(28): a(f'v_dot2c_f32_bf16 v{vSb+8}, s{sOnes}, v{DB+i}')
    a('s_nop 2')
    dpp([8])
    col_record(a, DB, vSb+8)
    a(f'v_lshlrev_b32 v{t+7}, 4, v{t+7}\ns_lshl_b32 s{sT}, s{sRT}, 9\ns_lshl_b32 s{sT2}, s{sW}, 7\ns_add_u32 s{sT}, s{sT}, s{sT2}\ns_add_u32 s{sT}, s{sT}, {CSZ}')
    a.vmem(f'buffer_store_dwordx4 {vr(DB)}, v{t+7}, {sr(SM)}, s{sT} offen sc1', 'S1')
    stamp(a, 3)
    if TWL == 1: light_tw()
    for g in range(4):
        for ins in dma_group('B', g): a.emit(ins)
    if TWL == 2: light_tw()
    p1_addr_read(a)
    for x in wg_flag_prep(vFl, sB0, sB1) + stat_addr() + twiddle_wc(vWt) + z_addr(vWt, sB0, sB1): a(x)
    if opt('tlb2', 1):
        a.emit((f's_mov_b32 exec_lo, 0x00010001\ns_mov_b32 exec_hi, 0x00010001\nbuffer_load_dword v{vP}, v{vVs}, {sr(SV)}, 0 offen\n'
                f's_mov_b32 s{sT}, {4*65536}\nbuffer_load_dword v{vP}, v{vVs}, {sr(SV)}, s{sT} offen\ns_mov_b64 exec, -1', 'TL'))
    p1_loop_bc(a, 'B')
    stat_check(a, 'B')
    for x in stat_fix('B'): a(x)
    a('s_nop 1')
    a(mfma(vr(ZA,16), vr(MO), vr(CZ), vr(ZA,16)))
    a('s_nop 11\ns_waitcnt lgkmcnt(0)')
    z1(a); z2(a); a('s_nop 11'); z3(a); z4a(a); z4b(a)
    wg_flag(a, vFl)
    a('s_branch Lfin')

    a('LroleC:')
    a.vm = ['CP'] if CPF else []
    a(f's_lshl_b32 s{sT3}, s{sT}, 1\ns_add_u32 s{sT3}, s{sT3}, s{sN}\ns_sub_u32 s{sT3}, s{sT3}, 30')
    a(f's_lshl_b32 s{sRT}, s{sT2}, 3\ns_add_u32 s{sRT}, s{sRT}, s{sT3}')
    a(f's_mul_i32 s{sCG}, s{sT2}, 7\ns_add_u32 s{sCG}, s{sCG}, s{sT3}\ns_add_u32 s{sT2}, s{sT2}, 14')
    a(f's_cmp_eq_u32 s{sT3}, 7\ns_cselect_b32 s{sCG}, s{sT2}, s{sCG}')
    sigma(); p1_addr_dma(a); p1_srds()
    other_srds()
    a(f's_cmp_ge_u32 s{sCG}, 14\ns_cbranch_scc1 LroleE')
    for g in range(3):
        for ins in dma_group('C', g): a.emit(ins)
    p1_addr_read(a)
    for x in stat_addr(): a(x)
    for i in range(4): a(f'v_mov_b32 v{TF+i}, 0x3f803f80')
    get_tag(a)
    p1_loop_bc(a, 'C')
    a('s_nop 11')
    col_record(a, FR, ACC)
    a(CW_OFF)
    a.vmem(f'buffer_store_dwordx4 {vr(FR)}, v{vU8}, {sr(SM)}, s{sA2} offen sc1', 'S1')
    stamp(a, 3)
    light_tw()
    a(f's_mov_b32 s{sCG}, 15')
    for x in wg_flag_prep(vFl, sB0, sB1): a(x)
    wg_flag(a, vFl)
    a('s_branch Lfin')

    a('LroleE:')
    a.vm = []
    light_tw()
    get_tag(a)
    a(f's_sub_u32 s{sT3}, 15, s{sCG}\ns_add_u32 s{sT3}, s{sT3}, s{sW}\ns_mov_b32 s{sCG}, 15')
    for x in wg_flag_prep(vFl, sB0, sB1): a(x)
    wg_flag(a, vFl)
    a(f's_cmp_lg_u32 s{sT3}, 0\ns_cbranch_scc1 Lfin')
    a(f'v_lshlrev_b32 v{vPa}, 3, v{vL}\nv_add_u32 v{vPa}, {FLV}, v{vPa}')
    for i in range(4):
        poll_issue(a, 'PE', vPa)
        poll_check(a, 'PE', vPa, sleep=16)
        a(f'v_add_u32 v{vPa}, 512, v{vPa}')
    a(f'v_mov_b32 v{vFl+2}, {EPO}\ns_mov_b64 exec, 1')
    a(f'buffer_store_dwordx2 {vr(vFl,2)}, v{vFl+2}, {sr(SM)}, 0 offen sc1')
    a('s_mov_b64 exec, -1')
    a('Lfin:')
    stamp_store(a)
    a('Lend:')
    a('s_endpgm')
    return a.text()

def phase2(a, wq):
    ACC0, ACC1, YA, VF = 144, 176, 208, 104
    TFd = 4
    vRw, vRwb, vRr = 84, 88, 92
    vRi = 36
    YS = [208, 240]
    XR = 224
    t = 56
    for ins in wq: a.emit(ins)
    rq = []
    for q in range(NSTG, 7): rq += w2_group(q)
    NR = len(rq)
    def rdma(n):
        while rq and n > 0:
            ins = rq.pop(0); a.emit(ins)
            if ins[1]: n -= 1
    vq = twiddle_tf(t, TFd)
    u = t + 8
    vq += lines(f'v_and_b32 v{u}, 7, v{vU}\nv_xor_b32 v{u}, v{u}, v{vHH}\nv_lshlrev_b32 v{u+1}, 7, v{vU}')
    vq += [f's_lshl_b32 s{sT}, s{sJ}, 12\ns_add_u32 s{sT2}, s{sT}, 32768\ns_add_u32 s{sT}, s{sT2}, s{sArea}', f'v_add_u32 v{u+1}, s{sT}, v{u+1}']
    for q in range(4):
        vq += lines(f'v_xor_b32 v{u+2}, {2*q}, v{u}\nv_lshl_add_u32 v{vRw+q}, v{u+2}, 4, v{u+1}\nv_xor_b32 v{vRwb+q}, 0x1000, v{vRw+q}')
    vq += lines(f'v_lshrrev_b32 v{u}, 2, v{vL}\nv_and_b32 v{u+1}, 3, v{vL}\nv_and_b32 v{u+2}, 7, v{u}\nv_lshlrev_b32 v{u+3}, 1, v{u+1}\nv_xor_b32 v{u+2}, v{u+2}, v{u+3}\n'
                f'v_lshlrev_b32 v{u+2}, 4, v{u+2}\nv_lshl_add_u32 v{u+2}, v{u}, 7, v{u+2}')
    vq += [f's_lshl_b32 s{sT}, s{sI}, 11\ns_add_u32 s{sT2}, s{sT2}, s{sT}']
    nsafe = len(vq)
    for k in range(4):
        vq += [f's_xor_b32 s{sT}, s{sJ}, {k}\ns_mul_i32 s{sT}, s{sT}, {AREA}\ns_add_u32 s{sT}, s{sT}, s{sT2}', f'v_add_u32 v{vRr+2*k}, s{sT}, v{u+2}', f'v_xor_b32 v{vRr+2*k+1}, 16, v{vRr+2*k}']
    uq = []
    def vdo(budget):
        while (uq or vq) and budget > 0:
            x = (uq or vq).pop(0)
            if callable(x): x(); continue
            a(x); budget -= cost(x)
    if RPRE0:
        assert opt('sk', 28) == 28 and RPRE0 <= 32
        rdma(RPRE0)
        vdo(opt('tf0', 60) + opt('tf0b', 40))
    else:
        a.wait_vm('R0'); stamp(a, 3, '5')
        for x in stage_reads(0): a(x)
        vdo(opt('tf0', 60))
        stamp(a, 4, '5'); a.wait_vm('R1'); stamp(a, 5, '5')
        for x in stage_reads(1): a(x)
        vdo(opt('tf0b', 40))
        if NSTG == 3:
            a.wait_vm('R2')
            for x in stage_reads(2): a(x)
    a('s_waitcnt lgkmcnt(0)')
    stamp(a, 3, '3'); stamp(a, 6, '5'); a.wait_vm('ST'); stamp(a, 7, '5')
    wg_flag(a, vFl)
    stamp(a, 8, '5')
    stamp(a, 4); stamp(a, 4, '3'); cstamp(a, 5, '8')
    nr = max(opt('rb', 10), RPRE0)
    rdma(nr - RPRE0)
    did2 = NSTG == 3
    while nr < NR - RLATE:
        if nr >= P1POS and 'P1' not in a.vm: poll_issue(a, 'P1', vPa)
        rdma(1); nr += 1
        if nr == 20 and not did2: uq += [lambda: a.wait_vm('R2')] + stage_reads(2); did2 = True
        vdo(opt('tf1', 8))
    if 'P1' not in a.vm: poll_issue(a, 'P1', vPa)
    stamp(a, 5, '3')
    if not did2: uq += [lambda: a.wait_vm('R2')] + stage_reads(2)
    vdo(10000)
    stamp(a, 5); stamp(a, 6, '3')
    poll_check(a, 'P1', vPa, mask='15' if VSPLIT else None)
    stamp(a, 6); stamp(a, 7, '3'); stamp(a, 1, '4'); cstamp(a, 7, '8')
    horder = list(range(HN0)) + [28, 29, 30, 31] + list(range(HN0, 28)) + list(range(32, 56))
    sHq = [sB0, sB1]
    def hload(pos):
        i = horder[pos]
        rb, k = divmod(i, 28)
        c = (sGh0, sGh1)[rb]
        if k % 4 == 0:
            a(f's_mov_b32 s{c}, s{sG0}' if k == 0 else rot_next(c))
            a(f's_lshl_b32 s{sHq[rb]}, s{c}, 12\ns_add_u32 s{sHq[rb]}, s{sHq[rb]}, s{sHb}')
            if rb: a(f's_add_u32 s{sHq[rb]}, s{sHq[rb]}, {32*HB_SIG}')
        a.vmem(f'buffer_load_dwordx4 {ar(aH+4*(i%32))}, v{vHo}, {sr(SH)}, s{sHq[rb]} offen offset:{(k % 4)*1024} sc1', f'H{i}')
    def vloads():
        if VSPLIT: poll_check(a, 'P2', vPa, sleep=0)
        for j in range(8):
            a(f's_movk_i32 s{sA2}, {j*4096}')
            a.vmem(f'buffer_load_dwordx4 {vr(VF+4*j)}, v{vVo}, {sr(SV)}, s{sA2} offen sc1', f'V{j}')
    def smalls():
        for rb in range(2):
            a(f's_lshl_b32 s{sA2}, s{sT1}, 9' if rb == 0 else f's_add_u32 s{sA2}, s{sA2}, {32*512}')
            a.vmem(f'buffer_load_dword v{vRi+rb}, v{vRo}, {sr(SM)}, s{sA2} offen offset:4 sc1', 'RI')
            a.vmem(f'buffer_load_dword v{vRi+2+rb}, v{vU8}, {sr(SM)}, s{sA2} offen offset:4 sc1', 'RI')
        a.vmem(f'buffer_load_dwordx4 {vr(XR)}, v{vOo}, {sr(SX)}, 0 offen', 'X')
        a.vmem(f'buffer_load_dwordx4 {vr(XR+4)}, v{vOo+1}, {sr(SX)}, 0 offen', 'X')
    a('s_waitcnt lgkmcnt(0)')
    def vload(j):
        a(f's_movk_i32 s{sA2}, {j*4096}')
        a.vmem(f'buffer_load_dwordx4 {vr(VF+4*j)}, v{vVo}, {sr(SV)}, s{sA2} offen sc1', f'V{j}')
    lq = [('h', i) for i in range(56)]
    vpos = opt('vpos', 14)
    lq = lq[:vpos] + [('v', j) for j in range(4)] + [('s', 0)] + lq[vpos:]
    pos = opt('rpos', 8)
    for _ in range(RLATE):
        lq.insert(pos, ('r', 0)); pos += opt('rstep', 2)
    def lnext(i):
        if not lq: return
        kind, x = lq[0]
        if kind == 'h' and horder[x] - 32 > i: return
        lq.pop(0)
        if kind == 'h': hload(x)
        elif kind == 'v': vload(x)
        elif kind == 'r': rdma(1)
        else: smalls()
    for i in range(HB0): lnext(-1)
    stamp(a, 8, '3'); stamp(a, 2, '4')
    def ard(k):
        s = aF + 8 * (k % (PD + 1))
        return [f'ds_read_b64_tr_b16 {ar(s+4*blk+2*p,2)}, v{va} offset:{(k-12)*2048 + p*1024}'
                for blk, va in enumerate((vTra, vTrb)) for p in range(2)]
    state = dict(lgk=[])
    HPS = [int(c) for c in (OPT.get('hpp', '1112') * opt('hpn', 10) + '1')]
    def lds(s, tag):
        a(s); state['lgk'].append(tag)
    def wait_lgk(tag):
        L = state['lgk']
        if tag not in L: return
        idx = max(i for i, x in enumerate(L) if x == tag)
        a(f's_waitcnt lgkmcnt({min(len(L)-1-idx, 15)})')
        state['lgk'] = L[idx+1:]
    def kstep(rb, k, fill, fill0=()):
        i = 28*rb + k
        acc = ACC0 if rb == 0 else ACC1
        assert not any(kd == 'h' and horder[x] == i for kd, x in lq)
        a.wait_vm(f'H{i}')
        if k >= 12: wait_lgk(f'A{rb}_{k}')
        if rb == 0 and 12 <= k + PD < 28 and (k + PD) % 4 == 0:
            assert not any(t_ == f'R{(k+PD)//4}' for _, t_ in rq)
            a.wait_vm(f'R{(k+PD)//4}')
        A = aW + 8*k if k < 12 else aF + 8*(k % (PD + 1))
        B = ar(aH + 4*(i % 32))
        a(mfma(vr(acc,16), ar(A), B, vr(acc,16) if k else '0'))
        if 12 <= k + PD < 28:
            for r in ard(k+PD): lds(r, f'A{rb}_{k+PD}')
        for f in fill0: f()
        a(mfma(vr(acc+16,16), ar(A+4), B, vr(acc+16,16) if k else '0'))
        for _ in range(HPS[min(i, len(HPS) - 1)]): lnext(i)
        for f in fill: f()
    def take(Q, budget):
        out = []
        while Q and budget > 0:
            x = Q.pop(0)
            if isinstance(x, str): budget -= cost(x); out.append(lambda x=x: a(x))
            else: budget -= 1; out.append(x)
        return out
    def vstep(m_):
        def f():
            j, rb = divmod(m_, 2)
            if rb == 0:
                assert ('v', j) not in lq
                a.wait_vm(f'V{j}')
                for i in range(4): a(f'v_xor_b32 v{VF+4*j+i}, v{VF+4*j+i}, v{vSg}')
                a('s_nop 1')
            a(mfma(vr(YS[rb],16), vr(VF+4*j), vr(TFd+16*rb+4*j), vr(YS[rb],16) if j else '0'))
        return f
    for k in range(28):
        fill = []; fill0 = []
        if k + PD < 12: fill0 = take(vq, 5)
        if VM0 <= k < VM0 + 8:
            assert not any('cos' in x for x in vq)
            fill.append(vstep(k - VM0))
        else: fill += take(vq, 4)
        kstep(0, k, fill, fill0)
        if k in (0, 7, 15, 27): stamp(a, {0: 3, 7: 4, 15: 5, 27: 6}[k], '4')
    assert not vq
    stamp(a, 7)
    def red_write(acc, base): return [(lambda q=q: lds(f'ds_write_b128 v{base+q}, {vr(acc+4*q)}', 'RW')) for q in range(4)]
    def scale_own(acc, rb): return [f'v_fmac_f32 v{acc+r}, v{YS[rb]+r}, v{vRi+2+rb}' for r in range(16)]
    def barrier():
        wait_lgk('RW'); a('s_barrier')
    def finalize(P, rb):
        L = []
        for k in range(4):
            for h in range(2):
                L.append(lambda k=k, h=h: lds(f'ds_read_b128 {vr(P+8*k+4*h)}, v{vRr+2*k+h}', f'RR{k}'))
        U = 56
        for i in range(4): L += [f'v_lshlrev_b32 v{U+2*i}, 16, v{XR+4*rb+i}', f'v_and_b32 v{U+2*i+1}, 0xffff0000, v{XR+4*rb+i}']
        L.append(lambda: wait_lgk('RR1'))
        L += [f'v_add_f32 v{P+r}, v{P+r}, v{P+8+r}' for r in range(8)]
        L.append(lambda: wait_lgk('RR3'))
        L += [f'v_add_f32 v{P+16+r}, v{P+16+r}, v{P+24+r}' for r in range(8)]
        L += [f'v_add_f32 v{P+r}, v{P+r}, v{P+16+r}' for r in range(8)]
        L += [f'v_fma_f32 v{P+r}, v{P+r}, v{vRi+rb}, v{U+r}' for r in range(8)]
        if opt('pert', 0.0) and rb == 1:
            L.append(f's_add_u32 s{sT}, s2, s{sW}\ns_cmp_eq_u32 s{sT}, 0\ns_cselect_b64 exec, 1, 0\nv_add_f32 v{P}, {f2h(opt("pert", 0.0))}, v{P}\ns_mov_b64 exec, -1')
        if opt('pscale', 0.0): L += [f'v_mul_f32 v{P+r}, {f2h(1 + opt("pscale", 0.0))}, v{P+r}' for r in range(8)]
        L += [f'v_cvt_pk_bf16_f32 v{U+p}, v{P+2*p}, v{P+2*p+1}' for p in range(4)]
        L.append(lambda: a.vmem(f'buffer_store_dwordx4 {vr(U)}, v{vOo+rb}, {sr(SO)}, 0 offen {OST}', 'O'))
        return L
    def run(L):
        for f in take(L, 10**6): f()
    PF = 104
    assert ('s', 0) not in lq
    a.wait_vm('X')
    a(f'v_rcp_f32 v{vRi+2}, v{vRi+2}\nv_rcp_f32 v{vRi+3}, v{vRi+3}')
    work = red_write(ACC0+16, vRwb) + scale_own(ACC0, 0) + red_write(ACC0, vRw)
    post = finalize(PF, 0)
    KB1, KB2 = opt('kb1', 10), 25
    for k in range(28):
        fill = []; fill0 = []
        if 3 <= k < KB1: fill0 = take(work, 2); fill = take(work, 3)
        if k == KB1:
            assert not work
            fill = [barrier]
        if KB1 < k < KB2:
            fill0 = take(post, 1)
            fill = take(post, FILL + (1 if opt('pscale', 0.0) else 0))
        if k == KB2:
            assert not post and not any(x.startswith('RR') for x in state['lgk']), post
            fill = [lambda: a('s_barrier')]
        kstep(1, k, fill, fill0)
        if k in (11, 27): stamp(a, {11: 7, 27: 8}[k], '4'); cstamp(a, {11: 5, 27: 7}[k])
    stamp(a, 8)
    a('s_nop 10')
    run(scale_own(ACC1, 1) + red_write(ACC1, vRw) + red_write(ACC1+16, vRwb))
    barrier()
    run(finalize(PF, 1))

def main():
    body = gen()
    k = NAME + '_kernel'
    print(f'''; FNet mixing (two-stage DFT factorisation, 2048 = 32 x 64) + ReLU FFN + residual in one persistent launch.
; @launch grid=(256,1,1) block=(256,1,1) lds={LDS_SIZE}
.amdgcn_target "amdgcn-amd-amdhsa--gfx950"
.text
.globl {k}
.p2align 8
.type {k},@function
{k}:
{body}
.section .rodata,"a"
.p2align 6
.amdhsa_kernel {k}
  .amdhsa_next_free_vgpr {256+NAGPR}
  .amdhsa_next_free_sgpr 102
  .amdhsa_accum_offset 256
  .amdhsa_group_segment_fixed_size 0
  .amdhsa_kernarg_size 88
  .amdhsa_user_sgpr_count 2
  .amdhsa_user_sgpr_kernarg_segment_ptr 1
  .amdhsa_system_sgpr_workgroup_id_x 1
.end_amdhsa_kernel''')
main()
```

```python
import sys, struct
NAME = 'parallel_sum__spectral_fnet__dense_activation_relu__prompt'
OPT = dict(a.split('=') for a in sys.argv[1:] if '=' in a)
def opt(k, d): return type(d)(OPT.get(k, d))
STAMP = opt('stamp', 0); LST = OPT.get('lst')
RATE = [int(c) for c in OPT.get('rate', '3')]
ROT = opt('rot', 1)
POLL0 = opt('poll0', 15); PCHK = opt('pchk', 6)
NW = opt('nw', 16); W0 = opt('w0', 16); WPS = [int(c) for c in OPT.get('wps', '112')]
RPRE0 = opt('rpre0', 0); P1POS = opt('p1pos', 26); RLATE = opt('rlate', 0)
HB0 = opt('hb0', 14); VM0 = opt('vm0', 20); FILL = opt('fill', 5); SLEEP = opt('sleep', 4)
OST = OPT.get('ost', '').replace('_', ' ')
STF = OPT.get('stf', 'sc1').replace('_', ' ')
TW = opt('tw', -1); ROT1 = opt('rot1', 2); XOFF = opt('xoff', 0); VSPLIT = opt('vsplit', 0)

def f2h(x): return '0x%08x' % struct.unpack('<I', struct.pack('<f', x))[0]

WS0 = opt('ws0', 0) << 20
HB_SIG = opt('hbs', 29) * 4096
HB_SIZE = 64 * HB_SIG
VB_OFF = WS0 + 0x800000
VB_SIZE = 32 * 16 * 256 * 16
SM_OFF = WS0 + 0xA00000
SM_SIZE = 0x20000
CSW, CSZ = 0x8000, 0x18000
FLH, FLV, EPO = 0x10000, 0x11000, 0x14000
ST_OFF = 0x1000000
SLOT = 36864
VX = 4 * SLOT
AREA = 40960
LDS_SIZE = 163840
SPIN_MAX = 1 << 17

SX, SW, SD, SH, SV, SM, SW2, SO = 24, 28, 32, 36, 40, 44, 48, 52
sTag = 56
sW, sI, sJ, sRT, sCG, sSig, sLx, sLw, sLd, sT, sT2, sT3, sT1, sCT = 58, 59, 60, 61, 62, 63, 64, 65, 66, 67, 68, 69, 70, 71
sA0, sA1, sA2, sA3, sA4, sOnes, sSpin, sB0, sB1, sG0 = 72, 73, 74, 75, 76, 77, 78, 79, 80, 81
sGc, sGw, sGh0, sGh1 = 6, 7, 3, 6
sArea, sHb, sRi, sG1, sStg = 20, 21, 77, 10, 11
STB = 82
vL, vU, vHH = 1, 2, 3
vXo, vWo, vDo = 4, 8, 12
vRb, vRp, vRd, vTa, vTb = 13, 21, 29, 37, 39
vM8, vU8, vH16, vZs, vP = 41, 42, 43, 44, 46
vt = 48
WC, TF, FR, ACC = 56, 72, 104, 144
MO, MP, CA, CB, CZ, ZR = 224, 228, 232, 236, 100, 240
vWt = 84
vW2, vTra, vTrb, vZw, vPa, vVo, vSg, vOo, vRo = 48, 52, 53, 54, 55, 45, 72, 74, 76
vSt = [(54, 73), (77, 83)]
vFl = 92
aW, aH, aF = 0, 96, 224
aRaw = aH
NAGPR = 256
PD = opt('pd', 3); RL0 = opt('rl0', 0); VL0 = opt('vl0', -1); HN0 = opt('hn0', 28); P2K = opt('p2k', -1)

class Asm:
    def __init__(self):
        self.L = []; self.vm = []; self.nlab = 0
    def __call__(self, s):
        for line in s.split('\n'):
            line = line.strip()
            self.L.append(line if line.endswith(':') else '    ' + line)
    def vmem(self, s, tag):
        self(s); self.vm.append(tag)
    def emit(self, ins):
        s, tag = ins
        if tag == 'TL': self.vm += ['TL'] * (s.count('buffer_load') - 1)
        if tag: self.vmem(s, tag)
        else: self(s)
    def wait_vm(self, tag):
        if tag not in self.vm: return
        idx = max(i for i, t in enumerate(self.vm) if t == tag)
        n = len(self.vm) - 1 - idx
        self(f's_waitcnt vmcnt({min(n, 63)})')
        self.vm = self.vm[idx + 1:]
    def label(self, p):
        self.nlab += 1
        return f'L{p}_{self.nlab}'
    def text(self): return '\n'.join(self.L)

def vr(b, n=4): return f'v[{b}:{b+n-1}]'
def ar(b, n=4): return f'a[{b}:{b+n-1}]'
def sr(b, n=4): return f's[{b}:{b+n-1}]'
def srd(a, d, lo, size, off=0):
    if off: a(f's_add_u32 s{d}, s{lo}, {off}\ns_addc_u32 s{d+1}, s{lo+1}, 0')
    else: a(f's_mov_b32 s{d}, s{lo}\ns_mov_b32 s{d+1}, s{lo+1}')
    a(f's_mov_b32 s{d+2}, {size}\ns_mov_b32 s{d+3}, 0x20000')
def stamp(a, idx, mode=None):
    if not STAMP: return
    if 1 <= idx <= 8 and mode != LST: return
    a(f's_memrealtime s[{STB+2*idx}:{STB+2*idx+1}]')
def cstamp(a, idx, mode='6'):
    if STAMP and LST == mode: a(f's_memrealtime s[{STB+2*idx}:{STB+2*idx+1}]\ns_memtime s[{STB+2*idx+2}:{STB+2*idx+3}]')
def mfma(D, A, B, C): return f'v_mfma_f32_32x32x16_bf16 {D}, {A}, {B}, {C}'
def lines(s): return s.split('\n')
def cost(x): return sum(2 if ('cos' in y or 'sin' in y) else 1 for y in x.split('\n'))

def stamp_store(a):
    if not STAMP: return
    a('s_waitcnt vmcnt(0) lgkmcnt(0)')
    if LST != '7': stamp(a, 9)
    a('s_waitcnt lgkmcnt(0)')
    if STAMP == 3:
        pa, pb = map(int, OPT['probe'].split(','))
        sk = a.label('pskip'); sp = a.label('pspin')
        a(f's_cmp_lg_u32 s2, {OPT.get("pwg", 0)}\ns_cbranch_scc1 {sk}\ns_cmp_lg_u32 s{sW}, {OPT.get("pwv", 0)}\ns_cbranch_scc1 {sk}')
        if pa < 0:
            a(f'v_mov_b32 v4, {EPO+128}\nbuffer_load_dword v5, v4, {sr(SM)}, 0 offen sc1\ns_waitcnt vmcnt(0)\nv_readfirstlane_b32 s{STB-2}, v5\ns_nop 3')
        a(f's_sub_u32 s{sT}, s{STB+2*pb}, s{STB+2*pa}\ns_add_u32 s{sT}, s{sT}, {opt("poff", 0)}\ns_min_u32 s{sT}, s{sT}, 5000\ns_mul_i32 s{sT}, s{sT}, 10')
        a(f's_memrealtime s[4:5]\ns_waitcnt lgkmcnt(0)\ns_add_u32 s{sT}, s{sT}, s4')
        a(f'{sp}:\ns_memrealtime s[4:5]\ns_waitcnt lgkmcnt(0)\ns_sub_u32 s{sT2}, s{sT}, s4\ns_cmp_gt_i32 s{sT2}, 0\ns_cbranch_scc1 {sp}')
        a(f'{sk}:')
        return
    srd(a, SX, 18, 65536, ST_OFF)
    a(f's_lshl_b32 s{sT}, s2, 2\ns_add_u32 s{sT}, s{sT}, s{sW}\ns_lshl_b32 s{sT}, s{sT}, 6')
    a(f'v_mov_b32 v5, s{sT}')
    for i in range(10):
        a(f'v_mov_b32 v4, s{STB+2*i}')
        a(f'buffer_store_dword v4, v5, {sr(SX)}, 0 offen offset:{4*i}')
        a('s_nop 1')

def poll_issue(a, tag, va, vd=vP):
    a.vmem(f'buffer_load_dwordx2 {vr(vd,2)}, v{va}, {sr(SM)}, 0 offen sc1', tag)
def poll_check(a, tag, va, vd=vP, sleep=SLEEP, mask=None):
    ok = a.label('ok'); lp = a.label('spin')
    a.wait_vm(tag)
    mk = f'\ns_and_b64 vcc, vcc, {mask}' if mask else ''
    a(f'v_cmp_ne_u64 vcc, s[{sTag}:{sTag+1}], {vr(vd,2)}' + mk)
    a(f's_cbranch_vccz {ok}')
    a(f's_mov_b32 s{sSpin}, {SPIN_MAX}')
    a(f'{lp}:')
    if sleep: a(f's_sleep {sleep}')
    a(f'buffer_load_dwordx2 {vr(vd,2)}, v{va}, {sr(SM)}, 0 offen sc1')
    a(f's_sub_u32 s{sSpin}, s{sSpin}, 1\ns_cbranch_scc1 {ok}')
    a('s_waitcnt vmcnt(0)')
    a(f'v_cmp_ne_u64 vcc, s[{sTag}:{sTag+1}], {vr(vd,2)}' + mk)
    a(f's_cbranch_vccnz {lp}')
    a(f'{ok}:')
def wg_flag_prep(tmp, u0, u1):
    return [f's_lshl_b32 s{u0}, s{sCG}, 4\ns_add_u32 s{u0}, s{u0}, s{sRT}\ns_lshl_b32 s{u0}, s{u0}, 3\ns_add_u32 s{u0}, s{u0}, {FLV}',
            f's_lshl_b32 s{u1}, s{sRT}, 4\ns_add_u32 s{u1}, s{u1}, s{sCG}\ns_lshl_b32 s{u1}, s{u1}, 3\ns_add_u32 s{u1}, s{u1}, {FLH}\ns_sub_u32 s{u1}, s{u1}, s{u0}',
            f'v_mul_lo_u32 v{tmp+2}, v{vL}, s{u1}', f'v_add_u32 v{tmp+2}, s{u0}, v{tmp+2}',
            f'v_mov_b32 v{tmp}, s{sTag}', f'v_mov_b32 v{tmp+1}, s{sTag+1}']
def wg_flag(a, tmp, barrier=True):
    a.wait_vm('ST')
    if barrier: a('s_barrier')
    sk = a.label('nofl')
    a(f's_cmp_lg_u32 s{sW}, 0\ns_cbranch_scc1 {sk}')
    a('s_mov_b64 exec, 3')
    a(f'buffer_store_dwordx2 {vr(tmp,2)}, v{tmp+2}, {sr(SM)}, 0 offen sc1')
    a('s_mov_b64 exec, -1')
    a(f'{sk}:')
def col_record(a, o, src):
    a(f'v_cvt_pk_bf16_f32 v{o+2}, v{src}, v{src}\nv_and_b32 v{o+3}, 0xffff0000, v{o+2}\nv_sub_f32 v{o+4}, v{src}, v{o+3}')
    a(f'v_cvt_pk_bf16_f32 v{o}, v{src}, v{o+4}\nv_and_b32 v{o+3}, 0xffff0000, v{o}\nv_sub_f32 v{o+4}, v{o+4}, v{o+3}')
    a(f'v_cvt_pk_bf16_f32 v{o+1}, v{o+4}, 0')
    a(f'v_mov_b32 v{o+2}, s{sTag}\nv_mov_b32 v{o+3}, s{sTag+1}')
def get_tag(a):
    a('s_waitcnt lgkmcnt(0)')
    a(f's_add_u32 s{sTag}, s{sTag}, 0x7f4a7c15\ns_addc_u32 s{sTag+1}, s{sTag+1}, 0x9e3779b9')
CW_OFF = f's_lshl_b32 s{sA2}, s{sCG}, 11\ns_lshl_b32 s{sA3}, s{sJ}, 10\ns_add_u32 s{sA2}, s{sA2}, s{sA3}\ns_lshl_b32 s{sA3}, s{sI}, 9\ns_add_u32 s{sA2}, s{sA2}, s{sA3}\ns_add_u32 s{sA2}, s{sA2}, {CSW}'
def stat_loads(role):
    ld = lambda r: (f'buffer_load_dwordx4 {vr(r)}, v{vU8}, {sr(SM)}, s{sA2} offen sc1', 'SL')
    ins = [(f's_lshl_b32 s{sA2}, s{sSig}, 9', None), ld(MO)]
    if role == 'A':
        ins += [(f's_xor_b32 s{sA2}, s{sA2}, 512', None), ld(MP), (CW_OFF, None), ld(CA), (f's_xor_b32 s{sA2}, s{sA2}, 512', None), ld(CB)]
    ins += [(f's_lshl_b32 s{sA2}, s{sCG}, 9\ns_add_u32 s{sA2}, s{sA2}, {CSZ}', None), ld(CZ)]
    return ins
def stat_check(a, role):
    ok = a.label('ok'); lp = a.label('spin')
    recs = [MO, MP, CA, CB, CZ] if role == 'A' else [MO, CZ]
    def cmp():
        for i, r in enumerate(recs):
            a(f'v_cmp_ne_u64 {"s[22:23]" if i else "vcc"}, s[{sTag}:{sTag+1}], {vr(r+2,2)}')
            if i: a('s_or_b64 vcc, vcc, s[22:23]')
    a.wait_vm('SL')
    cmp()
    a(f's_cbranch_vccz {ok}')
    a(f's_mov_b32 s{sSpin}, {SPIN_MAX}')
    a(f'{lp}:')
    for ins in stat_loads(role): a(ins[0])
    a(f's_sub_u32 s{sSpin}, s{sSpin}, 1\ns_cbranch_scc1 {ok}')
    a('s_waitcnt vmcnt(0)')
    cmp()
    a(f's_cbranch_vccnz {lp}')
    a(f'{ok}:')
def stat_fix(role):
    L = [f'ds_write_b32 v{vZs}, v{MO+1}']
    for r in ([MO, MP] if role == 'A' else [MO]):
        L += [f'v_and_b32 v{r}, v{r}, v{vM8}', f'v_and_b32 v{r+1}, 0xffff, v{r}', f'v_mov_b32 v{r+2}, 0', f'v_mov_b32 v{r+3}, 0']
    for r in ([CA, CB, CZ] if role == 'A' else [CZ]):
        L += [f'v_mov_b32 v{r+2}, 0', f'v_mov_b32 v{r+3}, 0']
    L += [f'ds_read_b128 {vr(ZR+4*q)}, v{vH16} offset:{32*q}' for q in range(4)]
    return L

def rot_next(c): return f's_add_u32 s{c}, s{c}, 1\ns_cmp_eq_u32 s{c}, 7\ns_cselect_b32 s{c}, 0, s{c}'
BCO = [int(c) for c in OPT.get('bco', '0123456')]
def dma_group(role, g):
    slot = (g % 4) * SLOT
    ins = []
    if role == 'A':
        ins.append((f's_mov_b32 s{sGc}, s{sG1}' if g == 0 else rot_next(sGc), None))
        ins.append((f's_lshl_b32 s{sA0}, s{sGc}, 7\ns_mul_i32 s{sA1}, s{sGc}, {64*3584}', None))
    else:
        gp = BCO[g]
        ins.append((f's_movk_i32 s{sA0}, {gp*128}\ns_mov_b32 s{sA1}, {gp*64*3584}', None))
    if role != 'C':
        ins.append((f's_add_u32 m0, s{sLx}, {slot}\ns_nop 0', None))
        for q in range(4):
            ins.append((f'buffer_load_dwordx4 v{vXo+q}, {sr(SX)}, s{sA0} offen offset:{q*1024} lds', f'G{g}'))
        ins.append((f's_add_u32 m0, s{sLd}, {slot}\ns_nop 0', None))
        ins.append((f'buffer_load_dwordx4 v{vDo}, {sr(SD)}, s{sA0} offen lds', f'G{g}'))
    if role != 'B':
        ins.append((f's_add_u32 m0, s{sLw}, {slot}\ns_nop 0', None))
        for i in range(4):
            ins.append((f'buffer_load_dwordx4 v{vWo+i}, {sr(SW)}, s{sA1} offen offset:{i*1024} lds', f'G{g}'))
    return ins
STG = [3*SLOT, 0, SLOT]
NSTG = opt('nstg', 2)
def w2_group(q):
    base, off = (sStg, STG[q]) if q < NSTG else (sArea, 32768 if q == 2 else (q-3)*8192)
    ins = []
    for m in range(8):
        pre = ''
        if m == 0: pre = (f's_mov_b32 s{sGw}, s{sG0}' if q == 0 else rot_next(sGw)) + f'\ns_mul_i32 s{sA4}, s{sGw}, {8*7168}\n'
        if m == 4: pre = f's_add_u32 s{sA4}, s{sA4}, {4*7168}\n'
        pre += f's_add_u32 m0, s{base}, {off + 4096*(m//4)}\ns_nop 0\n' if (q < NSTG or m % 4 == 0) else ''
        ins.append((pre + f'buffer_load_dwordx4 v{vW2+m%4}, {sr(SW2)}, s{sA4} offen offset:{(m%4)*1024} lds', f'R{q}'))
    return ins
def stage_reads(part):
    va2, off = (vSt[part], 0) if part < 2 else ((vSt[1], SLOT) if NSTG == 3 else ((vTra, vTrb), 32768))
    return [f'ds_read_b64_tr_b16 {ar(aW+8*(4*part+kk)+4*blk+2*p,2)}, v{va} offset:{off + kk*2048 + p*1024}'
            for kk in range(4) for blk, va in enumerate(va2) for p in range(2)]

def p1_addr_dma(a):
    t = FR
    a(f'v_lshrrev_b32 v{t+1}, 3, v{vL}\nv_and_b32 v{t+2}, 7, v{vL}\nv_lshrrev_b32 v{t+3}, 1, v{t+1}')
    a(f'v_xor_b32 v{t+4}, v{t+2}, v{t+3}\nv_lshlrev_b32 v{t+4}, 4, v{t+4}')
    a(f'v_mul_u32_u24 v{t+5}, {64*896}, v{t+1}')
    a(f's_mul_i32 s{sT}, s{sSig}, 896')
    a(f'v_add3_u32 v{vXo}, v{t+5}, v{t+4}, s{sT}')
    a(f'v_xor_b32 v{vXo+1}, 64, v{vXo}')
    a(f'v_add_u32 v{vXo+2}, {2*(458752-1024)}, v{vXo}')
    a(f'v_add_u32 v{vXo+3}, {3*(458752-1024)}, v{vXo+1}')
    a(f'v_add_u32 v{vXo+1}, {1*(458752-1024)}, v{vXo+1}')
    a(f'v_and_b32 v{t+6}, 1, v{t+3}\nv_lshlrev_b32 v{t+6}, 2, v{t+6}\nv_xor_b32 v{t+6}, v{t+6}, v{t+2}\nv_lshlrev_b32 v{t+6}, 4, v{t+6}')
    a(f'v_mul_u32_u24 v{t+7}, 3584, v{t+1}')
    a(f's_mul_i32 s{sT}, s{sI}, {32*3584}\ns_lshl_b32 s{sT2}, s{sCG}, 8\ns_add_u32 s{sT}, s{sT}, s{sT2}\ns_lshl_b32 s{sT2}, s{sJ}, 7\ns_add_u32 s{sT}, s{sT}, s{sT2}')
    a(f'v_add3_u32 v{vWo}, v{t+7}, v{t+6}, s{sT}')
    for i in range(1, 4): a(f'v_add_u32 v{vWo+i}, {i*(8*3584-1024)}, v{vWo}')
    a(f'v_mul_u32_u24 v{t+5}, 896, v{t+1}')
    a(f's_lshl_b32 s{sT}, s{sJ}, 6')
    a(f'v_xor_b32 v{t+6}, s{sT}, v{t+4}')
    a(f's_lshl_b32 s{sT}, s{sCG}, 1\ns_add_u32 s{sT}, s{sT}, s{sJ}\ns_mul_i32 s{sT}, s{sT}, {8*896}')
    a(f'v_add3_u32 v{vDo}, v{t+5}, v{t+6}, s{sT}')
    a(f's_lshl_b32 s{sLx}, s{sW}, 12')
    a(f's_lshl_b32 s{sLw}, s{sJ}, 13\ns_lshl_b32 s{sT}, s{sI}, 12\ns_add_u32 s{sLw}, s{sLw}, s{sT}\ns_add_u32 s{sLw}, s{sLw}, 16384')
    a(f's_lshl_b32 s{sLd}, s{sW}, 10\ns_add_u32 s{sLd}, s{sLd}, 32768')

def p1_addr_read(a):
    t = FR
    a(f'v_and_b32 v{vU}, 31, v{vL}\nv_lshrrev_b32 v{vHH}, 5, v{vL}')
    a(f'v_bfe_u32 v{t}, v{vU}, 1, 3\nv_xor_b32 v{t}, v{t}, v{vHH}')
    a(f'v_lshlrev_b32 v{t+1}, 7, v{vU}')
    a(f's_xor_b32 s{sT}, s{sW}, 1\ns_lshl_b32 s{sT}, s{sT}, 12')
    for jj in range(4):
        a(f'v_xor_b32 v{t+2}, {2*jj}, v{t}\nv_lshl_add_u32 v{t+2}, v{t+2}, 4, v{t+1}')
        a(f'v_add_u32 v{vRb+jj}, s{sLx}, v{t+2}\nv_add_u32 v{vRp+jj}, s{sT}, v{t+2}\nv_add_u32 v{vRd+jj}, 0x8000, v{t+2}')
        for r in (vRb, vRp, vRd): a(f'v_add_u32 v{r+4+jj}, {2*SLOT}, v{r+jj}')
    a(f'v_bfe_u32 v{t}, v{vL}, 2, 2')
    a(f'v_lshl_add_u32 v{t+1}, v{vHH}, 3, v{t}\nv_lshlrev_b32 v{t+1}, 7, v{t+1}')
    a(f'v_lshrrev_b32 v{t}, 1, v{t}\nv_xor_b32 v{t}, s{sI}, v{t}\nv_lshl_add_u32 v{t+1}, v{t}, 6, v{t+1}')
    a(f'v_bfe_u32 v{t}, v{vL}, 4, 1\nv_lshl_add_u32 v{t+1}, v{t}, 5, v{t+1}')
    a(f'v_and_b32 v{t}, 3, v{vL}\nv_lshl_add_u32 v{t+1}, v{t}, 3, v{t+1}')
    a(f's_lshl_b32 s{sT}, s{sJ}, 13\ns_add_u32 s{sT}, s{sT}, 16384')
    a(f'v_add_u32 v{vTa}, s{sT}, v{t+1}\nv_xor_b32 v{vTb}, 64, v{vTa}')
    a(f'v_add_u32 v{vTa+1}, {2*SLOT}, v{vTa}\nv_add_u32 v{vTb+1}, {2*SLOT}, v{vTb}')
def stat_addr():
    return lines(f'v_lshlrev_b32 v{vU8}, 4, v{vU}\nv_add_u32 v{vM8}, -1, v{vHH}') + \
           [f's_lshl_b32 s{sB0}, s{sW}, 7\ns_add_u32 s{sB0}, s{sB0}, {VX+8192}', f'v_lshl_add_u32 v{vZs}, v{vU}, 2, s{sB0}', f'v_lshl_add_u32 v{vH16}, v{vHH}, 4, s{sB0}']

def twiddle_wc(t):
    L = [f'v_cvt_f32_u32 v{t}, v{vU}', f'v_cvt_f32_u32 v{t+1}, v{vHH}', f'v_mul_f32 v{t}, {f2h(1/32)}, v{t}',
         f'v_mul_f32 v{t+1}, 4.0, v{t+1}', f'v_mul_f32 v{t+1}, v{t+1}, v{t}']
    for p in range(8):
        u0 = 16*(p >> 2) + 8*((p & 3) >> 1) + 2*(p & 1)
        L += [f'v_fmamk_f32 v{t+2}, v{t}, {f2h(u0)}, v{t+1}', f'v_fmamk_f32 v{t+3}, v{t}, {f2h(u0+1)}, v{t+1}',
              f'v_cos_f32 v{t+4}, v{t+2}', f'v_cos_f32 v{t+5}, v{t+3}', f'v_sin_f32 v{t+6}, v{t+2}', f'v_sin_f32 v{t+7}, v{t+3}',
              f'v_cvt_pk_bf16_f32 v{WC+p}, v{t+4}, v{t+5}', f'v_cvt_pk_bf16_f32 v{WC+8+p}, -v{t+6}, -v{t+7}']
    return L
def twiddle_tf(t, dst):
    L = []
    for rb in range(2):
        L += [f's_add_u32 s{sT}, s{sT1}, {32*rb}\nv_lshl_add_u32 v{t}, v{vU}, 6, s{sT}', f'v_lshl_add_u32 v{t+1}, v{vHH}, 1, s{sI}',
              f'v_cvt_f32_u32 v{t}, v{t}', f'v_cvt_f32_u32 v{t+1}, v{t+1}', f'v_mul_f32 v{t}, {f2h(1/2048)}, v{t}',
              f'v_mul_f32 v{t+1}, {f2h(8.0)}, v{t+1}', f'v_mul_f32 v{t+1}, v{t+1}, v{t}']
        for jj in range(4):
            for h in range(2):
                k0 = 2*jj + 32*h
                d = dst + 16*rb + 4*jj + 2*h
                L += [f'v_fmamk_f32 v{t+2}, v{t}, {f2h(k0)}, v{t+1}', f'v_fmamk_f32 v{t+3}, v{t}, {f2h(k0+1)}, v{t+1}',
                      f'v_cos_f32 v{t+4}, v{t+2}', f'v_sin_f32 v{t+5}, v{t+2}', f'v_cos_f32 v{t+6}, v{t+3}', f'v_sin_f32 v{t+7}, v{t+3}',
                      f'v_cvt_pk_bf16_f32 v{d}, v{t+4}, v{t+5}', f'v_cvt_pk_bf16_f32 v{d+1}, v{t+6}, v{t+7}']
    return L

def p2_addr_early():
    t = vWt; u, w = sB0, sB1
    L = lines(f'v_lshrrev_b32 v{t+1}, 3, v{vL}\nv_and_b32 v{t+2}, 7, v{vL}\nv_bfe_u32 v{t+3}, v{vL}, 4, 1\nv_lshlrev_b32 v{t+3}, 2, v{t+3}\n'
              f'v_xor_b32 v{t+3}, v{t+3}, v{t+2}\nv_lshlrev_b32 v{t+3}, 4, v{t+3}\nv_mul_u32_u24 v{t+4}, 896, v{t+1}')
    L += [f's_mul_i32 s{u}, s{sW}, {448*896}\ns_lshl_b32 s{w}, s{sCT}, 7\ns_add_u32 s{u}, s{u}, s{w}', f'v_add3_u32 v{vW2}, v{t+4}, v{t+3}, s{u}']
    L += [f'v_add_u32 v{vW2+i}, {i*(7168-1024)}, v{vW2}' for i in range(1, 4)]
    L += lines(f'v_bfe_u32 v{t}, v{vL}, 2, 2\nv_lshl_add_u32 v{t+1}, v{vHH}, 2, v{t}\nv_lshlrev_b32 v{t+1}, 7, v{t+1}\nv_lshrrev_b32 v{t}, 1, v{t}\n'
               f'v_xor_b32 v{t}, s{sJ}, v{t}\nv_lshl_add_u32 v{t+1}, v{t}, 6, v{t+1}\nv_bfe_u32 v{t}, v{vL}, 4, 1\nv_lshl_add_u32 v{t+1}, v{t}, 5, v{t+1}\n'
               f'v_and_b32 v{t}, 3, v{vL}\nv_lshl_add_u32 v{t+1}, v{t}, 3, v{t+1}\ns_mul_i32 s{sArea}, s{sW}, {AREA}\n'
               f'v_add_u32 v{vTra}, s{sArea}, v{t+1}\nv_xor_b32 v{vTrb}, 64, v{vTra}\ns_lshl_b32 s{sStg}, s{sW}, 13\nv_add_u32 v{vSt[1][0]}, s{sStg}, v{t+1}\n'
               f'v_xor_b32 v{vSt[1][1]}, 64, v{vSt[1][0]}\nv_add_u32 v{vSt[0][0]}, {STG[0]}, v{vSt[1][0]}\nv_add_u32 v{vSt[0][1]}, {STG[0]}, v{vSt[1][1]}')
    def vmap(el, e_out, tt_out, sg_out):
        M = [f's_lshl_b32 s{u}, s{sCT}, 6\ns_lshl_b32 s{w}, s{sJ}, 5\ns_add_u32 s{u}, s{u}, s{w}', f'v_add_u32 v{e_out}, s{u}, v{el}', f'v_sub_u32 v{t+6}, 448, v{e_out}',
             f's_sub_u32 s{u}, 32, s{sT1}\ns_and_b32 s{u}, s{u}, 31', f'v_mov_b32 v{tt_out}, s{sT1}', f'v_mov_b32 v{t+7}, s{u}',
             f'v_cmp_lt_u32 vcc, 239, v{e_out}\ns_nop 1\nv_cndmask_b32 v{e_out}, v{e_out}, v{t+6}, vcc\nv_cndmask_b32 v{tt_out}, v{tt_out}, v{t+7}, vcc' +
             (f'\nv_mov_b32 v{t+6}, 0\nv_bfrev_b32 v{t+7}, 1\nv_cndmask_b32 v{sg_out}, v{t+6}, v{t+7}, vcc' if sg_out else '')]
        return M
    L += vmap(vU, t, t+1, vSg)
    L += lines(f'v_lshlrev_b32 v{vVo}, 16, v{t+1}\nv_lshl_add_u32 v{vVo}, v{t}, 4, v{vVo}\nv_lshl_add_u32 v{vVo}, v{vHH}, 15, v{vVo}')
    L += [f's_lshl_b32 s{u}, s{sI}, 14', f'v_add_u32 v{vVo}, s{u}, v{vVo}']
    L += lines(f'v_and_b32 v{t+2}, 48, v{vL}\nv_subrev_u32 v{t+2}, 16, v{t+2}\nv_min_u32 v{t+2}, 31, v{t+2}')
    L += vmap(t+2, t, t+1, None)
    L += lines(f'v_and_b32 v{t}, 0x1f0, v{t}\nv_and_b32 v{t+2}, 15, v{vL}\nv_add_u32 v{t}, v{t}, v{t+2}\nv_lshlrev_b32 v{t}, 3, v{t}\nv_add_u32 v{vPa}, {FLV}, v{t}')
    L += [f's_mul_i32 s{u}, s{sW}, 7\ns_lshr_b32 s{u}, s{u}, 1\ns_lshr_b32 s{w}, s{sT1}, 1\ns_lshl_b32 s{w}, s{w}, 4\ns_add_u32 s{u}, s{u}, s{w}',
          f's_lshl_b32 s{u}, s{u}, 3\ns_add_u32 s{u}, s{u}, {FLH}', f'v_and_b32 v{t}, 3, v{vL}', f'v_lshl_add_u32 v{t}, v{t}, 3, s{u}',
          f'v_cmp_gt_u32 vcc, 16, v{vL}\ns_nop 1\nv_cndmask_b32 v{vPa}, v{vPa}, v{t}, vcc']
    L += [f'v_lshrrev_b32 v{t}, 2, v{vL}', f's_lshl_b32 s{u}, s{sI}, 4', f'v_add_u32 v{t}, s{u}, v{t}']
    L += lines(f'v_and_b32 v{t+1}, 3, v{vL}\nv_mul_u32_u24 v{t+2}, {64*896}, v{t}\nv_lshl_add_u32 v{t+2}, v{t+1}, 4, v{t+2}')
    L += [f's_lshl_b32 s{sRi}, s{sI}, 5\ns_add_u32 s{sRi}, s{sRi}, s{sT1}\ns_mul_i32 s{u}, s{sT1}, 896\ns_lshl_b32 s{w}, s{sCT}, 7',
          f's_add_u32 s{u}, s{u}, s{w}\ns_lshl_b32 s{w}, s{sJ}, 6\ns_add_u32 s{u}, s{u}, s{w}\ns_lshl_b32 s{sRi}, s{sRi}, 9',
          f'v_add_u32 v{vOo}, s{u}, v{t+2}', f'v_add_u32 v{vOo+1}, {32*896}, v{vOo}', f'v_lshlrev_b32 v{vRo}, 4, v{t}',
          f's_mul_i32 s{sHb}, s{sT1}, {HB_SIG}\ns_mul_i32 s{u}, s{sW}, {28*1024}\ns_add_u32 s{sHb}, s{sHb}, s{u}']
    return L

def p1_reads(n):
    g, jj = divmod(n, 4)
    half, so = (g % 4) // 2, (g % 2) * SLOT
    f = FR + 20 * (n & 1)
    return [f'ds_read_b64_tr_b16 {vr(f+8,2)}, v{vTa+half} offset:{so + jj*2048}',
            f'ds_read_b64_tr_b16 {vr(f+10,2)}, v{vTa+half} offset:{so + jj*2048 + 512}',
            f'ds_read_b128 {vr(f)}, v{vRb+4*half+jj} offset:{so}',
            f'ds_read_b128 {vr(f+4)}, v{vRp+4*half+jj} offset:{so}',
            f'ds_read_b64_tr_b16 {vr(f+12,2)}, v{vTb+half} offset:{so + jj*2048}',
            f'ds_read_b64_tr_b16 {vr(f+14,2)}, v{vTb+half} offset:{so + jj*2048 + 512}',
            f'ds_read_b128 {vr(f+16)}, v{vRd+4*half+jj} offset:{so}']
def p1_mfmas(n):
    f = FR + 20 * (n & 1)
    def m(acc, A, B): return mfma(vr(acc, 16), vr(A), vr(B), vr(acc, 16) if n else '0')
    return [m(ACC, f+8, f), m(ACC+16, f+8, f+4), m(ACC+32, f+12, f), m(ACC+48, f+12, f+4), m(ACC+64, f, f+16)]

vZsg, vXw, vXr, vVs, vHo = 78, 79, 80, 81, 82
sHA0, sHA1, sHB0, sHB1 = 4, 5, 8, 9
def z_addr(t, u, w):
    L = lines(f'v_bfe_u32 v{t}, v{vL}, 4, 1\nv_xor_b32 v{vZsg}, 1, v{t}\nv_mul_u32_u24 v{vZsg}, 0x8000, v{vZsg}\nv_lshl_or_b32 v{vZsg}, v{vZsg}, 16, v{vZsg}\n'
              f'v_lshl_add_u32 v{t}, v{vHH}, 2, v{t}\nv_lshlrev_b32 v{t}, 8, v{t}\nv_and_b32 v{t+1}, 15, v{vL}\nv_lshl_add_u32 v{t}, v{t+1}, 4, v{t}')
    L += [f's_lshl_b32 s{u}, s{sW}, 2\ns_add_u32 s{u}, s{u}, {VX}', f'v_add_u32 v{vXw}, s{u}, v{t}',
          f's_lshl_b32 s{u}, s{sW}, 11\ns_add_u32 s{u}, s{u}, {VX}', f'v_lshlrev_b32 v{vHo}, 4, v{vL}', f'v_add_u32 v{vXr}, s{u}, v{vHo}']
    L += lines(f'v_lshrrev_b32 v{t}, 4, v{vL}\nv_lshlrev_b32 v{t}, 16, v{t}\nv_lshl_add_u32 v{t}, v{t+1}, 4, v{t}')
    L += [f's_lshl_b32 s{u}, s{sW}, 19\ns_lshl_b32 s{w}, s{sRT}, 12\ns_add_u32 s{u}, s{u}, s{w}\ns_lshl_b32 s{w}, s{sCG}, 8\ns_add_u32 s{u}, s{u}, s{w}',
          f'v_add_u32 v{vVs}, s{u}, v{t}']
    return L
def h_addr(u, w):
    return [f's_lshl_b32 s{u}, s{sCG}, 3\ns_lshl_b32 s{w}, s{sJ}, 2\ns_add_u32 s{u}, s{u}, s{w}\ns_lshl_b32 s{w}, s{sI}, 1\ns_add_u32 s{u}, s{u}, s{w}',
            f's_lshl_b32 s{u}, s{u}, 10\ns_mul_i32 s{w}, s{sSig}, {HB_SIG}\ns_add_u32 s{sHA0}, s{u}, s{w}',
            f's_xor_b32 s{w}, s{sSig}, 1\ns_mul_i32 s{w}, s{w}, {HB_SIG}\ns_add_u32 s{sHA1}, s{u}, s{w}',
            f's_xor_b32 s{sHB0}, s{sHA0}, 2048\ns_xor_b32 s{sHB1}, s{sHA1}, 2048']

def hblock_list(a, acc, so):
    L = [f'v_cvt_pk_bf16_f32 v{acc+p}, v{acc+2*p}, v{acc+2*p+1}' for p in range(8)]
    L += [f'v_pk_max_i16 v{acc+p}, v{acc+p}, 0' for p in range(8)] if not opt('maxf', 0) else []
    L.append(lambda: a.vmem(f'buffer_store_dwordx4 {vr(acc)}, v{vHo}, {sr(SH)}, s{so} offen {STF}', 'ST'))
    L.append(lambda: a.vmem(f'buffer_store_dwordx4 {vr(acc+4)}, v{vHo}, {sr(SH)}, s{so} offen offset:1024 {STF}', 'ST'))
    if opt('maxf', 0): L = [f'v_max_f32 v{acc+r}, 0, v{acc+r}' for r in range(16)] + L
    return L
def early_epilogue(a, lds, wait_lg):
    ZA = ACC + 64
    T1 = [FR+8, FR+16]; T2 = [FR+28, FR+36]
    b1 = lambda p: T1[p >> 2] + (p & 3)
    b2 = lambda p: T2[p >> 2] + (p & 3)
    L = ['s_nop 3'] + hblock_list(a, ACC, sHA0)
    L += [f'v_mul_f32 v{ZA+r}, v{ZA+r}, v{ZR+r}' for r in range(16)]
    L += [f'v_cvt_pk_bf16_f32 v{b1(p)}, v{ZA+2*p}, v{ZA+2*p+1}' for p in range(8)]
    L += [(lambda p=p: lds(f'ds_swizzle_b32 v{b2(p)}, v{b1(p)} offset:0x401f', 'sw')) for p in range(8)]
    L += [mfma(vr(ZA,16), vr(WC), vr(T1[0]), '0'), mfma(vr(ZA,16), vr(WC+4), vr(T1[1]), vr(ZA,16))]
    L += [lambda: wait_lg('sw')] + [f'v_xor_b32 v{b2(p)}, v{b2(p)}, v{vZsg}' for p in range(8)] + ['s_nop 1']
    L += [mfma(vr(ZA,16), vr(WC+8), vr(T2[0]), vr(ZA,16)), mfma(vr(ZA,16), vr(WC+12), vr(T2[1]), vr(ZA,16))]
    L += hblock_list(a, ACC+16, sHA1)
    L += [f'v_permlane16_swap_b32 v{ZA+2*p}, v{ZA+2*p+1}' for p in range(8)] + ['s_nop 1']
    L += [f'v_cvt_pk_bf16_f32 v{b1(p)}, v{ZA+2*p}, v{ZA+2*p+1}' for p in range(8)]
    L += [(lambda p=p: lds(f'ds_write_b32 v{vXw}, v{b1(p)} offset:{((2*p & 3) + 8*(p >> 1))*256}', 'xw')) for p in range(8)]
    L += [lambda: (wait_lg('xw'), a('s_barrier'))]
    L += [lambda: lds(f'ds_read_b128 {vr(T2[0])}, v{vXr}', 'xr'), lambda: lds(f'ds_read_b128 {vr(T2[1])}, v{vXr} offset:1024', 'xr')]
    L += [f's_mov_b32 s{sT}, {4*65536}', 'MARK']
    L += [lambda: wait_lg('xr'),
          lambda: a.vmem(f'buffer_store_dwordx4 {vr(T2[0])}, v{vVs}, {sr(SV)}, 0 offen {STF}', 'ST'),
          lambda: a.vmem(f'buffer_store_dwordx4 {vr(T2[1])}, v{vVs}, {sr(SV)}, s{sT} offen {STF}', 'ST')]
    L.remove('MARK')
    return L
def own_touch():
    if opt('tfull', 0):
        return (f's_and_b32 s{sT}, s{sHA0}, 0xfffff000\nv_and_b32 v{vP+1}, 31, v{vL}\nv_lshlrev_b32 v{vP+1}, 7, v{vP+1}\ns_mov_b64 exec, 0xffffffff\nbuffer_load_dword v{vP}, v{vP+1}, {sr(SH)}, s{sT} offen\n'
                f's_and_b32 s{sT}, s{sHA1}, 0xfffff000\nbuffer_load_dword v{vP}, v{vP+1}, {sr(SH)}, s{sT} offen\n'
                f's_mov_b32 exec_lo, 0x01010101\ns_mov_b32 exec_hi, 0x01010101\nbuffer_load_dword v{vP}, v{vVs}, {sr(SV)}, 0 offen\n'
                f's_mov_b32 s{sT}, {4*65536}\nbuffer_load_dword v{vP}, v{vVs}, {sr(SV)}, s{sT} offen\ns_mov_b64 exec, -1', 'TL')
    return (f's_mov_b64 exec, 1\nbuffer_load_dword v{vP}, v{vHo}, {sr(SH)}, s{sHA0} offen\nbuffer_load_dword v{vP}, v{vHo}, {sr(SH)}, s{sHA1} offen\n'
            f's_mov_b32 exec_lo, 0x00010001\ns_mov_b32 exec_hi, 0x00010001\nbuffer_load_dword v{vP}, v{vVs}, {sr(SV)}, 0 offen\n'
            f's_mov_b32 s{sT}, {4*65536}\nbuffer_load_dword v{vP}, v{vVs}, {sr(SV)}, s{sT} offen\ns_mov_b64 exec, -1', 'TL')
SPF = 20
vPf = 96
def pf_addr(a):
    M1 = opt('pm1', 2)
    assert M1 == 2
    t = vWt
    l1, l2, l3, dn = a.label('pf'), a.label('pf'), a.label('pf'), a.label('pf')
    a(f's_cmp_lg_u32 s{sW}, 0\ns_cbranch_scc1 {l1}')
    a(f'v_mul_u32_u24 v{t}, 7, v{vL}\nv_add_u32 v{t}, s{sCT}, v{t}\ns_mul_i32 s{sT}, s{sRT}, {2*896}')
    def xoff(dst, src, lg, gbase):
        a(f'v_lshrrev_b32 v{t+2}, {lg+1}, v{src}\nv_mul_u32_u24 v{t+2}, {32*896}, v{t+2}\nv_bfe_u32 v{t+3}, v{src}, {lg}, 1\nv_mul_u32_u24 v{t+3}, 7, v{t+3}')
        a(f'v_and_b32 v{t+4}, {(1 << lg) - 1}, v{src}\nv_add3_u32 v{t+3}, v{t+3}, v{t+4}, {gbase}\nv_lshl_add_u32 v{t+2}, v{t+3}, 7, v{t+2}\nv_add_u32 v{dst}, s{sT}, v{t+2}')
    xoff(vPf, t, 1, 1); xoff(vPf+1, t, 2, 3)
    a(f'v_add_u32 v{t}, 448, v{t}')
    xoff(vPf+2, t, 2, 3)
    a(f's_branch {dn}')
    a(f'{l1}:')
    a(f's_cmp_eq_u32 s{sW}, 3\ns_cbranch_scc1 {l3}')
    a(f'v_lshrrev_b32 v{t}, 1, v{vL}\nv_mul_u32_u24 v{t}, {4*3584}, v{t}\nv_and_b32 v{t+1}, 1, v{vL}\nv_lshl_add_u32 v{t}, v{t+1}, 7, v{t}')
    a(f's_mul_i32 s{sT}, s{sT3}, 3584\ns_lshl_b32 s{sT2}, s{sCG}, 8\ns_add_u32 s{sT}, s{sT}, s{sT2}\nv_add_u32 v{t}, s{sT}, v{t}')
    a(f's_mul_i32 s{sT}, s{sI}, {128*3584}\ns_add_u32 s{sT}, s{sT}, {192*3584}\ns_lshl_b32 s{sT2}, s{sI}, 31\ns_add_u32 s{sT2}, s{sT2}, {64*3584}')
    a(f'v_add_u32 v{vPf}, s{sT2}, v{t}\nv_add_u32 v{vPf+1}, s{sT}, v{t}\nv_bfrev_b32 v{vPf+2}, 1')
    a(f's_branch {dn}')
    a(f'{l3}:')
    a(f's_lshl_b32 s{sT}, s{sCG}, 1\ns_and_b32 s{sT2}, s{sT3}, 1\ns_add_u32 s{sT}, s{sT}, s{sT2}\ns_mul_i32 s{sT}, s{sT}, {8*896}')
    a(f'v_and_b32 v{t}, 7, v{vL}\nv_mul_u32_u24 v{t}, 896, v{t}\nv_add_u32 v{t}, s{sT}, v{t}')
    a(f'v_bfe_u32 v{t+1}, v{vL}, 3, 1\nv_lshl_add_u32 v{vPf}, v{t+1}, 7, v{t}\nv_add_u32 v{vPf}, 128, v{vPf}')
    a(f'v_bfe_u32 v{t+1}, v{vL}, 3, 2\nv_lshl_add_u32 v{vPf+1}, v{t+1}, 7, v{t}\nv_add_u32 v{vPf+1}, 384, v{vPf+1}\nv_bfrev_b32 v{vPf+2}, 1')
    a(f'{dn}:')
def pf_srd(a):
    a(f's_cmp_ge_u32 s{sT3}, 2\ns_cselect_b32 s{SPF}, s10, s8\ns_cselect_b32 s{SPF+1}, s11, s9\ns_mov_b32 s{SPF+2}, {448*896}\ns_mov_b32 s{SPF+3}, 0x20000')
    a(f's_cmp_eq_u32 s{sW}, 3\ns_cselect_b32 s{SPF}, s{SPF}, s12\ns_cselect_b32 s{SPF+1}, s{SPF+1}, s13\ns_cselect_b32 s{SPF+2}, s{SPF+2}, {448*3584}')
    a(f's_cmp_eq_u32 s{sW}, 0\ns_cselect_b32 s{SPF}, s4, s{SPF}\ns_cselect_b32 s{SPF+1}, s5, s{SPF+1}\ns_cselect_b32 s{SPF+2}, {2048*896}, s{SPF+2}')
def pf_load(i): return (f'buffer_load_dword v{vPf+3}, v{vPf+i}, {sr(SPF)}, 0 offen', 'PF')
def rank1():
    return [mfma(vr(ACC,16), vr(CA), vr(MO), vr(ACC,16)), mfma(vr(ACC+16,16), vr(CA), vr(MP), vr(ACC+16,16)),
            mfma(vr(ACC+32,16), vr(CB), vr(MO), vr(ACC+32,16)), mfma(vr(ACC+48,16), vr(CB), vr(MP), vr(ACC+48,16)),
            mfma(vr(ACC+64,16), vr(MO), vr(CZ), vr(ACC+64,16))]
TWI = (f'v_and_b32 v{vP}, 15, v{vL}\nv_lshlrev_b32 v{vP}, 7, v{vP}\nbuffer_load_dword v{vP+1}, v{vP}, {sr(SW2)}, s{sA2} offen', 'TW')
def p1_loop(a):
    lg = []
    def lds(x, tag):
        a(x); lg.append(tag)
    def wait_lg(tag=None):
        if tag is None:
            if lg: a('s_waitcnt lgkmcnt(0)'); lg.clear()
            return
        if tag not in lg: return
        idx = max(i for i, x in enumerate(lg) if x == tag)
        a(f's_waitcnt lgkmcnt({min(len(lg)-1-idx, 15)})')
        del lg[:idx+1]
    RT = ['m0', 'm0', 'm0', 'm1', 'm2', 'm2', 'm4']
    FG = opt('fg', 5); FINE = opt('fine', 1)
    a.wait_vm('G0')
    a('s_barrier')
    stamp(a, 1); stamp(a, 1, '1'); cstamp(a, 1, '8')
    for r, t_ in zip(p1_reads(0), RT): lds(r, f'0{t_}')
    a.lgw = wait_lg
    q = [x for g_ in range(2 + opt('gpre', 0), 4) for x in dma_group('A', g_)]
    if opt('pf', 0):
        i2 = max(i for i, x in enumerate(q) if x[1] == 'G2') + 1 if not opt('gpre', 0) else 0
        i2 = 0 if opt('pf', 0) == 2 else i2
        q[i2:i2] = [pf_load(1), pf_load(2)] + ([TWI] if TW == 1 else [])
    vq = stat_addr() + (z_addr(vWt, sB0, sB1) + h_addr(sB0, sB1) if opt('tln', 4) >= 0 else []) + p2_addr_early() + twiddle_wc(vWt) + wg_flag_prep(vFl, sB0, sB1)
    wq = [x for q_ in range(NSTG) for x in w2_group(q_)]
    midgroup = [False]
    SK = opt('sk', 28)
    seq = [(n, 'AZB') for n in range(SK)] + [(n, 'AZ') for n in range(SK, 28)] + [(n, 'B') for n in range(SK, 28)]
    def reads(pos):
        n, kind = seq[pos]
        g, jj = divmod(n, 4)
        half, so = (g % 4) // 2, (g % 2) * SLOT
        f = FR + 20 * (pos & 1)
        wa = [f'ds_read_b64_tr_b16 {vr(f+8+2*p,2)}, v{vTa+half} offset:{so + jj*2048 + 512*p}' for p in range(2)]
        wb = [f'ds_read_b64_tr_b16 {vr(f+12+2*p,2)}, v{vTb+half} offset:{so + jj*2048 + 512*p}' for p in range(2)]
        x0 = f'ds_read_b128 {vr(f)}, v{vRb+4*half+jj} offset:{so}'
        x1 = f'ds_read_b128 {vr(f+4)}, v{vRp+4*half+jj} offset:{so}'
        d = f'ds_read_b128 {vr(f+16)}, v{vRd+4*half+jj} offset:{so}'
        if kind == 'AZB': L = [(wa[0], 0), (wa[1], 0), (x0, 0), (x1, 1), (wb[0], 2), (wb[1], 2), (d, 4)]
        elif kind == 'AZ': L = [(wa[0], 0), (wa[1], 0), (x0, 0), (x1, 1), (d, 2)]
        else: L = [(wb[0], 0), (wb[1], 0), (x0, 0), (x1, 1)]
        return [(x, f'{pos}m{m_}') for x, m_ in L]
    def mfmas(pos):
        n, kind = seq[pos]
        f = FR + 20 * (pos & 1)
        def m(acc, A, B): return mfma(vr(acc, 16), vr(A), vr(B), vr(acc, 16) if n else '0')
        A_ = [m(ACC, f+8, f), m(ACC+16, f+8, f+4)]; B_ = [m(ACC+32, f+12, f), m(ACC+48, f+12, f+4)]; Z_ = [m(ACC+64, f, f+16)]
        return {'AZB': A_ + B_ + Z_, 'AZ': A_ + Z_, 'B': B_}[kind]
    yq = []
    for pos, (n, kind) in enumerate(seq):
        g, jj = divmod(n, 4)
        first = kind != 'B'
        if STAMP and LST == '7' and 0 <= pos - opt('s0', 8) <= 8: a(f's_memtime s[{STB+2*(1+pos-opt("s0", 8))}:{STB+2*(1+pos-opt("s0", 8))+1}]')
        BG = opt('bg', 2)
        def group_barrier():
            assert not any(t == f'G{g+1}' for _, t in q), (n, q)
            wait_lg()
            a.wait_vm(f'G{g+1}')
            a('s_barrier')
            stamp(a, 2 + g, '1')
            if g == 1: cstamp(a, 1)
            if g == 5: cstamp(a, 3)
            if g + 4 < 7: q.extend(dma_group('A', g + 4))
        bar = first and jj == 3 and g < 6
        if bar and BG == 0: group_barrier()
        if first and TW > 1 and n == TW:
            q[:0] = [(f'v_and_b32 v{vP}, 15, v{vL}\nv_lshlrev_b32 v{vP}, 7, v{vP}\nbuffer_load_dword v{vP+1}, v{vP}, {sr(SW2)}, s{sA2} offen', 'TW')]
        if first and n == opt('tln', 4):
            assert not any(x.startswith(f'v_add_u32 v{vVs},') or f's{sHA1}, s' in x for x in vq), 'addresses not ready'
            q[:0] = [own_touch()]
        if first and n == opt('tlo', 99):
            assert not any(x.startswith(f'v_add_u32 v{vOo+1},') for x in vq), 'addresses not ready'
            q[:0] = [(f'buffer_load_dword v{vP}, v{vOo}, {sr(SO)}, 0 offen\nbuffer_load_dword v{vP}, v{vOo+1}, {sr(SO)}, 0 offen', 'TL')]
        if first and n == POLL0: q[:0] = stat_loads('A')
        chk = first and n == POLL0 + PCHK
        if chk: assert not any(t == 'SL' for _, t in q)
        R1 = rank1()
        if first and n == 27:
            assert not any(x in vq for x in stat_fix('A'))
            for m in (R1 if SK == 28 else R1[:2] + R1[4:]): a(m)
        if kind == 'B' and n == SK:
            for x in vq: a(x)
            vq.clear()
            assert SK >= 20
            stamp(a, 7, '1')
            for m in R1[2:4]: a(m)
            yq = early_epilogue(a, lds, wait_lg)
        rd = reads(pos + 1) if pos + 1 < len(seq) else []
        nld = 0; wn = 0
        rate = RATE[pos % len(RATE)]
        ms = mfmas(pos)
        for mi, m in enumerate(ms):
            last = mi == len(ms) - 1
            wait_lg(f'{pos}m{mi}')
            a(m)
            used = 0
            if bar and mi + 1 == BG: group_barrier(); used += 2
            if chk and mi == 0: stat_check(a, 'A'); vq[:0] = stat_fix('A'); used += 9
            for _ in range(7 if last else (opt('rpg', 3) if not (bar and BG) else 4)):
                if rd and not (bar and mi + 1 < BG): r, t_ = rd.pop(0); lds(r, t_); used += 1
            if mi >= len(ms) - 3:
                cnt = 0
                while nld < rate and (cnt < 1 or last):
                    wok = pos >= W0 and wq and not (bar and mi + 1 < BG) and wn < WPS[pos % len(WPS)] and pos >= 16 + 4 * int(wq[0][1][1])
                    if q: ins = q.pop(0)
                    elif wok: ins = wq.pop(0); wn += 1
                    else: break
                    a.emit(ins); used += cost(ins[0])
                    if ins[1]: nld += 0.5 if ins[1] == 'SL' else 1; cnt += 1
            while vq and used + min(cost(vq[0]), 3) <= FG and not (f's{sArea}, s' in vq[0] and any(t_ == 'PF' for _, t_ in q)):
                x = vq.pop(0); used += cost(x)
                if x.startswith('ds_'): lds(x, 'x')
                else: a(x)
            while yq and used < opt('yg', 7):
                x = yq.pop(0); used += 1
                if callable(x): x()
                else: a(x)
        assert not rd
    a.yq = yq
    assert not vq and not q, vq
    stamp(a, 2); stamp(a, 8, '1'); stamp(a, 1, '3'); stamp(a, 1, '5'); cstamp(a, 3, '8')
    return wq

def p1_loop_bc(a, role):
    def regs(g): return FR if g % 2 == 0 else ACC + 16
    def reads(g):
        half, so = (g % 4) // 2, (g % 2) * SLOT
        f = regs(g); L = []
        for jj in range(4):
            if role == 'B':
                L.append(f'ds_read_b128 {vr(f+8*jj)}, v{vRb+4*half+jj} offset:{so}')
                L.append(f'ds_read_b128 {vr(f+8*jj+4)}, v{vRd+4*half+jj} offset:{so}')
            else:
                L.append(f'ds_read_b64_tr_b16 {vr(f+8*jj,2)}, v{vTa+half} offset:{so + jj*2048}')
                L.append(f'ds_read_b64_tr_b16 {vr(f+8*jj+2,2)}, v{vTa+half} offset:{so + jj*2048 + 512}')
        return L
    a.wait_vm('G0'); a('s_barrier')
    if role == 'C': stamp(a, 1)
    for r in reads(0): a(r)
    if role == 'C':
        for ins in dma_group(role, 3): a.emit(ins)
    for g in range(7):
        a('s_waitcnt lgkmcnt(0)')
        if g < 6:
            a.wait_vm(f'G{g+1}'); a('s_barrier')
            for r in reads(g + 1): a(r)
            if g + 4 < 7:
                for ins in dma_group(role, g + 4): a.emit(ins)
            if role == 'B' and g == 4:
                for ins in stat_loads('B'): a.emit(ins)
        f = regs(g)
        for jj in range(4):
            n = 4*g + jj
            if role == 'B': a(mfma(vr(ACC+64,16), vr(f+8*jj), vr(f+8*jj+4), vr(ACC+64,16) if n else '0'))
            else: a(mfma(vr(ACC,16), vr(TF), vr(f+8*jj), vr(ACC,16) if n else '0'))
    if role == 'C': stamp(a, 2)

ZA, B1, B2 = ACC + 64, FR, FR + 8
def z1(a):
    for r in range(16): a(f'v_mul_f32 v{ZA+r}, v{ZA+r}, v{ZR+r}')
    for p in range(8): a(f'v_cvt_pk_bf16_f32 v{B1+p}, v{ZA+2*p}, v{ZA+2*p+1}')
    for p in range(8): a(f'ds_swizzle_b32 v{B2+p}, v{B1+p} offset:0x401f')
    a(mfma(vr(ZA,16), vr(WC), vr(B1), '0'))
    a(mfma(vr(ZA,16), vr(WC+4), vr(B1+4), vr(ZA,16)))
def z2(a):
    a('s_waitcnt lgkmcnt(0)')
    for p in range(8): a(f'v_xor_b32 v{B2+p}, v{B2+p}, v{vZsg}')
    a('s_nop 1')
    a(mfma(vr(ZA,16), vr(WC+8), vr(B2), vr(ZA,16)))
    a(mfma(vr(ZA,16), vr(WC+12), vr(B2+4), vr(ZA,16)))
def z3(a):
    for p in range(8): a(f'v_permlane16_swap_b32 v{ZA+2*p}, v{ZA+2*p+1}')
    a('s_nop 1')
    for p in range(8): a(f'v_cvt_pk_bf16_f32 v{B1+p}, v{ZA+2*p}, v{ZA+2*p+1}')
    for p in range(8):
        t1b = (2*p & 3) + 8 * (p >> 1)
        a(f'ds_write_b32 v{vXw}, v{B1+p} offset:{t1b*256}')
def z4a(a):
    a('s_waitcnt lgkmcnt(0)\ns_barrier')
    a(f'ds_read_b128 {vr(B2)}, v{vXr}\nds_read_b128 {vr(B2+4)}, v{vXr} offset:1024')
def z4b(a):
    a(f's_mov_b32 s{sT}, {4*65536}')
    a('s_waitcnt lgkmcnt(0)')
    a.vmem(f'buffer_store_dwordx4 {vr(B2)}, v{vVs}, {sr(SV)}, 0 offen {STF}', 'ST')
    a.vmem(f'buffer_store_dwordx4 {vr(B2+4)}, v{vVs}, {sr(SV)}, s{sT} offen {STF}', 'ST')

def gen():
    a = Asm()
    a('s_cmp_ge_u32 s2, 256\ns_cbranch_scc1 Lend')
    a('s_load_dwordx2 s[4:5], s[0:1], 0')
    a('s_load_dwordx4 s[8:11], s[0:1], 24')
    a('s_load_dwordx4 s[12:15], s[0:1], 48')
    a('s_load_dwordx2 s[16:17], s[0:1], 64')
    a('s_load_dwordx2 s[18:19], s[0:1], 80')
    stamp(a, 0)
    CPF = opt('cpf', 1)
    if CPF:
        a('s_getpc_b64 s[22:23]')
        a('Lpc:')
        a(f's_bfe_u32 s3, s2, 0x30003\ns_lshl_b32 s3, s3, 12')
        a(f'v_lshrrev_b32 v{vP}, 6, v0\nv_lshlrev_b32 v{vP}, 10, v{vP}\nv_and_b32 v{vP+1}, 7, v0\nv_lshl_add_u32 v{vP}, v{vP+1}, 7, v{vP}\nv_add_u32 v{vP}, s3, v{vP}')
        a(f'v_min_u32 v{vP}, Lend-Lpc, v{vP}')
        a.vmem(f'global_load_dword v{vP+1}, v{vP}, s[22:23]', 'CP')
    a(f'v_lshrrev_b32 v{FR}, 6, v0\nv_and_b32 v{vL}, 63, v0')
    a(f'v_readfirstlane_b32 s{sW}, v{FR}')
    sX8, sN = sA3, sA4
    a(f's_and_b32 s{sX8}, s2, 7\ns_lshr_b32 s{sN}, s2, 3')
    a(f's_and_b32 s{sT}, s{sX8}, 3\ns_lshr_b32 s{sT2}, s{sX8}, 2')
    a(f's_lshr_b32 s{sI}, s{sW}, 1\ns_and_b32 s{sJ}, s{sW}, 1')
    a(f's_cmp_ge_u32 s{sN}, 28\ns_cbranch_scc1 LroleBC')
    def sigma(): a(f's_lshl_b32 s{sSig}, s{sRT}, 1\ns_add_u32 s{sSig}, s{sSig}, s{sJ}\ns_lshl_b32 s{sT}, s{sI}, 5\ns_add_u32 s{sSig}, s{sSig}, s{sT}')
    def p1_srds():
        a('s_waitcnt lgkmcnt(0)')
        srd(a, SX, 4, 2048*896)
        a(f's_cmp_ge_u32 s{sW}, 2')
        a(f's_cselect_b32 s{SD}, s10, s8\ns_cselect_b32 s{SD+1}, s11, s9\ns_mov_b32 s{SD+2}, {448*896}\ns_mov_b32 s{SD+3}, 0x20000')
        srd(a, SW, 12, 448*3584)
    def other_srds():
        srd(a, SM, 18, SM_SIZE, SM_OFF)
        a(f's_load_dwordx2 s[{sTag}:{sTag+1}], s[{SM}:{SM+1}], {EPO}')
        srd(a, SH, 18, HB_SIZE, WS0)
        srd(a, SV, 18, VB_SIZE, VB_OFF)

    a(f's_lshl_b32 s{sRT}, s{sT}, 2\ns_and_b32 s{sT3}, s{sN}, 3\ns_add_u32 s{sRT}, s{sRT}, s{sT3}\ns_lshr_b32 s{sCT}, s{sN}, 2')
    a(f's_mul_i32 s{sCG}, s{sT2}, 7\ns_add_u32 s{sCG}, s{sCG}, s{sCT}')
    a(f's_lshl_b32 s{sG0}, s{sT3}, 1\ns_add_u32 s{sG0}, s{sG0}, s{sCT}\ns_sub_u32 s{sB0}, s{sG0}, 7\ns_cselect_b32 s{sG0}, s{sG0}, s{sB0}')
    if not ROT: a(f's_mov_b32 s{sG0}, 0')
    sCT1 = sCT
    if opt('map2', 0):
        a(f's_mov_b32 s{sB1}, s{sG0}')
        a(f's_and_b32 s{sA0}, s{sX8}, 1\ns_and_b32 s{sA1}, s{sN}, 7\ns_lshr_b32 s{sCT}, s{sN}, 3')
        a(f's_lshl_b32 s{sG0}, s{sCT}, 1\ns_add_u32 s{sG0}, s{sG0}, s{sA1}')
        a(f's_lshl_b32 s{sB0}, s{sA1}, 1\ns_lshl_b32 s{sA0}, s{sA0}, 2\ns_add_u32 s{sT1}, s{sA1}, s{sA0}\ns_add_u32 s{sA0}, s{sA0}, s{sCT}')
        a(f's_cmp_eq_u32 s{sCT}, 3\ns_cselect_b32 s{sCT}, 3, s{sA0}\ns_cselect_b32 s{sA1}, s{sT1}, s{sA1}\ns_cselect_b32 s{sG0}, s{sB0}, s{sG0}')
        a(f's_sub_u32 s{sB0}, s{sG0}, 7\ns_cselect_b32 s{sG0}, s{sG0}, s{sB0}')
        a(f's_lshr_b32 s{sT1}, s{sX8}, 1\ns_lshl_b32 s{sT1}, s{sT1}, 2\ns_lshr_b32 s{sB0}, s{sA1}, 1\ns_add_u32 s{sT1}, s{sT1}, s{sB0}')
        a(f's_sub_u32 s{sB0}, 32, s{sT1}\ns_cmp_eq_u32 s{sT1}, 0\ns_cselect_b32 s{sB0}, 16, s{sB0}')
        a(f's_bitcmp1_b32 s{sA1}, 0\ns_cselect_b32 s{sT1}, s{sB0}, s{sT1}')
        assert ROT1 in (7, 4) and not XOFF
        if ROT1 == 4: a(f's_lshr_b32 s{sB1}, s{sN}, 2\ns_add_u32 s{sB1}, s{sB1}, s{sT3}\ns_and_b32 s{sB1}, s{sB1}, 3\ns_lshl_b32 s{sB1}, s{sB1}, 1')
    else:
        a(f's_lshl_b32 s{sT1}, s{sX8}, 1\ns_lshr_b32 s{sB0}, s{sT3}, 1\ns_add_u32 s{sT1}, s{sT1}, s{sB0}\ns_sub_u32 s{sB0}, 32, s{sT1}\ns_cmp_eq_u32 s{sT1}, 0\ns_cselect_b32 s{sB0}, 16, s{sB0}')
        a(f's_bitcmp1_b32 s{sT3}, 0\ns_cselect_b32 s{sT1}, s{sB0}, s{sT1}')
    if XOFF: a(f's_add_u32 s{sG0}, s{sG0}, s{sX8}\ns_sub_u32 s{sB0}, s{sG0}, 7\ns_cselect_b32 s{sG0}, s{sG0}, s{sB0}\ns_sub_u32 s{sB0}, s{sG0}, 7\ns_cselect_b32 s{sG0}, s{sG0}, s{sB0}')
    if opt('map2', 0): pass
    elif ROT1 == 7: a(f's_mov_b32 s{sB1}, s{sG0}')
    elif ROT1 == 4: a(f's_add_u32 s{sB1}, s{sCT}, s{sT3}\ns_and_b32 s{sB1}, s{sB1}, 3\ns_lshl_b32 s{sB1}, s{sB1}, 1')
    elif ROT1 == 2: a(f's_add_u32 s{sB1}, s{sCT}, s{sT3}\ns_and_b32 s{sB1}, s{sB1}, 1\ns_mul_i32 s{sB1}, s{sB1}, 3')
    elif ROT1 == 3: a(f's_add_u32 s{sB1}, s{sCT}, s{sT3}\ns_mul_i32 s{sB0}, s{sB1}, 43\ns_lshr_b32 s{sB0}, s{sB0}, 7\ns_mul_i32 s{sB0}, s{sB0}, 3\ns_sub_u32 s{sB1}, s{sB1}, s{sB0}\ns_lshl_b32 s{sB1}, s{sB1}, 1')
    else: a(f's_mov_b32 s{sB1}, 0')
    a(f's_mul_i32 s{sOnes}, s{sX8}, 28\ns_add_u32 s{sOnes}, s{sOnes}, s{sN}\ns_lshl_b32 s{sOnes}, s{sOnes}, 2\ns_add_u32 s{sOnes}, s{sOnes}, s{sW}\ns_mul_i32 s{sA2}, s{sOnes}, {14*128}')
    PF = opt('pf', 0)
    sigma(); p1_addr_dma(a)
    if PF: pf_addr(a)
    p1_srds()
    if PF: pf_srd(a)
    a(f's_mov_b32 s{sG1}, s{sB1}')
    def tw():
        srd(a, SW2, 14, 1792*896)
        a.vmem(f'v_and_b32 v{vt}, 15, v{vL}\nv_lshlrev_b32 v{vt}, 7, v{vt}\nbuffer_load_dword v{vP+1}, v{vt}, {sr(SW2)}, s{sA2} offen', 'TW')
    if TW == -3: tw()
    for ins in dma_group('A', 0): a.emit(ins)
    if PF: a.emit(pf_load(0))
    if TW == -2: tw()
    TLN = opt('tln', 4)
    def early_touch():
        srd(a, SH, 18, HB_SIZE, WS0); srd(a, SV, 18, VB_SIZE, VB_OFF)
        a.emit(own_touch())
    p1_addr_read(a)
    if TLN < 0:
        for x in z_addr(vWt, sB0, sB1) + h_addr(sB0, sB1): a(x)
    if TLN == -2: early_touch()
    for ins in dma_group('A', 1): a.emit(ins)
    if TW == -1: tw()
    if TLN == -1: early_touch()
    if TW >= 0: srd(a, SW2, 14, 1792*896)
    for g_ in range(2, 2 + opt('gpre', 0)):
        for ins in dma_group('A', g_): a.emit(ins)
    other_srds()
    srd(a, SO, 16, 2048*896)
    if opt('tlb', 0):
        a(f's_mov_b32 s{sT}, {HB_SIG}\nv_mul_lo_u32 v{FR}, v{vL}, s{sT}\nv_mov_b32 v{FR+1}, {248*16}\nv_mul_u32_u24 v{FR+2}, {32*896}, v{vL}')
        a(f's_mov_b32 s{sT}, {112*1024}')
        a.vmem(f'buffer_load_dword v{vP}, v{FR}, {sr(SH)}, s{sT} offen', 'TL')
        a.vmem(f'buffer_load_dword v{vP+1}, v{FR+1}, {sr(SV)}, 0 offen', 'TL')
        if opt('tlb', 0) > 1: a.vmem(f'buffer_load_dword v{vP+1}, v{FR+2}, {sr(SO)}, 0 offen', 'TL')
    get_tag(a)
    if STAMP == 3:
        a(f's_add_u32 s{sT}, s2, s{sW}\ns_cmp_lg_u32 s{sT}, 0\ns_cbranch_scc1 Lnopub\nv_mov_b32 v{FR}, {EPO+128}\nv_mov_b32 v{FR+1}, s{STB}\nbuffer_store_dword v{FR+1}, v{FR}, {sr(SM)}, 0 offen sc1\nLnopub:')
    wq = p1_loop(a)
    def run_list(L):
        for x in L:
            if callable(x): x()
            else: a(x)
    if opt('sk', 28) == 28:
        a('s_nop 6\ns_waitcnt lgkmcnt(0)')
        run_list(hblock_list(a, ACC, sHA0))
        z1(a); run_list(hblock_list(a, ACC+16, sHA1))
        z2(a); run_list(hblock_list(a, ACC+32, sHB0))
        if RPRE0:
            for ins in wq: a.emit(ins)
            wq = []
            a.wait_vm('R0'); run_list(stage_reads(0))
        z3(a); run_list(hblock_list(a, ACC+48, sHB1))
        if RPRE0:
            a.wait_vm('R1'); run_list(stage_reads(1))
        z4a(a); z4b(a)
    else:
        k = min(len(a.yq), 11)
        run_list(a.yq[:k])
        if k < 11: a(f's_nop {10 - k}')
        run_list(hblock_list(a, ACC+32, sHB0) + hblock_list(a, ACC+48, sHB1))
        run_list(a.yq[k:])
    stamp(a, 3); stamp(a, 2, '3'); stamp(a, 2, '5')
    phase2(a, wq)
    a('s_branch Lfin')

    a('LroleBC:')
    a.vm = ['CP'] if CPF else []
    TWL = opt('twl', 0)
    if TWL: a(f's_lshl_b32 s{sG0}, s{sX8}, 2\ns_add_u32 s{sG0}, s{sG0}, s{sN}\ns_sub_u32 s{sG0}, s{sG0}, 28\ns_lshl_b32 s{sG0}, s{sG0}, 2\ns_add_u32 s{sG0}, s{sG0}, s{sW}\ns_mul_i32 s{sG0}, s{sG0}, {98*128}')
    def light_tw():
        if not TWL: return
        srd(a, SW2, 14, 1792*896)
        a(f'v_lshlrev_b32 v{vP}, 7, v{vL}\ns_add_u32 s{sT}, s{sG0}, {34*128}')
        a.vmem(f'buffer_load_dword v{vP+1}, v{vP}, {sr(SW2)}, s{sG0} offen', 'TW')
        a.vmem(f'buffer_load_dword v{vP+1}, v{vP}, {sr(SW2)}, s{sT} offen', 'TW')
    a(f's_cmp_ge_u32 s{sN}, 30\ns_cbranch_scc1 LroleC')
    a(f's_lshl_b32 s{sRT}, s{sT}, 2\ns_lshl_b32 s{sT2}, s{sT2}, 1\ns_add_u32 s{sRT}, s{sRT}, s{sT2}\ns_add_u32 s{sRT}, s{sRT}, s{sN}\ns_sub_u32 s{sRT}, s{sRT}, 28')
    a(f's_mov_b32 s{sCG}, s{sRT}')
    sigma(); p1_addr_dma(a); p1_srds()
    XB, DB, vSb = 104, 224, 92
    for g in range(7):
        a(f's_movk_i32 s{sA0}, {BCO[g]*128}')
        for q in range(4):
            a.vmem(f'buffer_load_dwordx4 {vr(XB+16*g+4*q)}, v{vXo+q}, {sr(SX)}, s{sA0} offen offset:{q*1024}', f'X{g}')
    for g in range(7):
        a.vmem(f'buffer_load_dwordx4 {vr(DB+4*g)}, v{vDo}, {sr(SD)}, 0 offen offset:{g*128}', 'XD')
    a(f's_sub_u32 s{sT}, 14, s{sRT}\ns_mul_i32 s{sT}, s{sT}, {16*896}\nv_add_u32 v{vDo}, s{sT}, v{vDo}\ns_mov_b32 s{sCG}, 14')
    other_srds()
    a(f's_mov_b32 s{sOnes}, 0x3f803f80')
    for i in range(9): a(f'v_mov_b32 v{vSb+i}, 0')
    for g in range(7):
        a.wait_vm(f'X{g}')
        if g == 0: stamp(a, 1)
        for i in range(4):
            for q in range(4):
                a(f'v_dot2c_f32_bf16 v{vSb+q}, s{sOnes}, v{XB+16*g+4*q+i}')
                a(f'v_dot2c_f32_bf16 v{vSb+4+q}, v{XB+16*g+4*q+i}, v{XB+16*g+4*q+i}')
    t = vt
    def dpp(rng):
        for pat in ('quad_perm:[1,0,3,2]', 'quad_perm:[2,3,0,1]', 'row_half_mirror'):
            for i in rng: a(f'v_add_f32_dpp v{vSb+i}, v{vSb+i}, v{vSb+i} {pat} row_mask:0xf bank_mask:0xf')
            if len(rng) < 3: a('s_nop 1')
    stamp(a, 2)
    a(f'v_and_b32 v{t+6}, 3, v{vL}\ns_nop 1')
    dpp(range(8))
    for q in range(1, 4):
        a(f'v_cmp_eq_u32 vcc, {q}, v{t+6}\ns_nop 1\nv_cndmask_b32 v{vSb}, v{vSb}, v{vSb+q}, vcc\nv_cndmask_b32 v{vSb+4}, v{vSb+4}, v{vSb+4+q}, vcc')
    a(f'v_mul_f32 v{t+4}, {f2h(1/448)}, v{vSb}\nv_mul_f32 v{t+1}, {f2h(1/448)}, v{vSb+4}')
    a(f'v_fma_f32 v{t+1}, -v{t+4}, v{t+4}, v{t+1}\nv_max_f32 v{t+1}, 0, v{t+1}')
    a(f'v_cvt_pk_bf16_f32 v{t}, -v{t+4}, -v{t+4}')
    a(f'v_cvt_pk_bf16_f32 v{t+1}, v{t+1}, v{t+1}\nv_and_b32 v{t+1}, 0xffff0000, v{t+1}')
    a(f'v_add_f32 v{t+1}, {f2h(1e-5)}, v{t+1}')
    a(f'v_cvt_pk_bf16_f32 v{t+1}, v{t+1}, v{t+1}\nv_and_b32 v{t+1}, 0xffff0000, v{t+1}')
    a(f'v_sqrt_f32 v{t+1}, v{t+1}\ns_nop 0')
    a(f'v_cvt_pk_bf16_f32 v{t+1}, v{t+1}, v{t+1}\nv_and_b32 v{t+1}, 0xffff0000, v{t+1}')
    a(f'v_rcp_f32 v{t+1}, v{t+1}')
    get_tag(a)
    a(f'v_mov_b32 v{t+2}, s{sTag}\nv_mov_b32 v{t+3}, s{sTag+1}')
    a(f'v_lshrrev_b32 v{t+7}, 3, v{vL}\nv_lshl_add_u32 v{t+5}, v{t+6}, 3, v{t+7}\nv_lshlrev_b32 v{t+5}, 4, v{t+5}')
    a(f's_lshl_b32 s{sT}, s{sSig}, 9')
    a.vmem(f'buffer_store_dwordx4 {vr(t)}, v{t+5}, {sr(SM)}, s{sT} offen sc1', 'S1')
    a.wait_vm('XD')
    for i in range(28): a(f'v_dot2c_f32_bf16 v{vSb+8}, s{sOnes}, v{DB+i}')
    a('s_nop 2')
    dpp([8])
    col_record(a, DB, vSb+8)
    a(f'v_lshlrev_b32 v{t+7}, 4, v{t+7}\ns_lshl_b32 s{sT}, s{sRT}, 9\ns_lshl_b32 s{sT2}, s{sW}, 7\ns_add_u32 s{sT}, s{sT}, s{sT2}\ns_add_u32 s{sT}, s{sT}, {CSZ}')
    a.vmem(f'buffer_store_dwordx4 {vr(DB)}, v{t+7}, {sr(SM)}, s{sT} offen sc1', 'S1')
    stamp(a, 3)
    if TWL == 1: light_tw()
    for g in range(4):
        for ins in dma_group('B', g): a.emit(ins)
    if TWL == 2: light_tw()
    p1_addr_read(a)
    for x in wg_flag_prep(vFl, sB0, sB1) + stat_addr() + twiddle_wc(vWt) + z_addr(vWt, sB0, sB1): a(x)
    if opt('tlb2', 1):
        a.emit((f's_mov_b32 exec_lo, 0x00010001\ns_mov_b32 exec_hi, 0x00010001\nbuffer_load_dword v{vP}, v{vVs}, {sr(SV)}, 0 offen\n'
                f's_mov_b32 s{sT}, {4*65536}\nbuffer_load_dword v{vP}, v{vVs}, {sr(SV)}, s{sT} offen\ns_mov_b64 exec, -1', 'TL'))
    p1_loop_bc(a, 'B')
    stat_check(a, 'B')
    for x in stat_fix('B'): a(x)
    a('s_nop 1')
    a(mfma(vr(ZA,16), vr(MO), vr(CZ), vr(ZA,16)))
    a('s_nop 11\ns_waitcnt lgkmcnt(0)')
    z1(a); z2(a); a('s_nop 11'); z3(a); z4a(a); z4b(a)
    wg_flag(a, vFl)
    a('s_branch Lfin')

    a('LroleC:')
    a.vm = ['CP'] if CPF else []
    a(f's_lshl_b32 s{sT3}, s{sT}, 1\ns_add_u32 s{sT3}, s{sT3}, s{sN}\ns_sub_u32 s{sT3}, s{sT3}, 30')
    a(f's_lshl_b32 s{sRT}, s{sT2}, 3\ns_add_u32 s{sRT}, s{sRT}, s{sT3}')
    a(f's_mul_i32 s{sCG}, s{sT2}, 7\ns_add_u32 s{sCG}, s{sCG}, s{sT3}\ns_add_u32 s{sT2}, s{sT2}, 14')
    a(f's_cmp_eq_u32 s{sT3}, 7\ns_cselect_b32 s{sCG}, s{sT2}, s{sCG}')
    sigma(); p1_addr_dma(a); p1_srds()
    other_srds()
    a(f's_cmp_ge_u32 s{sCG}, 14\ns_cbranch_scc1 LroleE')
    for g in range(3):
        for ins in dma_group('C', g): a.emit(ins)
    p1_addr_read(a)
    for x in stat_addr(): a(x)
    for i in range(4): a(f'v_mov_b32 v{TF+i}, 0x3f803f80')
    get_tag(a)
    p1_loop_bc(a, 'C')
    a('s_nop 11')
    col_record(a, FR, ACC)
    a(CW_OFF)
    a.vmem(f'buffer_store_dwordx4 {vr(FR)}, v{vU8}, {sr(SM)}, s{sA2} offen sc1', 'S1')
    stamp(a, 3)
    light_tw()
    a(f's_mov_b32 s{sCG}, 15')
    for x in wg_flag_prep(vFl, sB0, sB1): a(x)
    wg_flag(a, vFl)
    a('s_branch Lfin')

    a('LroleE:')
    a.vm = []
    light_tw()
    get_tag(a)
    a(f's_sub_u32 s{sT3}, 15, s{sCG}\ns_add_u32 s{sT3}, s{sT3}, s{sW}\ns_mov_b32 s{sCG}, 15')
    for x in wg_flag_prep(vFl, sB0, sB1): a(x)
    wg_flag(a, vFl)
    a(f's_cmp_lg_u32 s{sT3}, 0\ns_cbranch_scc1 Lfin')
    a(f'v_lshlrev_b32 v{vPa}, 3, v{vL}\nv_add_u32 v{vPa}, {FLV}, v{vPa}')
    for i in range(4):
        poll_issue(a, 'PE', vPa)
        poll_check(a, 'PE', vPa, sleep=16)
        a(f'v_add_u32 v{vPa}, 512, v{vPa}')
    a(f'v_mov_b32 v{vFl+2}, {EPO}\ns_mov_b64 exec, 1')
    a(f'buffer_store_dwordx2 {vr(vFl,2)}, v{vFl+2}, {sr(SM)}, 0 offen sc1')
    a('s_mov_b64 exec, -1')
    a('Lfin:')
    stamp_store(a)
    a('Lend:')
    a('s_endpgm')
    return a.text()

def phase2(a, wq):
    ACC0, ACC1, YA, VF = 144, 176, 208, 104
    TFd = 4
    vRw, vRwb, vRr = 84, 88, 92
    vRi = 36
    YS = [208, 240]
    XR = 224
    t = 56
    for ins in wq: a.emit(ins)
    rq = []
    for q in range(NSTG, 7): rq += w2_group(q)
    NR = len(rq)
    def rdma(n):
        while rq and n > 0:
            ins = rq.pop(0); a.emit(ins)
            if ins[1]: n -= 1
    vq = twiddle_tf(t, TFd)
    u = t + 8
    vq += lines(f'v_and_b32 v{u}, 7, v{vU}\nv_xor_b32 v{u}, v{u}, v{vHH}\nv_lshlrev_b32 v{u+1}, 7, v{vU}')
    vq += [f's_lshl_b32 s{sT}, s{sJ}, 12\ns_add_u32 s{sT2}, s{sT}, 32768\ns_add_u32 s{sT}, s{sT2}, s{sArea}', f'v_add_u32 v{u+1}, s{sT}, v{u+1}']
    for q in range(4):
        vq += lines(f'v_xor_b32 v{u+2}, {2*q}, v{u}\nv_lshl_add_u32 v{vRw+q}, v{u+2}, 4, v{u+1}\nv_xor_b32 v{vRwb+q}, 0x1000, v{vRw+q}')
    vq += lines(f'v_lshrrev_b32 v{u}, 2, v{vL}\nv_and_b32 v{u+1}, 3, v{vL}\nv_and_b32 v{u+2}, 7, v{u}\nv_lshlrev_b32 v{u+3}, 1, v{u+1}\nv_xor_b32 v{u+2}, v{u+2}, v{u+3}\n'
                f'v_lshlrev_b32 v{u+2}, 4, v{u+2}\nv_lshl_add_u32 v{u+2}, v{u}, 7, v{u+2}')
    vq += [f's_lshl_b32 s{sT}, s{sI}, 11\ns_add_u32 s{sT2}, s{sT2}, s{sT}']
    nsafe = len(vq)
    for k in range(4):
        vq += [f's_xor_b32 s{sT}, s{sJ}, {k}\ns_mul_i32 s{sT}, s{sT}, {AREA}\ns_add_u32 s{sT}, s{sT}, s{sT2}', f'v_add_u32 v{vRr+2*k}, s{sT}, v{u+2}', f'v_xor_b32 v{vRr+2*k+1}, 16, v{vRr+2*k}']
    uq = []
    def vdo(budget):
        while (uq or vq) and budget > 0:
            x = (uq or vq).pop(0)
            if callable(x): x(); continue
            a(x); budget -= cost(x)
    if RPRE0:
        assert opt('sk', 28) == 28 and RPRE0 <= 32
        rdma(RPRE0)
        vdo(opt('tf0', 60) + opt('tf0b', 40))
    else:
        a.wait_vm('R0'); stamp(a, 3, '5')
        for x in stage_reads(0): a(x)
        vdo(opt('tf0', 60))
        stamp(a, 4, '5'); a.wait_vm('R1'); stamp(a, 5, '5')
        for x in stage_reads(1): a(x)
        vdo(opt('tf0b', 40))
        if NSTG == 3:
            a.wait_vm('R2')
            for x in stage_reads(2): a(x)
    a('s_waitcnt lgkmcnt(0)')
    stamp(a, 3, '3'); stamp(a, 6, '5'); a.wait_vm('ST'); stamp(a, 7, '5')
    wg_flag(a, vFl)
    stamp(a, 8, '5')
    stamp(a, 4); stamp(a, 4, '3'); cstamp(a, 5, '8')
    nr = max(opt('rb', 10), RPRE0)
    rdma(nr - RPRE0)
    did2 = NSTG == 3
    while nr < NR - RLATE:
        if nr >= P1POS and 'P1' not in a.vm: poll_issue(a, 'P1', vPa)
        rdma(1); nr += 1
        if nr == 20 and not did2: uq += [lambda: a.wait_vm('R2')] + stage_reads(2); did2 = True
        vdo(opt('tf1', 8))
    if 'P1' not in a.vm: poll_issue(a, 'P1', vPa)
    stamp(a, 5, '3')
    if not did2: uq += [lambda: a.wait_vm('R2')] + stage_reads(2)
    vdo(10000)
    stamp(a, 5); stamp(a, 6, '3')
    poll_check(a, 'P1', vPa, mask='15' if VSPLIT else None)
    stamp(a, 6); stamp(a, 7, '3'); stamp(a, 1, '4'); cstamp(a, 7, '8')
    horder = list(range(HN0)) + [28, 29, 30, 31] + list(range(HN0, 28)) + list(range(32, 56))
    sHq = [sB0, sB1]
    def hload(pos):
        i = horder[pos]
        rb, k = divmod(i, 28)
        c = (sGh0, sGh1)[rb]
        if k % 4 == 0:
            a(f's_mov_b32 s{c}, s{sG0}' if k == 0 else rot_next(c))
            a(f's_lshl_b32 s{sHq[rb]}, s{c}, 12\ns_add_u32 s{sHq[rb]}, s{sHq[rb]}, s{sHb}')
            if rb: a(f's_add_u32 s{sHq[rb]}, s{sHq[rb]}, {32*HB_SIG}')
        a.vmem(f'buffer_load_dwordx4 {ar(aH+4*(i%32))}, v{vHo}, {sr(SH)}, s{sHq[rb]} offen offset:{(k % 4)*1024} sc1', f'H{i}')
    def vloads():
        if VSPLIT: poll_check(a, 'P2', vPa, sleep=0)
        for j in range(8):
            a(f's_movk_i32 s{sA2}, {j*4096}')
            a.vmem(f'buffer_load_dwordx4 {vr(VF+4*j)}, v{vVo}, {sr(SV)}, s{sA2} offen sc1', f'V{j}')
    def smalls():
        for rb in range(2):
            a(f's_lshl_b32 s{sA2}, s{sT1}, 9' if rb == 0 else f's_add_u32 s{sA2}, s{sA2}, {32*512}')
            a.vmem(f'buffer_load_dword v{vRi+rb}, v{vRo}, {sr(SM)}, s{sA2} offen offset:4 sc1', 'RI')
            a.vmem(f'buffer_load_dword v{vRi+2+rb}, v{vU8}, {sr(SM)}, s{sA2} offen offset:4 sc1', 'RI')
        a.vmem(f'buffer_load_dwordx4 {vr(XR)}, v{vOo}, {sr(SX)}, 0 offen', 'X')
        a.vmem(f'buffer_load_dwordx4 {vr(XR+4)}, v{vOo+1}, {sr(SX)}, 0 offen', 'X')
    a('s_waitcnt lgkmcnt(0)')
    def vload(j):
        a(f's_movk_i32 s{sA2}, {j*4096}')
        a.vmem(f'buffer_load_dwordx4 {vr(VF+4*j)}, v{vVo}, {sr(SV)}, s{sA2} offen sc1', f'V{j}')
    lq = [('h', i) for i in range(56)]
    vpos = opt('vpos', 14)
    lq = lq[:vpos] + [('v', j) for j in range(4)] + [('s', 0)] + lq[vpos:]
    pos = opt('rpos', 8)
    for _ in range(RLATE):
        lq.insert(pos, ('r', 0)); pos += opt('rstep', 2)
    def lnext(i):
        if not lq: return
        kind, x = lq[0]
        if kind == 'h' and horder[x] - 32 > i: return
        lq.pop(0)
        if kind == 'h': hload(x)
        elif kind == 'v': vload(x)
        elif kind == 'r': rdma(1)
        else: smalls()
    for i in range(HB0): lnext(-1)
    stamp(a, 8, '3'); stamp(a, 2, '4')
    def ard(k):
        s = aF + 8 * (k % (PD + 1))
        return [f'ds_read_b64_tr_b16 {ar(s+4*blk+2*p,2)}, v{va} offset:{(k-12)*2048 + p*1024}'
                for blk, va in enumerate((vTra, vTrb)) for p in range(2)]
    state = dict(lgk=[])
    HPS = [int(c) for c in (OPT.get('hpp', '1112') * opt('hpn', 10) + '1')]
    def lds(s, tag):
        a(s); state['lgk'].append(tag)
    def wait_lgk(tag):
        L = state['lgk']
        if tag not in L: return
        idx = max(i for i, x in enumerate(L) if x == tag)
        a(f's_waitcnt lgkmcnt({min(len(L)-1-idx, 15)})')
        state['lgk'] = L[idx+1:]
    def kstep(rb, k, fill, fill0=()):
        i = 28*rb + k
        acc = ACC0 if rb == 0 else ACC1
        assert not any(kd == 'h' and horder[x] == i for kd, x in lq)
        a.wait_vm(f'H{i}')
        if k >= 12: wait_lgk(f'A{rb}_{k}')
        if rb == 0 and 12 <= k + PD < 28 and (k + PD) % 4 == 0:
            assert not any(t_ == f'R{(k+PD)//4}' for _, t_ in rq)
            a.wait_vm(f'R{(k+PD)//4}')
        A = aW + 8*k if k < 12 else aF + 8*(k % (PD + 1))
        B = ar(aH + 4*(i % 32))
        a(mfma(vr(acc,16), ar(A), B, vr(acc,16) if k else '0'))
        if 12 <= k + PD < 28:
            for r in ard(k+PD): lds(r, f'A{rb}_{k+PD}')
        for f in fill0: f()
        a(mfma(vr(acc+16,16), ar(A+4), B, vr(acc+16,16) if k else '0'))
        for _ in range(HPS[min(i, len(HPS) - 1)]): lnext(i)
        for f in fill: f()
    def take(Q, budget):
        out = []
        while Q and budget > 0:
            x = Q.pop(0)
            if isinstance(x, str): budget -= cost(x); out.append(lambda x=x: a(x))
            else: budget -= 1; out.append(x)
        return out
    def vstep(m_):
        def f():
            j, rb = divmod(m_, 2)
            if rb == 0:
                assert ('v', j) not in lq
                a.wait_vm(f'V{j}')
                for i in range(4): a(f'v_xor_b32 v{VF+4*j+i}, v{VF+4*j+i}, v{vSg}')
                a('s_nop 1')
            a(mfma(vr(YS[rb],16), vr(VF+4*j), vr(TFd+16*rb+4*j), vr(YS[rb],16) if j else '0'))
        return f
    for k in range(28):
        fill = []; fill0 = []
        if k + PD < 12: fill0 = take(vq, 5)
        if VM0 <= k < VM0 + 8:
            assert not any('cos' in x for x in vq)
            fill.append(vstep(k - VM0))
        else: fill += take(vq, 4)
        kstep(0, k, fill, fill0)
        if k in (0, 7, 15, 27): stamp(a, {0: 3, 7: 4, 15: 5, 27: 6}[k], '4')
    assert not vq
    stamp(a, 7)
    def red_write(acc, base): return [(lambda q=q: lds(f'ds_write_b128 v{base+q}, {vr(acc+4*q)}', 'RW')) for q in range(4)]
    def scale_own(acc, rb): return [f'v_fmac_f32 v{acc+r}, v{YS[rb]+r}, v{vRi+2+rb}' for r in range(16)]
    def barrier():
        wait_lgk('RW'); a('s_barrier')
    def finalize(P, rb):
        L = []
        for k in range(4):
            for h in range(2):
                L.append(lambda k=k, h=h: lds(f'ds_read_b128 {vr(P+8*k+4*h)}, v{vRr+2*k+h}', f'RR{k}'))
        U = 56
        for i in range(4): L += [f'v_lshlrev_b32 v{U+2*i}, 16, v{XR+4*rb+i}', f'v_and_b32 v{U+2*i+1}, 0xffff0000, v{XR+4*rb+i}']
        L.append(lambda: wait_lgk('RR1'))
        L += [f'v_add_f32 v{P+r}, v{P+r}, v{P+8+r}' for r in range(8)]
        L.append(lambda: wait_lgk('RR3'))
        L += [f'v_add_f32 v{P+16+r}, v{P+16+r}, v{P+24+r}' for r in range(8)]
        L += [f'v_add_f32 v{P+r}, v{P+r}, v{P+16+r}' for r in range(8)]
        L += [f'v_fma_f32 v{P+r}, v{P+r}, v{vRi+rb}, v{U+r}' for r in range(8)]
        if opt('pert', 0.0) and rb == 1:
            L.append(f's_add_u32 s{sT}, s2, s{sW}\ns_cmp_eq_u32 s{sT}, 0\ns_cselect_b64 exec, 1, 0\nv_add_f32 v{P}, {f2h(opt("pert", 0.0))}, v{P}\ns_mov_b64 exec, -1')
        if opt('pscale', 0.0): L += [f'v_mul_f32 v{P+r}, {f2h(1 + opt("pscale", 0.0))}, v{P+r}' for r in range(8)]
        L += [f'v_cvt_pk_bf16_f32 v{U+p}, v{P+2*p}, v{P+2*p+1}' for p in range(4)]
        L.append(lambda: a.vmem(f'buffer_store_dwordx4 {vr(U)}, v{vOo+rb}, {sr(SO)}, 0 offen {OST}', 'O'))
        return L
    def run(L):
        for f in take(L, 10**6): f()
    PF = 104
    assert ('s', 0) not in lq
    a.wait_vm('X')
    a(f'v_rcp_f32 v{vRi+2}, v{vRi+2}\nv_rcp_f32 v{vRi+3}, v{vRi+3}')
    work = red_write(ACC0+16, vRwb) + scale_own(ACC0, 0) + red_write(ACC0, vRw)
    post = finalize(PF, 0)
    KB1, KB2 = opt('kb1', 10), 25
    for k in range(28):
        fill = []; fill0 = []
        if 3 <= k < KB1: fill0 = take(work, 2); fill = take(work, 3)
        if k == KB1:
            assert not work
            fill = [barrier]
        if KB1 < k < KB2:
            fill0 = take(post, 1)
            fill = take(post, FILL + (1 if opt('pscale', 0.0) else 0))
        if k == KB2:
            assert not post and not any(x.startswith('RR') for x in state['lgk']), post
            fill = [lambda: a('s_barrier')]
        kstep(1, k, fill, fill0)
        if k in (11, 27): stamp(a, {11: 7, 27: 8}[k], '4'); cstamp(a, {11: 5, 27: 7}[k])
    stamp(a, 8)
    a('s_nop 10')
    run(scale_own(ACC1, 1) + red_write(ACC1, vRw) + red_write(ACC1+16, vRwb))
    barrier()
    run(finalize(PF, 1))

def main():
    body = gen()
    k = NAME + '_kernel'
    print(f'''; FNet mixing (two-stage DFT factorisation, 2048 = 32 x 64) + ReLU FFN + residual in one persistent launch.
; @launch grid=(256,1,1) block=(256,1,1) lds={LDS_SIZE}
.amdgcn_target "amdgcn-amd-amdhsa--gfx950"
.text
.globl {k}
.p2align 8
.type {k},@function
{k}:
{body}
.section .rodata,"a"
.p2align 6
.amdhsa_kernel {k}
  .amdhsa_next_free_vgpr {256+NAGPR}
  .amdhsa_next_free_sgpr 102
  .amdhsa_accum_offset 256
  .amdhsa_group_segment_fixed_size 0
  .amdhsa_kernarg_size 88
  .amdhsa_user_sgpr_count 2
  .amdhsa_user_sgpr_kernarg_segment_ptr 1
  .amdhsa_system_sgpr_workgroup_id_x 1
.end_amdhsa_kernel''')
main()
```

```python
import sys, struct
NAME = 'parallel_sum__spectral_fnet__dense_activation_relu__prompt'
OPT = dict(a.split('=') for a in sys.argv[1:] if '=' in a)
def opt(k, d): return type(d)(OPT.get(k, d))
STAMP = opt('stamp', 0); LST = OPT.get('lst')
RATE = [int(c) for c in OPT.get('rate', '3')]
ROT = opt('rot', 1)
POLL0 = opt('poll0', 15); PCHK = opt('pchk', 6)
NW = opt('nw', 16); W0 = opt('w0', 16); WPS = [int(c) for c in OPT.get('wps', '112')]
RPRE0 = opt('rpre0', 0); P1POS = opt('p1pos', 26); RLATE = opt('rlate', 0)
HB0 = opt('hb0', 14); VM0 = opt('vm0', 20); FILL = opt('fill', 5); SLEEP = opt('sleep', 4)
OST = OPT.get('ost', '').replace('_', ' ')
STF = OPT.get('stf', 'sc1').replace('_', ' ')
TW = opt('tw', -1); ROT1 = opt('rot1', 2); XOFF = opt('xoff', 0); VSPLIT = opt('vsplit', 0)

def f2h(x): return '0x%08x' % struct.unpack('<I', struct.pack('<f', x))[0]

WS0 = opt('ws0', 0) << 20
HB_SIG = opt('hbs', 29) * 4096
HB_SIZE = 64 * HB_SIG
VB_OFF = WS0 + 0x800000
VB_SIZE = 32 * 16 * 256 * 16
SM_OFF = WS0 + 0xA00000
SM_SIZE = 0x20000
CSW, CSZ = 0x8000, 0x18000
FLH, FLV, EPO = 0x10000, 0x11000, 0x14000
ST_OFF = 0x1000000
SLOT = 36864
VX = 4 * SLOT
AREA = 40960
LDS_SIZE = 163840
SPIN_MAX = 1 << 17

SX, SW, SD, SH, SV, SM, SW2, SO = 24, 28, 32, 36, 40, 44, 48, 52
sTag = 56
sW, sI, sJ, sRT, sCG, sSig, sLx, sLw, sLd, sT, sT2, sT3, sT1, sCT = 58, 59, 60, 61, 62, 63, 64, 65, 66, 67, 68, 69, 70, 71
sA0, sA1, sA2, sA3, sA4, sOnes, sSpin, sB0, sB1, sG0 = 72, 73, 74, 75, 76, 77, 78, 79, 80, 81
sGc, sGw, sGh0, sGh1 = 6, 7, 3, 6
sArea, sHb, sRi, sG1, sStg = 20, 21, 77, 10, 11
STB = 82
vL, vU, vHH = 1, 2, 3
vXo, vWo, vDo = 4, 8, 12
vRb, vRp, vRd, vTa, vTb = 13, 21, 29, 37, 39
vM8, vU8, vH16, vZs, vP = 41, 42, 43, 44, 46
vt = 48
WC, TF, FR, ACC = 56, 72, 104, 144
MO, MP, CA, CB, CZ, ZR = 224, 228, 232, 236, 100, 240
vWt = 84
vW2, vTra, vTrb, vZw, vPa, vVo, vSg, vOo, vRo = 48, 52, 53, 54, 55, 45, 72, 74, 76
vSt = [(54, 73), (77, 83)]
vFl = 92
aW, aH, aF = 0, 96, 224
aRaw = aH
NAGPR = 256
PD = opt('pd', 3); RL0 = opt('rl0', 0); VL0 = opt('vl0', -1); HN0 = opt('hn0', 28); P2K = opt('p2k', -1)

class Asm:
    def __init__(self):
        self.L = []; self.vm = []; self.nlab = 0
    def __call__(self, s):
        for line in s.split('\n'):
            line = line.strip()
            self.L.append(line if line.endswith(':') else '    ' + line)
    def vmem(self, s, tag):
        self(s); self.vm.append(tag)
    def emit(self, ins):
        s, tag = ins
        if tag == 'TL': self.vm += ['TL'] * (s.count('buffer_load') - 1)
        if tag: self.vmem(s, tag)
        else: self(s)
    def wait_vm(self, tag):
        if tag not in self.vm: return
        idx = max(i for i, t in enumerate(self.vm) if t == tag)
        n = len(self.vm) - 1 - idx
        self(f's_waitcnt vmcnt({min(n, 63)})')
        self.vm = self.vm[idx + 1:]
    def label(self, p):
        self.nlab += 1
        return f'L{p}_{self.nlab}'
    def text(self): return '\n'.join(self.L)

def vr(b, n=4): return f'v[{b}:{b+n-1}]'
def ar(b, n=4): return f'a[{b}:{b+n-1}]'
def sr(b, n=4): return f's[{b}:{b+n-1}]'
def srd(a, d, lo, size, off=0):
    if off: a(f's_add_u32 s{d}, s{lo}, {off}\ns_addc_u32 s{d+1}, s{lo+1}, 0')
    else: a(f's_mov_b32 s{d}, s{lo}\ns_mov_b32 s{d+1}, s{lo+1}')
    a(f's_mov_b32 s{d+2}, {size}\ns_mov_b32 s{d+3}, 0x20000')
def stamp(a, idx, mode=None):
    if not STAMP: return
    if 1 <= idx <= 8 and mode != LST: return
    a(f's_memrealtime s[{STB+2*idx}:{STB+2*idx+1}]')
def cstamp(a, idx, mode='6'):
    if STAMP and LST == mode: a(f's_memrealtime s[{STB+2*idx}:{STB+2*idx+1}]\ns_memtime s[{STB+2*idx+2}:{STB+2*idx+3}]')
def mfma(D, A, B, C): return f'v_mfma_f32_32x32x16_bf16 {D}, {A}, {B}, {C}'
def lines(s): return s.split('\n')
def cost(x): return sum(2 if ('cos' in y or 'sin' in y) else 1 for y in x.split('\n'))

def stamp_store(a):
    if not STAMP: return
    a('s_waitcnt vmcnt(0) lgkmcnt(0)')
    if LST != '7': stamp(a, 9)
    a('s_waitcnt lgkmcnt(0)')
    if STAMP == 3:
        pa, pb = map(int, OPT['probe'].split(','))
        sk = a.label('pskip'); sp = a.label('pspin')
        a(f's_cmp_lg_u32 s2, {OPT.get("pwg", 0)}\ns_cbranch_scc1 {sk}\ns_cmp_lg_u32 s{sW}, {OPT.get("pwv", 0)}\ns_cbranch_scc1 {sk}')
        if pa < 0:
            a(f'v_mov_b32 v4, {EPO+128}\nbuffer_load_dword v5, v4, {sr(SM)}, 0 offen sc1\ns_waitcnt vmcnt(0)\nv_readfirstlane_b32 s{STB-2}, v5\ns_nop 3')
        a(f's_sub_u32 s{sT}, s{STB+2*pb}, s{STB+2*pa}\ns_add_u32 s{sT}, s{sT}, {opt("poff", 0)}\ns_min_u32 s{sT}, s{sT}, 5000\ns_mul_i32 s{sT}, s{sT}, 10')
        a(f's_memrealtime s[4:5]\ns_waitcnt lgkmcnt(0)\ns_add_u32 s{sT}, s{sT}, s4')
        a(f'{sp}:\ns_memrealtime s[4:5]\ns_waitcnt lgkmcnt(0)\ns_sub_u32 s{sT2}, s{sT}, s4\ns_cmp_gt_i32 s{sT2}, 0\ns_cbranch_scc1 {sp}')
        a(f'{sk}:')
        return
    srd(a, SX, 18, 65536, ST_OFF)
    a(f's_lshl_b32 s{sT}, s2, 2\ns_add_u32 s{sT}, s{sT}, s{sW}\ns_lshl_b32 s{sT}, s{sT}, 6')
    a(f'v_mov_b32 v5, s{sT}')
    for i in range(10):
        a(f'v_mov_b32 v4, s{STB+2*i}')
        a(f'buffer_store_dword v4, v5, {sr(SX)}, 0 offen offset:{4*i}')
        a('s_nop 1')

def poll_issue(a, tag, va, vd=vP):
    a.vmem(f'buffer_load_dwordx2 {vr(vd,2)}, v{va}, {sr(SM)}, 0 offen sc1', tag)
def poll_check(a, tag, va, vd=vP, sleep=SLEEP, mask=None):
    ok = a.label('ok'); lp = a.label('spin')
    a.wait_vm(tag)
    mk = f'\ns_and_b64 vcc, vcc, {mask}' if mask else ''
    a(f'v_cmp_ne_u64 vcc, s[{sTag}:{sTag+1}], {vr(vd,2)}' + mk)
    a(f's_cbranch_vccz {ok}')
    a(f's_mov_b32 s{sSpin}, {SPIN_MAX}')
    a(f'{lp}:')
    if sleep: a(f's_sleep {sleep}')
    a(f'buffer_load_dwordx2 {vr(vd,2)}, v{va}, {sr(SM)}, 0 offen sc1')
    a(f's_sub_u32 s{sSpin}, s{sSpin}, 1\ns_cbranch_scc1 {ok}')
    a('s_waitcnt vmcnt(0)')
    a(f'v_cmp_ne_u64 vcc, s[{sTag}:{sTag+1}], {vr(vd,2)}' + mk)
    a(f's_cbranch_vccnz {lp}')
    a(f'{ok}:')
def wg_flag_prep(tmp, u0, u1):
    return [f's_lshl_b32 s{u0}, s{sCG}, 4\ns_add_u32 s{u0}, s{u0}, s{sRT}\ns_lshl_b32 s{u0}, s{u0}, 3\ns_add_u32 s{u0}, s{u0}, {FLV}',
            f's_lshl_b32 s{u1}, s{sRT}, 4\ns_add_u32 s{u1}, s{u1}, s{sCG}\ns_lshl_b32 s{u1}, s{u1}, 3\ns_add_u32 s{u1}, s{u1}, {FLH}\ns_sub_u32 s{u1}, s{u1}, s{u0}',
            f'v_mul_lo_u32 v{tmp+2}, v{vL}, s{u1}', f'v_add_u32 v{tmp+2}, s{u0}, v{tmp+2}',
            f'v_mov_b32 v{tmp}, s{sTag}', f'v_mov_b32 v{tmp+1}, s{sTag+1}']
def wg_flag(a, tmp, barrier=True):
    a.wait_vm('ST')
    if barrier: a('s_barrier')
    sk = a.label('nofl')
    a(f's_cmp_lg_u32 s{sW}, 0\ns_cbranch_scc1 {sk}')
    a('s_mov_b64 exec, 3')
    a(f'buffer_store_dwordx2 {vr(tmp,2)}, v{tmp+2}, {sr(SM)}, 0 offen sc1')
    a('s_mov_b64 exec, -1')
    a(f'{sk}:')
def col_record(a, o, src):
    a(f'v_cvt_pk_bf16_f32 v{o+2}, v{src}, v{src}\nv_and_b32 v{o+3}, 0xffff0000, v{o+2}\nv_sub_f32 v{o+4}, v{src}, v{o+3}')
    a(f'v_cvt_pk_bf16_f32 v{o}, v{src}, v{o+4}\nv_and_b32 v{o+3}, 0xffff0000, v{o}\nv_sub_f32 v{o+4}, v{o+4}, v{o+3}')
    a(f'v_cvt_pk_bf16_f32 v{o+1}, v{o+4}, 0')
    a(f'v_mov_b32 v{o+2}, s{sTag}\nv_mov_b32 v{o+3}, s{sTag+1}')
def get_tag(a):
    a('s_waitcnt lgkmcnt(0)')
    a(f's_add_u32 s{sTag}, s{sTag}, 0x7f4a7c15\ns_addc_u32 s{sTag+1}, s{sTag+1}, 0x9e3779b9')
CW_OFF = f's_lshl_b32 s{sA2}, s{sCG}, 11\ns_lshl_b32 s{sA3}, s{sJ}, 10\ns_add_u32 s{sA2}, s{sA2}, s{sA3}\ns_lshl_b32 s{sA3}, s{sI}, 9\ns_add_u32 s{sA2}, s{sA2}, s{sA3}\ns_add_u32 s{sA2}, s{sA2}, {CSW}'
def stat_loads(role):
    ld = lambda r: (f'buffer_load_dwordx4 {vr(r)}, v{vU8}, {sr(SM)}, s{sA2} offen sc1', 'SL')
    ins = [(f's_lshl_b32 s{sA2}, s{sSig}, 9', None), ld(MO)]
    if role == 'A':
        ins += [(f's_xor_b32 s{sA2}, s{sA2}, 512', None), ld(MP), (CW_OFF, None), ld(CA), (f's_xor_b32 s{sA2}, s{sA2}, 512', None), ld(CB)]
    ins += [(f's_lshl_b32 s{sA2}, s{sCG}, 9\ns_add_u32 s{sA2}, s{sA2}, {CSZ}', None), ld(CZ)]
    return ins
def stat_check(a, role):
    ok = a.label('ok'); lp = a.label('spin')
    recs = [MO, MP, CA, CB, CZ] if role == 'A' else [MO, CZ]
    def cmp():
        for i, r in enumerate(recs):
            a(f'v_cmp_ne_u64 {"s[22:23]" if i else "vcc"}, s[{sTag}:{sTag+1}], {vr(r+2,2)}')
            if i: a('s_or_b64 vcc, vcc, s[22:23]')
    a.wait_vm('SL')
    cmp()
    a(f's_cbranch_vccz {ok}')
    a(f's_mov_b32 s{sSpin}, {SPIN_MAX}')
    a(f'{lp}:')
    for ins in stat_loads(role): a(ins[0])
    a(f's_sub_u32 s{sSpin}, s{sSpin}, 1\ns_cbranch_scc1 {ok}')
    a('s_waitcnt vmcnt(0)')
    cmp()
    a(f's_cbranch_vccnz {lp}')
    a(f'{ok}:')
def stat_fix(role):
    L = [f'ds_write_b32 v{vZs}, v{MO+1}']
    for r in ([MO, MP] if role == 'A' else [MO]):
        L += [f'v_and_b32 v{r}, v{r}, v{vM8}', f'v_and_b32 v{r+1}, 0xffff, v{r}', f'v_mov_b32 v{r+2}, 0', f'v_mov_b32 v{r+3}, 0']
    for r in ([CA, CB, CZ] if role == 'A' else [CZ]):
        L += [f'v_mov_b32 v{r+2}, 0', f'v_mov_b32 v{r+3}, 0']
    L += [f'ds_read_b128 {vr(ZR+4*q)}, v{vH16} offset:{32*q}' for q in range(4)]
    return L

def rot_next(c): return f's_add_u32 s{c}, s{c}, 1\ns_cmp_eq_u32 s{c}, 7\ns_cselect_b32 s{c}, 0, s{c}'
BCO = [int(c) for c in OPT.get('bco', '0123456')]
def dma_group(role, g):
    slot = (g % 4) * SLOT
    ins = []
    if role == 'A':
        ins.append((f's_mov_b32 s{sGc}, s{sG1}' if g == 0 else rot_next(sGc), None))
        ins.append((f's_lshl_b32 s{sA0}, s{sGc}, 7\ns_mul_i32 s{sA1}, s{sGc}, {64*3584}', None))
    else:
        gp = BCO[g]
        ins.append((f's_movk_i32 s{sA0}, {gp*128}\ns_mov_b32 s{sA1}, {gp*64*3584}', None))
    if role != 'C':
        ins.append((f's_add_u32 m0, s{sLx}, {slot}\ns_nop 0', None))
        for q in range(4):
            ins.append((f'buffer_load_dwordx4 v{vXo+q}, {sr(SX)}, s{sA0} offen offset:{q*1024} lds', f'G{g}'))
        ins.append((f's_add_u32 m0, s{sLd}, {slot}\ns_nop 0', None))
        ins.append((f'buffer_load_dwordx4 v{vDo}, {sr(SD)}, s{sA0} offen lds', f'G{g}'))
    if role != 'B':
        ins.append((f's_add_u32 m0, s{sLw}, {slot}\ns_nop 0', None))
        for i in range(4):
            ins.append((f'buffer_load_dwordx4 v{vWo+i}, {sr(SW)}, s{sA1} offen offset:{i*1024} lds', f'G{g}'))
    return ins
STG = [3*SLOT, 0, SLOT]
NSTG = opt('nstg', 2)
def w2_group(q):
    base, off = (sStg, STG[q]) if q < NSTG else (sArea, 32768 if q == 2 else (q-3)*8192)
    ins = []
    for m in range(8):
        pre = ''
        if m == 0: pre = (f's_mov_b32 s{sGw}, s{sG0}' if q == 0 else rot_next(sGw)) + f'\ns_mul_i32 s{sA4}, s{sGw}, {8*7168}\n'
        if m == 4: pre = f's_add_u32 s{sA4}, s{sA4}, {4*7168}\n'
        pre += f's_add_u32 m0, s{base}, {off + 4096*(m//4)}\ns_nop 0\n' if (q < NSTG or m % 4 == 0) else ''
        ins.append((pre + f'buffer_load_dwordx4 v{vW2+m%4}, {sr(SW2)}, s{sA4} offen offset:{(m%4)*1024} lds', f'R{q}'))
    return ins
def stage_reads(part):
    va2, off = (vSt[part], 0) if part < 2 else ((vSt[1], SLOT) if NSTG == 3 else ((vTra, vTrb), 32768))
    return [f'ds_read_b64_tr_b16 {ar(aW+8*(4*part+kk)+4*blk+2*p,2)}, v{va} offset:{off + kk*2048 + p*1024}'
            for kk in range(4) for blk, va in enumerate(va2) for p in range(2)]

def p1_addr_dma(a):
    t = FR
    a(f'v_lshrrev_b32 v{t+1}, 3, v{vL}\nv_and_b32 v{t+2}, 7, v{vL}\nv_lshrrev_b32 v{t+3}, 1, v{t+1}')
    a(f'v_xor_b32 v{t+4}, v{t+2}, v{t+3}\nv_lshlrev_b32 v{t+4}, 4, v{t+4}')
    a(f'v_mul_u32_u24 v{t+5}, {64*896}, v{t+1}')
    a(f's_mul_i32 s{sT}, s{sSig}, 896')
    a(f'v_add3_u32 v{vXo}, v{t+5}, v{t+4}, s{sT}')
    a(f'v_xor_b32 v{vXo+1}, 64, v{vXo}')
    a(f'v_add_u32 v{vXo+2}, {2*(458752-1024)}, v{vXo}')
    a(f'v_add_u32 v{vXo+3}, {3*(458752-1024)}, v{vXo+1}')
    a(f'v_add_u32 v{vXo+1}, {1*(458752-1024)}, v{vXo+1}')
    a(f'v_and_b32 v{t+6}, 1, v{t+3}\nv_lshlrev_b32 v{t+6}, 2, v{t+6}\nv_xor_b32 v{t+6}, v{t+6}, v{t+2}\nv_lshlrev_b32 v{t+6}, 4, v{t+6}')
    a(f'v_mul_u32_u24 v{t+7}, 3584, v{t+1}')
    a(f's_mul_i32 s{sT}, s{sI}, {32*3584}\ns_lshl_b32 s{sT2}, s{sCG}, 8\ns_add_u32 s{sT}, s{sT}, s{sT2}\ns_lshl_b32 s{sT2}, s{sJ}, 7\ns_add_u32 s{sT}, s{sT}, s{sT2}')
    a(f'v_add3_u32 v{vWo}, v{t+7}, v{t+6}, s{sT}')
    for i in range(1, 4): a(f'v_add_u32 v{vWo+i}, {i*(8*3584-1024)}, v{vWo}')
    a(f'v_mul_u32_u24 v{t+5}, 896, v{t+1}')
    a(f's_lshl_b32 s{sT}, s{sJ}, 6')
    a(f'v_xor_b32 v{t+6}, s{sT}, v{t+4}')
    a(f's_lshl_b32 s{sT}, s{sCG}, 1\ns_add_u32 s{sT}, s{sT}, s{sJ}\ns_mul_i32 s{sT}, s{sT}, {8*896}')
    a(f'v_add3_u32 v{vDo}, v{t+5}, v{t+6}, s{sT}')
    a(f's_lshl_b32 s{sLx}, s{sW}, 12')
    a(f's_lshl_b32 s{sLw}, s{sJ}, 13\ns_lshl_b32 s{sT}, s{sI}, 12\ns_add_u32 s{sLw}, s{sLw}, s{sT}\ns_add_u32 s{sLw}, s{sLw}, 16384')
    a(f's_lshl_b32 s{sLd}, s{sW}, 10\ns_add_u32 s{sLd}, s{sLd}, 32768')

def p1_addr_read(a):
    t = FR
    a(f'v_and_b32 v{vU}, 31, v{vL}\nv_lshrrev_b32 v{vHH}, 5, v{vL}')
    a(f'v_bfe_u32 v{t}, v{vU}, 1, 3\nv_xor_b32 v{t}, v{t}, v{vHH}')
    a(f'v_lshlrev_b32 v{t+1}, 7, v{vU}')
    a(f's_xor_b32 s{sT}, s{sW}, 1\ns_lshl_b32 s{sT}, s{sT}, 12')
    for jj in range(4):
        a(f'v_xor_b32 v{t+2}, {2*jj}, v{t}\nv_lshl_add_u32 v{t+2}, v{t+2}, 4, v{t+1}')
        a(f'v_add_u32 v{vRb+jj}, s{sLx}, v{t+2}\nv_add_u32 v{vRp+jj}, s{sT}, v{t+2}\nv_add_u32 v{vRd+jj}, 0x8000, v{t+2}')
        for r in (vRb, vRp, vRd): a(f'v_add_u32 v{r+4+jj}, {2*SLOT}, v{r+jj}')
    a(f'v_bfe_u32 v{t}, v{vL}, 2, 2')
    a(f'v_lshl_add_u32 v{t+1}, v{vHH}, 3, v{t}\nv_lshlrev_b32 v{t+1}, 7, v{t+1}')
    a(f'v_lshrrev_b32 v{t}, 1, v{t}\nv_xor_b32 v{t}, s{sI}, v{t}\nv_lshl_add_u32 v{t+1}, v{t}, 6, v{t+1}')
    a(f'v_bfe_u32 v{t}, v{vL}, 4, 1\nv_lshl_add_u32 v{t+1}, v{t}, 5, v{t+1}')
    a(f'v_and_b32 v{t}, 3, v{vL}\nv_lshl_add_u32 v{t+1}, v{t}, 3, v{t+1}')
    a(f's_lshl_b32 s{sT}, s{sJ}, 13\ns_add_u32 s{sT}, s{sT}, 16384')
    a(f'v_add_u32 v{vTa}, s{sT}, v{t+1}\nv_xor_b32 v{vTb}, 64, v{vTa}')
    a(f'v_add_u32 v{vTa+1}, {2*SLOT}, v{vTa}\nv_add_u32 v{vTb+1}, {2*SLOT}, v{vTb}')
def stat_addr():
    return lines(f'v_lshlrev_b32 v{vU8}, 4, v{vU}\nv_add_u32 v{vM8}, -1, v{vHH}') + \
           [f's_lshl_b32 s{sB0}, s{sW}, 7\ns_add_u32 s{sB0}, s{sB0}, {VX+8192}', f'v_lshl_add_u32 v{vZs}, v{vU}, 2, s{sB0}', f'v_lshl_add_u32 v{vH16}, v{vHH}, 4, s{sB0}']

def twiddle_wc(t):
    L = [f'v_cvt_f32_u32 v{t}, v{vU}', f'v_cvt_f32_u32 v{t+1}, v{vHH}', f'v_mul_f32 v{t}, {f2h(1/32)}, v{t}',
         f'v_mul_f32 v{t+1}, 4.0, v{t+1}', f'v_mul_f32 v{t+1}, v{t+1}, v{t}']
    for p in range(8):
        u0 = 16*(p >> 2) + 8*((p & 3) >> 1) + 2*(p & 1)
        L += [f'v_fmamk_f32 v{t+2}, v{t}, {f2h(u0)}, v{t+1}', f'v_fmamk_f32 v{t+3}, v{t}, {f2h(u0+1)}, v{t+1}',
              f'v_cos_f32 v{t+4}, v{t+2}', f'v_cos_f32 v{t+5}, v{t+3}', f'v_sin_f32 v{t+6}, v{t+2}', f'v_sin_f32 v{t+7}, v{t+3}',
              f'v_cvt_pk_bf16_f32 v{WC+p}, v{t+4}, v{t+5}', f'v_cvt_pk_bf16_f32 v{WC+8+p}, -v{t+6}, -v{t+7}']
    return L
def twiddle_tf(t, dst):
    L = []
    for rb in range(2):
        L += [f's_add_u32 s{sT}, s{sT1}, {32*rb}\nv_lshl_add_u32 v{t}, v{vU}, 6, s{sT}', f'v_lshl_add_u32 v{t+1}, v{vHH}, 1, s{sI}',
              f'v_cvt_f32_u32 v{t}, v{t}', f'v_cvt_f32_u32 v{t+1}, v{t+1}', f'v_mul_f32 v{t}, {f2h(1/2048)}, v{t}',
              f'v_mul_f32 v{t+1}, {f2h(8.0)}, v{t+1}', f'v_mul_f32 v{t+1}, v{t+1}, v{t}']
        for jj in range(4):
            for h in range(2):
                k0 = 2*jj + 32*h
                d = dst + 16*rb + 4*jj + 2*h
                L += [f'v_fmamk_f32 v{t+2}, v{t}, {f2h(k0)}, v{t+1}', f'v_fmamk_f32 v{t+3}, v{t}, {f2h(k0+1)}, v{t+1}',
                      f'v_cos_f32 v{t+4}, v{t+2}', f'v_sin_f32 v{t+5}, v{t+2}', f'v_cos_f32 v{t+6}, v{t+3}', f'v_sin_f32 v{t+7}, v{t+3}',
                      f'v_cvt_pk_bf16_f32 v{d}, v{t+4}, v{t+5}', f'v_cvt_pk_bf16_f32 v{d+1}, v{t+6}, v{t+7}']
    return L

def p2_addr_early():
    t = vWt; u, w = sB0, sB1
    L = lines(f'v_lshrrev_b32 v{t+1}, 3, v{vL}\nv_and_b32 v{t+2}, 7, v{vL}\nv_bfe_u32 v{t+3}, v{vL}, 4, 1\nv_lshlrev_b32 v{t+3}, 2, v{t+3}\n'
              f'v_xor_b32 v{t+3}, v{t+3}, v{t+2}\nv_lshlrev_b32 v{t+3}, 4, v{t+3}\nv_mul_u32_u24 v{t+4}, 896, v{t+1}')
    L += [f's_mul_i32 s{u}, s{sW}, {448*896}\ns_lshl_b32 s{w}, s{sCT}, 7\ns_add_u32 s{u}, s{u}, s{w}', f'v_add3_u32 v{vW2}, v{t+4}, v{t+3}, s{u}']
    L += [f'v_add_u32 v{vW2+i}, {i*(7168-1024)}, v{vW2}' for i in range(1, 4)]
    L += lines(f'v_bfe_u32 v{t}, v{vL}, 2, 2\nv_lshl_add_u32 v{t+1}, v{vHH}, 2, v{t}\nv_lshlrev_b32 v{t+1}, 7, v{t+1}\nv_lshrrev_b32 v{t}, 1, v{t}\n'
               f'v_xor_b32 v{t}, s{sJ}, v{t}\nv_lshl_add_u32 v{t+1}, v{t}, 6, v{t+1}\nv_bfe_u32 v{t}, v{vL}, 4, 1\nv_lshl_add_u32 v{t+1}, v{t}, 5, v{t+1}\n'
               f'v_and_b32 v{t}, 3, v{vL}\nv_lshl_add_u32 v{t+1}, v{t}, 3, v{t+1}\ns_mul_i32 s{sArea}, s{sW}, {AREA}\n'
               f'v_add_u32 v{vTra}, s{sArea}, v{t+1}\nv_xor_b32 v{vTrb}, 64, v{vTra}\ns_lshl_b32 s{sStg}, s{sW}, 13\nv_add_u32 v{vSt[1][0]}, s{sStg}, v{t+1}\n'
               f'v_xor_b32 v{vSt[1][1]}, 64, v{vSt[1][0]}\nv_add_u32 v{vSt[0][0]}, {STG[0]}, v{vSt[1][0]}\nv_add_u32 v{vSt[0][1]}, {STG[0]}, v{vSt[1][1]}')
    def vmap(el, e_out, tt_out, sg_out):
        M = [f's_lshl_b32 s{u}, s{sCT}, 6\ns_lshl_b32 s{w}, s{sJ}, 5\ns_add_u32 s{u}, s{u}, s{w}', f'v_add_u32 v{e_out}, s{u}, v{el}', f'v_sub_u32 v{t+6}, 448, v{e_out}',
             f's_sub_u32 s{u}, 32, s{sT1}\ns_and_b32 s{u}, s{u}, 31', f'v_mov_b32 v{tt_out}, s{sT1}', f'v_mov_b32 v{t+7}, s{u}',
             f'v_cmp_lt_u32 vcc, 239, v{e_out}\ns_nop 1\nv_cndmask_b32 v{e_out}, v{e_out}, v{t+6}, vcc\nv_cndmask_b32 v{tt_out}, v{tt_out}, v{t+7}, vcc' +
             (f'\nv_mov_b32 v{t+6}, 0\nv_bfrev_b32 v{t+7}, 1\nv_cndmask_b32 v{sg_out}, v{t+6}, v{t+7}, vcc' if sg_out else '')]
        return M
    L += vmap(vU, t, t+1, vSg)
    L += lines(f'v_lshlrev_b32 v{vVo}, 16, v{t+1}\nv_lshl_add_u32 v{vVo}, v{t}, 4, v{vVo}\nv_lshl_add_u32 v{vVo}, v{vHH}, 15, v{vVo}')
    L += [f's_lshl_b32 s{u}, s{sI}, 14', f'v_add_u32 v{vVo}, s{u}, v{vVo}']
    L += lines(f'v_and_b32 v{t+2}, 48, v{vL}\nv_subrev_u32 v{t+2}, 16, v{t+2}\nv_min_u32 v{t+2}, 31, v{t+2}')
    L += vmap(t+2, t, t+1, None)
    L += lines(f'v_and_b32 v{t}, 0x1f0, v{t}\nv_and_b32 v{t+2}, 15, v{vL}\nv_add_u32 v{t}, v{t}, v{t+2}\nv_lshlrev_b32 v{t}, 3, v{t}\nv_add_u32 v{vPa}, {FLV}, v{t}')
    L += [f's_mul_i32 s{u}, s{sW}, 7\ns_lshr_b32 s{u}, s{u}, 1\ns_lshr_b32 s{w}, s{sT1}, 1\ns_lshl_b32 s{w}, s{w}, 4\ns_add_u32 s{u}, s{u}, s{w}',
          f's_lshl_b32 s{u}, s{u}, 3\ns_add_u32 s{u}, s{u}, {FLH}', f'v_and_b32 v{t}, 3, v{vL}', f'v_lshl_add_u32 v{t}, v{t}, 3, s{u}',
          f'v_cmp_gt_u32 vcc, 16, v{vL}\ns_nop 1\nv_cndmask_b32 v{vPa}, v{vPa}, v{t}, vcc']
    L += [f'v_lshrrev_b32 v{t}, 2, v{vL}', f's_lshl_b32 s{u}, s{sI}, 4', f'v_add_u32 v{t}, s{u}, v{t}']
    L += lines(f'v_and_b32 v{t+1}, 3, v{vL}\nv_mul_u32_u24 v{t+2}, {64*896}, v{t}\nv_lshl_add_u32 v{t+2}, v{t+1}, 4, v{t+2}')
    L += [f's_lshl_b32 s{sRi}, s{sI}, 5\ns_add_u32 s{sRi}, s{sRi}, s{sT1}\ns_mul_i32 s{u}, s{sT1}, 896\ns_lshl_b32 s{w}, s{sCT}, 7',
          f's_add_u32 s{u}, s{u}, s{w}\ns_lshl_b32 s{w}, s{sJ}, 6\ns_add_u32 s{u}, s{u}, s{w}\ns_lshl_b32 s{sRi}, s{sRi}, 9',
          f'v_add_u32 v{vOo}, s{u}, v{t+2}', f'v_add_u32 v{vOo+1}, {32*896}, v{vOo}', f'v_lshlrev_b32 v{vRo}, 4, v{t}',
          f's_mul_i32 s{sHb}, s{sT1}, {HB_SIG}\ns_mul_i32 s{u}, s{sW}, {28*1024}\ns_add_u32 s{sHb}, s{sHb}, s{u}']
    return L

def p1_reads(n):
    g, jj = divmod(n, 4)
    half, so = (g % 4) // 2, (g % 2) * SLOT
    f = FR + 20 * (n & 1)
    return [f'ds_read_b64_tr_b16 {vr(f+8,2)}, v{vTa+half} offset:{so + jj*2048}',
            f'ds_read_b64_tr_b16 {vr(f+10,2)}, v{vTa+half} offset:{so + jj*2048 + 512}',
            f'ds_read_b128 {vr(f)}, v{vRb+4*half+jj} offset:{so}',
            f'ds_read_b128 {vr(f+4)}, v{vRp+4*half+jj} offset:{so}',
            f'ds_read_b64_tr_b16 {vr(f+12,2)}, v{vTb+half} offset:{so + jj*2048}',
            f'ds_read_b64_tr_b16 {vr(f+14,2)}, v{vTb+half} offset:{so + jj*2048 + 512}',
            f'ds_read_b128 {vr(f+16)}, v{vRd+4*half+jj} offset:{so}']
def p1_mfmas(n):
    f = FR + 20 * (n & 1)
    def m(acc, A, B): return mfma(vr(acc, 16), vr(A), vr(B), vr(acc, 16) if n else '0')
    return [m(ACC, f+8, f), m(ACC+16, f+8, f+4), m(ACC+32, f+12, f), m(ACC+48, f+12, f+4), m(ACC+64, f, f+16)]

vZsg, vXw, vXr, vVs, vHo = 78, 79, 80, 81, 82
sHA0, sHA1, sHB0, sHB1 = 4, 5, 8, 9
def z_addr(t, u, w):
    L = lines(f'v_bfe_u32 v{t}, v{vL}, 4, 1\nv_xor_b32 v{vZsg}, 1, v{t}\nv_mul_u32_u24 v{vZsg}, 0x8000, v{vZsg}\nv_lshl_or_b32 v{vZsg}, v{vZsg}, 16, v{vZsg}\n'
              f'v_lshl_add_u32 v{t}, v{vHH}, 2, v{t}\nv_lshlrev_b32 v{t}, 8, v{t}\nv_and_b32 v{t+1}, 15, v{vL}\nv_lshl_add_u32 v{t}, v{t+1}, 4, v{t}')
    L += [f's_lshl_b32 s{u}, s{sW}, 2\ns_add_u32 s{u}, s{u}, {VX}', f'v_add_u32 v{vXw}, s{u}, v{t}',
          f's_lshl_b32 s{u}, s{sW}, 11\ns_add_u32 s{u}, s{u}, {VX}', f'v_lshlrev_b32 v{vHo}, 4, v{vL}', f'v_add_u32 v{vXr}, s{u}, v{vHo}']
    L += lines(f'v_lshrrev_b32 v{t}, 4, v{vL}\nv_lshlrev_b32 v{t}, 16, v{t}\nv_lshl_add_u32 v{t}, v{t+1}, 4, v{t}')
    L += [f's_lshl_b32 s{u}, s{sW}, 19\ns_lshl_b32 s{w}, s{sRT}, 12\ns_add_u32 s{u}, s{u}, s{w}\ns_lshl_b32 s{w}, s{sCG}, 8\ns_add_u32 s{u}, s{u}, s{w}',
          f'v_add_u32 v{vVs}, s{u}, v{t}']
    return L
def h_addr(u, w):
    return [f's_lshl_b32 s{u}, s{sCG}, 3\ns_lshl_b32 s{w}, s{sJ}, 2\ns_add_u32 s{u}, s{u}, s{w}\ns_lshl_b32 s{w}, s{sI}, 1\ns_add_u32 s{u}, s{u}, s{w}',
            f's_lshl_b32 s{u}, s{u}, 10\ns_mul_i32 s{w}, s{sSig}, {HB_SIG}\ns_add_u32 s{sHA0}, s{u}, s{w}',
            f's_xor_b32 s{w}, s{sSig}, 1\ns_mul_i32 s{w}, s{w}, {HB_SIG}\ns_add_u32 s{sHA1}, s{u}, s{w}',
            f's_xor_b32 s{sHB0}, s{sHA0}, 2048\ns_xor_b32 s{sHB1}, s{sHA1}, 2048']

def hblock_list(a, acc, so):
    L = [f'v_cvt_pk_bf16_f32 v{acc+p}, v{acc+2*p}, v{acc+2*p+1}' for p in range(8)]
    L += [f'v_pk_max_i16 v{acc+p}, v{acc+p}, 0' for p in range(8)] if not opt('maxf', 0) else []
    L.append(lambda: a.vmem(f'buffer_store_dwordx4 {vr(acc)}, v{vHo}, {sr(SH)}, s{so} offen {STF}', 'ST'))
    L.append(lambda: a.vmem(f'buffer_store_dwordx4 {vr(acc+4)}, v{vHo}, {sr(SH)}, s{so} offen offset:1024 {STF}', 'ST'))
    if opt('maxf', 0): L = [f'v_max_f32 v{acc+r}, 0, v{acc+r}' for r in range(16)] + L
    return L
def early_epilogue(a, lds, wait_lg):
    ZA = ACC + 64
    T1 = [FR+8, FR+16]; T2 = [FR+28, FR+36]
    b1 = lambda p: T1[p >> 2] + (p & 3)
    b2 = lambda p: T2[p >> 2] + (p & 3)
    L = ['s_nop 3'] + hblock_list(a, ACC, sHA0)
    L += [f'v_mul_f32 v{ZA+r}, v{ZA+r}, v{ZR+r}' for r in range(16)]
    L += [f'v_cvt_pk_bf16_f32 v{b1(p)}, v{ZA+2*p}, v{ZA+2*p+1}' for p in range(8)]
    L += [(lambda p=p: lds(f'ds_swizzle_b32 v{b2(p)}, v{b1(p)} offset:0x401f', 'sw')) for p in range(8)]
    L += [mfma(vr(ZA,16), vr(WC), vr(T1[0]), '0'), mfma(vr(ZA,16), vr(WC+4), vr(T1[1]), vr(ZA,16))]
    L += [lambda: wait_lg('sw')] + [f'v_xor_b32 v{b2(p)}, v{b2(p)}, v{vZsg}' for p in range(8)] + ['s_nop 1']
    L += [mfma(vr(ZA,16), vr(WC+8), vr(T2[0]), vr(ZA,16)), mfma(vr(ZA,16), vr(WC+12), vr(T2[1]), vr(ZA,16))]
    L += hblock_list(a, ACC+16, sHA1)
    L += [f'v_permlane16_swap_b32 v{ZA+2*p}, v{ZA+2*p+1}' for p in range(8)] + ['s_nop 1']
    L += [f'v_cvt_pk_bf16_f32 v{b1(p)}, v{ZA+2*p}, v{ZA+2*p+1}' for p in range(8)]
    L += [(lambda p=p: lds(f'ds_write_b32 v{vXw}, v{b1(p)} offset:{((2*p & 3) + 8*(p >> 1))*256}', 'xw')) for p in range(8)]
    L += [lambda: (wait_lg('xw'), a('s_barrier'))]
    L += [lambda: lds(f'ds_read_b128 {vr(T2[0])}, v{vXr}', 'xr'), lambda: lds(f'ds_read_b128 {vr(T2[1])}, v{vXr} offset:1024', 'xr')]
    L += [f's_mov_b32 s{sT}, {4*65536}', 'MARK']
    L += [lambda: wait_lg('xr'),
          lambda: a.vmem(f'buffer_store_dwordx4 {vr(T2[0])}, v{vVs}, {sr(SV)}, 0 offen {STF}', 'ST'),
          lambda: a.vmem(f'buffer_store_dwordx4 {vr(T2[1])}, v{vVs}, {sr(SV)}, s{sT} offen {STF}', 'ST')]
    L.remove('MARK')
    return L
def own_touch():
    if opt('tfull', 0):
        return (f's_and_b32 s{sT}, s{sHA0}, 0xfffff000\nv_and_b32 v{vP+1}, 31, v{vL}\nv_lshlrev_b32 v{vP+1}, 7, v{vP+1}\ns_mov_b64 exec, 0xffffffff\nbuffer_load_dword v{vP}, v{vP+1}, {sr(SH)}, s{sT} offen\n'
                f's_and_b32 s{sT}, s{sHA1}, 0xfffff000\nbuffer_load_dword v{vP}, v{vP+1}, {sr(SH)}, s{sT} offen\n'
                f's_mov_b32 exec_lo, 0x01010101\ns_mov_b32 exec_hi, 0x01010101\nbuffer_load_dword v{vP}, v{vVs}, {sr(SV)}, 0 offen\n'
                f's_mov_b32 s{sT}, {4*65536}\nbuffer_load_dword v{vP}, v{vVs}, {sr(SV)}, s{sT} offen\ns_mov_b64 exec, -1', 'TL')
    return (f's_mov_b64 exec, 1\nbuffer_load_dword v{vP}, v{vHo}, {sr(SH)}, s{sHA0} offen\nbuffer_load_dword v{vP}, v{vHo}, {sr(SH)}, s{sHA1} offen\n'
            f's_mov_b32 exec_lo, 0x00010001\ns_mov_b32 exec_hi, 0x00010001\nbuffer_load_dword v{vP}, v{vVs}, {sr(SV)}, 0 offen\n'
            f's_mov_b32 s{sT}, {4*65536}\nbuffer_load_dword v{vP}, v{vVs}, {sr(SV)}, s{sT} offen\ns_mov_b64 exec, -1', 'TL')
SPF = 20
vPf = 96
def pf_addr(a):
    M1 = opt('pm1', 2)
    assert M1 == 2
    t = vWt
    l1, l2, l3, dn = a.label('pf'), a.label('pf'), a.label('pf'), a.label('pf')
    a(f's_cmp_lg_u32 s{sW}, 0\ns_cbranch_scc1 {l1}')
    a(f'v_mul_u32_u24 v{t}, 7, v{vL}\nv_add_u32 v{t}, s{sCT}, v{t}\ns_mul_i32 s{sT}, s{sRT}, {2*896}')
    def xoff(dst, src, lg, gbase):
        a(f'v_lshrrev_b32 v{t+2}, {lg+1}, v{src}\nv_mul_u32_u24 v{t+2}, {32*896}, v{t+2}\nv_bfe_u32 v{t+3}, v{src}, {lg}, 1\nv_mul_u32_u24 v{t+3}, 7, v{t+3}')
        a(f'v_and_b32 v{t+4}, {(1 << lg) - 1}, v{src}\nv_add3_u32 v{t+3}, v{t+3}, v{t+4}, {gbase}\nv_lshl_add_u32 v{t+2}, v{t+3}, 7, v{t+2}\nv_add_u32 v{dst}, s{sT}, v{t+2}')
    xoff(vPf, t, 1, 1); xoff(vPf+1, t, 2, 3)
    a(f'v_add_u32 v{t}, 448, v{t}')
    xoff(vPf+2, t, 2, 3)
    a(f's_branch {dn}')
    a(f'{l1}:')
    a(f's_cmp_eq_u32 s{sW}, 3\ns_cbranch_scc1 {l3}')
    a(f'v_lshrrev_b32 v{t}, 1, v{vL}\nv_mul_u32_u24 v{t}, {4*3584}, v{t}\nv_and_b32 v{t+1}, 1, v{vL}\nv_lshl_add_u32 v{t}, v{t+1}, 7, v{t}')
    a(f's_mul_i32 s{sT}, s{sT3}, 3584\ns_lshl_b32 s{sT2}, s{sCG}, 8\ns_add_u32 s{sT}, s{sT}, s{sT2}\nv_add_u32 v{t}, s{sT}, v{t}')
    a(f's_mul_i32 s{sT}, s{sI}, {128*3584}\ns_add_u32 s{sT}, s{sT}, {192*3584}\ns_lshl_b32 s{sT2}, s{sI}, 31\ns_add_u32 s{sT2}, s{sT2}, {64*3584}')
    a(f'v_add_u32 v{vPf}, s{sT2}, v{t}\nv_add_u32 v{vPf+1}, s{sT}, v{t}\nv_bfrev_b32 v{vPf+2}, 1')
    a(f's_branch {dn}')
    a(f'{l3}:')
    a(f's_lshl_b32 s{sT}, s{sCG}, 1\ns_and_b32 s{sT2}, s{sT3}, 1\ns_add_u32 s{sT}, s{sT}, s{sT2}\ns_mul_i32 s{sT}, s{sT}, {8*896}')
    a(f'v_and_b32 v{t}, 7, v{vL}\nv_mul_u32_u24 v{t}, 896, v{t}\nv_add_u32 v{t}, s{sT}, v{t}')
    a(f'v_bfe_u32 v{t+1}, v{vL}, 3, 1\nv_lshl_add_u32 v{vPf}, v{t+1}, 7, v{t}\nv_add_u32 v{vPf}, 128, v{vPf}')
    a(f'v_bfe_u32 v{t+1}, v{vL}, 3, 2\nv_lshl_add_u32 v{vPf+1}, v{t+1}, 7, v{t}\nv_add_u32 v{vPf+1}, 384, v{vPf+1}\nv_bfrev_b32 v{vPf+2}, 1')
    a(f'{dn}:')
def pf_srd(a):
    a(f's_cmp_ge_u32 s{sT3}, 2\ns_cselect_b32 s{SPF}, s10, s8\ns_cselect_b32 s{SPF+1}, s11, s9\ns_mov_b32 s{SPF+2}, {448*896}\ns_mov_b32 s{SPF+3}, 0x20000')
    a(f's_cmp_eq_u32 s{sW}, 3\ns_cselect_b32 s{SPF}, s{SPF}, s12\ns_cselect_b32 s{SPF+1}, s{SPF+1}, s13\ns_cselect_b32 s{SPF+2}, s{SPF+2}, {448*3584}')
    a(f's_cmp_eq_u32 s{sW}, 0\ns_cselect_b32 s{SPF}, s4, s{SPF}\ns_cselect_b32 s{SPF+1}, s5, s{SPF+1}\ns_cselect_b32 s{SPF+2}, {2048*896}, s{SPF+2}')
def pf_load(i): return (f'buffer_load_dword v{vPf+3}, v{vPf+i}, {sr(SPF)}, 0 offen', 'PF')
def rank1():
    return [mfma(vr(ACC,16), vr(CA), vr(MO), vr(ACC,16)), mfma(vr(ACC+16,16), vr(CA), vr(MP), vr(ACC+16,16)),
            mfma(vr(ACC+32,16), vr(CB), vr(MO), vr(ACC+32,16)), mfma(vr(ACC+48,16), vr(CB), vr(MP), vr(ACC+48,16)),
            mfma(vr(ACC+64,16), vr(MO), vr(CZ), vr(ACC+64,16))]
TWI = (f'v_and_b32 v{vP}, 15, v{vL}\nv_lshlrev_b32 v{vP}, 7, v{vP}\nbuffer_load_dword v{vP+1}, v{vP}, {sr(SW2)}, s{sA2} offen', 'TW')
def p1_loop(a):
    lg = []
    def lds(x, tag):
        a(x); lg.append(tag)
    def wait_lg(tag=None):
        if tag is None:
            if lg: a('s_waitcnt lgkmcnt(0)'); lg.clear()
            return
        if tag not in lg: return
        idx = max(i for i, x in enumerate(lg) if x == tag)
        a(f's_waitcnt lgkmcnt({min(len(lg)-1-idx, 15)})')
        del lg[:idx+1]
    RT = ['m0', 'm0', 'm0', 'm1', 'm2', 'm2', 'm4']
    FG = opt('fg', 5); FINE = opt('fine', 1)
    a.wait_vm('G0')
    a('s_barrier')
    stamp(a, 1); stamp(a, 1, '1'); cstamp(a, 1, '8')
    for r, t_ in zip(p1_reads(0), RT): lds(r, f'0{t_}')
    a.lgw = wait_lg
    q = [x for g_ in range(2 + opt('gpre', 0), 4) for x in dma_group('A', g_)]
    if opt('pf', 0):
        i2 = max(i for i, x in enumerate(q) if x[1] == 'G2') + 1 if not opt('gpre', 0) else 0
        i2 = 0 if opt('pf', 0) == 2 else i2
        q[i2:i2] = [pf_load(1), pf_load(2)] + ([TWI] if TW == 1 else [])
    vq = stat_addr() + (z_addr(vWt, sB0, sB1) + h_addr(sB0, sB1) if opt('tln', 6) >= 0 else []) + p2_addr_early() + twiddle_wc(vWt) + wg_flag_prep(vFl, sB0, sB1)
    wq = [x for q_ in range(NSTG) for x in w2_group(q_)]
    midgroup = [False]
    SK = opt('sk', 28)
    seq = [(n, 'AZB') for n in range(SK)] + [(n, 'AZ') for n in range(SK, 28)] + [(n, 'B') for n in range(SK, 28)]
    def reads(pos):
        n, kind = seq[pos]
        g, jj = divmod(n, 4)
        half, so = (g % 4) // 2, (g % 2) * SLOT
        f = FR + 20 * (pos & 1)
        wa = [f'ds_read_b64_tr_b16 {vr(f+8+2*p,2)}, v{vTa+half} offset:{so + jj*2048 + 512*p}' for p in range(2)]
        wb = [f'ds_read_b64_tr_b16 {vr(f+12+2*p,2)}, v{vTb+half} offset:{so + jj*2048 + 512*p}' for p in range(2)]
        x0 = f'ds_read_b128 {vr(f)}, v{vRb+4*half+jj} offset:{so}'
        x1 = f'ds_read_b128 {vr(f+4)}, v{vRp+4*half+jj} offset:{so}'
        d = f'ds_read_b128 {vr(f+16)}, v{vRd+4*half+jj} offset:{so}'
        if kind == 'AZB': L = [(wa[0], 0), (wa[1], 0), (x0, 0), (x1, 1), (wb[0], 2), (wb[1], 2), (d, 4)]
        elif kind == 'AZ': L = [(wa[0], 0), (wa[1], 0), (x0, 0), (x1, 1), (d, 2)]
        else: L = [(wb[0], 0), (wb[1], 0), (x0, 0), (x1, 1)]
        return [(x, f'{pos}m{m_}') for x, m_ in L]
    def mfmas(pos):
        n, kind = seq[pos]
        f = FR + 20 * (pos & 1)
        def m(acc, A, B): return mfma(vr(acc, 16), vr(A), vr(B), vr(acc, 16) if n else '0')
        A_ = [m(ACC, f+8, f), m(ACC+16, f+8, f+4)]; B_ = [m(ACC+32, f+12, f), m(ACC+48, f+12, f+4)]; Z_ = [m(ACC+64, f, f+16)]
        if opt('mord', 1): B_ = B_[::-1]
        return {'AZB': A_ + B_ + Z_, 'AZ': A_ + Z_, 'B': B_}[kind]
    yq = []
    for pos, (n, kind) in enumerate(seq):
        g, jj = divmod(n, 4)
        first = kind != 'B'
        if STAMP and LST == '7' and 0 <= pos - opt('s0', 8) <= 8: a(f's_memtime s[{STB+2*(1+pos-opt("s0", 8))}:{STB+2*(1+pos-opt("s0", 8))+1}]')
        BG = opt('bg', 2)
        def group_barrier():
            assert not any(t == f'G{g+1}' for _, t in q), (n, q)
            wait_lg()
            a.wait_vm(f'G{g+1}')
            a('s_barrier')
            stamp(a, 2 + g, '1')
            if g == 1: cstamp(a, 1)
            if g == 5: cstamp(a, 3)
            if g + 4 < 7: q.extend(dma_group('A', g + 4))
        bar = first and jj == 3 and g < 6
        if bar and BG == 0: group_barrier()
        if first and TW > 1 and n == TW:
            q[:0] = [(f'v_and_b32 v{vP}, 15, v{vL}\nv_lshlrev_b32 v{vP}, 7, v{vP}\nbuffer_load_dword v{vP+1}, v{vP}, {sr(SW2)}, s{sA2} offen', 'TW')]
        if first and n in (opt('tln', 6), opt('tln2', 99)):
            assert not any(x.startswith(f'v_add_u32 v{vVs},') or f's{sHA1}, s' in x for x in vq), 'addresses not ready'
            q[:0] = [own_touch()]
        if first and n == opt('tlo', 99):
            assert not any(x.startswith(f'v_add_u32 v{vOo+1},') for x in vq), 'addresses not ready'
            q[:0] = [(f'buffer_load_dword v{vP}, v{vOo}, {sr(SO)}, 0 offen\nbuffer_load_dword v{vP}, v{vOo+1}, {sr(SO)}, 0 offen', 'TL')]
        if first and n == POLL0: q[:0] = stat_loads('A')
        chk = first and n == POLL0 + PCHK
        if chk: assert not any(t == 'SL' for _, t in q)
        R1 = rank1()
        if first and n == 27:
            assert not any(x in vq for x in stat_fix('A'))
            for m in (R1 if SK == 28 else R1[:2] + R1[4:]): a(m)
        if kind == 'B' and n == SK:
            for x in vq: a(x)
            vq.clear()
            assert SK >= 20
            stamp(a, 7, '1')
            for m in R1[2:4]: a(m)
            yq = early_epilogue(a, lds, wait_lg)
        rd = reads(pos + 1) if pos + 1 < len(seq) else []
        nld = 0; wn = 0
        rate = RATE[pos % len(RATE)]
        ms = mfmas(pos)
        for mi, m in enumerate(ms):
            last = mi == len(ms) - 1
            wait_lg(f'{pos}m{mi}')
            a(m)
            used = 0
            if bar and mi + 1 == BG: group_barrier(); used += 2
            if chk and mi == 0: stat_check(a, 'A'); vq[:0] = stat_fix('A'); used += 9
            for _ in range(7 if last else (opt('rpg', 3) if not (bar and BG) else 4)):
                if rd and not (bar and mi + 1 < BG): r, t_ = rd.pop(0); lds(r, t_); used += 1
            if mi >= len(ms) - 3:
                cnt = 0
                while nld < rate and (cnt < 1 or last):
                    wok = pos >= W0 and wq and not (bar and mi + 1 < BG) and wn < WPS[pos % len(WPS)] and pos >= 16 + 4 * int(wq[0][1][1])
                    if q: ins = q.pop(0)
                    elif wok: ins = wq.pop(0); wn += 1
                    else: break
                    a.emit(ins); used += cost(ins[0])
                    if ins[1]: nld += 0.5 if ins[1] == 'SL' else 1; cnt += 1
            while vq and used + min(cost(vq[0]), 3) <= FG and not (f's{sArea}, s' in vq[0] and any(t_ == 'PF' for _, t_ in q)):
                x = vq.pop(0); used += cost(x)
                if x.startswith('ds_'): lds(x, 'x')
                else: a(x)
            while yq and used < opt('yg', 7):
                x = yq.pop(0); used += 1
                if callable(x): x()
                else: a(x)
        assert not rd
    a.yq = yq
    assert not vq and not q, vq
    stamp(a, 2); stamp(a, 8, '1'); stamp(a, 1, '3'); stamp(a, 1, '5'); cstamp(a, 3, '8')
    return wq

def p1_loop_bc(a, role):
    def regs(g): return FR if g % 2 == 0 else ACC + 16
    def reads(g):
        half, so = (g % 4) // 2, (g % 2) * SLOT
        f = regs(g); L = []
        for jj in range(4):
            if role == 'B':
                L.append(f'ds_read_b128 {vr(f+8*jj)}, v{vRb+4*half+jj} offset:{so}')
                L.append(f'ds_read_b128 {vr(f+8*jj+4)}, v{vRd+4*half+jj} offset:{so}')
            else:
                L.append(f'ds_read_b64_tr_b16 {vr(f+8*jj,2)}, v{vTa+half} offset:{so + jj*2048}')
                L.append(f'ds_read_b64_tr_b16 {vr(f+8*jj+2,2)}, v{vTa+half} offset:{so + jj*2048 + 512}')
        return L
    a.wait_vm('G0'); a('s_barrier')
    if role == 'C': stamp(a, 1)
    for r in reads(0): a(r)
    if role == 'C':
        for ins in dma_group(role, 3): a.emit(ins)
    for g in range(7):
        a('s_waitcnt lgkmcnt(0)')
        if g < 6:
            a.wait_vm(f'G{g+1}'); a('s_barrier')
            for r in reads(g + 1): a(r)
            if g + 4 < 7:
                for ins in dma_group(role, g + 4): a.emit(ins)
            if role == 'B' and g == 4:
                for ins in stat_loads('B'): a.emit(ins)
        f = regs(g)
        for jj in range(4):
            n = 4*g + jj
            if role == 'B': a(mfma(vr(ACC+64,16), vr(f+8*jj), vr(f+8*jj+4), vr(ACC+64,16) if n else '0'))
            else: a(mfma(vr(ACC,16), vr(TF), vr(f+8*jj), vr(ACC,16) if n else '0'))
    if role == 'C': stamp(a, 2)

ZA, B1, B2 = ACC + 64, FR, FR + 8
def z1(a):
    for r in range(16): a(f'v_mul_f32 v{ZA+r}, v{ZA+r}, v{ZR+r}')
    for p in range(8): a(f'v_cvt_pk_bf16_f32 v{B1+p}, v{ZA+2*p}, v{ZA+2*p+1}')
    for p in range(8): a(f'ds_swizzle_b32 v{B2+p}, v{B1+p} offset:0x401f')
    a(mfma(vr(ZA,16), vr(WC), vr(B1), '0'))
    a(mfma(vr(ZA,16), vr(WC+4), vr(B1+4), vr(ZA,16)))
def z2(a):
    a('s_waitcnt lgkmcnt(0)')
    for p in range(8): a(f'v_xor_b32 v{B2+p}, v{B2+p}, v{vZsg}')
    a('s_nop 1')
    a(mfma(vr(ZA,16), vr(WC+8), vr(B2), vr(ZA,16)))
    a(mfma(vr(ZA,16), vr(WC+12), vr(B2+4), vr(ZA,16)))
def z3(a):
    for p in range(8): a(f'v_permlane16_swap_b32 v{ZA+2*p}, v{ZA+2*p+1}')
    a('s_nop 1')
    for p in range(8): a(f'v_cvt_pk_bf16_f32 v{B1+p}, v{ZA+2*p}, v{ZA+2*p+1}')
    for p in range(8):
        t1b = (2*p & 3) + 8 * (p >> 1)
        a(f'ds_write_b32 v{vXw}, v{B1+p} offset:{t1b*256}')
def z4a(a):
    a('s_waitcnt lgkmcnt(0)\ns_barrier')
    a(f'ds_read_b128 {vr(B2)}, v{vXr}\nds_read_b128 {vr(B2+4)}, v{vXr} offset:1024')
def z4b(a):
    a(f's_mov_b32 s{sT}, {4*65536}')
    a('s_waitcnt lgkmcnt(0)')
    a.vmem(f'buffer_store_dwordx4 {vr(B2)}, v{vVs}, {sr(SV)}, 0 offen {STF}', 'ST')
    a.vmem(f'buffer_store_dwordx4 {vr(B2+4)}, v{vVs}, {sr(SV)}, s{sT} offen {STF}', 'ST')

def gen():
    a = Asm()
    a('s_cmp_ge_u32 s2, 256\ns_cbranch_scc1 Lend')
    a('s_load_dwordx2 s[4:5], s[0:1], 0')
    a('s_load_dwordx4 s[8:11], s[0:1], 24')
    a('s_load_dwordx4 s[12:15], s[0:1], 48')
    a('s_load_dwordx2 s[16:17], s[0:1], 64')
    a('s_load_dwordx2 s[18:19], s[0:1], 80')
    stamp(a, 0)
    CPF = opt('cpf', 1)
    if CPF:
        a('s_getpc_b64 s[22:23]')
        a('Lpc:')
        a(f's_bfe_u32 s3, s2, 0x30003\ns_lshl_b32 s3, s3, 12')
        a(f'v_lshrrev_b32 v{vP}, 6, v0\nv_lshlrev_b32 v{vP}, 10, v{vP}\nv_and_b32 v{vP+1}, 7, v0\nv_lshl_add_u32 v{vP}, v{vP+1}, 7, v{vP}\nv_add_u32 v{vP}, s3, v{vP}')
        a(f'v_min_u32 v{vP}, Lend-Lpc, v{vP}')
        a.vmem(f'global_load_dword v{vP+1}, v{vP}, s[22:23]', 'CP')
    a(f'v_lshrrev_b32 v{FR}, 6, v0\nv_and_b32 v{vL}, 63, v0')
    a(f'v_readfirstlane_b32 s{sW}, v{FR}')
    sX8, sN = sA3, sA4
    a(f's_and_b32 s{sX8}, s2, 7\ns_lshr_b32 s{sN}, s2, 3')
    a(f's_and_b32 s{sT}, s{sX8}, 3\ns_lshr_b32 s{sT2}, s{sX8}, 2')
    a(f's_lshr_b32 s{sI}, s{sW}, 1\ns_and_b32 s{sJ}, s{sW}, 1')
    a(f's_cmp_ge_u32 s{sN}, 28\ns_cbranch_scc1 LroleBC')
    def sigma(): a(f's_lshl_b32 s{sSig}, s{sRT}, 1\ns_add_u32 s{sSig}, s{sSig}, s{sJ}\ns_lshl_b32 s{sT}, s{sI}, 5\ns_add_u32 s{sSig}, s{sSig}, s{sT}')
    def p1_srds():
        a('s_waitcnt lgkmcnt(0)')
        srd(a, SX, 4, 2048*896)
        a(f's_cmp_ge_u32 s{sW}, 2')
        a(f's_cselect_b32 s{SD}, s10, s8\ns_cselect_b32 s{SD+1}, s11, s9\ns_mov_b32 s{SD+2}, {448*896}\ns_mov_b32 s{SD+3}, 0x20000')
        srd(a, SW, 12, 448*3584)
    def other_srds():
        srd(a, SM, 18, SM_SIZE, SM_OFF)
        a(f's_load_dwordx2 s[{sTag}:{sTag+1}], s[{SM}:{SM+1}], {EPO}')
        srd(a, SH, 18, HB_SIZE, WS0)
        srd(a, SV, 18, VB_SIZE, VB_OFF)

    a(f's_lshl_b32 s{sRT}, s{sT}, 2\ns_and_b32 s{sT3}, s{sN}, 3\ns_add_u32 s{sRT}, s{sRT}, s{sT3}\ns_lshr_b32 s{sCT}, s{sN}, 2')
    a(f's_mul_i32 s{sCG}, s{sT2}, 7\ns_add_u32 s{sCG}, s{sCG}, s{sCT}')
    a(f's_lshl_b32 s{sG0}, s{sT3}, 1\ns_add_u32 s{sG0}, s{sG0}, s{sCT}\ns_sub_u32 s{sB0}, s{sG0}, 7\ns_cselect_b32 s{sG0}, s{sG0}, s{sB0}')
    if not ROT: a(f's_mov_b32 s{sG0}, 0')
    sCT1 = sCT
    if opt('map2', 0):
        a(f's_mov_b32 s{sB1}, s{sG0}')
        a(f's_and_b32 s{sA0}, s{sX8}, 1\ns_and_b32 s{sA1}, s{sN}, 7\ns_lshr_b32 s{sCT}, s{sN}, 3')
        a(f's_lshl_b32 s{sG0}, s{sCT}, 1\ns_add_u32 s{sG0}, s{sG0}, s{sA1}')
        a(f's_lshl_b32 s{sB0}, s{sA1}, 1\ns_lshl_b32 s{sA0}, s{sA0}, 2\ns_add_u32 s{sT1}, s{sA1}, s{sA0}\ns_add_u32 s{sA0}, s{sA0}, s{sCT}')
        a(f's_cmp_eq_u32 s{sCT}, 3\ns_cselect_b32 s{sCT}, 3, s{sA0}\ns_cselect_b32 s{sA1}, s{sT1}, s{sA1}\ns_cselect_b32 s{sG0}, s{sB0}, s{sG0}')
        a(f's_sub_u32 s{sB0}, s{sG0}, 7\ns_cselect_b32 s{sG0}, s{sG0}, s{sB0}')
        a(f's_lshr_b32 s{sT1}, s{sX8}, 1\ns_lshl_b32 s{sT1}, s{sT1}, 2\ns_lshr_b32 s{sB0}, s{sA1}, 1\ns_add_u32 s{sT1}, s{sT1}, s{sB0}')
        a(f's_sub_u32 s{sB0}, 32, s{sT1}\ns_cmp_eq_u32 s{sT1}, 0\ns_cselect_b32 s{sB0}, 16, s{sB0}')
        a(f's_bitcmp1_b32 s{sA1}, 0\ns_cselect_b32 s{sT1}, s{sB0}, s{sT1}')
        assert ROT1 in (7, 4) and not XOFF
        if ROT1 == 4: a(f's_lshr_b32 s{sB1}, s{sN}, 2\ns_add_u32 s{sB1}, s{sB1}, s{sT3}\ns_and_b32 s{sB1}, s{sB1}, 3\ns_lshl_b32 s{sB1}, s{sB1}, 1')
    else:
        a(f's_lshl_b32 s{sT1}, s{sX8}, 1\ns_lshr_b32 s{sB0}, s{sT3}, 1\ns_add_u32 s{sT1}, s{sT1}, s{sB0}\ns_sub_u32 s{sB0}, 32, s{sT1}\ns_cmp_eq_u32 s{sT1}, 0\ns_cselect_b32 s{sB0}, 16, s{sB0}')
        a(f's_bitcmp1_b32 s{sT3}, 0\ns_cselect_b32 s{sT1}, s{sB0}, s{sT1}')
    if XOFF: a(f's_add_u32 s{sG0}, s{sG0}, s{sX8}\ns_sub_u32 s{sB0}, s{sG0}, 7\ns_cselect_b32 s{sG0}, s{sG0}, s{sB0}\ns_sub_u32 s{sB0}, s{sG0}, 7\ns_cselect_b32 s{sG0}, s{sG0}, s{sB0}')
    if opt('map2', 0): pass
    elif ROT1 == 7: a(f's_mov_b32 s{sB1}, s{sG0}')
    elif ROT1 == 4: a(f's_add_u32 s{sB1}, s{sCT}, s{sT3}\ns_and_b32 s{sB1}, s{sB1}, 3\ns_lshl_b32 s{sB1}, s{sB1}, 1')
    elif ROT1 == 2: a(f's_add_u32 s{sB1}, s{sCT}, s{sT3}\ns_and_b32 s{sB1}, s{sB1}, 1\ns_mul_i32 s{sB1}, s{sB1}, 3')
    elif ROT1 == 3: a(f's_add_u32 s{sB1}, s{sCT}, s{sT3}\ns_mul_i32 s{sB0}, s{sB1}, 43\ns_lshr_b32 s{sB0}, s{sB0}, 7\ns_mul_i32 s{sB0}, s{sB0}, 3\ns_sub_u32 s{sB1}, s{sB1}, s{sB0}\ns_lshl_b32 s{sB1}, s{sB1}, 1')
    else: a(f's_mov_b32 s{sB1}, 0')
    a(f's_mul_i32 s{sOnes}, s{sX8}, 28\ns_add_u32 s{sOnes}, s{sOnes}, s{sN}\ns_lshl_b32 s{sOnes}, s{sOnes}, 2\ns_add_u32 s{sOnes}, s{sOnes}, s{sW}\ns_mul_i32 s{sA2}, s{sOnes}, {14*128}')
    PF = opt('pf', 0)
    sigma(); p1_addr_dma(a)
    if PF: pf_addr(a)
    p1_srds()
    if PF: pf_srd(a)
    a(f's_mov_b32 s{sG1}, s{sB1}')
    def tw():
        srd(a, SW2, 14, 1792*896)
        a.vmem(f'v_and_b32 v{vt}, 15, v{vL}\nv_lshlrev_b32 v{vt}, 7, v{vt}\nbuffer_load_dword v{vP+1}, v{vt}, {sr(SW2)}, s{sA2} offen', 'TW')
    if TW == -3: tw()
    for ins in dma_group('A', 0): a.emit(ins)
    if PF: a.emit(pf_load(0))
    if TW == -2: tw()
    TLN = opt('tln', 6)
    def early_touch():
        srd(a, SH, 18, HB_SIZE, WS0); srd(a, SV, 18, VB_SIZE, VB_OFF)
        a.emit(own_touch())
    p1_addr_read(a)
    if TLN < 0:
        for x in z_addr(vWt, sB0, sB1) + h_addr(sB0, sB1): a(x)
    if TLN == -2: early_touch()
    for ins in dma_group('A', 1): a.emit(ins)
    if TW == -1: tw()
    if TLN == -1: early_touch()
    if TW >= 0: srd(a, SW2, 14, 1792*896)
    for g_ in range(2, 2 + opt('gpre', 0)):
        for ins in dma_group('A', g_): a.emit(ins)
    other_srds()
    srd(a, SO, 16, 2048*896)
    if opt('tlb', 0):
        a(f's_mov_b32 s{sT}, {HB_SIG}\nv_mul_lo_u32 v{FR}, v{vL}, s{sT}\nv_mov_b32 v{FR+1}, {248*16}\nv_mul_u32_u24 v{FR+2}, {32*896}, v{vL}')
        a(f's_mov_b32 s{sT}, {112*1024}')
        a.vmem(f'buffer_load_dword v{vP}, v{FR}, {sr(SH)}, s{sT} offen', 'TL')
        a.vmem(f'buffer_load_dword v{vP+1}, v{FR+1}, {sr(SV)}, 0 offen', 'TL')
        if opt('tlb', 0) > 1: a.vmem(f'buffer_load_dword v{vP+1}, v{FR+2}, {sr(SO)}, 0 offen', 'TL')
    get_tag(a)
    if STAMP == 3:
        a(f's_add_u32 s{sT}, s2, s{sW}\ns_cmp_lg_u32 s{sT}, 0\ns_cbranch_scc1 Lnopub\nv_mov_b32 v{FR}, {EPO+128}\nv_mov_b32 v{FR+1}, s{STB}\nbuffer_store_dword v{FR+1}, v{FR}, {sr(SM)}, 0 offen sc1\nLnopub:')
    wq = p1_loop(a)
    def run_list(L):
        for x in L:
            if callable(x): x()
            else: a(x)
    if opt('sk', 28) == 28:
        a('s_nop 6\ns_waitcnt lgkmcnt(0)')
        stamp(a, 1, '9')
        run_list(hblock_list(a, ACC, sHA0)); stamp(a, 2, '9')
        z1(a); run_list(hblock_list(a, ACC+16, sHA1)); stamp(a, 3, '9')
        z2(a); run_list(hblock_list(a, ACC+32, sHB0)); stamp(a, 4, '9')
        if RPRE0:
            for ins in wq: a.emit(ins)
            wq = []
            a.wait_vm('R0'); run_list(stage_reads(0))
        z3(a); run_list(hblock_list(a, ACC+48, sHB1))
        if RPRE0:
            a.wait_vm('R1'); run_list(stage_reads(1))
        stamp(a, 5, '9')
        z4a(a); stamp(a, 6, '9'); z4b(a); stamp(a, 7, '9')
    else:
        k = min(len(a.yq), 11)
        run_list(a.yq[:k])
        if k < 11: a(f's_nop {10 - k}')
        run_list(hblock_list(a, ACC+32, sHB0) + hblock_list(a, ACC+48, sHB1))
        run_list(a.yq[k:])
    stamp(a, 3); stamp(a, 2, '3'); stamp(a, 2, '5')
    phase2(a, wq)
    a('s_branch Lfin')

    a('LroleBC:')
    a.vm = ['CP'] if CPF else []
    TWL = opt('twl', 0)
    if TWL: a(f's_lshl_b32 s{sG0}, s{sX8}, 2\ns_add_u32 s{sG0}, s{sG0}, s{sN}\ns_sub_u32 s{sG0}, s{sG0}, 28\ns_lshl_b32 s{sG0}, s{sG0}, 2\ns_add_u32 s{sG0}, s{sG0}, s{sW}\ns_mul_i32 s{sG0}, s{sG0}, {98*128}')
    def light_tw():
        if not TWL: return
        srd(a, SW2, 14, 1792*896)
        a(f'v_lshlrev_b32 v{vP}, 7, v{vL}\ns_add_u32 s{sT}, s{sG0}, {34*128}')
        a.vmem(f'buffer_load_dword v{vP+1}, v{vP}, {sr(SW2)}, s{sG0} offen', 'TW')
        a.vmem(f'buffer_load_dword v{vP+1}, v{vP}, {sr(SW2)}, s{sT} offen', 'TW')
    a(f's_cmp_ge_u32 s{sN}, 30\ns_cbranch_scc1 LroleC')
    a(f's_lshl_b32 s{sRT}, s{sT}, 2\ns_lshl_b32 s{sT2}, s{sT2}, 1\ns_add_u32 s{sRT}, s{sRT}, s{sT2}\ns_add_u32 s{sRT}, s{sRT}, s{sN}\ns_sub_u32 s{sRT}, s{sRT}, 28')
    a(f's_mov_b32 s{sCG}, s{sRT}')
    sigma(); p1_addr_dma(a); p1_srds()
    XB, DB, vSb = 104, 224, 92
    for g in range(7):
        a(f's_movk_i32 s{sA0}, {BCO[g]*128}')
        for q in range(4):
            a.vmem(f'buffer_load_dwordx4 {vr(XB+16*g+4*q)}, v{vXo+q}, {sr(SX)}, s{sA0} offen offset:{q*1024}', f'X{g}')
    for g in range(7):
        a.vmem(f'buffer_load_dwordx4 {vr(DB+4*g)}, v{vDo}, {sr(SD)}, 0 offen offset:{g*128}', 'XD')
    a(f's_sub_u32 s{sT}, 14, s{sRT}\ns_mul_i32 s{sT}, s{sT}, {16*896}\nv_add_u32 v{vDo}, s{sT}, v{vDo}\ns_mov_b32 s{sCG}, 14')
    other_srds()
    a(f's_mov_b32 s{sOnes}, 0x3f803f80')
    for i in range(9): a(f'v_mov_b32 v{vSb+i}, 0')
    for g in range(7):
        a.wait_vm(f'X{g}')
        if g == 0: stamp(a, 1)
        for i in range(4):
            for q in range(4):
                a(f'v_dot2c_f32_bf16 v{vSb+q}, s{sOnes}, v{XB+16*g+4*q+i}')
                a(f'v_dot2c_f32_bf16 v{vSb+4+q}, v{XB+16*g+4*q+i}, v{XB+16*g+4*q+i}')
    t = vt
    def dpp(rng):
        for pat in ('quad_perm:[1,0,3,2]', 'quad_perm:[2,3,0,1]', 'row_half_mirror'):
            for i in rng: a(f'v_add_f32_dpp v{vSb+i}, v{vSb+i}, v{vSb+i} {pat} row_mask:0xf bank_mask:0xf')
            if len(rng) < 3: a('s_nop 1')
    stamp(a, 2)
    a(f'v_and_b32 v{t+6}, 3, v{vL}\ns_nop 1')
    dpp(range(8))
    for q in range(1, 4):
        a(f'v_cmp_eq_u32 vcc, {q}, v{t+6}\ns_nop 1\nv_cndmask_b32 v{vSb}, v{vSb}, v{vSb+q}, vcc\nv_cndmask_b32 v{vSb+4}, v{vSb+4}, v{vSb+4+q}, vcc')
    a(f'v_mul_f32 v{t+4}, {f2h(1/448)}, v{vSb}\nv_mul_f32 v{t+1}, {f2h(1/448)}, v{vSb+4}')
    a(f'v_fma_f32 v{t+1}, -v{t+4}, v{t+4}, v{t+1}\nv_max_f32 v{t+1}, 0, v{t+1}')
    a(f'v_cvt_pk_bf16_f32 v{t}, -v{t+4}, -v{t+4}')
    a(f'v_cvt_pk_bf16_f32 v{t+1}, v{t+1}, v{t+1}\nv_and_b32 v{t+1}, 0xffff0000, v{t+1}')
    a(f'v_add_f32 v{t+1}, {f2h(1e-5)}, v{t+1}')
    a(f'v_cvt_pk_bf16_f32 v{t+1}, v{t+1}, v{t+1}\nv_and_b32 v{t+1}, 0xffff0000, v{t+1}')
    a(f'v_sqrt_f32 v{t+1}, v{t+1}\ns_nop 0')
    a(f'v_cvt_pk_bf16_f32 v{t+1}, v{t+1}, v{t+1}\nv_and_b32 v{t+1}, 0xffff0000, v{t+1}')
    a(f'v_rcp_f32 v{t+1}, v{t+1}')
    get_tag(a)
    a(f'v_mov_b32 v{t+2}, s{sTag}\nv_mov_b32 v{t+3}, s{sTag+1}')
    a(f'v_lshrrev_b32 v{t+7}, 3, v{vL}\nv_lshl_add_u32 v{t+5}, v{t+6}, 3, v{t+7}\nv_lshlrev_b32 v{t+5}, 4, v{t+5}')
    a(f's_lshl_b32 s{sT}, s{sSig}, 9')
    a.vmem(f'buffer_store_dwordx4 {vr(t)}, v{t+5}, {sr(SM)}, s{sT} offen sc1', 'S1')
    a.wait_vm('XD')
    for i in range(28): a(f'v_dot2c_f32_bf16 v{vSb+8}, s{sOnes}, v{DB+i}')
    a('s_nop 2')
    dpp([8])
    col_record(a, DB, vSb+8)
    a(f'v_lshlrev_b32 v{t+7}, 4, v{t+7}\ns_lshl_b32 s{sT}, s{sRT}, 9\ns_lshl_b32 s{sT2}, s{sW}, 7\ns_add_u32 s{sT}, s{sT}, s{sT2}\ns_add_u32 s{sT}, s{sT}, {CSZ}')
    a.vmem(f'buffer_store_dwordx4 {vr(DB)}, v{t+7}, {sr(SM)}, s{sT} offen sc1', 'S1')
    stamp(a, 3)
    if TWL == 1: light_tw()
    for g in range(4):
        for ins in dma_group('B', g): a.emit(ins)
    if TWL == 2: light_tw()
    p1_addr_read(a)
    for x in wg_flag_prep(vFl, sB0, sB1) + stat_addr() + twiddle_wc(vWt) + z_addr(vWt, sB0, sB1): a(x)
    if opt('tlb2', 1):
        a.emit((f's_mov_b32 exec_lo, 0x00010001\ns_mov_b32 exec_hi, 0x00010001\nbuffer_load_dword v{vP}, v{vVs}, {sr(SV)}, 0 offen\n'
                f's_mov_b32 s{sT}, {4*65536}\nbuffer_load_dword v{vP}, v{vVs}, {sr(SV)}, s{sT} offen\ns_mov_b64 exec, -1', 'TL'))
    p1_loop_bc(a, 'B')
    stat_check(a, 'B')
    for x in stat_fix('B'): a(x)
    a('s_nop 1')
    a(mfma(vr(ZA,16), vr(MO), vr(CZ), vr(ZA,16)))
    a('s_nop 11\ns_waitcnt lgkmcnt(0)')
    z1(a); z2(a); a('s_nop 11'); z3(a); z4a(a); z4b(a)
    wg_flag(a, vFl)
    a('s_branch Lfin')

    a('LroleC:')
    a.vm = ['CP'] if CPF else []
    a(f's_lshl_b32 s{sT3}, s{sT}, 1\ns_add_u32 s{sT3}, s{sT3}, s{sN}\ns_sub_u32 s{sT3}, s{sT3}, 30')
    a(f's_lshl_b32 s{sRT}, s{sT2}, 3\ns_add_u32 s{sRT}, s{sRT}, s{sT3}')
    a(f's_mul_i32 s{sCG}, s{sT2}, 7\ns_add_u32 s{sCG}, s{sCG}, s{sT3}\ns_add_u32 s{sT2}, s{sT2}, 14')
    a(f's_cmp_eq_u32 s{sT3}, 7\ns_cselect_b32 s{sCG}, s{sT2}, s{sCG}')
    sigma(); p1_addr_dma(a); p1_srds()
    other_srds()
    a(f's_cmp_ge_u32 s{sCG}, 14\ns_cbranch_scc1 LroleE')
    for g in range(3):
        for ins in dma_group('C', g): a.emit(ins)
    p1_addr_read(a)
    for x in stat_addr(): a(x)
    for i in range(4): a(f'v_mov_b32 v{TF+i}, 0x3f803f80')
    get_tag(a)
    p1_loop_bc(a, 'C')
    a('s_nop 11')
    col_record(a, FR, ACC)
    a(CW_OFF)
    a.vmem(f'buffer_store_dwordx4 {vr(FR)}, v{vU8}, {sr(SM)}, s{sA2} offen sc1', 'S1')
    stamp(a, 3)
    light_tw()
    a(f's_mov_b32 s{sCG}, 15')
    for x in wg_flag_prep(vFl, sB0, sB1): a(x)
    wg_flag(a, vFl)
    a('s_branch Lfin')

    a('LroleE:')
    a.vm = []
    light_tw()
    get_tag(a)
    a(f's_sub_u32 s{sT3}, 15, s{sCG}\ns_add_u32 s{sT3}, s{sT3}, s{sW}\ns_mov_b32 s{sCG}, 15')
    for x in wg_flag_prep(vFl, sB0, sB1): a(x)
    wg_flag(a, vFl)
    a(f's_cmp_lg_u32 s{sT3}, 0\ns_cbranch_scc1 Lfin')
    a(f'v_lshlrev_b32 v{vPa}, 3, v{vL}\nv_add_u32 v{vPa}, {FLV}, v{vPa}')
    for i in range(4):
        poll_issue(a, 'PE', vPa)
        poll_check(a, 'PE', vPa, sleep=16)
        a(f'v_add_u32 v{vPa}, 512, v{vPa}')
    a(f'v_mov_b32 v{vFl+2}, {EPO}\ns_mov_b64 exec, 1')
    a(f'buffer_store_dwordx2 {vr(vFl,2)}, v{vFl+2}, {sr(SM)}, 0 offen sc1')
    a('s_mov_b64 exec, -1')
    a('Lfin:')
    stamp_store(a)
    a('Lend:')
    a('s_endpgm')
    return a.text()

def phase2(a, wq):
    ACC0, ACC1, YA, VF = 144, 176, 208, 104
    TFd = 4
    vRw, vRwb, vRr = 84, 88, 92
    vRi = 36
    YS = [208, 240]
    XR = 224
    t = 56
    for ins in wq: a.emit(ins)
    rq = []
    for q in range(NSTG, 7): rq += w2_group(q)
    NR = len(rq)
    def rdma(n):
        while rq and n > 0:
            ins = rq.pop(0); a.emit(ins)
            if ins[1]: n -= 1
    vq = twiddle_tf(t, TFd)
    u = t + 8
    vq += lines(f'v_and_b32 v{u}, 7, v{vU}\nv_xor_b32 v{u}, v{u}, v{vHH}\nv_lshlrev_b32 v{u+1}, 7, v{vU}')
    vq += [f's_lshl_b32 s{sT}, s{sJ}, 12\ns_add_u32 s{sT2}, s{sT}, 32768\ns_add_u32 s{sT}, s{sT2}, s{sArea}', f'v_add_u32 v{u+1}, s{sT}, v{u+1}']
    for q in range(4):
        vq += lines(f'v_xor_b32 v{u+2}, {2*q}, v{u}\nv_lshl_add_u32 v{vRw+q}, v{u+2}, 4, v{u+1}\nv_xor_b32 v{vRwb+q}, 0x1000, v{vRw+q}')
    vq += lines(f'v_lshrrev_b32 v{u}, 2, v{vL}\nv_and_b32 v{u+1}, 3, v{vL}\nv_and_b32 v{u+2}, 7, v{u}\nv_lshlrev_b32 v{u+3}, 1, v{u+1}\nv_xor_b32 v{u+2}, v{u+2}, v{u+3}\n'
                f'v_lshlrev_b32 v{u+2}, 4, v{u+2}\nv_lshl_add_u32 v{u+2}, v{u}, 7, v{u+2}')
    vq += [f's_lshl_b32 s{sT}, s{sI}, 11\ns_add_u32 s{sT2}, s{sT2}, s{sT}']
    nsafe = len(vq)
    for k in range(4):
        vq += [f's_xor_b32 s{sT}, s{sJ}, {k}\ns_mul_i32 s{sT}, s{sT}, {AREA}\ns_add_u32 s{sT}, s{sT}, s{sT2}', f'v_add_u32 v{vRr+2*k}, s{sT}, v{u+2}', f'v_xor_b32 v{vRr+2*k+1}, 16, v{vRr+2*k}']
    uq = []
    def vdo(budget):
        while (uq or vq) and budget > 0:
            x = (uq or vq).pop(0)
            if callable(x): x(); continue
            a(x); budget -= cost(x)
    if RPRE0:
        assert opt('sk', 28) == 28 and RPRE0 <= 32
        rdma(RPRE0)
        vdo(opt('tf0', 60) + opt('tf0b', 40))
    else:
        a.wait_vm('R0'); stamp(a, 3, '5')
        for x in stage_reads(0): a(x)
        vdo(opt('tf0', 60))
        stamp(a, 4, '5'); a.wait_vm('R1'); stamp(a, 5, '5')
        for x in stage_reads(1): a(x)
        vdo(opt('tf0b', 40))
        if NSTG == 3:
            a.wait_vm('R2')
            for x in stage_reads(2): a(x)
    a('s_waitcnt lgkmcnt(0)')
    stamp(a, 3, '3'); stamp(a, 6, '5'); a.wait_vm('ST'); stamp(a, 7, '5')
    wg_flag(a, vFl)
    stamp(a, 8, '5')
    stamp(a, 4); stamp(a, 4, '3'); cstamp(a, 5, '8'); stamp(a, 8, '9')
    nr = max(opt('rb', 10), RPRE0)
    rdma(nr - RPRE0)
    did2 = NSTG == 3
    while nr < NR - RLATE:
        if nr >= P1POS and 'P1' not in a.vm: poll_issue(a, 'P1', vPa)
        rdma(1); nr += 1
        if nr == 20 and not did2: uq += [lambda: a.wait_vm('R2')] + stage_reads(2); did2 = True
        vdo(opt('tf1', 8))
    if 'P1' not in a.vm: poll_issue(a, 'P1', vPa)
    stamp(a, 5, '3')
    if not did2: uq += [lambda: a.wait_vm('R2')] + stage_reads(2)
    vdo(10000)
    stamp(a, 5); stamp(a, 6, '3')
    poll_check(a, 'P1', vPa, mask='15' if VSPLIT else None)
    stamp(a, 6); stamp(a, 7, '3'); stamp(a, 1, '4'); cstamp(a, 7, '8')
    horder = list(range(HN0)) + [28, 29, 30, 31] + list(range(HN0, 28)) + list(range(32, 56))
    sHq = [sB0, sB1]
    def hload(pos):
        i = horder[pos]
        rb, k = divmod(i, 28)
        c = (sGh0, sGh1)[rb]
        if k % 4 == 0:
            a(f's_mov_b32 s{c}, s{sG0}' if k == 0 else rot_next(c))
            a(f's_lshl_b32 s{sHq[rb]}, s{c}, 12\ns_add_u32 s{sHq[rb]}, s{sHq[rb]}, s{sHb}')
            if rb: a(f's_add_u32 s{sHq[rb]}, s{sHq[rb]}, {32*HB_SIG}')
        a.vmem(f'buffer_load_dwordx4 {ar(aH+4*(i%32))}, v{vHo}, {sr(SH)}, s{sHq[rb]} offen offset:{(k % 4)*1024} sc1', f'H{i}')
    def vloads():
        if VSPLIT: poll_check(a, 'P2', vPa, sleep=0)
        for j in range(8):
            a(f's_movk_i32 s{sA2}, {j*4096}')
            a.vmem(f'buffer_load_dwordx4 {vr(VF+4*j)}, v{vVo}, {sr(SV)}, s{sA2} offen sc1', f'V{j}')
    def smalls():
        for rb in range(2):
            a(f's_lshl_b32 s{sA2}, s{sT1}, 9' if rb == 0 else f's_add_u32 s{sA2}, s{sA2}, {32*512}')
            a.vmem(f'buffer_load_dword v{vRi+rb}, v{vRo}, {sr(SM)}, s{sA2} offen offset:4 sc1', 'RI')
            a.vmem(f'buffer_load_dword v{vRi+2+rb}, v{vU8}, {sr(SM)}, s{sA2} offen offset:4 sc1', 'RI')
        a.vmem(f'buffer_load_dwordx4 {vr(XR)}, v{vOo}, {sr(SX)}, 0 offen', 'X')
        a.vmem(f'buffer_load_dwordx4 {vr(XR+4)}, v{vOo+1}, {sr(SX)}, 0 offen', 'X')
    a('s_waitcnt lgkmcnt(0)')
    def vload(j):
        a(f's_movk_i32 s{sA2}, {j*4096}')
        a.vmem(f'buffer_load_dwordx4 {vr(VF+4*j)}, v{vVo}, {sr(SV)}, s{sA2} offen sc1', f'V{j}')
    lq = [('h', i) for i in range(56)]
    vpos = opt('vpos', 14)
    lq = lq[:vpos] + [('v', j) for j in range(4)] + [('s', 0)] + lq[vpos:]
    pos = opt('rpos', 8)
    for _ in range(RLATE):
        lq.insert(pos, ('r', 0)); pos += opt('rstep', 2)
    def lnext(i):
        if not lq: return
        kind, x = lq[0]
        if kind == 'h' and horder[x] - 32 > i: return
        lq.pop(0)
        if kind == 'h': hload(x)
        elif kind == 'v': vload(x)
        elif kind == 'r': rdma(1)
        else: smalls()
    for i in range(HB0): lnext(-1)
    stamp(a, 8, '3'); stamp(a, 2, '4')
    def ard(k):
        s = aF + 8 * (k % (PD + 1))
        return [f'ds_read_b64_tr_b16 {ar(s+4*blk+2*p,2)}, v{va} offset:{(k-12)*2048 + p*1024}'
                for blk, va in enumerate((vTra, vTrb)) for p in range(2)]
    state = dict(lgk=[])
    HPS = [int(c) for c in (OPT.get('hpp', '1112') * opt('hpn', 10) + '1')]
    def lds(s, tag):
        a(s); state['lgk'].append(tag)
    def wait_lgk(tag):
        L = state['lgk']
        if tag not in L: return
        idx = max(i for i, x in enumerate(L) if x == tag)
        a(f's_waitcnt lgkmcnt({min(len(L)-1-idx, 15)})')
        state['lgk'] = L[idx+1:]
    def kstep(rb, k, fill, fill0=()):
        i = 28*rb + k
        acc = ACC0 if rb == 0 else ACC1
        assert not any(kd == 'h' and horder[x] == i for kd, x in lq)
        a.wait_vm(f'H{i}')
        if k >= 12: wait_lgk(f'A{rb}_{k}')
        if rb == 0 and 12 <= k + PD < 28 and (k + PD) % 4 == 0:
            assert not any(t_ == f'R{(k+PD)//4}' for _, t_ in rq)
            a.wait_vm(f'R{(k+PD)//4}')
        A = aW + 8*k if k < 12 else aF + 8*(k % (PD + 1))
        B = ar(aH + 4*(i % 32))
        a(mfma(vr(acc,16), ar(A), B, vr(acc,16) if k else '0'))
        if 12 <= k + PD < 28:
            for r in ard(k+PD): lds(r, f'A{rb}_{k+PD}')
        for f in fill0: f()
        a(mfma(vr(acc+16,16), ar(A+4), B, vr(acc+16,16) if k else '0'))
        for _ in range(HPS[min(i, len(HPS) - 1)]): lnext(i)
        for f in fill: f()
    def take(Q, budget):
        out = []
        while Q and budget > 0:
            x = Q.pop(0)
            if isinstance(x, str): budget -= cost(x); out.append(lambda x=x: a(x))
            else: budget -= 1; out.append(x)
        return out
    def vstep(m_):
        def f():
            j, rb = divmod(m_, 2)
            if rb == 0:
                assert ('v', j) not in lq
                a.wait_vm(f'V{j}')
                for i in range(4): a(f'v_xor_b32 v{VF+4*j+i}, v{VF+4*j+i}, v{vSg}')
                a('s_nop 1')
            a(mfma(vr(YS[rb],16), vr(VF+4*j), vr(TFd+16*rb+4*j), vr(YS[rb],16) if j else '0'))
        return f
    for k in range(28):
        fill = []; fill0 = []
        if k + PD < 12: fill0 = take(vq, 5)
        if VM0 <= k < VM0 + 8:
            assert not any('cos' in x for x in vq)
            fill.append(vstep(k - VM0))
        else: fill += take(vq, 4)
        kstep(0, k, fill, fill0)
        if k in (0, 7, 15, 27): stamp(a, {0: 3, 7: 4, 15: 5, 27: 6}[k], '4')
    assert not vq
    stamp(a, 7)
    def red_write(acc, base): return [(lambda q=q: lds(f'ds_write_b128 v{base+q}, {vr(acc+4*q)}', 'RW')) for q in range(4)]
    def scale_own(acc, rb): return [f'v_fmac_f32 v{acc+r}, v{YS[rb]+r}, v{vRi+2+rb}' for r in range(16)]
    def barrier():
        wait_lgk('RW'); a('s_barrier')
    def finalize(P, rb):
        L = []
        for k in range(4):
            for h in range(2):
                L.append(lambda k=k, h=h: lds(f'ds_read_b128 {vr(P+8*k+4*h)}, v{vRr+2*k+h}', f'RR{k}'))
        U = 56
        for i in range(4): L += [f'v_lshlrev_b32 v{U+2*i}, 16, v{XR+4*rb+i}', f'v_and_b32 v{U+2*i+1}, 0xffff0000, v{XR+4*rb+i}']
        L.append(lambda: wait_lgk('RR1'))
        L += [f'v_add_f32 v{P+r}, v{P+r}, v{P+8+r}' for r in range(8)]
        L.append(lambda: wait_lgk('RR3'))
        L += [f'v_add_f32 v{P+16+r}, v{P+16+r}, v{P+24+r}' for r in range(8)]
        L += [f'v_add_f32 v{P+r}, v{P+r}, v{P+16+r}' for r in range(8)]
        L += [f'v_fma_f32 v{P+r}, v{P+r}, v{vRi+rb}, v{U+r}' for r in range(8)]
        if opt('pert', 0.0) and rb == 1:
            L.append(f's_add_u32 s{sT}, s2, s{sW}\ns_cmp_eq_u32 s{sT}, 0\ns_cselect_b64 exec, 1, 0\nv_add_f32 v{P}, {f2h(opt("pert", 0.0))}, v{P}\ns_mov_b64 exec, -1')
        if opt('pscale', 0.0): L += [f'v_mul_f32 v{P+r}, {f2h(1 + opt("pscale", 0.0))}, v{P+r}' for r in range(8)]
        L += [f'v_cvt_pk_bf16_f32 v{U+p}, v{P+2*p}, v{P+2*p+1}' for p in range(4)]
        L.append(lambda: a.vmem(f'buffer_store_dwordx4 {vr(U)}, v{vOo+rb}, {sr(SO)}, 0 offen {OST}', 'O'))
        return L
    def run(L):
        for f in take(L, 10**6): f()
    PF = 104
    assert ('s', 0) not in lq
    a.wait_vm('X')
    a(f'v_rcp_f32 v{vRi+2}, v{vRi+2}\nv_rcp_f32 v{vRi+3}, v{vRi+3}')
    work = red_write(ACC0+16, vRwb) + scale_own(ACC0, 0) + red_write(ACC0, vRw)
    post = finalize(PF, 0)
    KB1, KB2 = opt('kb1', 10), 25
    for k in range(28):
        fill = []; fill0 = []
        if 3 <= k < KB1: fill0 = take(work, 2); fill = take(work, 3)
        if k == KB1:
            assert not work
            fill = [barrier]
        if KB1 < k < KB2:
            fill0 = take(post, 1)
            fill = take(post, FILL + (1 if opt('pscale', 0.0) else 0))
        if k == KB2:
            assert not post and not any(x.startswith('RR') for x in state['lgk']), post
            fill = [lambda: a('s_barrier')]
        kstep(1, k, fill, fill0)
        if k in (11, 27): stamp(a, {11: 7, 27: 8}[k], '4'); cstamp(a, {11: 5, 27: 7}[k])
    stamp(a, 8)
    a('s_nop 10')
    run(scale_own(ACC1, 1) + red_write(ACC1, vRw) + red_write(ACC1+16, vRwb))
    barrier()
    run(finalize(PF, 1))

def main():
    body = gen()
    k = NAME + '_kernel'
    print(f'''; out = x + Re(DFT_seq(DFT_hid(LN(x)))) + relu(LN(x) w1) w2   (S=2048, D=448, F=1792, bf16), one persistent launch.
;   stage 1 (DFT-32 over u) runs on the hidden-DFT accumulators, stage 2 (64 twiddled terms) joins the second GEMM;
; @launch grid=(256,1,1) block=(256,1,1) lds={LDS_SIZE}
.amdgcn_target "amdgcn-amd-amdhsa--gfx950"
.text
.globl {k}
.p2align 8
.type {k},@function
{k}:
{body}
.section .rodata,"a"
.p2align 6
.amdhsa_kernel {k}
  .amdhsa_next_free_vgpr {256+NAGPR}
  .amdhsa_next_free_sgpr 102
  .amdhsa_accum_offset 256
  .amdhsa_group_segment_fixed_size 0
  .amdhsa_kernarg_size 88
  .amdhsa_user_sgpr_count 2
  .amdhsa_user_sgpr_kernarg_segment_ptr 1
  .amdhsa_system_sgpr_workgroup_id_x 1
.end_amdhsa_kernel''')
main()
```

```python
import sys, struct
NAME = 'parallel_sum__spectral_fnet__dense_activation_relu__prompt'
OPT = dict(a.split('=') for a in sys.argv[1:] if '=' in a)
def opt(k, d): return type(d)(OPT.get(k, d))
STAMP = opt('stamp', 0); LST = OPT.get('lst')
RATE = [int(c) for c in OPT.get('rate', '3')]
ROT = opt('rot', 1)
POLL0 = opt('poll0', 15); PCHK = opt('pchk', 6)
NW = opt('nw', 16); W0 = opt('w0', 16); WPS = [int(c) for c in OPT.get('wps', '112')]
RPRE0 = opt('rpre0', 0); P1POS = opt('p1pos', 26); RLATE = opt('rlate', 0)
HB0 = opt('hb0', 14); VM0 = opt('vm0', 20); FILL = opt('fill', 5); SLEEP = opt('sleep', 4)
OST = OPT.get('ost', '').replace('_', ' ')
STF = OPT.get('stf', 'sc1').replace('_', ' ')
TW = opt('tw', -1); ROT1 = opt('rot1', 2); XOFF = opt('xoff', 0); VSPLIT = opt('vsplit', 0)

def f2h(x): return '0x%08x' % struct.unpack('<I', struct.pack('<f', x))[0]

WS0 = opt('ws0', 0) << 20
HB_SIG = opt('hbs', 29) * 4096
HB_SIZE = 64 * HB_SIG
VB_OFF = WS0 + 0x800000
VB_SIZE = 32 * 16 * 256 * 16
SM_OFF = WS0 + 0xA00000
SM_SIZE = 0x20000
CSW, CSZ = 0x8000, 0x18000
FLH, FLV, EPO = 0x10000, 0x11000, 0x14000
ST_OFF = 0x1000000
SLOT = 36864
VX = 4 * SLOT
AREA = 40960
LDS_SIZE = 163840
SPIN_MAX = 1 << 17

SX, SW, SD, SH, SV, SM, SW2, SO = 24, 28, 32, 36, 40, 44, 48, 52
sTag = 56
sW, sI, sJ, sRT, sCG, sSig, sLx, sLw, sLd, sT, sT2, sT3, sT1, sCT = 58, 59, 60, 61, 62, 63, 64, 65, 66, 67, 68, 69, 70, 71
sA0, sA1, sA2, sA3, sA4, sOnes, sSpin, sB0, sB1, sG0 = 72, 73, 74, 75, 76, 77, 78, 79, 80, 81
sGc, sGw, sGh0, sGh1 = 6, 7, 3, 6
sArea, sHb, sRi, sG1, sStg = 20, 21, 77, 10, 11
STB = 82
vL, vU, vHH = 1, 2, 3
vXo, vWo, vDo = 4, 8, 12
vRb, vRp, vRd, vTa, vTb = 13, 21, 29, 37, 39
vM8, vU8, vH16, vZs, vP = 41, 42, 43, 44, 46
vt = 48
WC, TF, FR, ACC = 56, 72, 104, 144
MO, MP, CA, CB, CZ, ZR = 224, 228, 232, 236, 100, 240
vWt = 84
vW2, vTra, vTrb, vZw, vPa, vVo, vSg, vOo, vRo = 48, 52, 53, 54, 55, 45, 72, 74, 76
vSt = [(54, 73), (77, 83)]
vFl = 92
aW, aH, aF = 0, 96, 224
aRaw = aH
NAGPR = 256
PD = opt('pd', 3); RL0 = opt('rl0', 0); VL0 = opt('vl0', -1); HN0 = opt('hn0', 28); P2K = opt('p2k', -1)

class Asm:
    def __init__(self):
        self.L = []; self.vm = []; self.nlab = 0
    def __call__(self, s):
        for line in s.split('\n'):
            line = line.strip()
            self.L.append(line if line.endswith(':') else '    ' + line)
    def vmem(self, s, tag):
        self(s); self.vm.append(tag)
    def emit(self, ins):
        s, tag = ins
        if tag == 'TL': self.vm += ['TL'] * (s.count('buffer_load') - 1)
        if tag: self.vmem(s, tag)
        else: self(s)
    def wait_vm(self, tag):
        if tag not in self.vm: return
        idx = max(i for i, t in enumerate(self.vm) if t == tag)
        n = len(self.vm) - 1 - idx
        self(f's_waitcnt vmcnt({min(n, 63)})')
        self.vm = self.vm[idx + 1:]
    def label(self, p):
        self.nlab += 1
        return f'L{p}_{self.nlab}'
    def text(self): return '\n'.join(self.L)

def vr(b, n=4): return f'v[{b}:{b+n-1}]'
def ar(b, n=4): return f'a[{b}:{b+n-1}]'
def sr(b, n=4): return f's[{b}:{b+n-1}]'
def srd(a, d, lo, size, off=0):
    if off: a(f's_add_u32 s{d}, s{lo}, {off}\ns_addc_u32 s{d+1}, s{lo+1}, 0')
    else: a(f's_mov_b32 s{d}, s{lo}\ns_mov_b32 s{d+1}, s{lo+1}')
    a(f's_mov_b32 s{d+2}, {size}\ns_mov_b32 s{d+3}, 0x20000')
def stamp(a, idx, mode=None):
    if not STAMP: return
    if 1 <= idx <= 8 and mode != LST: return
    a(f's_memrealtime s[{STB+2*idx}:{STB+2*idx+1}]')
def cstamp(a, idx, mode='6'):
    if STAMP and LST == mode: a(f's_memrealtime s[{STB+2*idx}:{STB+2*idx+1}]\ns_memtime s[{STB+2*idx+2}:{STB+2*idx+3}]')
def mfma(D, A, B, C): return f'v_mfma_f32_32x32x16_bf16 {D}, {A}, {B}, {C}'
def lines(s): return s.split('\n')
def cost(x): return sum(2 if ('cos' in y or 'sin' in y) else 1 for y in x.split('\n'))

def stamp_store(a):
    if not STAMP: return
    a('s_waitcnt vmcnt(0) lgkmcnt(0)')
    if LST != '7': stamp(a, 9)
    a('s_waitcnt lgkmcnt(0)')
    if STAMP == 3:
        pa, pb = map(int, OPT['probe'].split(','))
        sk = a.label('pskip'); sp = a.label('pspin')
        a(f's_cmp_lg_u32 s2, {OPT.get("pwg", 0)}\ns_cbranch_scc1 {sk}\ns_cmp_lg_u32 s{sW}, {OPT.get("pwv", 0)}\ns_cbranch_scc1 {sk}')
        if pa < 0:
            a(f'v_mov_b32 v4, {EPO+128}\nbuffer_load_dword v5, v4, {sr(SM)}, 0 offen sc1\ns_waitcnt vmcnt(0)\nv_readfirstlane_b32 s{STB-2}, v5\ns_nop 3')
        a(f's_sub_u32 s{sT}, s{STB+2*pb}, s{STB+2*pa}\ns_add_u32 s{sT}, s{sT}, {opt("poff", 0)}\ns_min_u32 s{sT}, s{sT}, 5000\ns_mul_i32 s{sT}, s{sT}, 10')
        a(f's_memrealtime s[4:5]\ns_waitcnt lgkmcnt(0)\ns_add_u32 s{sT}, s{sT}, s4')
        a(f'{sp}:\ns_memrealtime s[4:5]\ns_waitcnt lgkmcnt(0)\ns_sub_u32 s{sT2}, s{sT}, s4\ns_cmp_gt_i32 s{sT2}, 0\ns_cbranch_scc1 {sp}')
        a(f'{sk}:')
        return
    srd(a, SX, 18, 65536, ST_OFF)
    a(f's_lshl_b32 s{sT}, s2, 2\ns_add_u32 s{sT}, s{sT}, s{sW}\ns_lshl_b32 s{sT}, s{sT}, 6')
    a(f'v_mov_b32 v5, s{sT}')
    for i in range(10):
        a(f'v_mov_b32 v4, s{STB+2*i}')
        a(f'buffer_store_dword v4, v5, {sr(SX)}, 0 offen offset:{4*i}')
        a('s_nop 1')

def poll_issue(a, tag, va, vd=vP):
    a.vmem(f'buffer_load_dwordx2 {vr(vd,2)}, v{va}, {sr(SM)}, 0 offen sc1', tag)
def poll_check(a, tag, va, vd=vP, sleep=SLEEP, mask=None):
    ok = a.label('ok'); lp = a.label('spin')
    a.wait_vm(tag)
    mk = f'\ns_and_b64 vcc, vcc, {mask}' if mask else ''
    a(f'v_cmp_ne_u64 vcc, s[{sTag}:{sTag+1}], {vr(vd,2)}' + mk)
    a(f's_cbranch_vccz {ok}')
    a(f's_mov_b32 s{sSpin}, {SPIN_MAX}')
    a(f'{lp}:')
    if sleep: a(f's_sleep {sleep}')
    a(f'buffer_load_dwordx2 {vr(vd,2)}, v{va}, {sr(SM)}, 0 offen sc1')
    a(f's_sub_u32 s{sSpin}, s{sSpin}, 1\ns_cbranch_scc1 {ok}')
    a('s_waitcnt vmcnt(0)')
    a(f'v_cmp_ne_u64 vcc, s[{sTag}:{sTag+1}], {vr(vd,2)}' + mk)
    a(f's_cbranch_vccnz {lp}')
    a(f'{ok}:')
def wg_flag_prep(tmp, u0, u1):
    return [f's_lshl_b32 s{u0}, s{sCG}, 4\ns_add_u32 s{u0}, s{u0}, s{sRT}\ns_lshl_b32 s{u0}, s{u0}, 3\ns_add_u32 s{u0}, s{u0}, {FLV}',
            f's_lshl_b32 s{u1}, s{sRT}, 4\ns_add_u32 s{u1}, s{u1}, s{sCG}\ns_lshl_b32 s{u1}, s{u1}, 3\ns_add_u32 s{u1}, s{u1}, {FLH}\ns_sub_u32 s{u1}, s{u1}, s{u0}',
            f'v_mul_lo_u32 v{tmp+2}, v{vL}, s{u1}', f'v_add_u32 v{tmp+2}, s{u0}, v{tmp+2}',
            f'v_mov_b32 v{tmp}, s{sTag}', f'v_mov_b32 v{tmp+1}, s{sTag+1}']
def wg_flag(a, tmp, barrier=True):
    a.wait_vm('ST')
    if barrier: a('s_barrier')
    sk = a.label('nofl')
    a(f's_cmp_lg_u32 s{sW}, 0\ns_cbranch_scc1 {sk}')
    a('s_mov_b64 exec, 3')
    a(f'buffer_store_dwordx2 {vr(tmp,2)}, v{tmp+2}, {sr(SM)}, 0 offen sc1')
    a('s_mov_b64 exec, -1')
    a(f'{sk}:')
def col_record(a, o, src):
    a(f'v_cvt_pk_bf16_f32 v{o+2}, v{src}, v{src}\nv_and_b32 v{o+3}, 0xffff0000, v{o+2}\nv_sub_f32 v{o+4}, v{src}, v{o+3}')
    a(f'v_cvt_pk_bf16_f32 v{o}, v{src}, v{o+4}\nv_and_b32 v{o+3}, 0xffff0000, v{o}\nv_sub_f32 v{o+4}, v{o+4}, v{o+3}')
    a(f'v_cvt_pk_bf16_f32 v{o+1}, v{o+4}, 0')
    a(f'v_mov_b32 v{o+2}, s{sTag}\nv_mov_b32 v{o+3}, s{sTag+1}')
def get_tag(a):
    a('s_waitcnt lgkmcnt(0)')
    a(f's_add_u32 s{sTag}, s{sTag}, 0x7f4a7c15\ns_addc_u32 s{sTag+1}, s{sTag+1}, 0x9e3779b9')
CW_OFF = f's_lshl_b32 s{sA2}, s{sCG}, 11\ns_lshl_b32 s{sA3}, s{sJ}, 10\ns_add_u32 s{sA2}, s{sA2}, s{sA3}\ns_lshl_b32 s{sA3}, s{sI}, 9\ns_add_u32 s{sA2}, s{sA2}, s{sA3}\ns_add_u32 s{sA2}, s{sA2}, {CSW}'
def stat_loads(role):
    ld = lambda r: (f'buffer_load_dwordx4 {vr(r)}, v{vU8}, {sr(SM)}, s{sA2} offen sc1', 'SL')
    ins = [(f's_lshl_b32 s{sA2}, s{sSig}, 9', None), ld(MO)]
    if role == 'A':
        ins += [(f's_xor_b32 s{sA2}, s{sA2}, 512', None), ld(MP), (CW_OFF, None), ld(CA), (f's_xor_b32 s{sA2}, s{sA2}, 512', None), ld(CB)]
    ins += [(f's_lshl_b32 s{sA2}, s{sCG}, 9\ns_add_u32 s{sA2}, s{sA2}, {CSZ}', None), ld(CZ)]
    return ins
def stat_check(a, role):
    ok = a.label('ok'); lp = a.label('spin')
    recs = [MO, MP, CA, CB, CZ] if role == 'A' else [MO, CZ]
    def cmp():
        for i, r in enumerate(recs):
            a(f'v_cmp_ne_u64 {"s[22:23]" if i else "vcc"}, s[{sTag}:{sTag+1}], {vr(r+2,2)}')
            if i: a('s_or_b64 vcc, vcc, s[22:23]')
    a.wait_vm('SL')
    cmp()
    a(f's_cbranch_vccz {ok}')
    a(f's_mov_b32 s{sSpin}, {SPIN_MAX}')
    a(f'{lp}:')
    for ins in stat_loads(role): a(ins[0])
    a(f's_sub_u32 s{sSpin}, s{sSpin}, 1\ns_cbranch_scc1 {ok}')
    a('s_waitcnt vmcnt(0)')
    cmp()
    a(f's_cbranch_vccnz {lp}')
    a(f'{ok}:')
def stat_fix(role):
    L = [f'ds_write_b32 v{vZs}, v{MO+1}']
    for r in ([MO, MP] if role == 'A' else [MO]):
        L += [f'v_and_b32 v{r}, v{r}, v{vM8}', f'v_and_b32 v{r+1}, 0xffff, v{r}', f'v_mov_b32 v{r+2}, 0', f'v_mov_b32 v{r+3}, 0']
    for r in ([CA, CB, CZ] if role == 'A' else [CZ]):
        L += [f'v_mov_b32 v{r+2}, 0', f'v_mov_b32 v{r+3}, 0']
    L += [f'ds_read_b128 {vr(ZR+4*q)}, v{vH16} offset:{32*q}' for q in range(4)]
    return L

def rot_next(c): return f's_add_u32 s{c}, s{c}, 1\ns_cmp_eq_u32 s{c}, 7\ns_cselect_b32 s{c}, 0, s{c}'
BCO = [int(c) for c in OPT.get('bco', '0123456')]
def dma_group(role, g):
    slot = (g % 4) * SLOT
    ins = []
    if role == 'A':
        if ROT1 >= 10:
            NC = ROT1 // 10
            if g < NC: ins.append((f's_mov_b32 s{sGc}, {g}', None))
            elif g == NC: ins.append((f's_mov_b32 s{sGc}, s{sG1}', None))
            else: ins.append((f's_add_u32 s{sGc}, s{sGc}, 1\ns_cmp_eq_u32 s{sGc}, 7\ns_cselect_b32 s{sGc}, {NC}, s{sGc}', None))
        else: ins.append((f's_mov_b32 s{sGc}, s{sG1}' if g == 0 else rot_next(sGc), None))
        ins.append((f's_lshl_b32 s{sA0}, s{sGc}, 7\ns_mul_i32 s{sA1}, s{sGc}, {64*3584}', None))
    else:
        gp = BCO[g]
        ins.append((f's_movk_i32 s{sA0}, {gp*128}\ns_mov_b32 s{sA1}, {gp*64*3584}', None))
    if role != 'C':
        ins.append((f's_add_u32 m0, s{sLx}, {slot}\ns_nop 0', None))
        for q in range(4):
            ins.append((f'buffer_load_dwordx4 v{vXo+q}, {sr(SX)}, s{sA0} offen offset:{q*1024} lds', f'G{g}'))
        ins.append((f's_add_u32 m0, s{sLd}, {slot}\ns_nop 0', None))
        ins.append((f'buffer_load_dwordx4 v{vDo}, {sr(SD)}, s{sA0} offen lds', f'G{g}'))
    if role != 'B':
        ins.append((f's_add_u32 m0, s{sLw}, {slot}\ns_nop 0', None))
        for i in range(4):
            ins.append((f'buffer_load_dwordx4 v{vWo+i}, {sr(SW)}, s{sA1} offen offset:{i*1024} lds', f'G{g}'))
    return ins
RAWP = opt('rawp', 0)
STG = [3*SLOT, 0, SLOT] if not RAWP else [None, 3*SLOT, 0]
NSTG = opt('nstg', 2) if not RAWP else 3
vZw = 95
def w2_group(q):
    base, off = (sStg, STG[q]) if q < NSTG else (sArea, 32768 if q == 2 else (q-3)*8192)
    ins = []
    for m in range(8):
        pre = ''
        if m == 0: pre = (f's_mov_b32 s{sGw}, s{sG0}' if q == 0 else rot_next(sGw)) + f'\ns_mul_i32 s{sA4}, s{sGw}, {8*7168}\n'
        if m == 4: pre = f's_add_u32 s{sA4}, s{sA4}, {4*7168}\n'
        if RAWP and q == 0:
            ins.append((pre + f'buffer_load_dwordx4 {ar(aH+4*m)}, v{vW2+m%4}, {sr(SW2)}, s{sA4} offen offset:{(m%4)*1024}', 'R0'))
            continue
        pre += f's_add_u32 m0, s{base}, {off + 4096*(m//4)}\ns_nop 0\n' if (q < NSTG or m % 4 == 0) else ''
        ins.append((pre + f'buffer_load_dwordx4 v{vW2+m%4}, {sr(SW2)}, s{sA4} offen offset:{(m%4)*1024} lds', f'R{q}'))
    return ins
def stage_reads(part):
    va2, off = (vSt[part], 0) if part < 2 else ((vSt[1], SLOT) if NSTG == 3 else ((vTra, vTrb), 32768))
    if RAWP: va2, off = ((vTra, vTrb), 32768) if part == 0 else (vSt[part-1], 0)
    return [f'ds_read_b64_tr_b16 {ar(aW+8*(4*part+kk)+4*blk+2*p,2)}, v{va} offset:{off + kk*2048 + p*1024}'
            for kk in range(4) for blk, va in enumerate(va2) for p in range(2)]

def p1_addr_dma(a):
    t = FR
    a(f'v_lshrrev_b32 v{t+1}, 3, v{vL}\nv_and_b32 v{t+2}, 7, v{vL}\nv_lshrrev_b32 v{t+3}, 1, v{t+1}')
    a(f'v_xor_b32 v{t+4}, v{t+2}, v{t+3}\nv_lshlrev_b32 v{t+4}, 4, v{t+4}')
    a(f'v_mul_u32_u24 v{t+5}, {64*896}, v{t+1}')
    a(f's_mul_i32 s{sT}, s{sSig}, 896')
    a(f'v_add3_u32 v{vXo}, v{t+5}, v{t+4}, s{sT}')
    a(f'v_xor_b32 v{vXo+1}, 64, v{vXo}')
    a(f'v_add_u32 v{vXo+2}, {2*(458752-1024)}, v{vXo}')
    a(f'v_add_u32 v{vXo+3}, {3*(458752-1024)}, v{vXo+1}')
    a(f'v_add_u32 v{vXo+1}, {1*(458752-1024)}, v{vXo+1}')
    a(f'v_and_b32 v{t+6}, 1, v{t+3}\nv_lshlrev_b32 v{t+6}, 2, v{t+6}\nv_xor_b32 v{t+6}, v{t+6}, v{t+2}\nv_lshlrev_b32 v{t+6}, 4, v{t+6}')
    a(f'v_mul_u32_u24 v{t+7}, 3584, v{t+1}')
    a(f's_mul_i32 s{sT}, s{sI}, {32*3584}\ns_lshl_b32 s{sT2}, s{sCG}, 8\ns_add_u32 s{sT}, s{sT}, s{sT2}\ns_lshl_b32 s{sT2}, s{sJ}, 7\ns_add_u32 s{sT}, s{sT}, s{sT2}')
    a(f'v_add3_u32 v{vWo}, v{t+7}, v{t+6}, s{sT}')
    for i in range(1, 4): a(f'v_add_u32 v{vWo+i}, {i*(8*3584-1024)}, v{vWo}')
    a(f'v_mul_u32_u24 v{t+5}, 896, v{t+1}')
    a(f's_lshl_b32 s{sT}, s{sJ}, 6')
    a(f'v_xor_b32 v{t+6}, s{sT}, v{t+4}')
    a(f's_lshl_b32 s{sT}, s{sCG}, 1\ns_add_u32 s{sT}, s{sT}, s{sJ}\ns_mul_i32 s{sT}, s{sT}, {8*896}')
    a(f'v_add3_u32 v{vDo}, v{t+5}, v{t+6}, s{sT}')
    a(f's_lshl_b32 s{sLx}, s{sW}, 12')
    a(f's_lshl_b32 s{sLw}, s{sJ}, 13\ns_lshl_b32 s{sT}, s{sI}, 12\ns_add_u32 s{sLw}, s{sLw}, s{sT}\ns_add_u32 s{sLw}, s{sLw}, 16384')
    a(f's_lshl_b32 s{sLd}, s{sW}, 10\ns_add_u32 s{sLd}, s{sLd}, 32768')

def p1_addr_read(a):
    t = FR
    a(f'v_and_b32 v{vU}, 31, v{vL}\nv_lshrrev_b32 v{vHH}, 5, v{vL}')
    a(f'v_bfe_u32 v{t}, v{vU}, 1, 3\nv_xor_b32 v{t}, v{t}, v{vHH}')
    a(f'v_lshlrev_b32 v{t+1}, 7, v{vU}')
    a(f's_xor_b32 s{sT}, s{sW}, 1\ns_lshl_b32 s{sT}, s{sT}, 12')
    for jj in range(4):
        a(f'v_xor_b32 v{t+2}, {2*jj}, v{t}\nv_lshl_add_u32 v{t+2}, v{t+2}, 4, v{t+1}')
        a(f'v_add_u32 v{vRb+jj}, s{sLx}, v{t+2}\nv_add_u32 v{vRp+jj}, s{sT}, v{t+2}\nv_add_u32 v{vRd+jj}, 0x8000, v{t+2}')
        for r in (vRb, vRp, vRd): a(f'v_add_u32 v{r+4+jj}, {2*SLOT}, v{r+jj}')
    a(f'v_bfe_u32 v{t}, v{vL}, 2, 2')
    a(f'v_lshl_add_u32 v{t+1}, v{vHH}, 3, v{t}\nv_lshlrev_b32 v{t+1}, 7, v{t+1}')
    a(f'v_lshrrev_b32 v{t}, 1, v{t}\nv_xor_b32 v{t}, s{sI}, v{t}\nv_lshl_add_u32 v{t+1}, v{t}, 6, v{t+1}')
    a(f'v_bfe_u32 v{t}, v{vL}, 4, 1\nv_lshl_add_u32 v{t+1}, v{t}, 5, v{t+1}')
    a(f'v_and_b32 v{t}, 3, v{vL}\nv_lshl_add_u32 v{t+1}, v{t}, 3, v{t+1}')
    a(f's_lshl_b32 s{sT}, s{sJ}, 13\ns_add_u32 s{sT}, s{sT}, 16384')
    a(f'v_add_u32 v{vTa}, s{sT}, v{t+1}\nv_xor_b32 v{vTb}, 64, v{vTa}')
    a(f'v_add_u32 v{vTa+1}, {2*SLOT}, v{vTa}\nv_add_u32 v{vTb+1}, {2*SLOT}, v{vTb}')
def stat_addr():
    return lines(f'v_lshlrev_b32 v{vU8}, 4, v{vU}\nv_add_u32 v{vM8}, -1, v{vHH}') + \
           [f's_lshl_b32 s{sB0}, s{sW}, 7\ns_add_u32 s{sB0}, s{sB0}, {VX+8192}', f'v_lshl_add_u32 v{vZs}, v{vU}, 2, s{sB0}', f'v_lshl_add_u32 v{vH16}, v{vHH}, 4, s{sB0}']

def twiddle_wc(t):
    L = [f'v_cvt_f32_u32 v{t}, v{vU}', f'v_cvt_f32_u32 v{t+1}, v{vHH}', f'v_mul_f32 v{t}, {f2h(1/32)}, v{t}',
         f'v_mul_f32 v{t+1}, 4.0, v{t+1}', f'v_mul_f32 v{t+1}, v{t+1}, v{t}']
    for p in range(8):
        u0 = 16*(p >> 2) + 8*((p & 3) >> 1) + 2*(p & 1)
        L += [f'v_fmamk_f32 v{t+2}, v{t}, {f2h(u0)}, v{t+1}', f'v_fmamk_f32 v{t+3}, v{t}, {f2h(u0+1)}, v{t+1}',
              f'v_cos_f32 v{t+4}, v{t+2}', f'v_cos_f32 v{t+5}, v{t+3}', f'v_sin_f32 v{t+6}, v{t+2}', f'v_sin_f32 v{t+7}, v{t+3}',
              f'v_cvt_pk_bf16_f32 v{WC+p}, v{t+4}, v{t+5}', f'v_cvt_pk_bf16_f32 v{WC+8+p}, -v{t+6}, -v{t+7}']
    return L
def twiddle_tf(t, dst):
    L = []
    for rb in range(2):
        L += [f's_add_u32 s{sT}, s{sT1}, {32*rb}\nv_lshl_add_u32 v{t}, v{vU}, 6, s{sT}', f'v_lshl_add_u32 v{t+1}, v{vHH}, 1, s{sI}',
              f'v_cvt_f32_u32 v{t}, v{t}', f'v_cvt_f32_u32 v{t+1}, v{t+1}', f'v_mul_f32 v{t}, {f2h(1/2048)}, v{t}',
              f'v_mul_f32 v{t+1}, {f2h(8.0)}, v{t+1}', f'v_mul_f32 v{t+1}, v{t+1}, v{t}']
        for jj in range(4):
            for h in range(2):
                k0 = 2*jj + 32*h
                d = dst + 16*rb + 4*jj + 2*h
                L += [f'v_fmamk_f32 v{t+2}, v{t}, {f2h(k0)}, v{t+1}', f'v_fmamk_f32 v{t+3}, v{t}, {f2h(k0+1)}, v{t+1}',
                      f'v_cos_f32 v{t+4}, v{t+2}', f'v_sin_f32 v{t+5}, v{t+2}', f'v_cos_f32 v{t+6}, v{t+3}', f'v_sin_f32 v{t+7}, v{t+3}',
                      f'v_cvt_pk_bf16_f32 v{d}, v{t+4}, v{t+5}', f'v_cvt_pk_bf16_f32 v{d+1}, v{t+6}, v{t+7}']
    return L

def p2_addr_early():
    t = vWt; u, w = sB0, sB1
    L = lines(f'v_lshrrev_b32 v{t+1}, 3, v{vL}\nv_and_b32 v{t+2}, 7, v{vL}\nv_bfe_u32 v{t+3}, v{vL}, 4, 1\nv_lshlrev_b32 v{t+3}, 2, v{t+3}\n'
              f'v_xor_b32 v{t+3}, v{t+3}, v{t+2}\nv_lshlrev_b32 v{t+3}, 4, v{t+3}\nv_mul_u32_u24 v{t+4}, 896, v{t+1}')
    L += [f's_mul_i32 s{u}, s{sW}, {448*896}\ns_lshl_b32 s{w}, s{sCT}, 7\ns_add_u32 s{u}, s{u}, s{w}', f'v_add3_u32 v{vW2}, v{t+4}, v{t+3}, s{u}']
    L += [f'v_add_u32 v{vW2+i}, {i*(7168-1024)}, v{vW2}' for i in range(1, 4)]
    L += lines(f'v_bfe_u32 v{t}, v{vL}, 2, 2\nv_lshl_add_u32 v{t+1}, v{vHH}, 2, v{t}\nv_lshlrev_b32 v{t+1}, 7, v{t+1}\nv_lshrrev_b32 v{t}, 1, v{t}\n'
               f'v_xor_b32 v{t}, s{sJ}, v{t}\nv_lshl_add_u32 v{t+1}, v{t}, 6, v{t+1}\nv_bfe_u32 v{t}, v{vL}, 4, 1\nv_lshl_add_u32 v{t+1}, v{t}, 5, v{t+1}\n'
               f'v_and_b32 v{t}, 3, v{vL}\nv_lshl_add_u32 v{t+1}, v{t}, 3, v{t+1}\ns_mul_i32 s{sArea}, s{sW}, {AREA}\n'
               f'v_add_u32 v{vTra}, s{sArea}, v{t+1}\nv_xor_b32 v{vTrb}, 64, v{vTra}\ns_lshl_b32 s{sStg}, s{sW}, 13\nv_add_u32 v{vSt[1][0]}, s{sStg}, v{t+1}\n'
               f'v_xor_b32 v{vSt[1][1]}, 64, v{vSt[1][0]}\nv_add_u32 v{vSt[0][0]}, {3*SLOT}, v{vSt[1][0]}\nv_add_u32 v{vSt[0][1]}, {3*SLOT}, v{vSt[1][1]}\nv_lshlrev_b32 v{vZw}, 4, v{vL}\nv_add_u32 v{vZw}, s{sArea}, v{vZw}')
    def vmap(el, e_out, tt_out, sg_out):
        M = [f's_lshl_b32 s{u}, s{sCT}, 6\ns_lshl_b32 s{w}, s{sJ}, 5\ns_add_u32 s{u}, s{u}, s{w}', f'v_add_u32 v{e_out}, s{u}, v{el}', f'v_sub_u32 v{t+6}, 448, v{e_out}',
             f's_sub_u32 s{u}, 32, s{sT1}\ns_and_b32 s{u}, s{u}, 31', f'v_mov_b32 v{tt_out}, s{sT1}', f'v_mov_b32 v{t+7}, s{u}',
             f'v_cmp_lt_u32 vcc, 239, v{e_out}\ns_nop 1\nv_cndmask_b32 v{e_out}, v{e_out}, v{t+6}, vcc\nv_cndmask_b32 v{tt_out}, v{tt_out}, v{t+7}, vcc' +
             (f'\nv_mov_b32 v{t+6}, 0\nv_bfrev_b32 v{t+7}, 1\nv_cndmask_b32 v{sg_out}, v{t+6}, v{t+7}, vcc' if sg_out else '')]
        return M
    L += vmap(vU, t, t+1, vSg)
    L += lines(f'v_lshlrev_b32 v{vVo}, 16, v{t+1}\nv_lshl_add_u32 v{vVo}, v{t}, 4, v{vVo}\nv_lshl_add_u32 v{vVo}, v{vHH}, 15, v{vVo}')
    L += [f's_lshl_b32 s{u}, s{sI}, 14', f'v_add_u32 v{vVo}, s{u}, v{vVo}']
    L += lines(f'v_and_b32 v{t+2}, 48, v{vL}\nv_subrev_u32 v{t+2}, 16, v{t+2}\nv_min_u32 v{t+2}, 31, v{t+2}')
    L += vmap(t+2, t, t+1, None)
    L += lines(f'v_and_b32 v{t}, 0x1f0, v{t}\nv_and_b32 v{t+2}, 15, v{vL}\nv_add_u32 v{t}, v{t}, v{t+2}\nv_lshlrev_b32 v{t}, 3, v{t}\nv_add_u32 v{vPa}, {FLV}, v{t}')
    L += [f's_mul_i32 s{u}, s{sW}, 7\ns_lshr_b32 s{u}, s{u}, 1\ns_lshr_b32 s{w}, s{sT1}, 1\ns_lshl_b32 s{w}, s{w}, 4\ns_add_u32 s{u}, s{u}, s{w}',
          f's_lshl_b32 s{u}, s{u}, 3\ns_add_u32 s{u}, s{u}, {FLH}', f'v_and_b32 v{t}, 3, v{vL}', f'v_lshl_add_u32 v{t}, v{t}, 3, s{u}',
          f'v_cmp_gt_u32 vcc, 16, v{vL}\ns_nop 1\nv_cndmask_b32 v{vPa}, v{vPa}, v{t}, vcc']
    L += [f'v_lshrrev_b32 v{t}, 2, v{vL}', f's_lshl_b32 s{u}, s{sI}, 4', f'v_add_u32 v{t}, s{u}, v{t}']
    L += lines(f'v_and_b32 v{t+1}, 3, v{vL}\nv_mul_u32_u24 v{t+2}, {64*896}, v{t}\nv_lshl_add_u32 v{t+2}, v{t+1}, 4, v{t+2}')
    L += [f's_lshl_b32 s{sRi}, s{sI}, 5\ns_add_u32 s{sRi}, s{sRi}, s{sT1}\ns_mul_i32 s{u}, s{sT1}, 896\ns_lshl_b32 s{w}, s{sCT}, 7',
          f's_add_u32 s{u}, s{u}, s{w}\ns_lshl_b32 s{w}, s{sJ}, 6\ns_add_u32 s{u}, s{u}, s{w}\ns_lshl_b32 s{sRi}, s{sRi}, 9',
          f'v_add_u32 v{vOo}, s{u}, v{t+2}', f'v_add_u32 v{vOo+1}, {32*896}, v{vOo}', f'v_lshlrev_b32 v{vRo}, 4, v{t}',
          f's_mul_i32 s{sHb}, s{sT1}, {HB_SIG}\ns_mul_i32 s{u}, s{sW}, {28*1024}\ns_add_u32 s{sHb}, s{sHb}, s{u}']
    return L

def p1_reads(n):
    g, jj = divmod(n, 4)
    half, so = (g % 4) // 2, (g % 2) * SLOT
    f = FR + 20 * (n & 1)
    return [f'ds_read_b64_tr_b16 {vr(f+8,2)}, v{vTa+half} offset:{so + jj*2048}',
            f'ds_read_b64_tr_b16 {vr(f+10,2)}, v{vTa+half} offset:{so + jj*2048 + 512}',
            f'ds_read_b128 {vr(f)}, v{vRb+4*half+jj} offset:{so}',
            f'ds_read_b128 {vr(f+4)}, v{vRp+4*half+jj} offset:{so}',
            f'ds_read_b64_tr_b16 {vr(f+12,2)}, v{vTb+half} offset:{so + jj*2048}',
            f'ds_read_b64_tr_b16 {vr(f+14,2)}, v{vTb+half} offset:{so + jj*2048 + 512}',
            f'ds_read_b128 {vr(f+16)}, v{vRd+4*half+jj} offset:{so}']
def p1_mfmas(n):
    f = FR + 20 * (n & 1)
    def m(acc, A, B): return mfma(vr(acc, 16), vr(A), vr(B), vr(acc, 16) if n else '0')
    return [m(ACC, f+8, f), m(ACC+16, f+8, f+4), m(ACC+32, f+12, f), m(ACC+48, f+12, f+4), m(ACC+64, f, f+16)]

vZsg, vXw, vXr, vVs, vHo = 78, 79, 80, 81, 82
sHA0, sHA1, sHB0, sHB1 = 4, 5, 8, 9
def z_addr(t, u, w):
    L = lines(f'v_bfe_u32 v{t}, v{vL}, 4, 1\nv_xor_b32 v{vZsg}, 1, v{t}\nv_mul_u32_u24 v{vZsg}, 0x8000, v{vZsg}\nv_lshl_or_b32 v{vZsg}, v{vZsg}, 16, v{vZsg}\n'
              f'v_lshl_add_u32 v{t}, v{vHH}, 2, v{t}\nv_lshlrev_b32 v{t}, 8, v{t}\nv_and_b32 v{t+1}, 15, v{vL}\nv_lshl_add_u32 v{t}, v{t+1}, 4, v{t}')
    L += [f's_lshl_b32 s{u}, s{sW}, 2\ns_add_u32 s{u}, s{u}, {VX}', f'v_add_u32 v{vXw}, s{u}, v{t}',
          f's_lshl_b32 s{u}, s{sW}, 11\ns_add_u32 s{u}, s{u}, {VX}', f'v_lshlrev_b32 v{vHo}, 4, v{vL}', f'v_add_u32 v{vXr}, s{u}, v{vHo}']
    L += lines(f'v_lshrrev_b32 v{t}, 4, v{vL}\nv_lshlrev_b32 v{t}, 16, v{t}\nv_lshl_add_u32 v{t}, v{t+1}, 4, v{t}')
    L += [f's_lshl_b32 s{u}, s{sW}, 19\ns_lshl_b32 s{w}, s{sRT}, 12\ns_add_u32 s{u}, s{u}, s{w}\ns_lshl_b32 s{w}, s{sCG}, 8\ns_add_u32 s{u}, s{u}, s{w}',
          f'v_add_u32 v{vVs}, s{u}, v{t}']
    return L
def h_addr(u, w):
    return [f's_lshl_b32 s{u}, s{sCG}, 3\ns_lshl_b32 s{w}, s{sJ}, 2\ns_add_u32 s{u}, s{u}, s{w}\ns_lshl_b32 s{w}, s{sI}, 1\ns_add_u32 s{u}, s{u}, s{w}',
            f's_lshl_b32 s{u}, s{u}, 10\ns_mul_i32 s{w}, s{sSig}, {HB_SIG}\ns_add_u32 s{sHA0}, s{u}, s{w}',
            f's_xor_b32 s{w}, s{sSig}, 1\ns_mul_i32 s{w}, s{w}, {HB_SIG}\ns_add_u32 s{sHA1}, s{u}, s{w}',
            f's_xor_b32 s{sHB0}, s{sHA0}, 2048\ns_xor_b32 s{sHB1}, s{sHA1}, 2048']

def hblock_list(a, acc, so):
    L = [f'v_cvt_pk_bf16_f32 v{acc+p}, v{acc+2*p}, v{acc+2*p+1}' for p in range(8)]
    L += [f'v_pk_max_i16 v{acc+p}, v{acc+p}, 0' for p in range(8)] if not opt('maxf', 0) else []
    L.append(lambda: a.vmem(f'buffer_store_dwordx4 {vr(acc)}, v{vHo}, {sr(SH)}, s{so} offen {STF}', 'ST'))
    L.append(lambda: a.vmem(f'buffer_store_dwordx4 {vr(acc+4)}, v{vHo}, {sr(SH)}, s{so} offen offset:1024 {STF}', 'ST'))
    if opt('maxf', 0): L = [f'v_max_f32 v{acc+r}, 0, v{acc+r}' for r in range(16)] + L
    return L
def early_epilogue(a, lds, wait_lg):
    ZA = ACC + 64
    T1 = [FR+8, FR+16]; T2 = [FR+28, FR+36]
    b1 = lambda p: T1[p >> 2] + (p & 3)
    b2 = lambda p: T2[p >> 2] + (p & 3)
    L = ['s_nop 3'] + hblock_list(a, ACC, sHA0)
    L += [f'v_mul_f32 v{ZA+r}, v{ZA+r}, v{ZR+r}' for r in range(16)]
    L += [f'v_cvt_pk_bf16_f32 v{b1(p)}, v{ZA+2*p}, v{ZA+2*p+1}' for p in range(8)]
    L += [(lambda p=p: lds(f'ds_swizzle_b32 v{b2(p)}, v{b1(p)} offset:0x401f', 'sw')) for p in range(8)]
    L += [mfma(vr(ZA,16), vr(WC), vr(T1[0]), '0'), mfma(vr(ZA,16), vr(WC+4), vr(T1[1]), vr(ZA,16))]
    L += [lambda: wait_lg('sw')] + [f'v_xor_b32 v{b2(p)}, v{b2(p)}, v{vZsg}' for p in range(8)] + ['s_nop 1']
    L += [mfma(vr(ZA,16), vr(WC+8), vr(T2[0]), vr(ZA,16)), mfma(vr(ZA,16), vr(WC+12), vr(T2[1]), vr(ZA,16))]
    L += hblock_list(a, ACC+16, sHA1)
    L += [f'v_permlane16_swap_b32 v{ZA+2*p}, v{ZA+2*p+1}' for p in range(8)] + ['s_nop 1']
    L += [f'v_cvt_pk_bf16_f32 v{b1(p)}, v{ZA+2*p}, v{ZA+2*p+1}' for p in range(8)]
    L += [(lambda p=p: lds(f'ds_write_b32 v{vXw}, v{b1(p)} offset:{((2*p & 3) + 8*(p >> 1))*256}', 'xw')) for p in range(8)]
    L += [lambda: (wait_lg('xw'), a('s_barrier'))]
    L += [lambda: lds(f'ds_read_b128 {vr(T2[0])}, v{vXr}', 'xr'), lambda: lds(f'ds_read_b128 {vr(T2[1])}, v{vXr} offset:1024', 'xr')]
    L += [f's_mov_b32 s{sT}, {4*65536}', 'MARK']
    L += [lambda: wait_lg('xr'),
          lambda: a.vmem(f'buffer_store_dwordx4 {vr(T2[0])}, v{vVs}, {sr(SV)}, 0 offen {STF}', 'ST'),
          lambda: a.vmem(f'buffer_store_dwordx4 {vr(T2[1])}, v{vVs}, {sr(SV)}, s{sT} offen {STF}', 'ST')]
    L.remove('MARK')
    return L
def own_touch():
    if opt('tfull', 0):
        return (f's_and_b32 s{sT}, s{sHA0}, 0xfffff000\nv_and_b32 v{vP+1}, 31, v{vL}\nv_lshlrev_b32 v{vP+1}, 7, v{vP+1}\ns_mov_b64 exec, 0xffffffff\nbuffer_load_dword v{vP}, v{vP+1}, {sr(SH)}, s{sT} offen\n'
                f's_and_b32 s{sT}, s{sHA1}, 0xfffff000\nbuffer_load_dword v{vP}, v{vP+1}, {sr(SH)}, s{sT} offen\n'
                f's_mov_b32 exec_lo, 0x01010101\ns_mov_b32 exec_hi, 0x01010101\nbuffer_load_dword v{vP}, v{vVs}, {sr(SV)}, 0 offen\n'
                f's_mov_b32 s{sT}, {4*65536}\nbuffer_load_dword v{vP}, v{vVs}, {sr(SV)}, s{sT} offen\ns_mov_b64 exec, -1', 'TL')
    return (f's_mov_b64 exec, 1\nbuffer_load_dword v{vP}, v{vHo}, {sr(SH)}, s{sHA0} offen\nbuffer_load_dword v{vP}, v{vHo}, {sr(SH)}, s{sHA1} offen\n'
            f's_mov_b32 exec_lo, 0x00010001\ns_mov_b32 exec_hi, 0x00010001\nbuffer_load_dword v{vP}, v{vVs}, {sr(SV)}, 0 offen\n'
            f's_mov_b32 s{sT}, {4*65536}\nbuffer_load_dword v{vP}, v{vVs}, {sr(SV)}, s{sT} offen\ns_mov_b64 exec, -1', 'TL')
SPF = 20
vPf = 96
def pf_addr(a):
    M1 = opt('pm1', 2)
    assert M1 == 2
    t = vWt
    l1, l2, l3, dn = a.label('pf'), a.label('pf'), a.label('pf'), a.label('pf')
    a(f's_cmp_lg_u32 s{sW}, 0\ns_cbranch_scc1 {l1}')
    a(f'v_mul_u32_u24 v{t}, 7, v{vL}\nv_add_u32 v{t}, s{sCT}, v{t}\ns_mul_i32 s{sT}, s{sRT}, {2*896}')
    def xoff(dst, src, lg, gbase):
        a(f'v_lshrrev_b32 v{t+2}, {lg+1}, v{src}\nv_mul_u32_u24 v{t+2}, {32*896}, v{t+2}\nv_bfe_u32 v{t+3}, v{src}, {lg}, 1\nv_mul_u32_u24 v{t+3}, 7, v{t+3}')
        a(f'v_and_b32 v{t+4}, {(1 << lg) - 1}, v{src}\nv_add3_u32 v{t+3}, v{t+3}, v{t+4}, {gbase}\nv_lshl_add_u32 v{t+2}, v{t+3}, 7, v{t+2}\nv_add_u32 v{dst}, s{sT}, v{t+2}')
    xoff(vPf, t, 1, 1); xoff(vPf+1, t, 2, 3)
    a(f'v_add_u32 v{t}, 448, v{t}')
    xoff(vPf+2, t, 2, 3)
    a(f's_branch {dn}')
    a(f'{l1}:')
    a(f's_cmp_eq_u32 s{sW}, 3\ns_cbranch_scc1 {l3}')
    a(f'v_lshrrev_b32 v{t}, 1, v{vL}\nv_mul_u32_u24 v{t}, {4*3584}, v{t}\nv_and_b32 v{t+1}, 1, v{vL}\nv_lshl_add_u32 v{t}, v{t+1}, 7, v{t}')
    a(f's_mul_i32 s{sT}, s{sT3}, 3584\ns_lshl_b32 s{sT2}, s{sCG}, 8\ns_add_u32 s{sT}, s{sT}, s{sT2}\nv_add_u32 v{t}, s{sT}, v{t}')
    a(f's_mul_i32 s{sT}, s{sI}, {128*3584}\ns_add_u32 s{sT}, s{sT}, {192*3584}\ns_lshl_b32 s{sT2}, s{sI}, 31\ns_add_u32 s{sT2}, s{sT2}, {64*3584}')
    a(f'v_add_u32 v{vPf}, s{sT2}, v{t}\nv_add_u32 v{vPf+1}, s{sT}, v{t}\nv_bfrev_b32 v{vPf+2}, 1')
    a(f's_branch {dn}')
    a(f'{l3}:')
    a(f's_lshl_b32 s{sT}, s{sCG}, 1\ns_and_b32 s{sT2}, s{sT3}, 1\ns_add_u32 s{sT}, s{sT}, s{sT2}\ns_mul_i32 s{sT}, s{sT}, {8*896}')
    a(f'v_and_b32 v{t}, 7, v{vL}\nv_mul_u32_u24 v{t}, 896, v{t}\nv_add_u32 v{t}, s{sT}, v{t}')
    a(f'v_bfe_u32 v{t+1}, v{vL}, 3, 1\nv_lshl_add_u32 v{vPf}, v{t+1}, 7, v{t}\nv_add_u32 v{vPf}, 128, v{vPf}')
    a(f'v_bfe_u32 v{t+1}, v{vL}, 3, 2\nv_lshl_add_u32 v{vPf+1}, v{t+1}, 7, v{t}\nv_add_u32 v{vPf+1}, 384, v{vPf+1}\nv_bfrev_b32 v{vPf+2}, 1')
    a(f'{dn}:')
def pf_srd(a):
    a(f's_cmp_ge_u32 s{sT3}, 2\ns_cselect_b32 s{SPF}, s10, s8\ns_cselect_b32 s{SPF+1}, s11, s9\ns_mov_b32 s{SPF+2}, {448*896}\ns_mov_b32 s{SPF+3}, 0x20000')
    a(f's_cmp_eq_u32 s{sW}, 3\ns_cselect_b32 s{SPF}, s{SPF}, s12\ns_cselect_b32 s{SPF+1}, s{SPF+1}, s13\ns_cselect_b32 s{SPF+2}, s{SPF+2}, {448*3584}')
    a(f's_cmp_eq_u32 s{sW}, 0\ns_cselect_b32 s{SPF}, s4, s{SPF}\ns_cselect_b32 s{SPF+1}, s5, s{SPF+1}\ns_cselect_b32 s{SPF+2}, {2048*896}, s{SPF+2}')
def pf_load(i): return (f'buffer_load_dword v{vPf+3}, v{vPf+i}, {sr(SPF)}, 0 offen', 'PF')
def rank1():
    return [mfma(vr(ACC,16), vr(CA), vr(MO), vr(ACC,16)), mfma(vr(ACC+16,16), vr(CA), vr(MP), vr(ACC+16,16)),
            mfma(vr(ACC+32,16), vr(CB), vr(MO), vr(ACC+32,16)), mfma(vr(ACC+48,16), vr(CB), vr(MP), vr(ACC+48,16)),
            mfma(vr(ACC+64,16), vr(MO), vr(CZ), vr(ACC+64,16))]
TWI = (f'v_and_b32 v{vP}, 15, v{vL}\nv_lshlrev_b32 v{vP}, 7, v{vP}\nbuffer_load_dword v{vP+1}, v{vP}, {sr(SW2)}, s{sA2} offen', 'TW')
def p1_loop(a):
    lg = []
    def lds(x, tag):
        a(x); lg.append(tag)
    def wait_lg(tag=None):
        if tag is None:
            if lg: a('s_waitcnt lgkmcnt(0)'); lg.clear()
            return
        if tag not in lg: return
        idx = max(i for i, x in enumerate(lg) if x == tag)
        a(f's_waitcnt lgkmcnt({min(len(lg)-1-idx, 15)})')
        del lg[:idx+1]
    RT = ['m0', 'm0', 'm0', 'm1', 'm2', 'm2', 'm4']
    FG = opt('fg', 5); FINE = opt('fine', 1)
    a.wait_vm('G0')
    a('s_barrier')
    stamp(a, 1); stamp(a, 1, '1'); cstamp(a, 1, '8')
    for r, t_ in zip(p1_reads(0), RT): lds(r, f'0{t_}')
    a.lgw = wait_lg
    q = [x for g_ in range(2 + opt('gpre', 0), 4) for x in dma_group('A', g_)]
    if opt('pf', 0):
        i2 = max(i for i, x in enumerate(q) if x[1] == 'G2') + 1 if not opt('gpre', 0) else 0
        i2 = 0 if opt('pf', 0) == 2 else i2
        q[i2:i2] = [pf_load(1), pf_load(2)] + ([TWI] if TW == 1 else [])
    vq = stat_addr() + (z_addr(vWt, sB0, sB1) + h_addr(sB0, sB1) if opt('tln', 6) >= 0 else []) + p2_addr_early() + twiddle_wc(vWt) + wg_flag_prep(vFl, sB0, sB1)
    assert vq[:len(a.pre)] == a.pre
    del vq[:len(a.pre)]
    wq = [x for q_ in range(NSTG) for x in w2_group(q_)]
    midgroup = [False]
    SK = opt('sk', 28)
    seq = [(n, 'AZB') for n in range(SK)] + [(n, 'AZ') for n in range(SK, 28)] + [(n, 'B') for n in range(SK, 28)]
    def reads(pos):
        n, kind = seq[pos]
        g, jj = divmod(n, 4)
        half, so = (g % 4) // 2, (g % 2) * SLOT
        f = FR + 20 * (pos & 1)
        wa = [f'ds_read_b64_tr_b16 {vr(f+8+2*p,2)}, v{vTa+half} offset:{so + jj*2048 + 512*p}' for p in range(2)]
        wb = [f'ds_read_b64_tr_b16 {vr(f+12+2*p,2)}, v{vTb+half} offset:{so + jj*2048 + 512*p}' for p in range(2)]
        x0 = f'ds_read_b128 {vr(f)}, v{vRb+4*half+jj} offset:{so}'
        x1 = f'ds_read_b128 {vr(f+4)}, v{vRp+4*half+jj} offset:{so}'
        d = f'ds_read_b128 {vr(f+16)}, v{vRd+4*half+jj} offset:{so}'
        if kind == 'AZB': L = [(wa[0], 0), (wa[1], 0), (x0, 0), (x1, 1), (wb[0], 2), (wb[1], 2), (d, 4)]
        elif kind == 'AZ': L = [(wa[0], 0), (wa[1], 0), (x0, 0), (x1, 1), (d, 2)]
        else: L = [(wb[0], 0), (wb[1], 0), (x0, 0), (x1, 1)]
        return [(x, f'{pos}m{m_}') for x, m_ in L]
    def mfmas(pos):
        n, kind = seq[pos]
        f = FR + 20 * (pos & 1)
        def m(acc, A, B): return mfma(vr(acc, 16), vr(A), vr(B), vr(acc, 16) if n else '0')
        A_ = [m(ACC, f+8, f), m(ACC+16, f+8, f+4)]; B_ = [m(ACC+32, f+12, f), m(ACC+48, f+12, f+4)]; Z_ = [m(ACC+64, f, f+16)]
        if opt('mord', 1): B_ = B_[::-1]
        return {'AZB': A_ + B_ + Z_, 'AZ': A_ + Z_, 'B': B_}[kind]
    yq = []
    for pos, (n, kind) in enumerate(seq):
        g, jj = divmod(n, 4)
        first = kind != 'B'
        if STAMP and LST == '7' and 0 <= pos - opt('s0', 8) <= 8: a(f's_memtime s[{STB+2*(1+pos-opt("s0", 8))}:{STB+2*(1+pos-opt("s0", 8))+1}]')
        BG = opt('bg', 2)
        def group_barrier():
            assert not any(t == f'G{g+1}' for _, t in q), (n, q)
            wait_lg()
            a.wait_vm(f'G{g+1}')
            a('s_barrier')
            stamp(a, 2 + g, '1')
            if g == 1: cstamp(a, 1)
            if g == 5: cstamp(a, 3)
            if g + 4 < 7: q.extend(dma_group('A', g + 4))
        bar = first and jj == 3 and g < 6
        if bar and BG == 0: group_barrier()
        if first and TW > 1 and n == TW:
            q[:0] = [(f'v_and_b32 v{vP}, 15, v{vL}\nv_lshlrev_b32 v{vP}, 7, v{vP}\nbuffer_load_dword v{vP+1}, v{vP}, {sr(SW2)}, s{sA2} offen', 'TW')]
        if first and n in (opt('tln', 6), opt('tln2', 99)):
            assert not any(x.startswith(f'v_add_u32 v{vVs},') or f's{sHA1}, s' in x for x in vq), 'addresses not ready'
            q[:0] = [own_touch()]
        if first and n == opt('tlo', 99):
            assert not any(x.startswith(f'v_add_u32 v{vOo+1},') for x in vq), 'addresses not ready'
            q[:0] = [(f'buffer_load_dword v{vP}, v{vOo}, {sr(SO)}, 0 offen\nbuffer_load_dword v{vP}, v{vOo+1}, {sr(SO)}, 0 offen', 'TL')]
        if first and n == POLL0: q[:0] = stat_loads('A')
        chk = first and n == POLL0 + PCHK
        if chk: assert not any(t == 'SL' for _, t in q)
        R1 = rank1()
        if first and n == 27:
            assert not any(x in vq for x in stat_fix('A'))
            for m in (R1 if SK == 28 else R1[:2] + R1[4:]): a(m)
        if kind == 'B' and n == SK:
            for x in vq: a(x)
            vq.clear()
            assert SK >= 20
            stamp(a, 7, '1')
            for m in R1[2:4]: a(m)
            yq = early_epilogue(a, lds, wait_lg)
        rd = reads(pos + 1) if pos + 1 < len(seq) else []
        nld = 0; wn = 0
        rate = RATE[pos % len(RATE)]
        ms = mfmas(pos)
        for mi, m in enumerate(ms):
            last = mi == len(ms) - 1
            wait_lg(f'{pos}m{mi}')
            a(m)
            used = 0
            if bar and mi + 1 == BG: group_barrier(); used += 2
            if chk and mi == 0: stat_check(a, 'A'); vq[:0] = stat_fix('A'); used += 9
            for _ in range(7 if last else (opt('rpg', 3) if not (bar and BG) else 4)):
                if rd and not (bar and mi + 1 < BG): r, t_ = rd.pop(0); lds(r, t_); used += 1
            if mi >= len(ms) - 3:
                cnt = 0
                while nld < rate and (cnt < 1 or last):
                    wok = pos >= W0 and wq and not (bar and mi + 1 < BG) and wn < WPS[pos % len(WPS)] and pos >= (16 + 4 * int(wq[0][1][1]) if not RAWP else (0, 16, 20)[int(wq[0][1][1])])
                    if wok and RAWP and wq[0][1] == 'R0': ins = wq.pop(0); wn += 1
                    elif q: ins = q.pop(0)
                    elif wok: ins = wq.pop(0); wn += 1
                    else: break
                    a.emit(ins); used += cost(ins[0])
                    if ins[1]: nld += 0.5 if ins[1] == 'SL' else 1; cnt += 1
            while vq and used + min(cost(vq[0]), 3) <= FG and not (f's{sArea}, s' in vq[0] and any(t_ == 'PF' for _, t_ in q)):
                x = vq.pop(0); used += cost(x)
                if x.startswith('ds_'): lds(x, 'x')
                else: a(x)
            while yq and used < opt('yg', 7):
                x = yq.pop(0); used += 1
                if callable(x): x()
                else: a(x)
        assert not rd
    a.yq = yq
    assert not vq and not q, vq
    stamp(a, 2); stamp(a, 8, '1'); stamp(a, 1, '3'); stamp(a, 1, '5'); cstamp(a, 3, '8')
    return wq

def p1_loop_bc(a, role):
    def regs(g): return FR if g % 2 == 0 else ACC + 16
    def reads(g):
        half, so = (g % 4) // 2, (g % 2) * SLOT
        f = regs(g); L = []
        for jj in range(4):
            if role == 'B':
                L.append(f'ds_read_b128 {vr(f+8*jj)}, v{vRb+4*half+jj} offset:{so}')
                L.append(f'ds_read_b128 {vr(f+8*jj+4)}, v{vRd+4*half+jj} offset:{so}')
            else:
                L.append(f'ds_read_b64_tr_b16 {vr(f+8*jj,2)}, v{vTa+half} offset:{so + jj*2048}')
                L.append(f'ds_read_b64_tr_b16 {vr(f+8*jj+2,2)}, v{vTa+half} offset:{so + jj*2048 + 512}')
        return L
    a.wait_vm('G0'); a('s_barrier')
    if role == 'C': stamp(a, 1)
    for r in reads(0): a(r)
    if role == 'C':
        for ins in dma_group(role, 3): a.emit(ins)
    for g in range(7):
        a('s_waitcnt lgkmcnt(0)')
        if g < 6:
            a.wait_vm(f'G{g+1}'); a('s_barrier')
            for r in reads(g + 1): a(r)
            if g + 4 < 7:
                for ins in dma_group(role, g + 4): a.emit(ins)
            if role == 'B' and g == 4:
                for ins in stat_loads('B'): a.emit(ins)
        f = regs(g)
        for jj in range(4):
            n = 4*g + jj
            if role == 'B': a(mfma(vr(ACC+64,16), vr(f+8*jj), vr(f+8*jj+4), vr(ACC+64,16) if n else '0'))
            else: a(mfma(vr(ACC,16), vr(TF), vr(f+8*jj), vr(ACC,16) if n else '0'))
    if role == 'C': stamp(a, 2)

ZA, B1, B2 = ACC + 64, FR, FR + 8
def z1(a):
    for r in range(16): a(f'v_mul_f32 v{ZA+r}, v{ZA+r}, v{ZR+r}')
    for p in range(8): a(f'v_cvt_pk_bf16_f32 v{B1+p}, v{ZA+2*p}, v{ZA+2*p+1}')
    for p in range(8): a(f'ds_swizzle_b32 v{B2+p}, v{B1+p} offset:0x401f')
    a(mfma(vr(ZA,16), vr(WC), vr(B1), '0'))
    a(mfma(vr(ZA,16), vr(WC+4), vr(B1+4), vr(ZA,16)))
def z2(a):
    a('s_waitcnt lgkmcnt(0)')
    for p in range(8): a(f'v_xor_b32 v{B2+p}, v{B2+p}, v{vZsg}')
    a('s_nop 1')
    a(mfma(vr(ZA,16), vr(WC+8), vr(B2), vr(ZA,16)))
    a(mfma(vr(ZA,16), vr(WC+12), vr(B2+4), vr(ZA,16)))
def z3(a):
    for p in range(8): a(f'v_permlane16_swap_b32 v{ZA+2*p}, v{ZA+2*p+1}')
    a('s_nop 1')
    for p in range(8): a(f'v_cvt_pk_bf16_f32 v{B1+p}, v{ZA+2*p}, v{ZA+2*p+1}')
    for p in range(8):
        t1b = (2*p & 3) + 8 * (p >> 1)
        a(f'ds_write_b32 v{vXw}, v{B1+p} offset:{t1b*256}')
def z4a(a):
    a('s_waitcnt lgkmcnt(0)\ns_barrier')
    a(f'ds_read_b128 {vr(B2)}, v{vXr}\nds_read_b128 {vr(B2+4)}, v{vXr} offset:1024')
def z4b(a):
    a(f's_mov_b32 s{sT}, {4*65536}')
    a('s_waitcnt lgkmcnt(0)')
    a.vmem(f'buffer_store_dwordx4 {vr(B2)}, v{vVs}, {sr(SV)}, 0 offen {STF}', 'ST')
    a.vmem(f'buffer_store_dwordx4 {vr(B2+4)}, v{vVs}, {sr(SV)}, s{sT} offen {STF}', 'ST')

def gen():
    a = Asm()
    a('s_cmp_ge_u32 s2, 256\ns_cbranch_scc1 Lend')
    a('s_load_dwordx2 s[4:5], s[0:1], 0')
    a('s_load_dwordx4 s[8:11], s[0:1], 24')
    a('s_load_dwordx4 s[12:15], s[0:1], 48')
    a('s_load_dwordx2 s[16:17], s[0:1], 64')
    a('s_load_dwordx2 s[18:19], s[0:1], 80')
    stamp(a, 0)
    CPF = opt('cpf', 1)
    if CPF:
        a('s_getpc_b64 s[22:23]')
        a('Lpc:')
        a(f's_bfe_u32 s3, s2, 0x30003\ns_lshl_b32 s3, s3, 12')
        a(f'v_lshrrev_b32 v{vP}, 6, v0\nv_lshlrev_b32 v{vP}, 10, v{vP}\nv_and_b32 v{vP+1}, 7, v0\nv_lshl_add_u32 v{vP}, v{vP+1}, 7, v{vP}\nv_add_u32 v{vP}, s3, v{vP}')
        a(f'v_min_u32 v{vP}, Lend-Lpc, v{vP}')
        a.vmem(f'global_load_dword v{vP+1}, v{vP}, s[22:23]', 'CP')
    a(f'v_lshrrev_b32 v{FR}, 6, v0\nv_and_b32 v{vL}, 63, v0')
    a(f'v_readfirstlane_b32 s{sW}, v{FR}')
    sX8, sN = sA3, sA4
    a(f's_and_b32 s{sX8}, s2, 7\ns_lshr_b32 s{sN}, s2, 3')
    a(f's_and_b32 s{sT}, s{sX8}, 3\ns_lshr_b32 s{sT2}, s{sX8}, 2')
    a(f's_lshr_b32 s{sI}, s{sW}, 1\ns_and_b32 s{sJ}, s{sW}, 1')
    a(f's_cmp_ge_u32 s{sN}, 28\ns_cbranch_scc1 LroleBC')
    def sigma(): a(f's_lshl_b32 s{sSig}, s{sRT}, 1\ns_add_u32 s{sSig}, s{sSig}, s{sJ}\ns_lshl_b32 s{sT}, s{sI}, 5\ns_add_u32 s{sSig}, s{sSig}, s{sT}')
    def p1_srds():
        a('s_waitcnt lgkmcnt(0)')
        srd(a, SX, 4, 2048*896)
        a(f's_cmp_ge_u32 s{sW}, 2')
        a(f's_cselect_b32 s{SD}, s10, s8\ns_cselect_b32 s{SD+1}, s11, s9\ns_mov_b32 s{SD+2}, {448*896}\ns_mov_b32 s{SD+3}, 0x20000')
        srd(a, SW, 12, 448*3584)
    def other_srds():
        srd(a, SM, 18, SM_SIZE, SM_OFF)
        a(f's_load_dwordx2 s[{sTag}:{sTag+1}], s[{SM}:{SM+1}], {EPO}')
        srd(a, SH, 18, HB_SIZE, WS0)
        srd(a, SV, 18, VB_SIZE, VB_OFF)

    a(f's_lshl_b32 s{sRT}, s{sT}, 2\ns_and_b32 s{sT3}, s{sN}, 3\ns_add_u32 s{sRT}, s{sRT}, s{sT3}\ns_lshr_b32 s{sCT}, s{sN}, 2')
    a(f's_mul_i32 s{sCG}, s{sT2}, 7\ns_add_u32 s{sCG}, s{sCG}, s{sCT}')
    a(f's_lshl_b32 s{sG0}, s{sT3}, 1\ns_add_u32 s{sG0}, s{sG0}, s{sCT}\ns_sub_u32 s{sB0}, s{sG0}, 7\ns_cselect_b32 s{sG0}, s{sG0}, s{sB0}')
    if not ROT: a(f's_mov_b32 s{sG0}, 0')
    sCT1 = sCT
    if opt('map2', 0):
        a(f's_mov_b32 s{sB1}, s{sG0}')
        a(f's_and_b32 s{sA0}, s{sX8}, 1\ns_and_b32 s{sA1}, s{sN}, 7\ns_lshr_b32 s{sCT}, s{sN}, 3')
        a(f's_lshl_b32 s{sG0}, s{sCT}, 1\ns_add_u32 s{sG0}, s{sG0}, s{sA1}')
        a(f's_lshl_b32 s{sB0}, s{sA1}, 1\ns_lshl_b32 s{sA0}, s{sA0}, 2\ns_add_u32 s{sT1}, s{sA1}, s{sA0}\ns_add_u32 s{sA0}, s{sA0}, s{sCT}')
        a(f's_cmp_eq_u32 s{sCT}, 3\ns_cselect_b32 s{sCT}, 3, s{sA0}\ns_cselect_b32 s{sA1}, s{sT1}, s{sA1}\ns_cselect_b32 s{sG0}, s{sB0}, s{sG0}')
        a(f's_sub_u32 s{sB0}, s{sG0}, 7\ns_cselect_b32 s{sG0}, s{sG0}, s{sB0}')
        a(f's_lshr_b32 s{sT1}, s{sX8}, 1\ns_lshl_b32 s{sT1}, s{sT1}, 2\ns_lshr_b32 s{sB0}, s{sA1}, 1\ns_add_u32 s{sT1}, s{sT1}, s{sB0}')
        a(f's_sub_u32 s{sB0}, 32, s{sT1}\ns_cmp_eq_u32 s{sT1}, 0\ns_cselect_b32 s{sB0}, 16, s{sB0}')
        a(f's_bitcmp1_b32 s{sA1}, 0\ns_cselect_b32 s{sT1}, s{sB0}, s{sT1}')
        assert ROT1 in (7, 4) and not XOFF
        if ROT1 == 4: a(f's_lshr_b32 s{sB1}, s{sN}, 2\ns_add_u32 s{sB1}, s{sB1}, s{sT3}\ns_and_b32 s{sB1}, s{sB1}, 3\ns_lshl_b32 s{sB1}, s{sB1}, 1')
    else:
        a(f's_lshl_b32 s{sT1}, s{sX8}, 1\ns_lshr_b32 s{sB0}, s{sT3}, 1\ns_add_u32 s{sT1}, s{sT1}, s{sB0}\ns_sub_u32 s{sB0}, 32, s{sT1}\ns_cmp_eq_u32 s{sT1}, 0\ns_cselect_b32 s{sB0}, 16, s{sB0}')
        a(f's_bitcmp1_b32 s{sT3}, 0\ns_cselect_b32 s{sT1}, s{sB0}, s{sT1}')
    if XOFF: a(f's_add_u32 s{sG0}, s{sG0}, s{sX8}\ns_sub_u32 s{sB0}, s{sG0}, 7\ns_cselect_b32 s{sG0}, s{sG0}, s{sB0}\ns_sub_u32 s{sB0}, s{sG0}, 7\ns_cselect_b32 s{sG0}, s{sG0}, s{sB0}')
    if opt('map2', 0): pass
    elif ROT1 == 7: a(f's_mov_b32 s{sB1}, s{sG0}')
    elif ROT1 == 16: a(f's_mul_i32 s{sB1}, s{sT3}, 3\ns_lshr_b32 s{sB1}, s{sB1}, 1\ns_add_u32 s{sB1}, s{sB1}, s{sCT}\ns_sub_u32 s{sB0}, s{sB1}, 6\ns_cselect_b32 s{sB1}, s{sB1}, s{sB0}\ns_add_u32 s{sB1}, s{sB1}, 1')
    elif ROT1 == 13: a(f's_add_u32 s{sB1}, s{sCT}, s{sT3}\ns_mul_i32 s{sB0}, s{sB1}, 43\ns_lshr_b32 s{sB0}, s{sB0}, 7\ns_mul_i32 s{sB0}, s{sB0}, 3\ns_sub_u32 s{sB1}, s{sB1}, s{sB0}\ns_lshl_b32 s{sB1}, s{sB1}, 1\ns_add_u32 s{sB1}, s{sB1}, 1')
    elif ROT1 == 25: a(f's_add_u32 s{sB1}, s{sCT}, s{sT3}\ns_sub_u32 s{sB0}, s{sB1}, 5\ns_cselect_b32 s{sB1}, s{sB1}, s{sB0}\ns_add_u32 s{sB1}, s{sB1}, 2')
    elif ROT1 == 4: a(f's_add_u32 s{sB1}, s{sCT}, s{sT3}\ns_and_b32 s{sB1}, s{sB1}, 3\ns_lshl_b32 s{sB1}, s{sB1}, 1')
    elif ROT1 == 2: a(f's_add_u32 s{sB1}, s{sCT}, s{sT3}\ns_and_b32 s{sB1}, s{sB1}, 1\ns_mul_i32 s{sB1}, s{sB1}, 3')
    elif ROT1 == 3: a(f's_add_u32 s{sB1}, s{sCT}, s{sT3}\ns_mul_i32 s{sB0}, s{sB1}, 43\ns_lshr_b32 s{sB0}, s{sB0}, 7\ns_mul_i32 s{sB0}, s{sB0}, 3\ns_sub_u32 s{sB1}, s{sB1}, s{sB0}\ns_lshl_b32 s{sB1}, s{sB1}, 1')
    else: a(f's_mov_b32 s{sB1}, 0')
    a(f's_mul_i32 s{sOnes}, s{sX8}, 28\ns_add_u32 s{sOnes}, s{sOnes}, s{sN}\ns_lshl_b32 s{sOnes}, s{sOnes}, 2\ns_add_u32 s{sOnes}, s{sOnes}, s{sW}\ns_mul_i32 s{sA2}, s{sOnes}, {14*128}')
    PF = opt('pf', 0)
    sigma(); p1_addr_dma(a)
    if PF: pf_addr(a)
    p1_srds()
    if PF: pf_srd(a)
    a(f's_mov_b32 s{sG1}, s{sB1}')
    def tw():
        srd(a, SW2, 14, 1792*896)
        a.vmem(f'v_and_b32 v{vt}, 15, v{vL}\nv_lshlrev_b32 v{vt}, 7, v{vt}\nbuffer_load_dword v{vP+1}, v{vt}, {sr(SW2)}, s{sA2} offen', 'TW')
    if TW == -3: tw()
    for ins in dma_group('A', 0): a.emit(ins)
    if PF: a.emit(pf_load(0))
    if TW == -2: tw()
    TLN = opt('tln', 6)
    def early_touch():
        srd(a, SH, 18, HB_SIZE, WS0); srd(a, SV, 18, VB_SIZE, VB_OFF)
        a.emit(own_touch())
    p1_addr_read(a)
    a.pre = []
    if opt('pre', 0):
        allv = stat_addr() + z_addr(vWt, sB0, sB1) + h_addr(sB0, sB1) + p2_addr_early() + twiddle_wc(vWt)
        npre = opt('pre', 0)
        for x in allv[:npre]: a(x)
        a.pre = allv[:npre]
    if TLN < 0:
        for x in z_addr(vWt, sB0, sB1) + h_addr(sB0, sB1): a(x)
    if TLN == -2: early_touch()
    for ins in dma_group('A', 1): a.emit(ins)
    if TW == -1: tw()
    if TLN == -1: early_touch()
    if TW >= 0: srd(a, SW2, 14, 1792*896)
    for g_ in range(2, 2 + opt('gpre', 0)):
        for ins in dma_group('A', g_): a.emit(ins)
    other_srds()
    srd(a, SO, 16, 2048*896)
    if opt('tlb', 0):
        a(f's_mov_b32 s{sT}, {HB_SIG}\nv_mul_lo_u32 v{FR}, v{vL}, s{sT}\nv_mov_b32 v{FR+1}, {248*16}\nv_mul_u32_u24 v{FR+2}, {32*896}, v{vL}')
        a(f's_mov_b32 s{sT}, {112*1024}')
        a.vmem(f'buffer_load_dword v{vP}, v{FR}, {sr(SH)}, s{sT} offen', 'TL')
        a.vmem(f'buffer_load_dword v{vP+1}, v{FR+1}, {sr(SV)}, 0 offen', 'TL')
        if opt('tlb', 0) > 1: a.vmem(f'buffer_load_dword v{vP+1}, v{FR+2}, {sr(SO)}, 0 offen', 'TL')
    get_tag(a)
    if STAMP == 3:
        a(f's_add_u32 s{sT}, s2, s{sW}\ns_cmp_lg_u32 s{sT}, 0\ns_cbranch_scc1 Lnopub\nv_mov_b32 v{FR}, {EPO+128}\nv_mov_b32 v{FR+1}, s{STB}\nbuffer_store_dword v{FR+1}, v{FR}, {sr(SM)}, 0 offen sc1\nLnopub:')
    wq = p1_loop(a)
    def run_list(L):
        for x in L:
            if callable(x): x()
            else: a(x)
    if opt('sk', 28) == 28:
        a('s_nop 6\ns_waitcnt lgkmcnt(0)')
        stamp(a, 1, '9')
        run_list(hblock_list(a, ACC, sHA0)); stamp(a, 2, '9')
        z1(a); run_list(hblock_list(a, ACC+16, sHA1)); stamp(a, 3, '9')
        z2(a); run_list(hblock_list(a, ACC+32, sHB0)); stamp(a, 4, '9')
        if RPRE0:
            for ins in wq: a.emit(ins)
            wq = []
            a.wait_vm('R0'); run_list(stage_reads(0))
        z3(a); run_list(hblock_list(a, ACC+48, sHB1))
        if RPRE0:
            a.wait_vm('R1'); run_list(stage_reads(1))
        stamp(a, 5, '9')
        z4a(a); stamp(a, 6, '9'); z4b(a); stamp(a, 7, '9')
    else:
        k = min(len(a.yq), 11)
        run_list(a.yq[:k])
        if k < 11: a(f's_nop {10 - k}')
        run_list(hblock_list(a, ACC+32, sHB0) + hblock_list(a, ACC+48, sHB1))
        run_list(a.yq[k:])
    stamp(a, 3); stamp(a, 2, '3'); stamp(a, 2, '5')
    phase2(a, wq)
    a('s_branch Lfin')

    a('LroleBC:')
    a.vm = ['CP'] if CPF else []
    TWL = opt('twl', 0)
    if TWL: a(f's_lshl_b32 s{sG0}, s{sX8}, 2\ns_add_u32 s{sG0}, s{sG0}, s{sN}\ns_sub_u32 s{sG0}, s{sG0}, 28\ns_lshl_b32 s{sG0}, s{sG0}, 2\ns_add_u32 s{sG0}, s{sG0}, s{sW}\ns_mul_i32 s{sG0}, s{sG0}, {98*128}')
    def light_tw():
        if not TWL: return
        srd(a, SW2, 14, 1792*896)
        a(f'v_lshlrev_b32 v{vP}, 7, v{vL}\ns_add_u32 s{sT}, s{sG0}, {34*128}')
        a.vmem(f'buffer_load_dword v{vP+1}, v{vP}, {sr(SW2)}, s{sG0} offen', 'TW')
        a.vmem(f'buffer_load_dword v{vP+1}, v{vP}, {sr(SW2)}, s{sT} offen', 'TW')
    a(f's_cmp_ge_u32 s{sN}, 30\ns_cbranch_scc1 LroleC')
    a(f's_lshl_b32 s{sRT}, s{sT}, 2\ns_lshl_b32 s{sT2}, s{sT2}, 1\ns_add_u32 s{sRT}, s{sRT}, s{sT2}\ns_add_u32 s{sRT}, s{sRT}, s{sN}\ns_sub_u32 s{sRT}, s{sRT}, 28')
    a(f's_mov_b32 s{sCG}, s{sRT}')
    sigma(); p1_addr_dma(a); p1_srds()
    XB, DB, vSb = 104, 224, 92
    for g in range(7):
        a(f's_movk_i32 s{sA0}, {BCO[g]*128}')
        for q in range(4):
            a.vmem(f'buffer_load_dwordx4 {vr(XB+16*g+4*q)}, v{vXo+q}, {sr(SX)}, s{sA0} offen offset:{q*1024}', f'X{g}')
    for g in range(7):
        a.vmem(f'buffer_load_dwordx4 {vr(DB+4*g)}, v{vDo}, {sr(SD)}, 0 offen offset:{g*128}', 'XD')
    a(f's_sub_u32 s{sT}, 14, s{sRT}\ns_mul_i32 s{sT}, s{sT}, {16*896}\nv_add_u32 v{vDo}, s{sT}, v{vDo}\ns_mov_b32 s{sCG}, 14')
    other_srds()
    a(f's_mov_b32 s{sOnes}, 0x3f803f80')
    for i in range(9): a(f'v_mov_b32 v{vSb+i}, 0')
    for g in range(7):
        a.wait_vm(f'X{g}')
        if g == 0: stamp(a, 1)
        for i in range(4):
            for q in range(4):
                a(f'v_dot2c_f32_bf16 v{vSb+q}, s{sOnes}, v{XB+16*g+4*q+i}')
                a(f'v_dot2c_f32_bf16 v{vSb+4+q}, v{XB+16*g+4*q+i}, v{XB+16*g+4*q+i}')
    t = vt
    def dpp(rng):
        for pat in ('quad_perm:[1,0,3,2]', 'quad_perm:[2,3,0,1]', 'row_half_mirror'):
            for i in rng: a(f'v_add_f32_dpp v{vSb+i}, v{vSb+i}, v{vSb+i} {pat} row_mask:0xf bank_mask:0xf')
            if len(rng) < 3: a('s_nop 1')
    stamp(a, 2)
    a(f'v_and_b32 v{t+6}, 3, v{vL}\ns_nop 1')
    dpp(range(8))
    for q in range(1, 4):
        a(f'v_cmp_eq_u32 vcc, {q}, v{t+6}\ns_nop 1\nv_cndmask_b32 v{vSb}, v{vSb}, v{vSb+q}, vcc\nv_cndmask_b32 v{vSb+4}, v{vSb+4}, v{vSb+4+q}, vcc')
    a(f'v_mul_f32 v{t+4}, {f2h(1/448)}, v{vSb}\nv_mul_f32 v{t+1}, {f2h(1/448)}, v{vSb+4}')
    a(f'v_fma_f32 v{t+1}, -v{t+4}, v{t+4}, v{t+1}\nv_max_f32 v{t+1}, 0, v{t+1}')
    a(f'v_cvt_pk_bf16_f32 v{t}, -v{t+4}, -v{t+4}')
    a(f'v_cvt_pk_bf16_f32 v{t+1}, v{t+1}, v{t+1}\nv_and_b32 v{t+1}, 0xffff0000, v{t+1}')
    a(f'v_add_f32 v{t+1}, {f2h(1e-5)}, v{t+1}')
    a(f'v_cvt_pk_bf16_f32 v{t+1}, v{t+1}, v{t+1}\nv_and_b32 v{t+1}, 0xffff0000, v{t+1}')
    a(f'v_sqrt_f32 v{t+1}, v{t+1}\ns_nop 0')
    a(f'v_cvt_pk_bf16_f32 v{t+1}, v{t+1}, v{t+1}\nv_and_b32 v{t+1}, 0xffff0000, v{t+1}')
    a(f'v_rcp_f32 v{t+1}, v{t+1}')
    get_tag(a)
    a(f'v_mov_b32 v{t+2}, s{sTag}\nv_mov_b32 v{t+3}, s{sTag+1}')
    a(f'v_lshrrev_b32 v{t+7}, 3, v{vL}\nv_lshl_add_u32 v{t+5}, v{t+6}, 3, v{t+7}\nv_lshlrev_b32 v{t+5}, 4, v{t+5}')
    a(f's_lshl_b32 s{sT}, s{sSig}, 9')
    a.vmem(f'buffer_store_dwordx4 {vr(t)}, v{t+5}, {sr(SM)}, s{sT} offen sc1', 'S1')
    a.wait_vm('XD')
    for i in range(28): a(f'v_dot2c_f32_bf16 v{vSb+8}, s{sOnes}, v{DB+i}')
    a('s_nop 2')
    dpp([8])
    col_record(a, DB, vSb+8)
    a(f'v_lshlrev_b32 v{t+7}, 4, v{t+7}\ns_lshl_b32 s{sT}, s{sRT}, 9\ns_lshl_b32 s{sT2}, s{sW}, 7\ns_add_u32 s{sT}, s{sT}, s{sT2}\ns_add_u32 s{sT}, s{sT}, {CSZ}')
    a.vmem(f'buffer_store_dwordx4 {vr(DB)}, v{t+7}, {sr(SM)}, s{sT} offen sc1', 'S1')
    stamp(a, 3)
    if TWL == 1: light_tw()
    for g in range(4):
        for ins in dma_group('B', g): a.emit(ins)
    if TWL == 2: light_tw()
    p1_addr_read(a)
    for x in wg_flag_prep(vFl, sB0, sB1) + stat_addr() + twiddle_wc(vWt) + z_addr(vWt, sB0, sB1): a(x)
    if opt('tlb2', 1):
        a.emit((f's_mov_b32 exec_lo, 0x00010001\ns_mov_b32 exec_hi, 0x00010001\nbuffer_load_dword v{vP}, v{vVs}, {sr(SV)}, 0 offen\n'
                f's_mov_b32 s{sT}, {4*65536}\nbuffer_load_dword v{vP}, v{vVs}, {sr(SV)}, s{sT} offen\ns_mov_b64 exec, -1', 'TL'))
    p1_loop_bc(a, 'B')
    stat_check(a, 'B')
    for x in stat_fix('B'): a(x)
    a('s_nop 1')
    a(mfma(vr(ZA,16), vr(MO), vr(CZ), vr(ZA,16)))
    a('s_nop 11\ns_waitcnt lgkmcnt(0)')
    z1(a); z2(a); a('s_nop 11'); z3(a); z4a(a); z4b(a)
    wg_flag(a, vFl)
    a('s_branch Lfin')

    a('LroleC:')
    a.vm = ['CP'] if CPF else []
    a(f's_lshl_b32 s{sT3}, s{sT}, 1\ns_add_u32 s{sT3}, s{sT3}, s{sN}\ns_sub_u32 s{sT3}, s{sT3}, 30')
    a(f's_lshl_b32 s{sRT}, s{sT2}, 3\ns_add_u32 s{sRT}, s{sRT}, s{sT3}')
    a(f's_mul_i32 s{sCG}, s{sT2}, 7\ns_add_u32 s{sCG}, s{sCG}, s{sT3}\ns_add_u32 s{sT2}, s{sT2}, 14')
    a(f's_cmp_eq_u32 s{sT3}, 7\ns_cselect_b32 s{sCG}, s{sT2}, s{sCG}')
    sigma(); p1_addr_dma(a); p1_srds()
    other_srds()
    a(f's_cmp_ge_u32 s{sCG}, 14\ns_cbranch_scc1 LroleE')
    for g in range(3):
        for ins in dma_group('C', g): a.emit(ins)
    p1_addr_read(a)
    for x in stat_addr(): a(x)
    for i in range(4): a(f'v_mov_b32 v{TF+i}, 0x3f803f80')
    get_tag(a)
    p1_loop_bc(a, 'C')
    a('s_nop 11')
    col_record(a, FR, ACC)
    a(CW_OFF)
    a.vmem(f'buffer_store_dwordx4 {vr(FR)}, v{vU8}, {sr(SM)}, s{sA2} offen sc1', 'S1')
    stamp(a, 3)
    light_tw()
    a(f's_mov_b32 s{sCG}, 15')
    for x in wg_flag_prep(vFl, sB0, sB1): a(x)
    wg_flag(a, vFl)
    a('s_branch Lfin')

    a('LroleE:')
    a.vm = []
    light_tw()
    get_tag(a)
    a(f's_sub_u32 s{sT3}, 15, s{sCG}\ns_add_u32 s{sT3}, s{sT3}, s{sW}\ns_mov_b32 s{sCG}, 15')
    for x in wg_flag_prep(vFl, sB0, sB1): a(x)
    wg_flag(a, vFl)
    a(f's_cmp_lg_u32 s{sT3}, 0\ns_cbranch_scc1 Lfin')
    a(f'v_lshlrev_b32 v{vPa}, 3, v{vL}\nv_add_u32 v{vPa}, {FLV}, v{vPa}')
    for i in range(4):
        poll_issue(a, 'PE', vPa)
        poll_check(a, 'PE', vPa, sleep=16)
        a(f'v_add_u32 v{vPa}, 512, v{vPa}')
    a(f'v_mov_b32 v{vFl+2}, {EPO}\ns_mov_b64 exec, 1')
    a(f'buffer_store_dwordx2 {vr(vFl,2)}, v{vFl+2}, {sr(SM)}, 0 offen sc1')
    a('s_mov_b64 exec, -1')
    a('Lfin:')
    stamp_store(a)
    a('Lend:')
    a('s_endpgm')
    return a.text()

def phase2(a, wq):
    ACC0, ACC1, YA, VF = 144, 176, 208, 104
    TFd = 4
    vRw, vRwb, vRr = 84, 88, 92
    vRi = 36
    YS = [208, 240]
    XR = 224
    t = 56
    for ins in wq: a.emit(ins)
    rq = []
    for q in range(NSTG, 7): rq += w2_group(q)
    NR = len(rq)
    def rdma(n):
        while rq and n > 0:
            ins = rq.pop(0); a.emit(ins)
            if ins[1]: n -= 1
    vq = twiddle_tf(t, TFd)
    u = t + 8
    vq += lines(f'v_and_b32 v{u}, 7, v{vU}\nv_xor_b32 v{u}, v{u}, v{vHH}\nv_lshlrev_b32 v{u+1}, 7, v{vU}')
    vq += [f's_lshl_b32 s{sT}, s{sJ}, 12\ns_add_u32 s{sT2}, s{sT}, 32768\ns_add_u32 s{sT}, s{sT2}, s{sArea}', f'v_add_u32 v{u+1}, s{sT}, v{u+1}']
    for q in range(4):
        vq += lines(f'v_xor_b32 v{u+2}, {2*q}, v{u}\nv_lshl_add_u32 v{vRw+q}, v{u+2}, 4, v{u+1}\nv_xor_b32 v{vRwb+q}, 0x1000, v{vRw+q}')
    vq += lines(f'v_lshrrev_b32 v{u}, 2, v{vL}\nv_and_b32 v{u+1}, 3, v{vL}\nv_and_b32 v{u+2}, 7, v{u}\nv_lshlrev_b32 v{u+3}, 1, v{u+1}\nv_xor_b32 v{u+2}, v{u+2}, v{u+3}\n'
                f'v_lshlrev_b32 v{u+2}, 4, v{u+2}\nv_lshl_add_u32 v{u+2}, v{u}, 7, v{u+2}')
    vq += [f's_lshl_b32 s{sT}, s{sI}, 11\ns_add_u32 s{sT2}, s{sT2}, s{sT}']
    nsafe = len(vq)
    for k in range(4):
        vq += [f's_xor_b32 s{sT}, s{sJ}, {k}\ns_mul_i32 s{sT}, s{sT}, {AREA}\ns_add_u32 s{sT}, s{sT}, s{sT2}', f'v_add_u32 v{vRr+2*k}, s{sT}, v{u+2}', f'v_xor_b32 v{vRr+2*k+1}, 16, v{vRr+2*k}']
    uq = []
    def vdo(budget):
        while (uq or vq) and budget > 0:
            x = (uq or vq).pop(0)
            if callable(x): x(); continue
            a(x); budget -= cost(x)
    if RPRE0:
        assert opt('sk', 28) == 28 and RPRE0 <= 32
        rdma(RPRE0)
        vdo(opt('tf0', 60) + opt('tf0b', 40))
    else:
        for p_ in range(RAWP, NSTG):
            a.wait_vm(f'R{p_}')
            for x in stage_reads(p_): a(x)
            vdo(opt('tf0', 60) if p_ == RAWP else opt('tf0b', 40) // (NSTG - RAWP - 1))
    a('s_waitcnt lgkmcnt(0)')
    stamp(a, 3, '3'); stamp(a, 6, '5'); a.wait_vm('ST'); stamp(a, 7, '5')
    wg_flag(a, vFl)
    stamp(a, 8, '5')
    stamp(a, 4); stamp(a, 4, '3'); cstamp(a, 5, '8'); stamp(a, 8, '9')
    nr = max(opt('rb', 10), RPRE0)
    rdma(nr - RPRE0)
    did2 = NSTG == 3
    if RAWP: uq += [f'ds_write_b128 v{vZw}, {ar(aH+4*m_)} offset:{32768 + m_*1024}' for m_ in range(8)] + stage_reads(0)
    while nr < NR - RLATE:
        if nr >= P1POS and 'P1' not in a.vm: poll_issue(a, 'P1', vPa)
        rdma(1); nr += 1
        if nr == 20 and not did2: uq += [lambda: a.wait_vm('R2')] + stage_reads(2); did2 = True
        vdo(opt('tf1', 8))
    if 'P1' not in a.vm: poll_issue(a, 'P1', vPa)
    stamp(a, 5, '3')
    if not did2: uq += [lambda: a.wait_vm('R2')] + stage_reads(2)
    vdo(10000)
    stamp(a, 5); stamp(a, 6, '3')
    poll_check(a, 'P1', vPa, mask='15' if VSPLIT else None)
    stamp(a, 6); stamp(a, 7, '3'); stamp(a, 1, '4'); cstamp(a, 7, '8')
    horder = list(range(HN0)) + [28, 29, 30, 31] + list(range(HN0, 28)) + list(range(32, 56))
    sHq = [sB0, sB1]
    def hload(pos):
        i = horder[pos]
        rb, k = divmod(i, 28)
        c = (sGh0, sGh1)[rb]
        if k % 4 == 0:
            a(f's_mov_b32 s{c}, s{sG0}' if k == 0 else rot_next(c))
            a(f's_lshl_b32 s{sHq[rb]}, s{c}, 12\ns_add_u32 s{sHq[rb]}, s{sHq[rb]}, s{sHb}')
            if rb: a(f's_add_u32 s{sHq[rb]}, s{sHq[rb]}, {32*HB_SIG}')
        a.vmem(f'buffer_load_dwordx4 {ar(aH+4*(i%32))}, v{vHo}, {sr(SH)}, s{sHq[rb]} offen offset:{(k % 4)*1024} sc1', f'H{i}')
    def vloads():
        if VSPLIT: poll_check(a, 'P2', vPa, sleep=0)
        for j in range(8):
            a(f's_movk_i32 s{sA2}, {j*4096}')
            a.vmem(f'buffer_load_dwordx4 {vr(VF+4*j)}, v{vVo}, {sr(SV)}, s{sA2} offen sc1', f'V{j}')
    def smalls():
        for rb in range(2):
            a(f's_lshl_b32 s{sA2}, s{sT1}, 9' if rb == 0 else f's_add_u32 s{sA2}, s{sA2}, {32*512}')
            a.vmem(f'buffer_load_dword v{vRi+rb}, v{vRo}, {sr(SM)}, s{sA2} offen offset:4 sc1', 'RI')
            a.vmem(f'buffer_load_dword v{vRi+2+rb}, v{vU8}, {sr(SM)}, s{sA2} offen offset:4 sc1', 'RI')
        a.vmem(f'buffer_load_dwordx4 {vr(XR)}, v{vOo}, {sr(SX)}, 0 offen', 'X')
        a.vmem(f'buffer_load_dwordx4 {vr(XR+4)}, v{vOo+1}, {sr(SX)}, 0 offen', 'X')
    a('s_waitcnt lgkmcnt(0)')
    def vload(j):
        a(f's_movk_i32 s{sA2}, {j*4096}')
        a.vmem(f'buffer_load_dwordx4 {vr(VF+4*j)}, v{vVo}, {sr(SV)}, s{sA2} offen sc1', f'V{j}')
    lq = [('h', i) for i in range(56)]
    vpos = opt('vpos', 14)
    lq = lq[:vpos] + [('v', j) for j in range(4)] + [('s', 0)] + lq[vpos:]
    pos = opt('rpos', 8)
    for _ in range(RLATE):
        lq.insert(pos, ('r', 0)); pos += opt('rstep', 2)
    def lnext(i):
        if not lq: return
        kind, x = lq[0]
        if kind == 'h' and horder[x] - 32 > i: return
        lq.pop(0)
        if kind == 'h': hload(x)
        elif kind == 'v': vload(x)
        elif kind == 'r': rdma(1)
        else: smalls()
    for i in range(HB0): lnext(-1)
    stamp(a, 8, '3'); stamp(a, 2, '4')
    def ard(k):
        s = aF + 8 * (k % (PD + 1))
        return [f'ds_read_b64_tr_b16 {ar(s+4*blk+2*p,2)}, v{va} offset:{(k-12)*2048 + p*1024}'
                for blk, va in enumerate((vTra, vTrb)) for p in range(2)]
    state = dict(lgk=[])
    HPS = [int(c) for c in (OPT.get('hpp', '1112') * opt('hpn', 10) + '1')]
    def lds(s, tag):
        a(s); state['lgk'].append(tag)
    def wait_lgk(tag):
        L = state['lgk']
        if tag not in L: return
        idx = max(i for i, x in enumerate(L) if x == tag)
        a(f's_waitcnt lgkmcnt({min(len(L)-1-idx, 15)})')
        state['lgk'] = L[idx+1:]
    def kstep(rb, k, fill, fill0=()):
        i = 28*rb + k
        acc = ACC0 if rb == 0 else ACC1
        assert not any(kd == 'h' and horder[x] == i for kd, x in lq)
        a.wait_vm(f'H{i}')
        if k >= 12: wait_lgk(f'A{rb}_{k}')
        if rb == 0 and 12 <= k + PD < 28 and (k + PD) % 4 == 0:
            assert not any(t_ == f'R{(k+PD)//4}' for _, t_ in rq)
            a.wait_vm(f'R{(k+PD)//4}')
        A = aW + 8*k if k < 12 else aF + 8*(k % (PD + 1))
        B = ar(aH + 4*(i % 32))
        a(mfma(vr(acc,16), ar(A), B, vr(acc,16) if k else '0'))
        if 12 <= k + PD < 28:
            for r in ard(k+PD): lds(r, f'A{rb}_{k+PD}')
        for f in fill0: f()
        a(mfma(vr(acc+16,16), ar(A+4), B, vr(acc+16,16) if k else '0'))
        for _ in range(HPS[min(i, len(HPS) - 1)]): lnext(i)
        for f in fill: f()
    def take(Q, budget):
        out = []
        while Q and budget > 0:
            x = Q.pop(0)
            if isinstance(x, str): budget -= cost(x); out.append(lambda x=x: a(x))
            else: budget -= 1; out.append(x)
        return out
    def vstep(m_):
        def f():
            j, rb = divmod(m_, 2)
            if rb == 0:
                assert ('v', j) not in lq
                a.wait_vm(f'V{j}')
                for i in range(4): a(f'v_xor_b32 v{VF+4*j+i}, v{VF+4*j+i}, v{vSg}')
                a('s_nop 1')
            a(mfma(vr(YS[rb],16), vr(VF+4*j), vr(TFd+16*rb+4*j), vr(YS[rb],16) if j else '0'))
        return f
    for k in range(28):
        fill = []; fill0 = []
        if k + PD < 12: fill0 = take(vq, 5)
        if VM0 <= k < VM0 + 8:
            assert not any('cos' in x for x in vq)
            fill.append(vstep(k - VM0))
        else: fill += take(vq, 4)
        kstep(0, k, fill, fill0)
        if k in (0, 7, 15, 27): stamp(a, {0: 3, 7: 4, 15: 5, 27: 6}[k], '4')
    assert not vq
    stamp(a, 7)
    def red_write(acc, base): return [(lambda q=q: lds(f'ds_write_b128 v{base+q}, {vr(acc+4*q)}', 'RW')) for q in range(4)]
    def scale_own(acc, rb): return [f'v_fmac_f32 v{acc+r}, v{YS[rb]+r}, v{vRi+2+rb}' for r in range(16)]
    def barrier():
        wait_lgk('RW'); a('s_barrier')
    def finalize(P, rb):
        L = []
        for k in range(4):
            for h in range(2):
                L.append(lambda k=k, h=h: lds(f'ds_read_b128 {vr(P+8*k+4*h)}, v{vRr+2*k+h}', f'RR{k}'))
        U = 56
        for i in range(4): L += [f'v_lshlrev_b32 v{U+2*i}, 16, v{XR+4*rb+i}', f'v_and_b32 v{U+2*i+1}, 0xffff0000, v{XR+4*rb+i}']
        L.append(lambda: wait_lgk('RR1'))
        L += [f'v_add_f32 v{P+r}, v{P+r}, v{P+8+r}' for r in range(8)]
        L.append(lambda: wait_lgk('RR3'))
        L += [f'v_add_f32 v{P+16+r}, v{P+16+r}, v{P+24+r}' for r in range(8)]
        L += [f'v_add_f32 v{P+r}, v{P+r}, v{P+16+r}' for r in range(8)]
        L += [f'v_fma_f32 v{P+r}, v{P+r}, v{vRi+rb}, v{U+r}' for r in range(8)]
        if opt('pert', 0.0) and rb == 1:
            L.append(f's_add_u32 s{sT}, s2, s{sW}\ns_cmp_eq_u32 s{sT}, 0\ns_cselect_b64 exec, 1, 0\nv_add_f32 v{P}, {f2h(opt("pert", 0.0))}, v{P}\ns_mov_b64 exec, -1')
        if opt('pscale', 0.0): L += [f'v_mul_f32 v{P+r}, {f2h(1 + opt("pscale", 0.0))}, v{P+r}' for r in range(8)]
        L += [f'v_cvt_pk_bf16_f32 v{U+p}, v{P+2*p}, v{P+2*p+1}' for p in range(4)]
        L.append(lambda: a.vmem(f'buffer_store_dwordx4 {vr(U)}, v{vOo+rb}, {sr(SO)}, 0 offen {OST}', 'O'))
        return L
    def run(L):
        for f in take(L, 10**6): f()
    PF = 104
    assert ('s', 0) not in lq
    a.wait_vm('X')
    a(f'v_rcp_f32 v{vRi+2}, v{vRi+2}\nv_rcp_f32 v{vRi+3}, v{vRi+3}')
    work = red_write(ACC0+16, vRwb) + scale_own(ACC0, 0) + red_write(ACC0, vRw)
    post = finalize(PF, 0)
    KB1, KB2 = opt('kb1', 10), 25
    for k in range(28):
        fill = []; fill0 = []
        if 3 <= k < KB1: fill0 = take(work, 2); fill = take(work, 3)
        if k == KB1:
            assert not work
            fill = [barrier]
        if KB1 < k < KB2:
            fill0 = take(post, 1)
            fill = take(post, FILL + (1 if opt('pscale', 0.0) else 0))
        if k == KB2:
            assert not post and not any(x.startswith('RR') for x in state['lgk']), post
            fill = [lambda: a('s_barrier')]
        kstep(1, k, fill, fill0)
        if k in (11, 27): stamp(a, {11: 7, 27: 8}[k], '4'); cstamp(a, {11: 5, 27: 7}[k])
    stamp(a, 8)
    a('s_nop 10')
    run(scale_own(ACC1, 1) + red_write(ACC1, vRw) + red_write(ACC1+16, vRwb))
    barrier()
    run(finalize(PF, 1))

def main():
    body = gen()
    k = NAME + '_kernel'
    print(f'''; out = x + Re(DFT_seq(DFT_hid(LN(x)))) + relu(LN(x) w1) w2   (S=2048, D=448, F=1792, bf16), one persistent launch.
;   stage 1 (DFT-32 over u) runs on the hidden-DFT accumulators, stage 2 (64 twiddled terms) joins the second GEMM;
; @launch grid=(256,1,1) block=(256,1,1) lds={LDS_SIZE}
.amdgcn_target "amdgcn-amd-amdhsa--gfx950"
.text
.globl {k}
.p2align 8
.type {k},@function
{k}:
{body}
.section .rodata,"a"
.p2align 6
.amdhsa_kernel {k}
  .amdhsa_next_free_vgpr {256+NAGPR}
  .amdhsa_next_free_sgpr 102
  .amdhsa_accum_offset 256
  .amdhsa_group_segment_fixed_size 0
  .amdhsa_kernarg_size 88
  .amdhsa_user_sgpr_count 2
  .amdhsa_user_sgpr_kernarg_segment_ptr 1
  .amdhsa_system_sgpr_workgroup_id_x 1
.end_amdhsa_kernel''')
main()
```
